```python
import torch

def _softmax(x, axis=-1):
    return torch.softmax(x, dim=axis)
def _gelu(x):
    return torch.nn.functional.gelu(x, approximate="tanh")
def _silu(x):
    return torch.nn.functional.silu(x)
def _sigmoid(x):
    return torch.sigmoid(x)
def _layernorm(x, axis=-1, eps=1e-5):
    m = x.mean(dim=axis, keepdim=True)
    v = x.var(dim=axis, keepdim=True, unbiased=False)
    return (x - m) / torch.sqrt(v + eps)
def _scatter_add(tgt, idx, src, axis=0):
    return tgt.clone().index_add_(axis, idx, src)
def _segment_sum(src, seg, n):
    out = torch.zeros((n,) + src.shape[1:], dtype=src.dtype)
    return out.index_add_(0, seg, src)
def _pad(x, pw):
    flat = tuple(v for pair in reversed(pw) for v in pair)
    return torch.nn.functional.pad(x, flat)

kernel_name = 'parallel_sum__softmax_full_mha__mixer_channel_mlp__prompt'

def setup_inputs():

    _w = (lambda a: (lambda t: t.to(torch.bfloat16) if t.is_floating_point() else t)(torch.as_tensor(a)))
    def _A_setup():
        B, S, D = 1, 2048, 640
        return {
            "x": _w((lambda *s: torch.randn(*s, dtype=torch.bfloat16) * 0.05)(B, S, D)),
            "wqkv": _w((lambda *s: torch.randn(*s, dtype=torch.bfloat16) * 0.05)(D, 3 * D)),
            "wo": _w((lambda *s: torch.randn(*s, dtype=torch.bfloat16) * 0.05)(D, D)),
        }
    _A_in = _A_setup()

    def _B_setup():
        B, S, D, F = 1, 2048, 640, 1536
        return {
            "x": _w((lambda *s: torch.randn(*s, dtype=torch.bfloat16) * 0.05)(B, S, D)),
            "w1": _w((lambda *s: torch.randn(*s, dtype=torch.bfloat16) * 3.2)(D, F) * (D ** -0.5)),
            "b1": _w((lambda *s: torch.randn(*s, dtype=torch.bfloat16) * 1.6)(F)),
            "w2": _w((lambda *s: torch.randn(*s, dtype=torch.bfloat16) * 0.1)(F, D) * (F ** -0.5)),
            "b2": _w((lambda *s: torch.randn(*s, dtype=torch.bfloat16) * 0.2)(D)),
        }
    _B_in = _B_setup()

    return {
        "A_x": _A_in["x"],
        "A_wqkv": _A_in["wqkv"],
        "A_wo": _A_in["wo"],
        "B_x": _B_in["x"],
        "B_w1": _B_in["w1"],
        "B_b1": _B_in["b1"],
        "B_w2": _B_in["w2"],
        "B_b2": _B_in["b2"],
    }

def reference(A_x, A_wqkv, A_wo, B_x, B_w1, B_b1, B_w2, B_b2):
    def _A_ref(x, wqkv, wo):
        B, S, D = x.shape
        H = 32; Dh = D // H
        qkv = (lambda x, *d: x.permute(*d))((x @ wqkv).reshape(B, S, 3, H, Dh), 2, 0, 3, 1, 4)
        q, k, v = qkv[0], qkv[1], qkv[2]
        scale = Dh ** -0.5
        scores = torch.einsum("bhqd,bhkd->bhqk", q, k) * scale
        p = _softmax(scores, axis=-1)
        o = torch.einsum("bhqk,bhkd->bhqd", p, v)
        return (lambda x, *d: x.permute(*d))(o, 0, 2, 1, 3).reshape(B, S, D) @ wo

    def _B_ref(x, w1, b1, w2, b2):
        y = _layernorm(x, axis=-1)
        h = _gelu(torch.einsum("bsd,df->bsf", y, w1) + b1)
        return torch.einsum("bsf,fd->bsd", h, w2) + b2

    x = A_x
    xn = _layernorm(x, axis=-1)
    return x + _A_ref(xn, A_wqkv, A_wo) + _B_ref(xn, B_w1, B_b1, B_w2, B_b2)
```

```python
class Asm:
    def __init__(self):
        self.lines = []
        self.uid = 0
    def __call__(self, s):
        for l in s.strip("\n").split("\n"):
            l = l.strip()
            if l:
                self.lines.append(("" if l.endswith(":") else "    ") + l)
    def label(self, base="L"):
        self.uid += 1
        return f"{base}_{self.uid}"
    def text(self):
        return "\n".join(self.lines) + "\n"

def vr(a, n):
    return f"v[{a}:{a+n-1}]" if n > 1 else f"v{a}"
def sr(a, n):
    return f"s[{a}:{a+n-1}]" if n > 1 else f"s{a}"

def kernel_begin(A, name):
    A.lines.append(".text")
    A.lines.append(f".globl {name}")
    A.lines.append(".p2align 8")
    A.lines.append(f".type {name},@function")
    A.lines.append(f"{name}:")

def kernel_desc(name, nvgpr, nsgpr=102, accum=None):
    acc = accum if accum is not None else ((nvgpr + 3) // 4) * 4
    return f""".section .rodata,"a"
.p2align 6
.amdhsa_kernel {name}
  .amdhsa_next_free_vgpr {nvgpr}
  .amdhsa_next_free_sgpr {nsgpr}
  .amdhsa_accum_offset {acc}
  .amdhsa_group_segment_fixed_size 0
  .amdhsa_kernarg_size 88
  .amdhsa_user_sgpr_count 2
  .amdhsa_user_sgpr_kernarg_segment_ptr 1
  .amdhsa_system_sgpr_workgroup_id_x 1
.end_amdhsa_kernel
"""

def srd(A, d, plo, size, off=0):
    if off:
        A(f"s_add_u32 s{d}, s{plo}, {hex(off)}")
        A(f"s_addc_u32 s{d+1}, s{plo+1}, 0")
    else:
        A(f"s_mov_b32 s{d}, s{plo}")
        A(f"s_mov_b32 s{d+1}, s{plo+1}")
    A(f"s_mov_b32 s{d+2}, {hex(size)}")
    A(f"s_mov_b32 s{d+3}, 0x00020000")

import struct
def f32hex(x):
    return hex(struct.unpack("<I", struct.pack("<f", x))[0])

import os
STAMP = bool(os.environ.get("STAMP"))
STAMP_OFF = 0x4000000
def stamp(A, idx):
    if STAMP:
        A(f"s_memtime s[{80+2*idx}:{81+2*idx}]")
        if idx == 0:
            A("s_memrealtime s[96:97]")
def stamp_flush(A, n, wsp, kidx, wave_sgpr):
    if not STAMP: return
    A("s_waitcnt vmcnt(0) lgkmcnt(0)")
    stamp(A, n)
    A("s_memrealtime s[98:99]")
    A("s_waitcnt lgkmcnt(0)")
    srd(A, 72, wsp, 1 << 20, STAMP_OFF + kidx * (1 << 20))
    A("s_lshl_b32 s76, s2, 4")
    A(f"s_add_u32 s76, s76, s{wave_sgpr}")
    A("s_lshl_b32 s76, s76, 6")
    for i in range(n + 1):
        A(f"v_mov_b32 v1, s{80+2*i}")
        A(f"v_mov_b32 v2, s76")
        A(f"buffer_store_dword v1, v2, s[72:75], 0 offen offset:{4*i}")
    for i, r in ((14, 96), (15, 98)):
        A(f"v_mov_b32 v1, s{r}")
        A(f"buffer_store_dword v1, v2, s[72:75], 0 offen offset:{4*i}")
```

```python
from asmlib import *
from layout import *

def red32(A, v, tmp):
    for mod in ("quad_perm:[1,0,3,2]", "quad_perm:[2,3,0,1]", "row_half_mirror", "row_mirror"):
        A("s_nop 1")
        A(f"v_add_f32_dpp v{v}, v{v}, v{v} {mod} row_mask:0xf bank_mask:0xf")
    A(f"v_mov_b32 v{tmp}, v{v}")
    A("s_nop 1")
    A(f"v_permlane16_swap_b32 v{v}, v{tmp}")
    A("s_nop 1")
    A(f"v_add_f32 v{v}, v{v}, v{tmp}")

def bf16r(A, v):
    A(f"v_cvt_pk_bf16_f32 v{v}, v{v}, v{v}")
    A(f"v_and_b32 v{v}, 0xffff0000, v{v}")

def layernorm(A, X, P, t0):
    s, tmp, m, r = t0, t0 + 1, t0 + 2, t0 + 3
    A(f"v_add_f32 v{s}, v{X}, v{X+1}")
    for i in range(2, 20):
        A(f"v_add_f32 v{s}, v{s}, v{X+i}")
    red32(A, s, tmp)
    A(f"v_mul_f32 v{m}, {f32hex(1.0/640)}, v{s}")
    A(f"v_sub_f32 v{tmp}, v{X}, v{m}")
    A(f"v_mul_f32 v{s}, v{tmp}, v{tmp}")
    for i in range(1, 20):
        A(f"v_sub_f32 v{tmp}, v{X+i}, v{m}")
        A(f"v_fmac_f32 v{s}, v{tmp}, v{tmp}")
    red32(A, s, tmp)
    A(f"v_mul_f32 v{s}, {f32hex(1.0/640)}, v{s}")
    bf16r(A, s)
    bf16r(A, m)
    A(f"v_add_f32 v{s}, {f32hex(1e-5)}, v{s}")
    bf16r(A, s)
    A(f"v_sqrt_f32 v{s}, v{s}")
    A("s_nop 0")
    bf16r(A, s)
    A(f"v_rcp_f32 v{r}, v{s}")
    for i in range(20):
        A(f"v_sub_f32 v{X+i}, v{X+i}, v{m}")
    for i in range(10):
        A(f"v_cvt_pk_bf16_f32 v{P+i}, v{X+2*i}, v{X+2*i+1}")
    for i in range(10):
        A(f"v_lshlrev_b32 v{X+2*i}, 16, v{P+i}")
        A(f"v_and_b32 v{X+2*i+1}, 0xffff0000, v{P+i}")
    for i in range(20):
        A(f"v_mul_f32 v{X+i}, v{X+i}, v{r}")
    for i in range(10):
        A(f"v_cvt_pk_bf16_f32 v{P+i}, v{X+2*i}, v{X+2*i+1}")
    for i in range(10):
        A(f"v_lshlrev_b32 v{X+2*i}, 16, v{P+i}")
        A(f"v_and_b32 v{X+2*i+1}, 0xffff0000, v{P+i}")

def gen_k0(A):
    name = "k0_kernel"
    kernel_begin(A, name)
    A("s_cmp_ge_u32 s2, 256")
    A("s_cbranch_scc1 k0_done")
    tl_start(A, 0)
    A("s_load_dwordx2 s[4:5], s[0:1], 0")
    A("s_load_dwordx2 s[6:7], s[0:1], 80")
    A("s_load_dwordx2 s[40:41], s[0:1], 16")
    A("s_load_dwordx2 s[42:43], s[0:1], 48")
    A("v_lshrrev_b32 v1, 6, v0")
    A("s_nop 0")
    A("v_readfirstlane_b32 s25, v1")
    A("v_lshrrev_b32 v1, 5, v0")
    A("s_lshl_b32 s3, s2, 3")
    A("v_add_u32 v1, s3, v1")
    A("v_mul_u32_u24 v1, 1280, v1")
    A("v_and_b32 v2, 31, v0")
    A("v_lshl_add_u32 v1, v2, 3, v1")
    A("s_waitcnt lgkmcnt(0)")
    srd(A, 8, 4, XSZ)
    srd(A, 12, 6, XSZ, XN_OFF)
    srd(A, 16, 6, XSZ, Y_OFF)
    P, X, P2, T = 4, 16, 40, 52
    for j in range(5):
        A(f"buffer_load_dwordx2 v[{P+2*j}:{P+2*j+1}], v1, s[8:11], 0 offen offset:{256*j}")
    srd(A, 28, 6, 0x500000, W2F_OFF)
    A("s_lshl_b32 s26, s2, 2")
    A("s_add_u32 s26, s26, s25")
    A("v_bfe_u32 v3, v0, 5, 1")
    A("v_and_b32 v60, 63, v0")
    A("v_lshlrev_b32 v60, 4, v60")
    PK = 64
    for f in range(3):
        r = PK + 4 * f
        A(f"s_add_u32 s27, s26, {1024*f}")
        lab = f"k0_pk{f}"
        if f == 2:
            A("s_cmp_ge_u32 s27, 2720")
            A(f"s_cbranch_scc1 {lab}_skip")
        A("s_cmp_ge_u32 s27, 1920")
        A(f"s_cbranch_scc1 {lab}_wo")
        A("s_mul_i32 s32, s27, 683")
        A("s_lshr_b32 s32, s32, 16")
        A("s_mul_i32 s33, s32, 96")
        A("s_sub_u32 s33, s27, s33")
        A("s_lshl_b32 s34, s33, 4")
        A("s_mov_b32 s35, 4")
        A(f"s_mov_b32 s36, {8*1280}")
        A(f"s_lshl_b32 s{44+f}, s27, 10")
        A("s_mov_b32 s20, s42"); A("s_mov_b32 s21, s43"); A(f"s_mov_b32 s22, {1536*1280}")
        A(f"s_branch {lab}_go")
        A(f"{lab}_wo:")
        A("s_sub_u32 s37, s27, 1920")
        A("s_mul_i32 s32, s37, 1639")
        A("s_lshr_b32 s32, s32, 16")
        A("s_mul_i32 s33, s32, 40")
        A("s_sub_u32 s33, s37, s33")
        A(f"s_lshl_b32 s{44+f}, s37, 10")
        A(f"s_add_u32 s{44+f}, s{44+f}, {WOF_OFF - W2F_OFF}")
        A("s_mul_i32 s34, s33, 20")
        A("s_mov_b32 s35, 4")
        A(f"s_mov_b32 s36, {8*1280}")
        A("s_mov_b32 s20, s40"); A("s_mov_b32 s21, s41"); A(f"s_mov_b32 s22, {640*1280}")
        A("s_cmp_lt_u32 s33, 32")
        A(f"s_cbranch_scc1 {lab}_go")
        A("s_sub_u32 s33, s33, 32")
        A("s_mul_i32 s34, s33, 80")
        A("s_add_u32 s34, s34, 16")
        A("s_mov_b32 s35, 40")
        A(f"s_mov_b32 s36, {20*1280}")
        A(f"{lab}_go:")
        A("s_mov_b32 s23, 0x00020000")
        A("v_mul_u32_u24 v61, s35, v3")
        A("v_add_u32 v61, s34, v61")
        A("v_mul_u32_u24 v61, 1280, v61")
        A("s_lshl_b32 s32, s32, 6")
        A("v_lshl_add_u32 v62, v2, 1, s32")
        A("v_add_u32 v61, v61, v62")
        for e in range(8):
            so = "s36" if e >= 4 else "0"
            A(f"buffer_load_ushort v{80 + 8*f + e}, v61, s[20:23], {so} offen offset:{(e&3)*1280}")
        if f == 2:
            A(f"{lab}_skip:")
    A("s_cmp_ge_u32 s26, 128")
    A("s_cbranch_scc1 k0_noones")
    srd(A, 48, 6, 32 * 64 * KVREC, KV_OFF)
    A("v_and_b32 v61, 63, v0")
    A("s_lshl_b32 s32, s26, 6")
    A("v_add_u32 v61, s32, v61")
    A("v_lshrrev_b32 v62, 2, v61")
    A("v_and_b32 v61, 3, v61")
    A(f"v_mul_u32_u24 v62, {KVREC}, v62")
    A(f"v_mul_u32_u24 v61, {VSB}, v61")
    A("v_add_u32 v61, v61, v62")
    for i in range(4): A(f"v_mov_b32 v{76+i}, 0x3f803f80")
    A(f"buffer_store_dwordx4 v[76:79], v61, s[48:51], 0 offen offset:{1280 + 320}")
    A("k0_noones:")
    A("s_waitcnt vmcnt(0)")
    for f in range(3):
        r = PK + 4 * f
        if f == 2:
            A(f"s_cmp_ge_u32 s27, 2720")
            A("s_cbranch_scc1 k0_nost2")
        for e in range(4):
            A(f"v_lshl_or_b32 v{r+e}, v{80+8*f+2*e+1}, 16, v{80+8*f+2*e}")
        A(f"buffer_store_dwordx4 v[{r}:{r+3}], v60, s[28:31], s{44+f} offen")
    A("k0_nost2:")
    for i in range(10):
        A(f"v_lshlrev_b32 v{X+2*i}, 16, v{P+i}")
        A(f"v_and_b32 v{X+2*i+1}, 0xffff0000, v{P+i}")
    layernorm(A, X, P, T)
    for j in range(5):
        A(f"buffer_store_dwordx2 v[{P+2*j}:{P+2*j+1}], v1, s[12:15], 0 offen offset:{256*j}")
    layernorm(A, X, P2, T)
    for j in range(5):
        A(f"buffer_store_dwordx2 v[{P2+2*j}:{P2+2*j+1}], v1, s[16:19], 0 offen offset:{256*j}")
    tl_end(A, 0)
    A("k0_done:")
    A("s_endpgm")
    return kernel_desc(name, 104), "; @launch kernel=k0_kernel grid=(256,1,1) block=(256,1,1) lds=0"
```

```python
from asmlib import *
from layout import *
import math, os

NST = 10
ACC = 128
XF = 48
WF = 80
DV = 16
XAB, WAB, XAC, WAC = 28, 32, 36, 40
BIAS = 104

def interleave(mfmas, fillers, per=2):
    out = []
    n = len(mfmas)
    k = 0
    for i, m in enumerate(mfmas):
        out.append(m)
        tgt = max((len(fillers) * (i + 1) + n - 1) // n, min(len(fillers), per * (i + 1)))
        while k < tgt:
            out.append(fillers[k]); k += 1
    return out

def gemm_core(A, tag, TM, TN, transposed, ldw, init_bias):
    BM, BN = 2 * TM * 32, 2 * TN * 32
    AB = BM * 128; pitch = BN * 2; BB = 64 * pitch; SS = AB + BB
    nA = BM // 32; nB = BB // 4096; ND = nA + nB
    CPR = BN // 8
    A("v_and_b32 v1, 63, v0")
    A("v_lshrrev_b32 v2, 3, v1")
    A("v_and_b32 v3, 7, v1")
    A("v_lshrrev_b32 v4, 4, v1")
    A(f"s_mul_i32 s40, s25, {BM//4}")
    A("s_add_u32 s40, s40, s30")
    A("v_add_u32 v2, s40, v2")
    A("v_mul_u32_u24 v2, 1280, v2")
    A("v_xor_b32 v5, v3, v4")
    A("v_xor_b32 v6, 4, v5")
    A("v_lshl_add_u32 v5, v5, 4, v2")
    A("v_lshl_add_u32 v6, v6, 4, v2")
    for q in range(nA):
        A(f"v_add_u32 v{DV+q}, {q*8*1280 - (q&3)*1024}, v{5 + (q&1)}")
    A(f"s_mul_i32 s41, s25, {nB*64}")
    for q in range(nB):
        A(f"v_add_u32 v7, s41, v1")
        if q: A(f"v_add_u32 v7, {q*64}, v7")
        if CPR == 16:
            A("v_lshrrev_b32 v8, 4, v7")
            A("v_and_b32 v9, 15, v7")
            A("v_and_b32 v10, 3, v8")
        else:
            A("v_mul_u32_u24 v8, 2731, v7")
            A("v_lshrrev_b32 v8, 16, v8")
            A("v_mul_u32_u24 v9, 24, v8")
            A("v_sub_u32 v9, v7, v9")
            A("v_bfe_u32 v10, v8, 1, 1")
        A("v_lshlrev_b32 v10, 2, v10")
        A("v_xor_b32 v9, v9, v10")
        A(f"v_mul_u32_u24 v8, {ldw}, v8")
        A("v_lshl_add_u32 v8, v9, 4, v8")
        A(f"s_lshl_b32 s42, s31, 1")
        A(f"v_add_u32 v8, s42, v8")
        if q & 3:
            A(f"v_subrev_u32 v{DV+nA+q}, {(q&3)*1024}, v8")
        else:
            A(f"v_mov_b32 v{DV+nA+q}, v8")
    A(f"s_mul_i32 s26, s25, {nA*1024}")
    A(f"s_mul_i32 s27, s25, {nB*1024}")
    A(f"s_add_u32 s27, s27, {AB}")
    def dma_list():
        L = []
        for q in range(nA):
            if q % 4 == 0:
                L.append("s_add_u32 m0, s23, s26" if q == 0 else "s_add_u32 m0, m0, 4096")
                L.append("s_nop 0")
            L.append(f"buffer_load_dwordx4 v{DV+q}, s[8:11], s21 offen offset:{(q&3)*1024} lds")
        for q in range(nB):
            if q % 4 == 0:
                L.append("s_add_u32 m0, s23, s27" if q == 0 else "s_add_u32 m0, m0, 4096")
                L.append("s_nop 0")
            L.append(f"buffer_load_dwordx4 v{DV+nA+q}, s[12:15], s22 offen offset:{(q&3)*1024} lds")
        L.append("s_add_u32 s21, s21, 128")
        L.append(f"s_add_u32 s22, s22, {64*ldw}")
        L.append(f"s_add_u32 s23, s23, {SS}")
        L.append(f"s_cmp_eq_u32 s23, {3*SS}")
        L.append("s_cselect_b32 s23, 0, s23")
        return L
    A("s_mov_b32 s21, 0"); A("s_mov_b32 s22, 0"); A("s_mov_b32 s23, 0")
    for st in range(2):
        for l in dma_list(): A(l)
    A("s_and_b32 s43, s25, 1")
    A("s_lshr_b32 s44, s25, 1")
    A("v_and_b32 v2, 31, v1")
    A("v_lshrrev_b32 v3, 5, v1")
    A("v_bfe_u32 v4, v2, 1, 3")
    A(f"s_mul_i32 s45, s43, {TM*32*128}")
    A("v_lshlrev_b32 v5, 7, v2")
    A("v_add_u32 v5, s45, v5")
    for kk in range(4):
        A(f"v_add_u32 v6, {2*kk}, v3")
        A("v_xor_b32 v6, v6, v4")
        A(f"v_lshl_add_u32 v{XAB+kk}, v6, 4, v5")
    A("v_bfe_u32 v6, v1, 2, 2")
    A("v_lshl_add_u32 v7, v3, 3, v6")
    A(f"v_mul_u32_u24 v7, {pitch}, v7")
    A("v_bfe_u32 v8, v1, 4, 1")
    A("v_lshl_add_u32 v7, v8, 5, v7")
    A("v_and_b32 v8, 3, v1")
    A("v_lshl_add_u32 v7, v8, 3, v7")
    A(f"v_add_u32 v7, {AB}, v7")
    if CPR != 16:
        A("v_lshrrev_b32 v6, 1, v6")
    A(f"s_mul_i32 s46, s44, {TN}")
    for u in range(TN):
        A(f"s_add_u32 s47, s46, {u}")
        A("v_xor_b32 v8, s47, v6")
        A(f"v_lshl_add_u32 v{WAB+u}, v8, 6, v7")
    if init_bias:
        A(f"s_waitcnt vmcnt({2*ND})")
        for u in range(TN):
            for j in range(4):
                for p in range(2):
                    src = BIAS + (u * 4 + j) * 2 + p
                    a0 = ACC + u * 16 + 4 * j + 2 * p
                    A(f"v_lshlrev_b32 v{a0}, 16, v{src}")
                    A(f"v_and_b32 v{a0+1}, 0xffff0000, v{src}")
        for t in range(1, TM):
            for i in range(TN * 16):
                A(f"v_mov_b32 v{ACC + t*TN*16 + i}, v{ACC + i}")
    else:
        for i in range(TM * TN * 16):
            A(f"v_mov_b32 v{ACC+i}, 0")
    def reads(kk, buf):
        L = []
        for t in range(TM):
            L.append(f"ds_read_b128 {vr(XF + (buf*4+t)*4, 4)}, v{XAC+kk} offset:{t*4096}")
        for u in range(TN):
            for i in range(2):
                L.append(f"ds_read_b64_tr_b16 {vr(WF + (buf*3+u)*4 + 2*i, 2)}, v{WAC+u} offset:{(16*kk+4*i)*pitch}")
        return L
    def mfmas(buf):
        L = []
        for t in range(TM):
            for u in range(TN):
                a = ACC + (t * TN + u) * 16
                x = vr(XF + (buf*4+t)*4, 4); w = vr(WF + (buf*3+u)*4, 4)
                o = (w, x) if transposed else (x, w)
                L.append(f"v_mfma_f32_32x32x16_bf16 {vr(a,16)}, {o[0]}, {o[1]}, {vr(a,16)}")
        return L
    def setcur():
        L = []
        for kk in range(4): L.append(f"v_add_u32 v{XAC+kk}, s24, v{XAB+kk}")
        for u in range(TN): L.append(f"v_add_u32 v{WAC+u}, s24, v{WAB+u}")
        return L
    A("s_mov_b32 s24, 0"); A("s_mov_b32 s20, 0")
    for l in setcur(): A(l)
    stamp(A, 1)
    A(f"s_waitcnt vmcnt({ND})")
    A("s_barrier")
    stamp(A, 2)
    for l in reads(0, 0): A(l)
    if os.environ.get("NODMA"):
        A("s_mov_b32 s10, 0"); A("s_mov_b32 s14, 0")
    A(f"{tag}_loop:")
    dl = dma_list()
    units = []; cur = []
    for l in dl:
        cur.append(l)
        if l.startswith("buffer_load"):
            units.append(cur); cur = []
    tailu = cur
    per = (len(units) + 2) // 3
    NM = TM * TN
    for kk in range(4):
        buf = kk & 1
        ms = mfmas(buf)
        slots = [[] for _ in ms]
        if kk < 3:
            A("s_waitcnt lgkmcnt(0)")
            rd = reads(kk + 1, buf ^ 1)
        else:
            for l in setcur(): A(l)
            A(f"s_waitcnt vmcnt({ND}) lgkmcnt(0)")
            A("s_barrier")
            rd = reads(0, buf ^ 1)
        for i, l in enumerate(rd):
            slots[i // 2].append(l)
        if kk < 3:
            us = units[kk * per:(kk + 1) * per]
            for i, u in enumerate(us):
                slots[min(NM - 1, (i * NM) // len(us) + 1)] += u
        if kk == 2:
            slots[NM - 1] += tailu + [f"s_add_u32 s24, s24, {SS}", f"s_cmp_eq_u32 s24, {3*SS}", "s_cselect_b32 s24, 0, s24"]
        if kk == 3:
            slots[NM - 2] += ["s_add_u32 s20, s20, 1", f"s_cmp_lt_u32 s20, {NST-2}", "s_cselect_b32 s10, s10, 0", "s_cselect_b32 s14, s14, 0"]
            slots[NM - 1] += [f"s_cmp_lt_u32 s20, {NST}"]
        for m, sl in zip(ms, slots):
            A(m)
            for l in sl: A(l)
    A(f"s_cbranch_scc1 {tag}_loop")
    A("s_waitcnt lgkmcnt(0)")
    stamp(A, 3)
    A("s_nop 15")
    return SS

def gen_k1(A):
    name = "k1_kernel"
    kernel_begin(A, name)
    A("s_cmp_ge_u32 s2, 248")
    A("s_cbranch_scc1 k1_done")
    stamp(A, 0)
    A("s_load_dwordx2 s[4:5], s[0:1], 8")
    A("s_load_dwordx4 s[48:51], s[0:1], 32")
    A("s_load_dwordx2 s[6:7], s[0:1], 80")
    A("v_lshrrev_b32 v1, 6, v0")
    A("s_nop 0")
    A("v_readfirstlane_b32 s25, v1")
    A("s_and_b32 s32, s2, 7")
    A("s_lshr_b32 s33, s2, 3")
    A("s_lshr_b32 s34, s32, 2")
    A("s_and_b32 s35, s32, 3")
    A("s_waitcnt lgkmcnt(0)")
    A("s_cmp_ge_u32 s33, 15")
    A("s_cbranch_scc1 k1_h")
    A("s_mul_i32 s36, s35, 15")
    A("s_add_u32 s36, s36, s33")
    A("s_lshr_b32 s37, s36, 2")
    A("s_and_b32 s38, s36, 3")
    A("s_lshl_b32 s39, s34, 2")
    A("s_add_u32 s38, s38, s39")
    A("s_lshl_b32 s30, s38, 8")
    A("s_lshl_b32 s31, s37, 7")
    srd(A, 8, 6, XSZ, XN_OFF)
    srd(A, 12, 4, 640 * 1920 * 2)
    A("s_cmp_ge_u32 s37, 10")
    A("s_cbranch_scc1 k1_v")
    SS1 = gemm_core(A, "k1qk", 4, 2, True, 3840, False)
    A("s_cmp_ge_u32 s37, 5")
    A(f"s_cselect_b32 s52, {KV_OFF - Q_OFF}, 0")
    A(f"s_cselect_b32 s53, {KVREC-1280}, 0")
    A(f"s_cselect_b32 s54, 1.0, {f32hex(DH**-0.5 * math.log2(math.e))}")
    A("s_cselect_b32 s55, 5, 0")
    A(f"s_add_u32 s52, s52, {Q_OFF}")
    A("s_add_u32 s53, s53, 1280")
    A("s_sub_u32 s55, s37, s55")
    A("s_add_u32 s16, s6, s52")
    A("s_addc_u32 s17, s7, 0")
    A("s_lshl_b32 s18, s53, 11")
    A("s_mov_b32 s19, 0x00020000")
    A("s_lshl_b32 s56, s53, 6")
    A("s_lshr_b32 s57, s30, 5")
    A("s_lshl_b32 s58, s43, 2")
    A("s_add_u32 s57, s57, s58")
    A("s_mul_i32 s57, s57, s53")
    for t in range(1, 4):
        A(f"s_add_u32 s{57+t}, s{56+t}, s53")
    A("s_lshl_b32 s61, s55, 5")
    A("s_lshl_b32 s62, s44, 4")
    A("s_add_u32 s61, s61, s62")
    A("v_and_b32 v1, 63, v0")
    A("v_and_b32 v2, 31, v1")
    A("v_lshrrev_b32 v3, 5, v1")
    A("v_lshlrev_b32 v4, 4, v2")
    A("v_lshlrev_b32 v5, 3, v2")
    A("v_add_u32 v5, 1024, v5")
    A("v_add_u32 v3, s61, v3")
    for u in range(2):
        for j in range(4):
            o = 16 + u * 4 + j
            A(f"v_add_u32 v6, {u*8+2*j}, v3")
            A("v_mul_u32_u24 v7, 205, v6")
            A("v_lshrrev_b32 v7, 10, v7")
            A("v_mul_u32_u24 v8, 5, v7")
            A("v_sub_u32 v8, v6, v8")
            A("v_lshrrev_b32 v9, 1, v8")
            A("v_lshl_add_u32 v9, v9, 9, v4")
            A("v_and_b32 v10, 1, v8")
            A("v_lshl_add_u32 v9, v10, 3, v9")
            A("v_cmp_eq_u32 vcc, 4, v8")
            A("v_mul_lo_u32 v7, v7, s56")
            A("s_nop 0")
            A("v_cndmask_b32 v9, v9, v5, vcc")
            A(f"v_add_u32 v{o}, v7, v9")
    for t in range(4):
        for u in range(2):
            a = ACC + (t * 2 + u) * 16
            for i in range(16):
                A(f"v_mul_f32 v{a+i}, s54, v{a+i}")
            p = 32 + ((t * 2 + u) & 1) * 8
            for i in range(8):
                A(f"v_cvt_pk_bf16_f32 v{p+i}, v{a+2*i}, v{a+2*i+1}")
            for j in range(4):
                A(f"buffer_store_dwordx2 v[{p+2*j}:{p+2*j+1}], v{16+u*4+j}, s[16:19], s{57+t} offen")
    stamp(A, 4); stamp_flush(A, 5, 6, 1, 25)
    A("s_endpgm")
    A("k1_v:")
    gemm_core(A, "k1v", 4, 2, False, 3840, False)
    srd(A, 16, 6, 32 * 64 * KVREC, KV_OFF)
    A("s_lshr_b32 s57, s30, 5")
    A("s_lshl_b32 s58, s43, 2")
    A("s_add_u32 s57, s57, s58")
    A(f"s_mul_i32 s57, s57, {KVREC}")
    for t in range(1, 4):
        A(f"s_add_u32 s{57+t}, s{56+t}, {KVREC}")
    A("s_sub_u32 s61, s31, 1280")
    A("s_lshl_b32 s62, s44, 6")
    A("s_add_u32 s61, s61, s62")
    A("v_and_b32 v1, 63, v0")
    A("v_and_b32 v2, 31, v1")
    A("v_lshrrev_b32 v3, 5, v1")
    A(f"v_mul_u32_u24 v3, {VSB}, v3")
    A("v_add_u32 v3, 1280, v3")
    A("v_add_u32 v2, s61, v2")
    A(f"s_mov_b32 s56, {64*KVREC}")
    for u in range(2):
        A(f"v_add_u32 v6, {u*32}, v2")
        A("v_mul_u32_u24 v7, 3277, v6")
        A("v_lshrrev_b32 v7, 16, v7")
        A("v_mul_u32_u24 v8, 20, v7")
        A("v_sub_u32 v8, v6, v8")
        A("v_lshl_add_u32 v8, v8, 4, v3")
        A("v_mul_lo_u32 v7, v7, s56")
        A(f"v_add_u32 v{16+u}, v7, v8")
    for t in range(4):
        for u in range(2):
            a = ACC + (t * 2 + u) * 16
            p = 32 + ((t * 2 + u) & 1) * 8
            for i in range(8):
                A(f"v_cvt_pk_bf16_f32 v{p+i}, v{a+2*i}, v{a+2*i+1}")
            A(f"buffer_store_dwordx4 v[{p}:{p+3}], v{16+u}, s[16:19], s{57+t} offen")
            A(f"buffer_store_dwordx4 v[{p+4}:{p+7}], v{16+u}, s[16:19], s{57+t} offen offset:{2*VSB}")
    stamp(A, 4); stamp_flush(A, 5, 6, 1, 25)
    A("s_endpgm")
    A("k1_h:")
    A("s_sub_u32 s36, s33, 15")
    A("s_lshr_b32 s37, s36, 3")
    A("s_lshl_b32 s38, s35, 1")
    A("s_add_u32 s37, s37, s38")
    A("s_and_b32 s38, s36, 7")
    A("s_lshl_b32 s39, s34, 3")
    A("s_add_u32 s38, s38, s39")
    A("s_lshl_b32 s30, s38, 7")
    A("s_mul_i32 s31, s37, 192")
    srd(A, 8, 6, XSZ, Y_OFF)
    srd(A, 12, 48, 640 * 1536 * 2)
    srd(A, 16, 50, 1536 * 2)
    A("s_lshr_b32 s44, s25, 1")
    A("s_mul_i32 s45, s44, 96")
    A("s_add_u32 s45, s45, s31")
    A("v_bfe_u32 v3, v0, 5, 1")
    A("v_lshlrev_b32 v3, 2, v3")
    A("v_add_u32 v3, s45, v3")
    A("v_lshlrev_b32 v3, 1, v3")
    for u in range(3):
        for j in range(4):
            b = BIAS + (u * 4 + j) * 2
            A(f"buffer_load_dwordx2 v[{b}:{b+1}], v3, s[16:19], 0 offen offset:{(u*32+8*j)*2}")
    SS2 = gemm_core(A, "k1h", 2, 3, True, 3072, True)
    srd(A, 16, 6, 64 * 96 * 1024, HB_OFF)
    A("s_lshr_b32 s57, s30, 5")
    A("s_lshl_b32 s58, s43, 1")
    A("s_add_u32 s57, s57, s58")
    A("s_mul_i32 s57, s57, 96")
    A("s_lshr_b32 s58, s31, 4")
    A("s_add_u32 s57, s57, s58")
    A("s_mul_i32 s58, s44, 6")
    A("s_add_u32 s57, s57, s58")
    A("s_lshl_b32 s57, s57, 10")
    A(f"s_add_u32 s58, s57, {96*1024}")
    A("v_and_b32 v1, 63, v0")
    A("v_lshlrev_b32 v16, 4, v1")
    A(f"v_add_u32 v17, 4096, v16")
    c0 = -2.0 * math.sqrt(2.0 / math.pi) * math.log2(math.e)
    c1 = c0 * 0.044715
    A(f"v_mov_b32 v2, {f32hex(c0)}"); A(f"v_mov_b32 v3, {f32hex(c0)}")
    A(f"v_mov_b32 v4, {f32hex(c1)}"); A(f"v_mov_b32 v5, {f32hex(c1)}")
    A("v_mov_b32 v6, 1.0"); A("v_mov_b32 v7, 1.0")
    T = 64
    for t in range(2):
        for u in range(3):
            a = ACC + (t * 3 + u) * 16
            p = 32 + ((t * 3 + u) & 1) * 8
            pr = lambda b, i: f"v[{b+2*i}:{b+2*i+1}]"
            for i in range(8): A(f"v_pk_mul_f32 {pr(T,i)}, {pr(a,i)}, {pr(a,i)}")
            for i in range(8): A(f"v_pk_fma_f32 {pr(T,i)}, {pr(T,i)}, v[4:5], v[2:3]")
            for i in range(8): A(f"v_pk_mul_f32 {pr(T,i)}, {pr(T,i)}, {pr(a,i)}")
            for i in range(16): A(f"v_exp_f32 v{T+i}, v{T+i}")
            for i in range(8): A(f"v_pk_add_f32 {pr(T,i)}, {pr(T,i)}, v[6:7]")
            for i in range(16): A(f"v_rcp_f32 v{T+i}, v{T+i}")
            for i in range(8): A(f"v_pk_mul_f32 {pr(T,i)}, {pr(T,i)}, {pr(a,i)}")
            for i in range(8): A(f"v_cvt_pk_bf16_f32 v{p+i}, v{T+2*i}, v{T+2*i+1}")
            va = 16 if u < 2 else 17
            off = (2 * u * 1024) % 4096
            A(f"buffer_store_dwordx4 v[{p}:{p+3}], v{va}, s[16:19], s{57+t} offen offset:{off}")
            A(f"buffer_store_dwordx4 v[{p+4}:{p+7}], v{va}, s[16:19], s{57+t} offen offset:{off+1024}")
    stamp(A, 4); stamp_flush(A, 5, 6, 1, 25)
    A("k1_done:")
    A("s_endpgm")
    lds = 3 * max(SS1, SS2)
    return kernel_desc(name, 256), f"; @launch kernel=k1_kernel grid=(248,1,1) block=(256,1,1) lds={lds}"
```

```python
from asmlib import *
from layout import *
import math, os

QA1, QA2, QB1, QB2 = 16, 20, 24, 28
NCA, NCB = 32, 48
SA, SB = 64, 80
PA, PB = 96, 104
OA, OB_ = 112, 128
KF = [(144, 148), (152, 156)]
VF = [(160, 164), (168, 172)]
VK1, VK2, VV = 4, 5, 6
SLOT = 16384
FLAG = 32768
LDS_BYTES = 32768 + 64

def m16(d, a, b, c):
    return f"v_mfma_f32_32x32x16_bf16 {vr(d,16)}, {vr(a,4)}, {vr(b,4)}, {c}"
def m8(d, a, b, c):
    return f"v_mfma_f32_32x32x8_bf16 {vr(d,16)}, {vr(a,2)}, {vr(b,2)}, {c}"

def phase(A, s, p, mf, slots):
    E = lambda i: f"v_exp_f32 v{s+i}, v{s+i}"
    C = lambda i: f"v_cvt_pk_bf16_f32 v{p+i}, v{s+2*i}, v{s+2*i+1}"
    groups = [[E(0), E(1), E(2), E(3), C(0)],
              [E(4), E(5), C(1), E(6), E(7), C(2)],
              [E(8), E(9), C(3), E(10), E(11), C(4)],
              [E(12), E(13), C(5), E(14), E(15), C(6), C(7)]]
    for g in range(4):
        A(mf[g])
        for l in slots[g]: A(l)
        for l in groups[g]: A(l)

def rdK(buf, off):
    return [f"ds_read_b128 {vr(KF[buf][0],4)}, v{VK1} offset:{off}", f"ds_read_b64 {vr(KF[buf][1],2)}, v{VK2} offset:{off}"]
def rdV(buf, off):
    return [f"ds_read_b128 {vr(VF[buf][0],4)}, v{VV} offset:{off}", f"ds_read_b128 {vr(VF[buf][1],4)}, v{VV} offset:{off+2*VSB}"]
def toff(i):
    i %= 8
    return (i // 4) * SLOT + (i % 4) * KVREC

def rowmax(A, s, acc, first):
    if first:
        A(f"v_max3_f32 v{acc}, v{s}, v{s+1}, v{s+2}")
        A(f"v_max_f32 v{acc}, v{acc}, v{s+3}")
        st = 4
    else:
        st = 0
    for i in range(st, 16, 2):
        A(f"v_max3_f32 v{acc}, v{acc}, v{s+i}, v{s+i+1}")

def set_nc(A, acc, nc, tmp):
    A(f"v_mov_b32 v{tmp}, v{acc}")
    A("s_nop 1")
    A(f"v_permlane32_swap_b32 v{acc}, v{tmp}")
    A("s_nop 1")
    A(f"v_max_f32 v{acc}, v{acc}, v{tmp}")
    A(f"v_sub_f32 v{nc}, 0, v{acc}")
    for i in range(1, 16):
        A(f"v_mov_b32 v{nc+i}, v{nc}")

def gen_k2(A):
    name = "k2_kernel"
    kernel_begin(A, name)
    A("s_cmp_ge_u32 s2, 256")
    A("s_cbranch_scc1 k2_done")
    stamp(A, 0); tl_start(A, 2)
    A("s_load_dwordx2 s[6:7], s[0:1], 80")
    A("v_lshrrev_b32 v1, 6, v0")
    A("s_nop 0")
    A("v_readfirstlane_b32 s25, v1")
    A("s_and_b32 s32, s2, 7")
    A("s_lshr_b32 s33, s2, 3")
    A("s_lshl_b32 s34, s32, 2")
    A("s_lshr_b32 s35, s33, 3")
    A("s_add_u32 s34, s34, s35")
    A("s_and_b32 s35, s33, 7")
    A("v_and_b32 v1, 63, v0")
    A("s_waitcnt lgkmcnt(0)")
    A("s_cmp_ge_u32 s25, 4")
    A("s_cbranch_scc1 k2_loader")
    srd(A, 8, 6, 32 * 64 * 1280, Q_OFF)
    srd(A, 12, 6, 64 * 40 * 1024, OB_OFF)
    A("s_lshl_b32 s36, s35, 3")
    A("s_lshl_b32 s37, s25, 1")
    A("s_add_u32 s36, s36, s37")
    A("s_lshl_b32 s37, s34, 6")
    A("s_add_u32 s37, s37, s36")
    A("s_mul_i32 s37, s37, 1280")
    A("v_and_b32 v2, 31, v1")
    A("v_lshrrev_b32 v3, 5, v1")
    A(f"v_lshlrev_b32 v{VK1}, 4, v1")
    A(f"v_lshlrev_b32 v{VK2}, 3, v2")
    A(f"v_add_u32 v{VK2}, 1024, v{VK2}")
    for r in (QA2, QA2 + 1, QB2, QB2 + 1): A(f"v_mov_b32 v{r}, 0")
    A(f"buffer_load_dwordx4 {vr(QA1,4)}, v{VK1}, s[8:11], s37 offen")
    A(f"buffer_load_dwordx4 {vr(QB1,4)}, v{VK1}, s[8:11], s37 offen offset:1280")
    A("s_mov_b64 exec, 0xffffffff")
    A(f"buffer_load_dwordx2 {vr(QA2,2)}, v{VK2}, s[8:11], s37 offen")
    A(f"buffer_load_dwordx2 {vr(QB2,2)}, v{VK2}, s[8:11], s37 offen offset:1280")
    A("s_mov_b64 exec, -1")
    A("v_min_u32 v7, 20, v2")
    A("v_cmp_lt_u32 vcc, 27, v2")
    A("v_mov_b32 v8, 16")
    A("s_nop 0")
    A("v_cndmask_b32 v7, v7, v8, vcc")
    A(f"v_mul_u32_u24 v8, {VSB}, v3")
    A(f"v_lshl_add_u32 v{VV}, v7, 4, v8")
    A(f"v_add_u32 v{VV}, 1280, v{VV}")
    A("s_mov_b32 s38, 0")
    A("k2_main:")
    for r in list(range(OA, OA + 32)) + list(range(PB, PB + 8)) + list(range(VF[1][0], VF[1][0] + 8)):
        A(f"v_mov_b32 v{r}, 0")
    A("s_waitcnt vmcnt(0)")
    stamp(A, 1)
    A("s_barrier")
    for l in rdK(0, 0) + rdV(0, 0): A(l)
    A("s_waitcnt lgkmcnt(0)")
    A("s_cmp_lg_u32 s38, 0")
    A("s_cbranch_scc1 k2_havemax")
    A(m16(SA, KF[0][0], QA1, "0")); A(m8(SA, KF[0][1], QA2, vr(SA, 16)))
    A(m16(SB, KF[0][0], QB1, "0")); A(m8(SB, KF[0][1], QB2, vr(SB, 16)))
    A("s_nop 15")
    rowmax(A, SA, 8, True); rowmax(A, SB, 9, True)
    set_nc(A, 8, NCA, 10); set_nc(A, 9, NCB, 10)
    A("k2_havemax:")
    A("s_nop 1")
    A(m16(SA, KF[0][0], QA1, vr(NCA, 16))); A(m8(SA, KF[0][1], QA2, vr(SA, 16)))
    A("s_nop 15")
    A("s_mov_b32 s39, 0")
    stamp(A, 2)
    A(".p2align 3")
    A("k2_loop:")
    for i in range(8):
        b = i & 1; nb = b ^ 1
        k = rdK(nb, toff(i + 1)); v = rdV(nb, toff(i + 1))
        pre = ["s_waitcnt lgkmcnt(0)", "s_barrier"] if i % 4 == 3 else []
        phase(A, SA, PA,
              [m16(SB, KF[b][0], QB1, vr(NCB, 16)), m8(SB, KF[b][1], QB2, vr(SB, 16)),
               m16(OB_, VF[nb][0], PB, vr(OB_, 16)), m16(OB_, VF[nb][1], PB + 4, vr(OB_, 16))],
              [pre + [k[0]], [k[1]], [], ["s_waitcnt lgkmcnt(0)"]])
        tail = ["s_add_u32 s39, s39, 1", "s_cmp_lt_u32 s39, 8"] if i == 7 else []
        phase(A, SB, PB,
              [m16(SA, KF[nb][0], QA1, vr(NCA, 16)), m8(SA, KF[nb][1], QA2, vr(SA, 16)),
               m16(OA, VF[b][0], PA, vr(OA, 16)), m16(OA, VF[b][1], PA + 4, vr(OA, 16))],
              [[v[0]], [v[1]], tail[:1], tail[1:]])
    A("s_cbranch_scc1 k2_loop")
    A("s_nop 1")
    A(m16(OB_, VF[1][0], PB, vr(OB_, 16))); A(m16(OB_, VF[1][1], PB + 4, vr(OB_, 16)))
    A("s_waitcnt lgkmcnt(0)")
    stamp(A, 3)
    A("s_nop 15")
    for (o, l) in ((OA, 8), (OB_, 9)):
        A(f"v_mov_b32 v10, v{o+8}")
        A(f"v_mov_b32 v{l}, v{o+8}")
        A("s_nop 1")
        A(f"v_permlane32_swap_b32 v10, v{l}")
    A("v_mov_b32 v10, 0")
    for o in (OA, OB_):
        for i in range(12):
            A(f"v_fmac_f32 v10, 0, v{o+i}")
    A(f"s_mov_b32 s40, {f32hex(2.0**64)}")
    A("v_cmp_u_f32 s[42:43], v10, v10")
    A("v_cmp_nlt_f32 s[44:45], v8, s40")
    A("v_cmp_nlt_f32 s[46:47], v9, s40")
    A("s_nop 3")
    A("s_or_b64 s[42:43], s[42:43], s[44:45]")
    A("s_or_b64 s[42:43], s[42:43], s[46:47]")
    A("s_cbranch_scc0 k2_noflag")
    A(f"v_mov_b32 v10, {FLAG}")
    A("v_mov_b32 v11, 1")
    A("ds_write_b32 v10, v11")
    A("k2_noflag:")
    A("s_waitcnt lgkmcnt(0)")
    A("s_barrier")
    A(f"v_mov_b32 v10, {FLAG}")
    A("ds_read_b32 v11, v10")
    A("s_waitcnt lgkmcnt(0)")
    A("v_readfirstlane_b32 s41, v11")
    A("s_nop 3")
    A("s_cmp_eq_u32 s41, 0")
    A("s_cbranch_scc1 k2_epi")
    A("s_cmp_lg_u32 s38, 0")
    A("s_cbranch_scc1 k2_epi")
    A("s_mov_b32 s38, 1")
    A(f"v_mov_b32 v8, {f32hex(-3.0e38)}")
    A(f"v_mov_b32 v9, {f32hex(-3.0e38)}")
    A("s_mov_b32 s39, 0")
    A("k2_maxloop:")
    for half in range(2):
        A("s_barrier")
        for i in range(4):
            for l in rdK(0, toff(half * 4 + i)): A(l)
            A("s_waitcnt lgkmcnt(0)")
            A(m16(SA, KF[0][0], QA1, "0")); A(m8(SA, KF[0][1], QA2, vr(SA, 16)))
            A(m16(SB, KF[0][0], QB1, "0")); A(m8(SB, KF[0][1], QB2, vr(SB, 16)))
            A("s_nop 15")
            rowmax(A, SA, 8, False); rowmax(A, SB, 9, False)
    A("s_add_u32 s39, s39, 1")
    A("s_cmp_lt_u32 s39, 8")
    A("s_cbranch_scc1 k2_maxloop")
    A("s_barrier")
    A("s_barrier")
    set_nc(A, 8, NCA, 10); set_nc(A, 9, NCB, 10)
    A("s_branch k2_main")
    A("k2_epi:")
    A("v_rcp_f32 v8, v8")
    A("v_rcp_f32 v9, v9")
    A("s_mul_i32 s40, s36, 40")
    A("s_add_u32 s41, s40, s34")
    A("s_lshl_b32 s41, s41, 10")
    A("s_lshr_b32 s42, s34, 2")
    A("s_add_u32 s42, s42, s40")
    A("s_add_u32 s42, s42, 32")
    A("s_lshl_b32 s42, s42, 10")
    A("s_bfe_u32 s43, s34, 0x10001")
    A("s_lshl_b32 s43, s43, 9")
    A("s_add_u32 s42, s42, s43")
    A("s_and_b32 s43, s34, 1")
    A("s_lshl_b32 s43, s43, 3")
    A("s_add_u32 s42, s42, s43")
    A(f"s_add_u32 s44, s41, {40*1024}")
    A(f"s_add_u32 s45, s42, {40*1024}")
    for (o, l, p, so1, so2) in ((OA, 8, PA, 41, 42), (OB_, 9, PB, 44, 45)):
        for i in range(12):
            A(f"v_mul_f32 v{o+i}, v{o+i}, v{l}")
        for i in range(6):
            A(f"v_cvt_pk_bf16_f32 v{p+i}, v{o+2*i}, v{o+2*i+1}")
        A(f"buffer_store_dwordx4 {vr(p,4)}, v{VK1}, s[12:15], s{so1} offen")
        A("s_mov_b64 exec, 0xffffffff")
        A(f"buffer_store_dwordx2 {vr(p+4,2)}, v{VK1}, s[12:15], s{so2} offen")
        A("s_mov_b64 exec, -1")
    stamp(A, 4); stamp_flush(A, 5, 6, 2, 25); tl_end(A, 2)
    A("s_endpgm")
    A("k2_loader:")
    srd(A, 8, 6, 32 * 64 * KVREC, KV_OFF)
    A("s_sub_u32 s36, s25, 4")
    A("s_mul_i32 s36, s36, 3072")
    A("v_lshlrev_b32 v2, 4, v1")
    A("v_add_u32 v2, s36, v2")
    A(f"s_mul_i32 s37, s34, {64*KVREC}")
    A(f"v_mov_b32 v3, {FLAG}")
    A("v_mov_b32 v4, 0")
    A("ds_write_b32 v3, v4")
    A("s_mov_b32 s38, 0")
    def dma(slot_expr):
        A(slot_expr)
        A("s_nop 0")
        for j in range(3):
            A(f"buffer_load_dwordx4 v2, s[8:11], s40 offen offset:{j*1024} lds")
        A(f"s_add_u32 s40, s40, {4*KVREC}")
    A("k2_stream:")
    A("s_mov_b32 s40, s37")
    dma("s_mov_b32 m0, s36")
    dma(f"s_add_u32 m0, s36, {SLOT}")
    A("s_waitcnt vmcnt(3) lgkmcnt(0)")
    A("s_barrier")
    A("s_mov_b32 s39, 1")
    A("s_mov_b32 s41, 0")
    A("k2_lloop:")
    A("s_waitcnt vmcnt(0)")
    A("s_barrier")
    A("s_cmp_ge_u32 s39, 15")
    A("s_cbranch_scc1 k2_lskip")
    dma("s_add_u32 m0, s36, s41")
    A(f"s_xor_b32 s41, s41, {SLOT}")
    A("k2_lskip:")
    A("s_add_u32 s39, s39, 1")
    A("s_cmp_le_u32 s39, 16")
    A("s_cbranch_scc1 k2_lloop")
    A("s_barrier")
    A("s_add_u32 s38, s38, 1")
    A("s_cmp_eq_u32 s38, 2")
    A("s_cbranch_scc1 k2_stream")
    A("s_cmp_ge_u32 s38, 3")
    A("s_cbranch_scc1 k2_done")
    A("ds_read_b32 v4, v3")
    A("s_waitcnt lgkmcnt(0)")
    A("v_readfirstlane_b32 s42, v4")
    A("s_nop 3")
    A("s_cmp_lg_u32 s42, 0")
    A("s_cbranch_scc1 k2_stream")
    A("k2_done:")
    A("s_endpgm")
    return kernel_desc(name, 256), f"; @launch kernel=k2_kernel grid=(256,1,1) block=(512,1,1) lds={LDS_BYTES}"
```

```python
from asmlib import *
from layout import *
import os

def gen_fraggemm(A, name, act_off, wf_off, nsteps, final, kidx):
    kernel_begin(A, name)
    spw = nsteps // 4
    BATCH = 10 if spw <= 10 else 8
    A("s_cmp_ge_u32 s2, 256")
    A(f"s_cbranch_scc1 {name}_done")
    stamp(A, 0); tl_start(A, kidx)
    A("s_load_dwordx2 s[6:7], s[0:1], 80")
    A("s_load_dwordx2 s[4:5], s[0:1], 0")
    A("s_load_dwordx4 s[48:51], s[0:1], 56")
    A("v_lshrrev_b32 v1, 6, v0")
    A("s_nop 0")
    A("v_readfirstlane_b32 s25, v1")
    A("s_and_b32 s32, s2, 7")
    A("s_lshr_b32 s33, s2, 3")
    A("s_lshr_b32 s34, s32, 1")
    A("s_lshl_b32 s34, s34, 4")
    A("s_and_b32 s35, s33, 15")
    A("s_add_u32 s34, s34, s35")
    A("s_and_b32 s35, s32, 1")
    A("s_lshl_b32 s35, s35, 1")
    A("s_lshr_b32 s36, s33, 4")
    A("s_add_u32 s35, s35, s36")
    A("v_and_b32 v1, 63, v0")
    A("v_lshlrev_b32 v2, 4, v1")
    A("s_waitcnt lgkmcnt(0)")
    srd(A, 8, 6, 64 * nsteps * 1024, act_off)
    srd(A, 12, 6, 20 * nsteps * 1024, wf_off)
    A(f"s_mul_i32 s37, s25, {spw}")
    A(f"s_mul_i32 s38, s34, {nsteps}")
    A("s_add_u32 s38, s38, s37")
    A("s_lshl_b32 s38, s38, 10")
    A(f"s_mul_i32 s39, s35, {5*nsteps}")
    A("s_add_u32 s39, s39, s37")
    A("s_lshl_b32 s40, s39, 10")
    for u in range(1, 5):
        A(f"s_add_u32 s{40+u}, s{39+u}, {nsteps*1024}")
    A("v_add_u32 v3, 4096, v2")
    A("v_add_u32 v4, 8192, v2")
    FR = 16
    def loads(nb):
        for s in range(nb):
            va = 2 + s // 4; off = (s % 4) * 1024
            A(f"buffer_load_dwordx4 {vr(FR + s*24, 4)}, v{va}, s[8:11], s38 offen offset:{off}")
            for u in range(5):
                A(f"buffer_load_dwordx4 {vr(FR + s*24 + 4 + 4*u, 4)}, v{va}, s[12:15], s{40+u} offen offset:{off}")
    loads(min(BATCH, spw))
    for i in range(80): A(f"v_accvgpr_write_b32 a{i}, 0")
    done = 0
    while done < spw:
        nb = min(BATCH, spw - done)
        for s in range(nb):
            A(f"s_waitcnt vmcnt({(nb-1-s)*6})")
            for u in range(5):
                A(f"v_mfma_f32_32x32x16_bf16 a[{16*u}:{16*u+15}], {vr(FR + s*24 + 4 + 4*u, 4)}, {vr(FR + s*24, 4)}, a[{16*u}:{16*u+15}]")
        done += nb
        if done < spw:
            A(f"s_add_u32 s38, s38, {nb*1024}")
            for u in range(5): A(f"s_add_u32 s{40+u}, s{40+u}, {nb*1024}")
            loads(min(BATCH, spw - done))
    stamp(A, 1)
    A("v_and_b32 v5, 31, v1")
    A("v_lshrrev_b32 v6, 5, v1")
    A("s_lshl_b32 s45, s34, 5")
    A("v_add_u32 v7, s45, v5")
    A("v_mul_u32_u24 v7, 1280, v7")
    A("v_lshlrev_b32 v8, 3, v6")
    A("s_mul_i32 s45, s35, 320")
    A("s_mul_i32 s46, s25, 80")
    A("s_add_u32 s45, s45, s46")
    A("v_add_u32 v8, s45, v8")
    A("v_add_u32 v7, v7, v8")
    E1, E2 = 200, 212
    srd(A, 16, 6, XSZ, BM_OFF)
    if final:
        srd(A, 20, 4, XSZ)
        srd(A, 28, 50, XSZ)
        for i in range(5):
            A(f"buffer_load_dwordx2 {vr(E1+2*i,2)}, v7, s[20:23], 0 offen offset:{16*i}")
            A(f"buffer_load_dwordx2 {vr(E2+2*i,2)}, v7, s[16:19], 0 offen offset:{16*i}")
    else:
        srd(A, 20, 48, 1280)
        for i in range(5):
            A(f"buffer_load_dwordx2 {vr(E1+2*i,2)}, v8, s[20:23], 0 offen offset:{16*i}")
    A("s_mul_i32 s47, s25, 20480")
    A("v_add_u32 v9, s47, v2")
    A("s_nop 7")
    for q in range(20):
        for r in range(4):
            A(f"v_accvgpr_read_b32 v{FR + (q%4)*4 + r}, a{4*q+r}")
        A(f"ds_write_b128 v9, {vr(FR + (q%4)*4, 4)} offset:{q*1024}")
    A("s_waitcnt lgkmcnt(0)")
    A("s_barrier")
    A("s_mul_i32 s47, s25, 5120")
    A("v_add_u32 v9, s47, v2")
    A("v_add_u32 v10, 40960, v9")
    for i in range(5):
        for p in range(4):
            va = 9 if p < 2 else 10
            A(f"ds_read_b128 {vr(32 + (i*4+p)*4, 4)}, v{va} offset:{(p%2)*20480 + i*1024}")
    A("s_waitcnt vmcnt(0) lgkmcnt(0)")
    for i in range(5):
        b = 32 + i * 16
        for r in range(4):
            A(f"v_add_f32 v{b+r}, v{b+r}, v{b+4+r}")
            A(f"v_add_f32 v{b+8+r}, v{b+8+r}, v{b+12+r}")
            A(f"v_add_f32 v{b+r}, v{b+r}, v{b+8+r}")
        A(f"v_cvt_pk_bf16_f32 v{b+4}, v{b}, v{b+1}")
        A(f"v_cvt_pk_bf16_f32 v{b+5}, v{b+2}, v{b+3}")
        for p in range(2):
            A(f"v_lshlrev_b32 v{b+2*p}, 16, v{b+4+p}")
            A(f"v_and_b32 v{b+2*p+1}, 0xffff0000, v{b+4+p}")
            A(f"v_lshlrev_b32 v{b+8+2*p}, 16, v{E1+2*i+p}")
            A(f"v_and_b32 v{b+8+2*p+1}, 0xffff0000, v{E1+2*i+p}")
        for r in range(4):
            A(f"v_add_f32 v{b+r}, v{b+r}, v{b+8+r}")
        A(f"v_cvt_pk_bf16_f32 v{b+4}, v{b}, v{b+1}")
        A(f"v_cvt_pk_bf16_f32 v{b+5}, v{b+2}, v{b+3}")
        if final:
            for p in range(2):
                A(f"v_lshlrev_b32 v{b+2*p}, 16, v{b+4+p}")
                A(f"v_and_b32 v{b+2*p+1}, 0xffff0000, v{b+4+p}")
                A(f"v_lshlrev_b32 v{b+8+2*p}, 16, v{E2+2*i+p}")
                A(f"v_and_b32 v{b+8+2*p+1}, 0xffff0000, v{E2+2*i+p}")
            for r in range(4):
                A(f"v_add_f32 v{b+r}, v{b+r}, v{b+8+r}")
                if os.environ.get("PERTURB"):
                    A(f"v_add_f32 v{b+r}, {f32hex(float(os.environ['PERTURB']))}, v{b+r}")
            A(f"v_cvt_pk_bf16_f32 v{b+4}, v{b}, v{b+1}")
            A(f"v_cvt_pk_bf16_f32 v{b+5}, v{b+2}, v{b+3}")
            A(f"buffer_store_dwordx2 {vr(b+4,2)}, v7, s[28:31], 0 offen offset:{16*i}")
        else:
            A(f"buffer_store_dwordx2 {vr(b+4,2)}, v7, s[16:19], 0 offen offset:{16*i}")
    stamp(A, 2); stamp_flush(A, 3, 6, kidx, 25); tl_end(A, kidx)
    A(f"{name}_done:")
    A("s_endpgm")
    return kernel_desc(name, 336, accum=256), f"; @launch kernel={name} grid=(256,1,1) block=(256,1,1) lds=81920"

def gen_k2b(A):
    return gen_fraggemm(A, "k2b_kernel", HB_OFF, W2F_OFF, 96, False, 3)
def gen_k3(A):
    return gen_fraggemm(A, "k3_kernel", OB_OFF, WOF_OFF, 40, True, 4)
```

```python
S = 2048; D = 640; F = 1536; H = 32; DH = 20
XN_OFF = 0x0000000
Y_OFF  = 0x0300000
Q_OFF  = 0x0600000
K_OFF  = 0x0900000
V_OFF  = 0x0C00000
VREC = 1344
VSB = 336
HB_OFF = 0x1000000
OB_OFF = 0x1800000
BM_OFF = 0x1C00000
W2F_OFF = 0x2000000
WOF_OFF = 0x2400000
XSZ = S * D * 2
SYNC_OFF = 0x0100000
```

```python
import sys
from asmlib import *
import k0
HEADER = open("parallel_sum__softmax_full_mha__mixer_channel_mlp__prompt.s.ref").read().split("; Override launch")[0]
def build(parts, out):
    A = Asm()
    descs = []; launches = []
    for p in parts:
        d, l = p(A)
        descs.append(d); launches.append(l)
    s = HEADER + "\n".join(launches) + "\n" + '.amdgcn_target "amdgcn-amd-amdhsa--gfx950"\n' + A.text() + "".join(descs)
    open(out, "w").write(s)
if __name__ == "__main__":
    parts = [k0.gen_k0]
    try:
        import k1; parts.append(k1.gen_k1)
        import k2; parts.append(k2.gen_k2)
        import k3; parts.append(k3.gen_k2b); parts.append(k3.gen_k3)
    except ImportError as e:
        print("partial build:", e)
    out = sys.argv[1] if len(sys.argv) > 1 else "parallel_sum__softmax_full_mha__mixer_channel_mlp__prompt.s"
    build(parts, out)
```

```python
import sys
from asmlib import *
import k0
HEADER = open("parallel_sum__softmax_full_mha__mixer_channel_mlp__prompt.s.ref").read().split("; Override launch")[0]
def build(parts, out):
    A = Asm()
    descs = []; launches = []
    for p in parts:
        d, l = p(A)
        descs.append(d); launches.append(l)
    s = HEADER + "\n".join(launches) + "\n" + '.amdgcn_target "amdgcn-amd-amdhsa--gfx950"\n' + A.text() + "".join(descs)
    open(out, "w").write(s)
if __name__ == "__main__":
    parts = [k0.gen_k0]
    try:
        import k1; parts.append(k1.gen_k1)
        import k2; parts.append(k2.gen_k2)
        import k3; parts.append(k3.gen_k3)
    except ImportError as e:
        print("partial build:", e)
    import os
    if os.environ.get("NOPS"):
        def nopk(A):
            kernel_begin(A, "nop_kernel"); A("s_endpgm")
            g = os.environ.get("NOPG", "1")
            return kernel_desc("nop_kernel", 8), "\n".join([f"; @launch kernel=nop_kernel grid=({g},1,1) block=(256,1,1) lds=0"] * int(os.environ["NOPS"]))
        parts.append(nopk)
    out = sys.argv[1] if len(sys.argv) > 1 else "parallel_sum__softmax_full_mha__mixer_channel_mlp__prompt.s"
    build(parts, out)
```

```python
class Asm:
    def __init__(self):
        self.lines = []
        self.uid = 0
    def __call__(self, s):
        for l in s.strip("\n").split("\n"):
            l = l.strip()
            if l:
                self.lines.append(("" if l.endswith(":") else "    ") + l)
    def label(self, base="L"):
        self.uid += 1
        return f"{base}_{self.uid}"
    def text(self):
        return "\n".join(self.lines) + "\n"

def vr(a, n):
    return f"v[{a}:{a+n-1}]" if n > 1 else f"v{a}"
def sr(a, n):
    return f"s[{a}:{a+n-1}]" if n > 1 else f"s{a}"

def kernel_begin(A, name):
    A.lines.append(".text")
    A.lines.append(f".globl {name}")
    A.lines.append(".p2align 8")
    A.lines.append(f".type {name},@function")
    A.lines.append(f"{name}:")

def kernel_desc(name, nvgpr, nsgpr=102, accum=None):
    acc = accum if accum is not None else ((nvgpr + 3) // 4) * 4
    return f""".section .rodata,"a"
.p2align 6
.amdhsa_kernel {name}
  .amdhsa_next_free_vgpr {nvgpr}
  .amdhsa_next_free_sgpr {nsgpr}
  .amdhsa_accum_offset {acc}
  .amdhsa_group_segment_fixed_size 0
  .amdhsa_kernarg_size 88
  .amdhsa_user_sgpr_count 2
  .amdhsa_user_sgpr_kernarg_segment_ptr 1
  .amdhsa_system_sgpr_workgroup_id_x 1
.end_amdhsa_kernel
"""

def srd(A, d, plo, size, off=0):
    if off:
        A(f"s_add_u32 s{d}, s{plo}, {hex(off)}")
        A(f"s_addc_u32 s{d+1}, s{plo+1}, 0")
    else:
        A(f"s_mov_b32 s{d}, s{plo}")
        A(f"s_mov_b32 s{d+1}, s{plo+1}")
    A(f"s_mov_b32 s{d+2}, {hex(size)}")
    A(f"s_mov_b32 s{d+3}, 0x00020000")

import struct
def f32hex(x):
    return hex(struct.unpack("<I", struct.pack("<f", x))[0])

import os
STAMP = bool(os.environ.get("STAMP"))
STAMP_OFF = 0x4000000
def stamp(A, idx):
    if STAMP:
        A(f"s_memtime s[{80+2*idx}:{81+2*idx}]")
        if idx == 0:
            A("s_memrealtime s[96:97]")
def stamp_flush(A, n, wsp, kidx, wave_sgpr):
    if not STAMP: return
    A("s_waitcnt vmcnt(0) lgkmcnt(0)")
    stamp(A, n)
    A("s_memrealtime s[98:99]")
    A("s_waitcnt lgkmcnt(0)")
    srd(A, 72, wsp, 1 << 20, STAMP_OFF + kidx * (1 << 20))
    A("s_lshl_b32 s76, s2, 4")
    A(f"s_add_u32 s76, s76, s{wave_sgpr}")
    A("s_lshl_b32 s76, s76, 6")
    for i in range(n + 1):
        A(f"v_mov_b32 v1, s{80+2*i}")
        A(f"v_mov_b32 v2, s76")
        A(f"buffer_store_dword v1, v2, s[72:75], 0 offen offset:{4*i}")
    for i, r in ((14, 96), (15, 98)):
        A(f"v_mov_b32 v1, s{r}")
        A(f"buffer_store_dword v1, v2, s[72:75], 0 offen offset:{4*i}")

TL = bool(os.environ.get("TIMELINE"))
def tl_start(A, k):
    if not TL: return
    A("s_memrealtime s[100:101]")
def tl_end(A, k):
    if not TL: return
    A("s_waitcnt vmcnt(0) lgkmcnt(0)")
    A("s_load_dwordx2 s[72:73], s[0:1], 72")
    A("s_memrealtime s[98:99]")
    A("s_waitcnt lgkmcnt(0)")
    A(f"s_add_u32 s72, s72, {512*(int(os.environ['TIMELINE'])-1-k)}")
    A("s_addc_u32 s73, s73, 0")
    A("s_mov_b32 s74, 256")
    A("s_mov_b32 s75, 0x00020000")
    A("s_mov_b64 exec, 1")
    A("v_mov_b32 v1, s98")
    A("v_mov_b32 v2, 0")
    A("s_not_b32 s100, s100")
    A("v_mov_b32 v3, s100")
    A(f"buffer_atomic_umax v1, v2, s[72:75], 0 offen offset:{8*k+4}")
    A(f"buffer_atomic_umax v3, v2, s[72:75], 0 offen offset:{8*k}")
```

```python
from asmlib import *
from layout import *
import math, os

NST = 10
ACC = 128
XF = 48
WF = 80
DV = 16
XAB, WAB, XAC, WAC = 28, 32, 36, 40
BIAS = 104

def interleave(mfmas, fillers, per=2):
    out = []
    n = len(mfmas)
    k = 0
    for i, m in enumerate(mfmas):
        out.append(m)
        tgt = max((len(fillers) * (i + 1) + n - 1) // n, min(len(fillers), per * (i + 1)))
        while k < tgt:
            out.append(fillers[k]); k += 1
    return out

def gemm_core(A, tag, TM, TN, transposed, ldw, init_bias):
    BM, BN = 2 * TM * 32, 2 * TN * 32
    AB = BM * 128; pitch = BN * 2; BB = 64 * pitch; SS = AB + BB
    nA = BM // 32; nB = BB // 4096; ND = nA + nB
    CPR = BN // 8
    A("v_and_b32 v1, 63, v0")
    A("v_lshrrev_b32 v2, 3, v1")
    A("v_and_b32 v3, 7, v1")
    A("v_lshrrev_b32 v4, 4, v1")
    A(f"s_mul_i32 s40, s25, {BM//4}")
    A("s_add_u32 s40, s40, s30")
    A("v_add_u32 v2, s40, v2")
    A("v_mul_u32_u24 v2, 1280, v2")
    A("v_xor_b32 v5, v3, v4")
    A("v_xor_b32 v6, 4, v5")
    A("v_lshl_add_u32 v5, v5, 4, v2")
    A("v_lshl_add_u32 v6, v6, 4, v2")
    for q in range(nA):
        A(f"v_add_u32 v{DV+q}, {q*8*1280 - (q&3)*1024}, v{5 + (q&1)}")
    A(f"s_mul_i32 s41, s25, {nB*64}")
    for q in range(nB):
        A(f"v_add_u32 v7, s41, v1")
        if q: A(f"v_add_u32 v7, {q*64}, v7")
        if CPR == 16:
            A("v_lshrrev_b32 v8, 4, v7")
            A("v_and_b32 v9, 15, v7")
            A("v_and_b32 v10, 3, v8")
        else:
            A("v_mul_u32_u24 v8, 2731, v7")
            A("v_lshrrev_b32 v8, 16, v8")
            A("v_mul_u32_u24 v9, 24, v8")
            A("v_sub_u32 v9, v7, v9")
            A("v_bfe_u32 v10, v8, 1, 1")
        A("v_lshlrev_b32 v10, 2, v10")
        A("v_xor_b32 v9, v9, v10")
        A(f"v_mul_u32_u24 v8, {ldw}, v8")
        A("v_lshl_add_u32 v8, v9, 4, v8")
        A(f"s_lshl_b32 s42, s31, 1")
        A(f"v_add_u32 v8, s42, v8")
        if q & 3:
            A(f"v_subrev_u32 v{DV+nA+q}, {(q&3)*1024}, v8")
        else:
            A(f"v_mov_b32 v{DV+nA+q}, v8")
    A(f"s_mul_i32 s26, s25, {nA*1024}")
    A(f"s_mul_i32 s27, s25, {nB*1024}")
    A(f"s_add_u32 s27, s27, {AB}")
    def dma_list():
        L = []
        for q in range(nA):
            if q % 4 == 0:
                L.append("s_add_u32 m0, s23, s26" if q == 0 else "s_add_u32 m0, m0, 4096")
                L.append("s_nop 0")
            L.append(f"buffer_load_dwordx4 v{DV+q}, s[8:11], s21 offen offset:{(q&3)*1024} lds")
        for q in range(nB):
            if q % 4 == 0:
                L.append("s_add_u32 m0, s23, s27" if q == 0 else "s_add_u32 m0, m0, 4096")
                L.append("s_nop 0")
            L.append(f"buffer_load_dwordx4 v{DV+nA+q}, s[12:15], s22 offen offset:{(q&3)*1024} lds")
        L.append("s_add_u32 s21, s21, 128")
        L.append(f"s_add_u32 s22, s22, {64*ldw}")
        L.append(f"s_add_u32 s23, s23, {SS}")
        L.append(f"s_cmp_eq_u32 s23, {3*SS}")
        L.append("s_cselect_b32 s23, 0, s23")
        return L
    A("s_mov_b32 s21, 0"); A("s_mov_b32 s22, 0"); A("s_mov_b32 s23, 0")
    for st in range(2):
        for l in dma_list(): A(l)
    A("s_and_b32 s43, s25, 1")
    A("s_lshr_b32 s44, s25, 1")
    A("v_and_b32 v2, 31, v1")
    A("v_lshrrev_b32 v3, 5, v1")
    A("v_bfe_u32 v4, v2, 1, 3")
    A(f"s_mul_i32 s45, s43, {TM*32*128}")
    A("v_lshlrev_b32 v5, 7, v2")
    A("v_add_u32 v5, s45, v5")
    for kk in range(4):
        A(f"v_add_u32 v6, {2*kk}, v3")
        A("v_xor_b32 v6, v6, v4")
        A(f"v_lshl_add_u32 v{XAB+kk}, v6, 4, v5")
    A("v_bfe_u32 v6, v1, 2, 2")
    A("v_lshl_add_u32 v7, v3, 3, v6")
    A(f"v_mul_u32_u24 v7, {pitch}, v7")
    A("v_bfe_u32 v8, v1, 4, 1")
    A("v_lshl_add_u32 v7, v8, 5, v7")
    A("v_and_b32 v8, 3, v1")
    A("v_lshl_add_u32 v7, v8, 3, v7")
    A(f"v_add_u32 v7, {AB}, v7")
    if CPR != 16:
        A("v_lshrrev_b32 v6, 1, v6")
    A(f"s_mul_i32 s46, s44, {TN}")
    for u in range(TN):
        A(f"s_add_u32 s47, s46, {u}")
        A("v_xor_b32 v8, s47, v6")
        A(f"v_lshl_add_u32 v{WAB+u}, v8, 6, v7")
    if init_bias:
        A(f"s_waitcnt vmcnt({2*ND})")
        for u in range(TN):
            for j in range(4):
                for p in range(2):
                    src = BIAS + (u * 4 + j) * 2 + p
                    a0 = ACC + u * 16 + 4 * j + 2 * p
                    A(f"v_lshlrev_b32 v{a0}, 16, v{src}")
                    A(f"v_and_b32 v{a0+1}, 0xffff0000, v{src}")
        for t in range(1, TM):
            for i in range(TN * 16):
                A(f"v_mov_b32 v{ACC + t*TN*16 + i}, v{ACC + i}")
    else:
        for i in range(TM * TN * 16):
            A(f"v_mov_b32 v{ACC+i}, 0")
    def reads(kk, buf):
        L = []
        for t in range(TM):
            L.append(f"ds_read_b128 {vr(XF + (buf*4+t)*4, 4)}, v{XAC+kk} offset:{t*4096}")
        for u in range(TN):
            for i in range(2):
                L.append(f"ds_read_b64_tr_b16 {vr(WF + (buf*3+u)*4 + 2*i, 2)}, v{WAC+u} offset:{(16*kk+4*i)*pitch}")
        return L
    def mfmas(buf):
        L = []
        for t in range(TM):
            for u in range(TN):
                a = ACC + (t * TN + u) * 16
                x = vr(XF + (buf*4+t)*4, 4); w = vr(WF + (buf*3+u)*4, 4)
                o = (w, x) if transposed else (x, w)
                L.append(f"v_mfma_f32_32x32x16_bf16 {vr(a,16)}, {o[0]}, {o[1]}, {vr(a,16)}")
        return L
    def setcur():
        L = []
        for kk in range(4): L.append(f"v_add_u32 v{XAC+kk}, s24, v{XAB+kk}")
        for u in range(TN): L.append(f"v_add_u32 v{WAC+u}, s24, v{WAB+u}")
        return L
    A("s_mov_b32 s24, 0"); A("s_mov_b32 s20, 0")
    for l in setcur(): A(l)
    stamp(A, 1)
    A(f"s_waitcnt vmcnt({ND})")
    A("s_barrier")
    stamp(A, 2)
    for l in reads(0, 0): A(l)
    if os.environ.get("NODMA"):
        A("s_mov_b32 s10, 0"); A("s_mov_b32 s14, 0")
    A(f"{tag}_loop:")
    dl = dma_list()
    units = []; cur = []
    for l in dl:
        cur.append(l)
        if l.startswith("buffer_load"):
            units.append(cur); cur = []
    tailu = cur
    per = (len(units) + 2) // 3
    NM = TM * TN
    for kk in range(4):
        buf = kk & 1
        ms = mfmas(buf)
        slots = [[] for _ in ms]
        if kk < 3:
            A("s_waitcnt lgkmcnt(0)")
            rd = reads(kk + 1, buf ^ 1)
        else:
            for l in setcur(): A(l)
            A(f"s_waitcnt vmcnt({ND}) lgkmcnt(0)")
            A("s_barrier")
            rd = reads(0, buf ^ 1)
        for i, l in enumerate(rd):
            slots[i // 2].append(l)
        if kk < 3:
            us = units[kk * per:(kk + 1) * per]
            for i, u in enumerate(us):
                slots[min(NM - 1, (i * NM) // len(us) + 1)] += u
        if kk == 2:
            slots[NM - 1] += tailu + [f"s_add_u32 s24, s24, {SS}", f"s_cmp_eq_u32 s24, {3*SS}", "s_cselect_b32 s24, 0, s24"]
        if kk == 3:
            slots[NM - 2] += ["s_add_u32 s20, s20, 1", f"s_cmp_lt_u32 s20, {NST-2}", "s_cselect_b32 s10, s10, 0", "s_cselect_b32 s14, s14, 0"]
            slots[NM - 1] += [f"s_cmp_lt_u32 s20, {NST}"]
        for m, sl in zip(ms, slots):
            A(m)
            for l in sl: A(l)
    A(f"s_cbranch_scc1 {tag}_loop")
    A("s_waitcnt lgkmcnt(0)")
    stamp(A, 3)
    A("s_nop 15")
    return SS

def gen_k1(A):
    name = "k1_kernel"
    kernel_begin(A, name)
    A("s_cmp_ge_u32 s2, 248")
    A("s_cbranch_scc1 k1_done")
    stamp(A, 0); tl_start(A, 1)
    A("s_load_dwordx2 s[4:5], s[0:1], 8")
    A("s_load_dwordx4 s[48:51], s[0:1], 32")
    A("s_load_dwordx2 s[6:7], s[0:1], 80")
    A("v_lshrrev_b32 v1, 6, v0")
    A("s_nop 0")
    A("v_readfirstlane_b32 s25, v1")
    A("s_and_b32 s32, s2, 7")
    A("s_lshr_b32 s33, s2, 3")
    A("s_lshr_b32 s34, s32, 2")
    A("s_and_b32 s35, s32, 3")
    A("s_waitcnt lgkmcnt(0)")
    A("s_cmp_ge_u32 s33, 15")
    A("s_cbranch_scc1 k1_h")
    A("s_mul_i32 s36, s35, 15")
    A("s_add_u32 s36, s36, s33")
    A("s_lshr_b32 s37, s36, 2")
    A("s_and_b32 s38, s36, 3")
    A("s_lshl_b32 s39, s34, 2")
    A("s_add_u32 s38, s38, s39")
    A("s_lshl_b32 s30, s38, 8")
    A("s_lshl_b32 s31, s37, 7")
    srd(A, 8, 6, XSZ, XN_OFF)
    srd(A, 12, 4, 640 * 1920 * 2)
    A("s_cmp_ge_u32 s37, 10")
    A("s_cbranch_scc1 k1_v")
    SS1 = gemm_core(A, "k1qk", 4, 2, True, 3840, False)
    A("s_cmp_ge_u32 s37, 5")
    A(f"s_cselect_b32 s52, {KV_OFF - Q_OFF}, 0")
    A(f"s_cselect_b32 s53, {KVREC-1280}, 0")
    A(f"s_cselect_b32 s54, 1.0, {f32hex(DH**-0.5 * math.log2(math.e))}")
    A("s_cselect_b32 s55, 5, 0")
    A(f"s_add_u32 s52, s52, {Q_OFF}")
    A("s_add_u32 s53, s53, 1280")
    A("s_sub_u32 s55, s37, s55")
    A("s_add_u32 s16, s6, s52")
    A("s_addc_u32 s17, s7, 0")
    A("s_lshl_b32 s18, s53, 11")
    A("s_mov_b32 s19, 0x00020000")
    A("s_lshl_b32 s56, s53, 6")
    A("s_lshr_b32 s57, s30, 5")
    A("s_lshl_b32 s58, s43, 2")
    A("s_add_u32 s57, s57, s58")
    A("s_mul_i32 s57, s57, s53")
    for t in range(1, 4):
        A(f"s_add_u32 s{57+t}, s{56+t}, s53")
    A("s_lshl_b32 s61, s55, 5")
    A("s_lshl_b32 s62, s44, 4")
    A("s_add_u32 s61, s61, s62")
    A("v_and_b32 v1, 63, v0")
    A("v_and_b32 v2, 31, v1")
    A("v_lshrrev_b32 v3, 5, v1")
    A("v_lshlrev_b32 v4, 4, v2")
    A("v_lshlrev_b32 v5, 3, v2")
    A("v_add_u32 v5, 1024, v5")
    A("v_add_u32 v3, s61, v3")
    for u in range(2):
        for j in range(4):
            o = 16 + u * 4 + j
            A(f"v_add_u32 v6, {u*8+2*j}, v3")
            A("v_mul_u32_u24 v7, 205, v6")
            A("v_lshrrev_b32 v7, 10, v7")
            A("v_mul_u32_u24 v8, 5, v7")
            A("v_sub_u32 v8, v6, v8")
            A("v_lshrrev_b32 v9, 1, v8")
            A("v_lshl_add_u32 v9, v9, 9, v4")
            A("v_and_b32 v10, 1, v8")
            A("v_lshl_add_u32 v9, v10, 3, v9")
            A("v_cmp_eq_u32 vcc, 4, v8")
            A("v_mul_lo_u32 v7, v7, s56")
            A("s_nop 0")
            A("v_cndmask_b32 v9, v9, v5, vcc")
            A(f"v_add_u32 v{o}, v7, v9")
    for t in range(4):
        for u in range(2):
            a = ACC + (t * 2 + u) * 16
            for i in range(16):
                A(f"v_mul_f32 v{a+i}, s54, v{a+i}")
            p = 32 + ((t * 2 + u) & 1) * 8
            for i in range(8):
                A(f"v_cvt_pk_bf16_f32 v{p+i}, v{a+2*i}, v{a+2*i+1}")
            for j in range(4):
                A(f"buffer_store_dwordx2 v[{p+2*j}:{p+2*j+1}], v{16+u*4+j}, s[16:19], s{57+t} offen")
    stamp(A, 4); stamp_flush(A, 5, 6, 1, 25); tl_end(A, 1)
    A("s_endpgm")
    A("k1_v:")
    gemm_core(A, "k1v", 4, 2, False, 3840, False)
    srd(A, 16, 6, 32 * 64 * KVREC, KV_OFF)
    A("s_lshr_b32 s57, s30, 5")
    A("s_lshl_b32 s58, s43, 2")
    A("s_add_u32 s57, s57, s58")
    A(f"s_mul_i32 s57, s57, {KVREC}")
    for t in range(1, 4):
        A(f"s_add_u32 s{57+t}, s{56+t}, {KVREC}")
    A("s_sub_u32 s61, s31, 1280")
    A("s_lshl_b32 s62, s44, 6")
    A("s_add_u32 s61, s61, s62")
    A("v_and_b32 v1, 63, v0")
    A("v_and_b32 v2, 31, v1")
    A("v_lshrrev_b32 v3, 5, v1")
    A(f"v_mul_u32_u24 v3, {VSB}, v3")
    A("v_add_u32 v3, 1280, v3")
    A("v_add_u32 v2, s61, v2")
    A(f"s_mov_b32 s56, {64*KVREC}")
    for u in range(2):
        A(f"v_add_u32 v6, {u*32}, v2")
        A("v_mul_u32_u24 v7, 3277, v6")
        A("v_lshrrev_b32 v7, 16, v7")
        A("v_mul_u32_u24 v8, 20, v7")
        A("v_sub_u32 v8, v6, v8")
        A("v_lshl_add_u32 v8, v8, 4, v3")
        A("v_mul_lo_u32 v7, v7, s56")
        A(f"v_add_u32 v{16+u}, v7, v8")
    for t in range(4):
        for u in range(2):
            a = ACC + (t * 2 + u) * 16
            p = 32 + ((t * 2 + u) & 1) * 8
            for i in range(8):
                A(f"v_cvt_pk_bf16_f32 v{p+i}, v{a+2*i}, v{a+2*i+1}")
            A(f"buffer_store_dwordx4 v[{p}:{p+3}], v{16+u}, s[16:19], s{57+t} offen")
            A(f"buffer_store_dwordx4 v[{p+4}:{p+7}], v{16+u}, s[16:19], s{57+t} offen offset:{2*VSB}")
    stamp(A, 4); stamp_flush(A, 5, 6, 1, 25); tl_end(A, 1)
    A("s_endpgm")
    A("k1_h:")
    A("s_sub_u32 s36, s33, 15")
    A("s_lshr_b32 s37, s36, 3")
    A("s_lshl_b32 s38, s35, 1")
    A("s_add_u32 s37, s37, s38")
    A("s_and_b32 s38, s36, 7")
    A("s_lshl_b32 s39, s34, 3")
    A("s_add_u32 s38, s38, s39")
    A("s_lshl_b32 s30, s38, 7")
    A("s_mul_i32 s31, s37, 192")
    srd(A, 8, 6, XSZ, Y_OFF)
    srd(A, 12, 48, 640 * 1536 * 2)
    srd(A, 16, 50, 1536 * 2)
    A("s_lshr_b32 s44, s25, 1")
    A("s_mul_i32 s45, s44, 96")
    A("s_add_u32 s45, s45, s31")
    A("v_bfe_u32 v3, v0, 5, 1")
    A("v_lshlrev_b32 v3, 2, v3")
    A("v_add_u32 v3, s45, v3")
    A("v_lshlrev_b32 v3, 1, v3")
    for u in range(3):
        for j in range(4):
            b = BIAS + (u * 4 + j) * 2
            A(f"buffer_load_dwordx2 v[{b}:{b+1}], v3, s[16:19], 0 offen offset:{(u*32+8*j)*2}")
    SS2 = gemm_core(A, "k1h", 2, 3, True, 3072, True)
    srd(A, 16, 6, 64 * 96 * 1024, HB_OFF)
    A("s_lshr_b32 s57, s30, 5")
    A("s_lshl_b32 s58, s43, 1")
    A("s_add_u32 s57, s57, s58")
    A("s_mul_i32 s57, s57, 96")
    A("s_lshr_b32 s58, s31, 4")
    A("s_add_u32 s57, s57, s58")
    A("s_mul_i32 s58, s44, 6")
    A("s_add_u32 s57, s57, s58")
    A("s_lshl_b32 s57, s57, 10")
    A(f"s_add_u32 s58, s57, {96*1024}")
    A("v_and_b32 v1, 63, v0")
    A("v_lshlrev_b32 v16, 4, v1")
    A(f"v_add_u32 v17, 4096, v16")
    c0 = -2.0 * math.sqrt(2.0 / math.pi) * math.log2(math.e)
    c1 = c0 * 0.044715
    A(f"v_mov_b32 v2, {f32hex(c0)}"); A(f"v_mov_b32 v3, {f32hex(c0)}")
    A(f"v_mov_b32 v4, {f32hex(c1)}"); A(f"v_mov_b32 v5, {f32hex(c1)}")
    A("v_mov_b32 v6, 1.0"); A("v_mov_b32 v7, 1.0")
    T = 64
    for t in range(2):
        for u in range(3):
            a = ACC + (t * 3 + u) * 16
            p = 32 + ((t * 3 + u) & 1) * 8
            pr = lambda b, i: f"v[{b+2*i}:{b+2*i+1}]"
            for i in range(8): A(f"v_pk_mul_f32 {pr(T,i)}, {pr(a,i)}, {pr(a,i)}")
            for i in range(8): A(f"v_pk_fma_f32 {pr(T,i)}, {pr(T,i)}, v[4:5], v[2:3]")
            for i in range(8): A(f"v_pk_mul_f32 {pr(T,i)}, {pr(T,i)}, {pr(a,i)}")
            for i in range(16): A(f"v_exp_f32 v{T+i}, v{T+i}")
            for i in range(8): A(f"v_pk_add_f32 {pr(T,i)}, {pr(T,i)}, v[6:7]")
            for i in range(16): A(f"v_rcp_f32 v{T+i}, v{T+i}")
            for i in range(8): A(f"v_pk_mul_f32 {pr(T,i)}, {pr(T,i)}, {pr(a,i)}")
            for i in range(8): A(f"v_cvt_pk_bf16_f32 v{p+i}, v{T+2*i}, v{T+2*i+1}")
            va = 16 if u < 2 else 17
            off = (2 * u * 1024) % 4096
            A(f"buffer_store_dwordx4 v[{p}:{p+3}], v{va}, s[16:19], s{57+t} offen offset:{off}")
            A(f"buffer_store_dwordx4 v[{p+4}:{p+7}], v{va}, s[16:19], s{57+t} offen offset:{off+1024}")
    stamp(A, 4); stamp_flush(A, 5, 6, 1, 25); tl_end(A, 1)
    A("k1_done:")
    A("s_endpgm")
    lds = 3 * max(SS1, SS2)
    return kernel_desc(name, 256), f"; @launch kernel=k1_kernel grid=(248,1,1) block=(256,1,1) lds={lds}"
```

```python
class Asm:
    def __init__(self):
        self.lines = []
        self.uid = 0
    def __call__(self, s):
        for l in s.strip("\n").split("\n"):
            l = l.strip().replace(" lds nt", " nt lds")
            if l:
                self.lines.append(("" if l.endswith(":") else "    ") + l)
    def label(self, base="L"):
        self.uid += 1
        return f"{base}_{self.uid}"
    def text(self):
        return "\n".join(self.lines) + "\n"

def vr(a, n):
    return f"v[{a}:{a+n-1}]" if n > 1 else f"v{a}"
def sr(a, n):
    return f"s[{a}:{a+n-1}]" if n > 1 else f"s{a}"

def kernel_begin(A, name):
    A.lines.append(".text")
    A.lines.append(f".globl {name}")
    A.lines.append(".p2align 8")
    A.lines.append(f".type {name},@function")
    A.lines.append(f"{name}:")

def kernel_desc(name, nvgpr, nsgpr=102, accum=None):
    acc = accum if accum is not None else ((nvgpr + 3) // 4) * 4
    return f""".section .rodata,"a"
.p2align 6
.amdhsa_kernel {name}
  .amdhsa_next_free_vgpr {nvgpr}
  .amdhsa_next_free_sgpr {nsgpr}
  .amdhsa_accum_offset {acc}
  .amdhsa_group_segment_fixed_size 0
  .amdhsa_kernarg_size 88
  .amdhsa_user_sgpr_count 2
  .amdhsa_user_sgpr_kernarg_segment_ptr 1
  .amdhsa_system_sgpr_workgroup_id_x 1
.end_amdhsa_kernel
"""

def srd(A, d, plo, size, off=0):
    if off:
        A(f"s_add_u32 s{d}, s{plo}, {hex(off)}")
        A(f"s_addc_u32 s{d+1}, s{plo+1}, 0")
    else:
        A(f"s_mov_b32 s{d}, s{plo}")
        A(f"s_mov_b32 s{d+1}, s{plo+1}")
    A(f"s_mov_b32 s{d+2}, {hex(size)}")
    A(f"s_mov_b32 s{d+3}, 0x00020000")

import struct
def f32hex(x):
    return hex(struct.unpack("<I", struct.pack("<f", x))[0])

import os
STAMP = bool(os.environ.get("STAMP"))
STAMP_OFF = 0x4000000
def stamp(A, idx):
    if STAMP:
        A(f"s_memtime s[{80+2*idx}:{81+2*idx}]")
        if idx == 0:
            A("s_memrealtime s[96:97]")
def stamp_flush(A, n, wsp, kidx, wave_sgpr):
    if not STAMP: return
    A("s_waitcnt vmcnt(0) lgkmcnt(0)")
    stamp(A, n)
    A("s_memrealtime s[98:99]")
    A("s_waitcnt lgkmcnt(0)")
    srd(A, 72, wsp, 1 << 20, STAMP_OFF + kidx * (1 << 20))
    A("s_lshl_b32 s76, s2, 4")
    A(f"s_add_u32 s76, s76, s{wave_sgpr}")
    A("s_lshl_b32 s76, s76, 6")
    for i in range(n + 1):
        A(f"v_mov_b32 v1, s{80+2*i}")
        A(f"v_mov_b32 v2, s76")
        A(f"buffer_store_dword v1, v2, s[72:75], 0 offen offset:{4*i}")
    for i, r in ((14, 96), (15, 98)):
        A(f"v_mov_b32 v1, s{r}")
        A(f"buffer_store_dword v1, v2, s[72:75], 0 offen offset:{4*i}")

TL = bool(os.environ.get("TIMELINE"))
def tl_start(A, k):
    if not TL: return
    A("s_memrealtime s[100:101]")
def tl_end(A, k):
    if not TL: return
    A("s_waitcnt vmcnt(0) lgkmcnt(0)")
    A("s_load_dwordx2 s[72:73], s[0:1], 72")
    A("s_memrealtime s[98:99]")
    A("s_waitcnt lgkmcnt(0)")
    A(f"s_add_u32 s72, s72, {512*(int(os.environ['TIMELINE'])-1-k)}")
    A("s_addc_u32 s73, s73, 0")
    A("s_mov_b32 s74, 256")
    A("s_mov_b32 s75, 0x00020000")
    A("s_mov_b64 exec, 1")
    A("v_mov_b32 v1, s98")
    A("v_mov_b32 v2, 0")
    A("s_not_b32 s100, s100")
    A("v_mov_b32 v3, s100")
    A(f"buffer_atomic_umax v1, v2, s[72:75], 0 offen offset:{8*k+4}")
    A(f"buffer_atomic_umax v3, v2, s[72:75], 0 offen offset:{8*k}")

def tl_mid(A, i):
    if TL: A(f"s_memrealtime s[{84+2*i}:{85+2*i}]")
def tl_mid_flush(A, n):
    if not TL: return
    for i in range(n):
        A(f"v_mov_b32 v1, s{84+2*i}")
        A(f"buffer_atomic_umax v1, v2, s[72:75], 0 offen offset:{40+4*i}")
    A("s_not_b32 s100, s100")
    A("v_mov_b32 v1, s100")
    A(f"buffer_atomic_umax v1, v2, s[72:75], 0 offen offset:{40+4*n}")
```

```python
from asmlib import *
from layout import *

def red32(A, v, tmp):
    for mod in ("quad_perm:[1,0,3,2]", "quad_perm:[2,3,0,1]", "row_half_mirror", "row_mirror"):
        A("s_nop 1")
        A(f"v_add_f32_dpp v{v}, v{v}, v{v} {mod} row_mask:0xf bank_mask:0xf")
    A(f"v_mov_b32 v{tmp}, v{v}")
    A("s_nop 1")
    A(f"v_permlane16_swap_b32 v{v}, v{tmp}")
    A("s_nop 1")
    A(f"v_add_f32 v{v}, v{v}, v{tmp}")

def bf16r(A, v):
    A(f"v_cvt_pk_bf16_f32 v{v}, v{v}, v{v}")
    A(f"v_and_b32 v{v}, 0xffff0000, v{v}")

def layernorm(A, X, P, t0):
    s, tmp, m, r = t0, t0 + 1, t0 + 2, t0 + 3
    A(f"v_add_f32 v{s}, v{X}, v{X+1}")
    for i in range(2, 20):
        A(f"v_add_f32 v{s}, v{s}, v{X+i}")
    red32(A, s, tmp)
    A(f"v_mul_f32 v{m}, {f32hex(1.0/640)}, v{s}")
    A(f"v_sub_f32 v{tmp}, v{X}, v{m}")
    A(f"v_mul_f32 v{s}, v{tmp}, v{tmp}")
    for i in range(1, 20):
        A(f"v_sub_f32 v{tmp}, v{X+i}, v{m}")
        A(f"v_fmac_f32 v{s}, v{tmp}, v{tmp}")
    red32(A, s, tmp)
    A(f"v_mul_f32 v{s}, {f32hex(1.0/640)}, v{s}")
    bf16r(A, s)
    bf16r(A, m)
    A(f"v_add_f32 v{s}, {f32hex(1e-5)}, v{s}")
    bf16r(A, s)
    A(f"v_sqrt_f32 v{s}, v{s}")
    A("s_nop 0")
    bf16r(A, s)
    A(f"v_rcp_f32 v{r}, v{s}")
    for i in range(20):
        A(f"v_sub_f32 v{X+i}, v{X+i}, v{m}")
    for i in range(10):
        A(f"v_cvt_pk_bf16_f32 v{P+i}, v{X+2*i}, v{X+2*i+1}")
    for i in range(10):
        A(f"v_lshlrev_b32 v{X+2*i}, 16, v{P+i}")
        A(f"v_and_b32 v{X+2*i+1}, 0xffff0000, v{P+i}")
    for i in range(20):
        A(f"v_mul_f32 v{X+i}, v{X+i}, v{r}")
    for i in range(10):
        A(f"v_cvt_pk_bf16_f32 v{P+i}, v{X+2*i}, v{X+2*i+1}")
    for i in range(10):
        A(f"v_lshlrev_b32 v{X+2*i}, 16, v{P+i}")
        A(f"v_and_b32 v{X+2*i+1}, 0xffff0000, v{P+i}")

def gen_k0(A):
    name = "k0_kernel"
    kernel_begin(A, name)
    A("s_cmp_ge_u32 s2, 256")
    A("s_cbranch_scc1 k0_done")
    tl_start(A, 0)
    A("s_load_dwordx2 s[4:5], s[0:1], 0")
    A("s_load_dwordx2 s[6:7], s[0:1], 80")
    A("s_load_dwordx2 s[40:41], s[0:1], 16")
    A("s_load_dwordx2 s[42:43], s[0:1], 48")
    A("v_lshrrev_b32 v1, 6, v0")
    A("s_nop 0")
    A("v_readfirstlane_b32 s25, v1")
    A("v_lshrrev_b32 v1, 5, v0")
    A("s_lshl_b32 s3, s2, 3")
    A("v_add_u32 v1, s3, v1")
    A("v_mul_u32_u24 v1, 1280, v1")
    A("v_and_b32 v2, 31, v0")
    A("v_lshl_add_u32 v1, v2, 3, v1")
    A("s_waitcnt lgkmcnt(0)")
    tl_mid(A, 0)
    srd(A, 8, 4, XSZ)
    srd(A, 12, 6, XSZ, XN_OFF)
    srd(A, 16, 6, XSZ, Y_OFF)
    P, X, P2, T = 4, 16, 40, 52
    for j in range(5):
        A(f"buffer_load_dwordx2 v[{P+2*j}:{P+2*j+1}], v1, s[8:11], 0 offen offset:{256*j}")
    srd(A, 28, 6, 0x500000, W2F_OFF)
    A("s_lshl_b32 s26, s2, 2")
    A("s_add_u32 s26, s26, s25")
    A("v_bfe_u32 v3, v0, 5, 1")
    A("v_and_b32 v60, 63, v0")
    A("v_lshlrev_b32 v60, 4, v60")
    PK = 64
    for f in range(3):
        r = PK + 4 * f
        A(f"s_add_u32 s27, s26, {1024*f}")
        lab = f"k0_pk{f}"
        if f == 2:
            A("s_cmp_ge_u32 s27, 2720")
            A(f"s_cbranch_scc1 {lab}_skip")
        A("s_cmp_ge_u32 s27, 1920")
        A(f"s_cbranch_scc1 {lab}_wo")
        A("s_mul_i32 s32, s27, 683")
        A("s_lshr_b32 s32, s32, 16")
        A("s_mul_i32 s33, s32, 96")
        A("s_sub_u32 s33, s27, s33")
        A("s_lshl_b32 s34, s33, 4")
        A("s_mov_b32 s35, 4")
        A(f"s_mov_b32 s36, {8*1280}")
        A(f"s_lshl_b32 s{44+f}, s27, 10")
        A("s_mov_b32 s20, s42"); A("s_mov_b32 s21, s43"); A(f"s_mov_b32 s22, {1536*1280}")
        A(f"s_branch {lab}_go")
        A(f"{lab}_wo:")
        A("s_sub_u32 s37, s27, 1920")
        A("s_mul_i32 s32, s37, 1639")
        A("s_lshr_b32 s32, s32, 16")
        A("s_mul_i32 s33, s32, 40")
        A("s_sub_u32 s33, s37, s33")
        A(f"s_lshl_b32 s{44+f}, s37, 10")
        A(f"s_add_u32 s{44+f}, s{44+f}, {WOF_OFF - W2F_OFF}")
        A("s_mul_i32 s34, s33, 20")
        A("s_mov_b32 s35, 4")
        A(f"s_mov_b32 s36, {8*1280}")
        A("s_mov_b32 s20, s40"); A("s_mov_b32 s21, s41"); A(f"s_mov_b32 s22, {640*1280}")
        A("s_cmp_lt_u32 s33, 32")
        A(f"s_cbranch_scc1 {lab}_go")
        A("s_sub_u32 s33, s33, 32")
        A("s_mul_i32 s34, s33, 80")
        A("s_add_u32 s34, s34, 16")
        A("s_mov_b32 s35, 40")
        A(f"s_mov_b32 s36, {20*1280}")
        A(f"{lab}_go:")
        A("s_mov_b32 s23, 0x00020000")
        A("v_mul_u32_u24 v61, s35, v3")
        A("v_add_u32 v61, s34, v61")
        A("v_mul_u32_u24 v61, 1280, v61")
        A("s_lshl_b32 s32, s32, 6")
        A("v_lshl_add_u32 v62, v2, 1, s32")
        A("v_add_u32 v61, v61, v62")
        for e in range(8):
            so = "s36" if e >= 4 else "0"
            A(f"buffer_load_ushort v{80 + 8*f + e}, v61, s[20:23], {so} offen offset:{(e&3)*1280}")
        if f == 2:
            A(f"{lab}_skip:")
    A("s_cmp_ge_u32 s26, 128")
    A("s_cbranch_scc1 k0_noones")
    srd(A, 48, 6, 32 * 64 * KVREC, KV_OFF)
    A("v_and_b32 v61, 63, v0")
    A("s_lshl_b32 s32, s26, 6")
    A("v_add_u32 v61, s32, v61")
    A("v_lshrrev_b32 v62, 2, v61")
    A("v_and_b32 v61, 3, v61")
    A(f"v_mul_u32_u24 v62, {KVREC}, v62")
    A(f"v_mul_u32_u24 v61, {VSB}, v61")
    A("v_add_u32 v61, v61, v62")
    for i in range(4): A(f"v_mov_b32 v{76+i}, 0x3f803f80")
    A(f"buffer_store_dwordx4 v[76:79], v61, s[48:51], 0 offen offset:{1280 + 320}")
    A("k0_noones:")
    tl_mid(A, 1)
    A("s_waitcnt vmcnt(0)")
    tl_mid(A, 2)
    for f in range(3):
        r = PK + 4 * f
        if f == 2:
            A(f"s_cmp_ge_u32 s27, 2720")
            A("s_cbranch_scc1 k0_nost2")
        for e in range(4):
            A(f"v_lshl_or_b32 v{r+e}, v{80+8*f+2*e+1}, 16, v{80+8*f+2*e}")
        A(f"buffer_store_dwordx4 v[{r}:{r+3}], v60, s[28:31], s{44+f} offen")
    A("k0_nost2:")
    for i in range(10):
        A(f"v_lshlrev_b32 v{X+2*i}, 16, v{P+i}")
        A(f"v_and_b32 v{X+2*i+1}, 0xffff0000, v{P+i}")
    layernorm(A, X, P, T)
    for j in range(5):
        A(f"buffer_store_dwordx2 v[{P+2*j}:{P+2*j+1}], v1, s[12:15], 0 offen offset:{256*j}")
    layernorm(A, X, P2, T)
    for j in range(5):
        A(f"buffer_store_dwordx2 v[{P2+2*j}:{P2+2*j+1}], v1, s[16:19], 0 offen offset:{256*j}")
    tl_mid(A, 3)
    tl_end(A, 0); tl_mid_flush(A, 4)
    A("k0_done:")
    A("s_endpgm")
    return kernel_desc(name, 104), "; @launch kernel=k0_kernel grid=(256,1,1) block=(256,1,1) lds=0"
```

```python
from asmlib import *
from layout import *
import math, os

QA1, QA2, QB1, QB2 = 16, 20, 22, 26
B2R = 28
VW = 36
SA, SB = 68, 84
PA, PB = 100, 108
OA, OB_ = 116, 132
KF = [(148, 152), (154, 158)]
VF = [(160, 164), (168, 172)]
MO, M5 = 176, 192
MF = 208
F5 = 240
VK1, VK2, VV = 4, 5, 6
VP = 8
VD = 12
SLOT = 24576
XCH = 2 * SLOT
X5 = XCH + 40960
FLAG = X5 + 32768
LDS_BYTES = FLAG + 64
OOB = 0x40000

def m16(d, a, b, c):
    return f"v_mfma_f32_32x32x16_bf16 {vr(d,16)}, {vr(a,4)}, {vr(b,4)}, {c}"
def m8(d, a, b, c):
    return f"v_mfma_f32_32x32x8_bf16 {vr(d,16)}, {vr(a,2)}, {vr(b,2)}, {c}"

def phase(out, s, p, mf, slots):
    E = lambda i: f"v_exp_f32 v{s+i}, v{s+i}"
    C = lambda i: f"v_cvt_pk_bf16_f32 v{p+i}, v{s+2*i}, v{s+2*i+1}"
    groups = [[E(0), E(1), E(2), E(3), C(0)],
              [E(4), E(5), C(1), E(6), E(7)],
              [C(2), E(8), E(9), C(3), E(10)],
              [E(11), C(4), E(12), E(13), C(5)],
              [E(14), E(15), C(6), C(7)]]
    X = os.environ.get("K2X", "")
    if "ord2" in X:
        groups = [[E(0), E(1), E(2), E(3), E(4)],
                  [E(5), C(0), E(6), E(7), C(1)],
                  [E(8), E(9), C(2), E(10), E(11)],
                  [C(3), E(12), E(13), C(4), E(14)],
                  [E(15), C(5), C(6), C(7)]]
    if "ord3" in X:
        groups = [[E(i) for i in range(0, 4)], [E(i) for i in range(4, 8)], [E(i) for i in range(8, 12)], [E(i) for i in range(12, 16)], [C(i) for i in range(8)]]
    for g in range(5):
        out += mf[g]
        out += slots[g]
        out += groups[g]

def rdK(buf, off):
    return [f"ds_read_b128 {vr(KF[buf][0],4)}, v{VK1} offset:{off}", f"ds_read_b64 {vr(KF[buf][1],2)}, v{VK2} offset:{off}"]
def rdV(buf, off):
    return [f"ds_read_b128 {vr(VF[buf][0],4)}, v{VV} offset:{off}", f"ds_read_b128 {vr(VF[buf][1],4)}, v{VV} offset:{off+2*VSB}"]
def toff(i):
    i %= 8
    return (i // 4) * SLOT + (i % 4) * 2 * KVREC

def rowmax(A, s, acc, first):
    if first:
        A(f"v_max3_f32 v{acc}, v{s}, v{s+1}, v{s+2}")
        A(f"v_max_f32 v{acc}, v{acc}, v{s+3}")
        st = 4
    else:
        st = 0
    for i in range(st, 16, 2):
        A(f"v_max3_f32 v{acc}, v{acc}, v{s+i}, v{s+i+1}")

def set_nc(A, acc, q2, tmp):
    A(f"v_mov_b32 v{tmp}, v{acc}")
    A("s_nop 1")
    A(f"v_permlane32_swap_b32 v{acc}, v{tmp}")
    A("s_nop 1")
    A(f"v_max_f32 v{acc}, v{acc}, v{tmp}")
    A(f"v_cvt_pk_bf16_f32 v{tmp}, -v{acc}, -v{acc}")
    A(f"v_lshlrev_b32 v{tmp}, 16, v{tmp}")
    A(f"v_sub_f32 v{tmp}, -v{acc}, v{tmp}")
    A("s_mov_b32 exec_lo, 0")
    A(f"v_cvt_pk_bf16_f32 v{q2}, -v{acc}, v{tmp}")
    A("s_mov_b64 exec, -1")

def dma_ops(slot):
    L = [f"s_add_u32 m0, s46, {slot*SLOT}", "s_nop 0"]
    for j in range(3):
        L.append(f"buffer_load_dwordx4 v{VD}, s[20:23], s47 offen offset:{j*1024} lds")
    L.append(f"s_add_u32 s47, s47, {8*KVREC}")
    return L

def mlp_loads(st):
    p = st % 4; b = MF + (st % 4) * 8
    L = [(f"buffer_load_dwordx4 {vr(b,4)}, v{VP+p}, s[24:27], s48 offen", f"h{st}"),
         (f"buffer_load_dwordx4 {vr(b+4,4)}, v{VW+p}, s[28:31], s49 offen", f"w{st}")]
    if p == 0:
        L.append((f"buffer_load_dwordx4 {vr(F5 + ((st//4) % 2) * 4, 4)}, v{VP}, s[28:31], s50 offen", f"f{st}"))
    if p == 3:
        L += ["s_add_u32 s48, s48, 4096", "s_add_u32 s49, s49, 4096", "s_add_u32 s50, s50, 4096"]
    return L

def resolve_waits(body):
    isv = lambda x: (x[0] if isinstance(x, tuple) else x).startswith("buffer_")
    n = len(body)
    out = []
    for i, x in enumerate(body):
        if isinstance(x, tuple) and x[0] == "WAIT":
            cnt = 0; j = i
            while True:
                j = (j - 1) % n
                y = body[j]
                if isinstance(y, tuple) and y[0] != "WAIT" and y[1] == x[1]:
                    break
                if not (isinstance(y, tuple) and y[0] == "WAIT") and isv(y):
                    cnt += 1
                assert j != i
            out.append(f"s_waitcnt vmcnt({cnt})")
        else:
            out.append(x[0] if isinstance(x, tuple) else x)
    return out


def build_body():
    mm = []
    for st in range(12):
        b = MF + (st % 4) * 8
        mm.append(([("WAIT", f"w{st}"), m16(MO, b + 4, b, vr(MO, 16))], st if st % 4 else None))
        if st % 4 == 0:
            mm.append(([("WAIT", f"f{st}"), m16(M5, F5 + ((st // 4) % 2) * 4, b, vr(M5, 16))], st))
    body = []
    ph = 0
    for i in range(8):
        b = i & 1; nb = b ^ 1
        k = rdK(nb, toff(i + 1)); v = rdV(nb, toff(i + 1))
        last = (i % 4 == 3)
        for half in range(2):
            if ph < 15:
                x5, fin = mm[ph]
                post = mlp_loads((fin + 3) % 12) if fin is not None else []
                if fin == 9:
                    post = ["s_cmp_lt_u32 s39, 3", "s_cselect_b32 s26, s26, 0", "s_cselect_b32 s30, s30, 0"] + post
            else:
                x5, post = [], []
            if half == 0:
                pre = [("WAIT", f"d{i//4}"), "s_waitcnt lgkmcnt(0)", "s_barrier"] if last else []
                dm = dma_ops(i // 4) if last else []
                if dm:
                    dm[4] = (dm[4], f"d{(i//4)^1}")
                    dm = ["s_cmp_lt_u32 s39, 3", "s_cselect_b32 s22, s22, 0"] + dm
                phase(body, SA, PA,
                      [[m16(SB, KF[b][0], QB1, "0")], [m8(SB, KF[b][1], QB2, vr(SB, 16))],
                       [m16(OB_, VF[nb][0], PB, vr(OB_, 16))], [m16(OB_, VF[nb][1], PB + 4, vr(OB_, 16))], x5],
                      [pre + k, [], dm, [], post + ["s_waitcnt lgkmcnt(0)"]])
            else:
                tail = ["s_add_u32 s39, s39, 1", "s_cmp_lt_u32 s39, 4"] if i == 7 else []
                phase(body, SB, PB,
                      [[m16(SA, KF[nb][0], QA1, "0")], [m8(SA, KF[nb][1], QA2, vr(SA, 16))],
                       [m16(OA, VF[b][0], PA, vr(OA, 16))], [m16(OA, VF[b][1], PA + 4, vr(OA, 16))], x5],
                      [v, [], [], [], post + tail])
            ph += 1
    return body

def prologue_vmem(body):
    i0 = next(i for i, x in enumerate(body) if isinstance(x, tuple) and x[1] == "h0" and x[0] != "WAIT")
    out = []
    for x in body[i0:]:
        if isinstance(x, tuple) and x[0] == "WAIT": continue
        t = x[0] if isinstance(x, tuple) else x
        if t.startswith("buffer_") or t.startswith("s_add_u32 m0") or t == "s_nop 0" or t.startswith("s_add_u32 s47") \
           or t.startswith("s_add_u32 s48") or t.startswith("s_add_u32 s49") or t.startswith("s_add_u32 s50"):
            out.append(t)
    return out

def gen_k2(A):
    name = "k2_kernel"
    kernel_begin(A, name)
    A("s_cmp_ge_u32 s2, 256")
    A("s_cbranch_scc1 k2_done")
    stamp(A, 0); tl_start(A, 2)
    A("s_load_dwordx2 s[6:7], s[0:1], 80")
    A("s_load_dwordx2 s[4:5], s[0:1], 56")
    A("v_lshrrev_b32 v1, 6, v0")
    A("s_nop 0")
    A("v_readfirstlane_b32 s64, v1")
    A("s_and_b32 s32, s2, 7")
    A("s_lshr_b32 s33, s2, 3")
    A("s_lshl_b32 s34, s32, 2")
    A("s_lshr_b32 s35, s33, 3")
    A("s_add_u32 s34, s34, s35")
    A("s_and_b32 s35, s33, 7")
    A("s_and_b32 s65, s64, 3")
    A("s_lshr_b32 s66, s64, 2")
    A("v_and_b32 v1, 63, v0")
    A(f"v_lshlrev_b32 v{VK1}, 4, v1")
    A("s_mul_i32 s46, s64, 3072")
    A(f"v_add_u32 v{VD}, s46, v{VK1}")
    A(f"s_mul_i32 s45, s34, {64*KVREC}")
    A("s_cmp_eq_u32 s64, 7")
    A(f"s_cselect_b32 s51, 0, {32 * 64 * KVREC}")
    A("s_mov_b32 s38, 0")
    A("s_lshl_b32 s36, s35, 3")
    A("s_lshl_b32 s37, s65, 1")
    A("s_add_u32 s36, s36, s37")
    A("s_add_u32 s36, s36, s66")
    A("s_lshl_b32 s37, s34, 6")
    A("s_add_u32 s37, s37, s36")
    A("s_xor_b32 s44, s37, 1")
    A("s_mul_i32 s37, s37, 1280")
    A("s_mul_i32 s44, s44, 1280")
    A("v_and_b32 v2, 31, v1")
    A("v_lshrrev_b32 v3, 5, v1")
    A(f"v_lshlrev_b32 v{VK2}, 3, v2")
    A(f"v_add_u32 v{VK2}, 1024, v{VK2}")
    for r in (QA2, QA2 + 1, QB2, QB2 + 1): A(f"v_mov_b32 v{r}, 0")
    A("s_lshr_b32 s52, s32, 1")
    A("s_lshl_b32 s52, s52, 4")
    A("s_and_b32 s53, s33, 15")
    A("s_add_u32 s52, s52, s53")
    A("s_and_b32 s53, s32, 1")
    A("s_lshl_b32 s53, s53, 1")
    A("s_lshr_b32 s54, s33, 4")
    A("s_add_u32 s53, s53, s54")
    A("s_lshl_b32 s55, s66, 8")
    A(f"v_xor_b32 v7, s55, v{VK1}")
    for p in range(4):
        A(f"s_xor_b32 s54, s65, {p}")
        A("s_lshl_b32 s54, s54, 10")
        A(f"v_add_u32 v{VP+p}, s54, v{VK1}")
        A(f"v_add_u32 v{VW+p}, s54, v7")
    A("s_mul_i32 s54, s53, 320")
    A("s_lshl_b32 s55, s65, 6")
    A("s_add_u32 s55, s55, s54")
    A("s_lshl_b32 s56, s66, 5")
    A("s_add_u32 s55, s55, s56")
    A("v_lshlrev_b32 v15, 3, v3")
    A("v_add_u32 v13, s55, v15")
    A("s_lshr_b32 s55, s64, 1")
    A("s_lshl_b32 s55, s55, 4")
    A("s_and_b32 s56, s64, 1")
    A("s_lshl_b32 s56, s56, 2")
    A("s_add_u32 s55, s55, s56")
    A("s_add_u32 s55, s55, s54")
    A("s_add_u32 s55, s55, 256")
    A("v_add_u32 v14, s55, v15")
    A("s_waitcnt lgkmcnt(0)")
    srd(A, 20, 6, 32 * 64 * KVREC, KV_OFF)
    srd(A, 8, 6, 32 * 64 * 1280, Q_OFF)
    A("s_mov_b32 s22, s51")
    A("s_mov_b32 s47, s45")
    for l in dma_ops(0): A(l)
    A(f"buffer_load_dwordx4 {vr(QA1,4)}, v{VK1}, s[8:11], s37 offen")
    A(f"buffer_load_dwordx4 {vr(QB1,4)}, v{VK1}, s[8:11], s44 offen")
    A("s_mov_b32 exec_hi, 0")
    A(f"buffer_load_dwordx2 {vr(QA2,2)}, v{VK2}, s[8:11], s37 offen")
    A(f"buffer_load_dwordx2 {vr(QB2,2)}, v{VK2}, s[8:11], s44 offen")
    A("s_mov_b64 exec, -1")
    srd(A, 16, 4, 1280)
    for j in range(2):
        A(f"buffer_load_dwordx2 {vr(B2R+2*j,2)}, v13, s[16:19], 0 offen offset:{16*j}")
    A(f"buffer_load_dword v{B2R+4}, v14, s[16:19], 0 offen")
    srd(A, 24, 6, 64 * 96 * 1024, HB_OFF)
    srd(A, 28, 6, 20 * 96 * 1024, W2F_OFF)
    srd(A, 12, 6, 64 * 40 * 1024, OB_OFF)
    srd(A, 16, 6, XSZ, BM_OFF)
    A("s_lshl_b32 s54, s52, 2")
    A("s_add_u32 s54, s54, s53")
    A("s_mul_i32 s54, s54, 10240")
    A("s_lshl_b32 s55, s65, 1")
    A("s_add_u32 s55, s55, s66")
    A("s_lshl_b32 s55, s55, 10")
    A("s_add_u32 s55, s55, s54")
    A(f"v_add_u32 v13, s55, v{VK1}")
    A("s_add_u32 s55, s66, 8")
    A("s_lshl_b32 s55, s55, 10")
    A("s_add_u32 s55, s55, s54")
    A("s_lshl_b32 s56, s65, 2")
    A("s_add_u32 s55, s55, s56")
    A(f"v_add_u32 v14, s55, v{VK1}")
    A(f"v_mul_u32_u24 v15, {VSB}, v3")
    A(f"v_lshl_add_u32 v{VV}, v2, 4, v15")
    A(f"v_add_u32 v{VV}, 1280, v{VV}")
    A("v_cmp_lt_u32 vcc, 20, v2")
    A(f"v_mov_b32 v15, {OOB}")
    A("v_cmp_lt_u32 s[58:59], 31, v1")
    A(f"v_mov_b32 v7, {1280+320}")
    A(f"v_cndmask_b32 v{VV}, v{VV}, v15, vcc")
    A(f"v_cndmask_b32 v{VK2}, v{VK2}, v7, s[58:59]")
    A(f"s_mul_i32 s57, s66, {KVREC}")
    A(f"v_mov_b32 v7, {FLAG}")
    A("v_mov_b32 v15, 0")
    A("ds_write_b32 v7, v15")
    A("s_branch k2_main2")
    A("k2_main:")
    A("s_mov_b32 s22, s51")
    A("s_mov_b32 s47, s45")
    for l in dma_ops(0): A(l)
    A("k2_main2:")
    A(f"s_mov_b32 s26, {64 * 96 * 1024}")
    A(f"s_mov_b32 s30, {20 * 96 * 1024}")
    A("s_mul_i32 s54, s66, 48")
    A("s_mul_i32 s48, s52, 96")
    A("s_add_u32 s48, s48, s54")
    A("s_lshl_b32 s48, s48, 10")
    A("s_mul_i32 s49, s53, 5")
    A("s_add_u32 s50, s49, 4")
    A("s_add_u32 s49, s49, s65")
    for r in (49, 50):
        A(f"s_mul_i32 s{r}, s{r}, 96")
        A(f"s_add_u32 s{r}, s{r}, s54")
        A(f"s_lshl_b32 s{r}, s{r}, 10")
    body = build_body()
    pv = prologue_vmem(body)
    npv = 0
    for r in list(range(OA, OA + 32)) + list(range(PB, PB + 8)) + list(range(VF[1][0], VF[1][0] + 8)) + list(range(MO + 8, MO + 32)):
        A(f"v_mov_b32 v{r}, 0")
    A(f"s_waitcnt vmcnt({npv}) lgkmcnt(0)")
    for e in range(4):
        A(f"v_lshlrev_b32 v{MO+2*e}, 16, v{B2R+e}")
        A(f"v_and_b32 v{MO+2*e+1}, 0xffff0000, v{B2R+e}")
    stamp(A, 1)
    A("s_barrier")
    A("s_cmp_lg_u32 s38, 0")
    A("s_cbranch_scc1 k2_havemax")
    for l in rdK(1, 0): A(l)
    for r in (VK1, VK2, VV): A(f"v_add_u32 v{r}, s57, v{r}")
    for l in rdK(0, 0) + rdV(0, 0): A(l)
    for l in pv[:2]: A(l)
    A("s_waitcnt lgkmcnt(4)")
    A(m16(SA, KF[1][0], QA1, "0")); A(m8(SA, KF[1][1], QA2, vr(SA, 16)))
    A(m16(SB, KF[1][0], QB1, "0")); A(m8(SB, KF[1][1], QB2, vr(SB, 16)))
    for l in pv[2:5]: A(l)
    A("s_nop 6")
    rowmax(A, SA, 2, True)
    set_nc(A, 2, QA2, 7)
    A("s_waitcnt lgkmcnt(0)")
    A(m16(SA, KF[0][0], QA1, "0")); A(m8(SA, KF[0][1], QA2, vr(SA, 16)))
    for l in pv[5:11]: A(l)
    rowmax(A, SB, 3, True)
    set_nc(A, 3, QB2, 7)
    for l in pv[11:]: A(l)
    A("s_branch k2_go")
    A("k2_havemax:")
    for l in rdK(0, 0) + rdV(0, 0): A(l)
    for l in pv: A(l)
    A("s_waitcnt lgkmcnt(0)")
    A(m16(SA, KF[0][0], QA1, "0")); A(m8(SA, KF[0][1], QA2, vr(SA, 16)))
    A("s_nop 10")
    A("k2_go:")
    A("s_mov_b32 s39, 0")
    stamp(A, 2)
    A(".p2align 3")
    A("k2_loop:")
    rb = resolve_waits(body)
    X = os.environ.get("K2X", "")
    for l in rb:
        if "nobar" in X and l == "s_barrier": continue
        if "nomlp" in X and (("s[24:27]" in l) or ("s[28:31]" in l) or l.startswith(f"v_mfma_f32_32x32x16_bf16 v[{MO}:") or l.startswith(f"v_mfma_f32_32x32x16_bf16 v[{M5}:")): continue
        A(l)
    A("s_cbranch_scc1 k2_loop")
    A("s_nop 1")
    A(m16(OB_, VF[1][0], PB, vr(OB_, 16))); A(m16(OB_, VF[1][1], PB + 4, vr(OB_, 16)))
    stamp(A, 3)
    A("v_and_b32 v1, 63, v0")
    A("v_lshlrev_b32 v2, 4, v1")
    A("s_lshl_b32 s40, s64, 12")
    A(f"s_add_u32 s40, s40, {X5}")
    A("v_add_u32 v3, s40, v2")
    A("s_mul_i32 s40, s64, 5120")
    A(f"s_add_u32 s40, s40, {XCH}")
    A("v_add_u32 v7, s40, v2")
    for q in range(4):
        A(f"ds_write_b128 v3, {vr(M5+4*q,4)} offset:{q*1024}")
    for q, r in enumerate([MO + 8, MO + 12]):
        A(f"ds_write_b128 v7, {vr(r,4)} offset:{q*1024}")
    A("s_xor_b32 s40, s64, 4")
    A("s_mul_i32 s40, s40, 5120")
    A(f"s_add_u32 s40, s40, {XCH}")
    A("v_add_u32 v15, s40, v2")
    A("s_lshr_b32 s40, s64, 1")
    A("s_lshl_b32 s40, s40, 10")
    A("s_and_b32 s41, s64, 1")
    A("s_lshl_b32 s41, s41, 3")
    A("s_add_u32 s40, s40, s41")
    A(f"s_add_u32 s40, s40, {X5}")
    A("v_add_u32 v3, s40, v2")
    A("s_nop 0")
    for q, r in enumerate([OB_, OB_ + 4, OB_ + 8]):
        A(f"ds_write_b128 v7, {vr(r,4)} offset:{(2+q)*1024}")
    A("s_mul_i32 s40, s36, 40")
    A("s_add_u32 s41, s40, s34")
    A("s_lshl_b32 s41, s41, 10")
    A("s_lshr_b32 s42, s34, 2")
    A("s_add_u32 s42, s42, s40")
    A("s_add_u32 s42, s42, 32")
    A("s_lshl_b32 s42, s42, 10")
    A("s_bfe_u32 s43, s34, 0x10001")
    A("s_lshl_b32 s43, s43, 9")
    A("s_add_u32 s42, s42, s43")
    A("s_and_b32 s43, s34, 1")
    A("s_lshl_b32 s43, s43, 3")
    A("s_add_u32 s42, s42, s43")
    A(f"s_mov_b32 s40, {f32hex(2.0**64)}")
    A("s_waitcnt lgkmcnt(0)")
    stamp(A, 4)
    A("s_barrier")
    stamp(A, 5)
    for q in (2, 3, 4, 0, 1):
        A(f"ds_read_b128 {vr(SA+4*q,4)}, v15 offset:{q*1024}")
    for q in range(8):
        A(f"ds_read_b64 {vr(148+2*q,2)}, v3 offset:{q*4096}")
    pr = lambda r: f"v[{r}:{r+1}]"
    A("v_mov_b32 v40, 0"); A("v_mov_b32 v41, 0"); A("v_mov_b32 v42, 0"); A("v_mov_b32 v43, 0")
    A(f"v_lshlrev_b32 v44, 16, v{B2R+4}")
    A(f"v_and_b32 v45, 0xffff0000, v{B2R+4}")
    A("s_waitcnt lgkmcnt(10)")
    for e in (8, 10, 0, 2, 4, 6):
        A(f"v_pk_add_f32 {pr(OA+e)}, {pr(OA+e)}, {pr(SA+8+e)}")
        if e == 10:
            A(f"v_mov_b32 v7, v{OA+8}")
            A(f"v_mov_b32 v46, v{OA+8}")
    A(f"v_permlane32_swap_b32 v7, v46")
    for e in range(0, 12, 2):
        A(f"v_pk_fma_f32 v[42:43], {pr(OA+e)}, v[40:41], v[42:43]")
    A("v_cmp_nlt_f32 s[58:59], v46, s40")
    A("v_cmp_u_f32 s[60:61], v42, v43")
    A("v_rcp_f32 v46, v46")
    A("s_nop 2")
    A("s_or_b64 s[58:59], s[58:59], s[60:61]")
    A("s_cbranch_scc0 k2_noflag")
    A(f"v_mov_b32 v7, {FLAG}")
    A("v_mov_b32 v15, 1")
    A("ds_write_b32 v7, v15")
    A("k2_noflag:")
    for e in range(0, 12, 2):
        A(f"v_pk_mul_f32 {pr(OA+e)}, {pr(OA+e)}, v[46:47] op_sel_hi:[1,0]")
    for i in range(6):
        A(f"v_cvt_pk_bf16_f32 v{PA+i}, v{OA+2*i}, v{OA+2*i+1}")
    A(f"buffer_store_dwordx4 {vr(PA,4)}, v2, s[12:15], s41 offen")
    A("s_mov_b32 exec_hi, 0")
    A(f"buffer_store_dwordx2 {vr(PA+4,2)}, v2, s[12:15], s42 offen")
    A("s_mov_b64 exec, -1")
    A("s_waitcnt lgkmcnt(0)")
    for e in range(0, 8, 2):
        A(f"v_pk_add_f32 {pr(MO+e)}, {pr(MO+e)}, {pr(SA+e)}")
    for e in range(4):
        A(f"v_cvt_pk_bf16_f32 v{PB+e}, v{MO+2*e}, v{MO+2*e+1}")
    A(f"buffer_store_dwordx4 {vr(PB,4)}, v13, s[16:19], 0 offen")
    for q in range(8):
        A(f"v_pk_add_f32 v[44:45], v[44:45], {pr(148+2*q)}")
    A(f"v_cvt_pk_bf16_f32 v{PB+4}, v44, v45")
    A(f"buffer_store_dword v{PB+4}, v14, s[16:19], 0 offen")
    A("s_waitcnt lgkmcnt(0)")
    stamp(A, 6)
    A("s_barrier")
    A(f"v_mov_b32 v7, {FLAG}")
    A("ds_read_b32 v15, v7")
    A("s_waitcnt lgkmcnt(0)")
    A("v_readfirstlane_b32 s41, v15")
    A("s_nop 3")
    A("s_cmp_eq_u32 s41, 0")
    A("s_cbranch_scc1 k2_fin")
    A("s_cmp_lg_u32 s38, 0")
    A("s_cbranch_scc1 k2_fin")
    A("s_mov_b32 s38, 1")
    A("s_waitcnt vmcnt(0)")
    A(f"v_mov_b32 v2, {f32hex(-3.0e38)}")
    A(f"v_mov_b32 v3, {f32hex(-3.0e38)}")
    A("s_mov_b32 exec_lo, 0")
    A(f"v_mov_b32 v{QA2}, 0")
    A(f"v_mov_b32 v{QB2}, 0")
    A("s_mov_b64 exec, -1")
    for r in (VK1, VK2): A(f"v_subrev_u32 v{r}, s57, v{r}")
    A("s_mov_b32 s22, s51")
    A("s_mov_b32 s47, s45")
    A("s_mov_b32 s39, 0")
    A("k2_maxloop:")
    for l in dma_ops(0): A(l)
    A("s_waitcnt vmcnt(0)")
    A("s_barrier")
    A("s_mov_b32 s40, 0")
    A("k2_maxin:")
    for l in rdK(0, 0): A(l)
    A("s_waitcnt lgkmcnt(0)")
    A(m16(SA, KF[0][0], QA1, "0")); A(m8(SA, KF[0][1], QA2, vr(SA, 16)))
    A(m16(SB, KF[0][0], QB1, "0")); A(m8(SB, KF[0][1], QB2, vr(SB, 16)))
    for r in (VK1, VK2): A(f"v_add_u32 v{r}, {KVREC}, v{r}")
    A("s_nop 15")
    rowmax(A, SA, 2, False); rowmax(A, SB, 3, False)
    A("s_add_u32 s40, s40, 1")
    A("s_cmp_lt_u32 s40, 8")
    A("s_cbranch_scc1 k2_maxin")
    for r in (VK1, VK2): A(f"v_subrev_u32 v{r}, {8*KVREC}, v{r}")
    A("s_barrier")
    A("s_add_u32 s39, s39, 1")
    A("s_cmp_lt_u32 s39, 8")
    A("s_cbranch_scc1 k2_maxloop")
    for r in (VK1, VK2): A(f"v_add_u32 v{r}, s57, v{r}")
    set_nc(A, 2, QA2, 7); set_nc(A, 3, QB2, 7)
    A("s_branch k2_main")
    A("k2_fin:")
    stamp_flush(A, 7, 6, 2, 64); tl_end(A, 2)
    A("k2_done:")
    A("s_endpgm")
    return kernel_desc(name, 256), f"; @launch kernel=k2_kernel grid=(256,1,1) block=(512,1,1) lds={LDS_BYTES}"
```

```python
from asmlib import *
from layout import *
import os

QP = 1040
WP = 20 * QP

def gen_k3(A):
    name = "k3_kernel"; kidx = 2
    nsteps = 40; spw = 10
    kernel_begin(A, name)
    A("s_cmp_ge_u32 s2, 256")
    A(f"s_cbranch_scc1 {name}_done")
    stamp(A, 0); tl_start(A, kidx)
    A("s_load_dwordx2 s[6:7], s[0:1], 80")
    A("s_load_dwordx2 s[4:5], s[0:1], 0")
    A("s_load_dwordx2 s[50:51], s[0:1], 64")
    A("v_lshrrev_b32 v1, 6, v0")
    A("s_nop 0")
    A("v_readfirstlane_b32 s25, v1")
    A("s_and_b32 s32, s2, 7")
    A("s_lshr_b32 s33, s2, 3")
    A("s_lshr_b32 s34, s32, 1")
    A("s_lshl_b32 s34, s34, 4")
    A("s_and_b32 s35, s33, 15")
    A("s_add_u32 s34, s34, s35")
    A("s_and_b32 s35, s32, 1")
    A("s_lshl_b32 s35, s35, 1")
    A("s_lshr_b32 s36, s33, 4")
    A("s_add_u32 s35, s35, s36")
    A("v_and_b32 v1, 63, v0")
    A("v_lshlrev_b32 v2, 4, v1")
    A(f"s_mul_i32 s37, s25, {spw}")
    A(f"s_mul_i32 s38, s34, {nsteps}")
    A("s_add_u32 s38, s38, s37")
    A("s_lshl_b32 s38, s38, 10")
    A(f"s_mul_i32 s39, s35, {5*nsteps}")
    A("s_add_u32 s39, s39, s37")
    A("s_lshl_b32 s40, s39, 10")
    for u in range(1, 5):
        A(f"s_add_u32 s{40+u}, s{39+u}, {nsteps*1024}")
    A("v_add_u32 v3, 4096, v2")
    A("v_add_u32 v4, 8192, v2")
    A("s_lshl_b32 s45, s34, 2")
    A("s_add_u32 s45, s45, s35")
    A("s_mul_i32 s45, s45, 10240")
    A("s_waitcnt lgkmcnt(0)")
    srd(A, 8, 6, 64 * nsteps * 1024, OB_OFF)
    srd(A, 12, 6, 20 * nsteps * 1024, WOF_OFF)
    srd(A, 16, 6, XSZ, BM_OFF)
    FR = 16
    def ld(s):
        va = 2 + s // 4; off = (s % 4) * 1024
        A(f"buffer_load_dwordx4 {vr(FR + s*24, 4)}, v{va}, s[8:11], s38 offen offset:{off}")
        for u in range(5):
            A(f"buffer_load_dwordx4 {vr(FR + s*24 + 4 + 4*u, 4)}, v{va}, s[12:15], s{40+u} offen offset:{off}")
    for s in range(spw): ld(s)
    srd(A, 20, 4, XSZ)
    srd(A, 28, 50, XSZ)
    A("s_lshl_b32 s46, s34, 5")
    A("s_mul_i32 s47, s35, 320")
    for c in range(3):
        t, q, g, l = 5, 6, 7 + c, 10 + c
        A(f"v_add_u32 v13, {256*c}, v0")
        A("v_mul_u32_u24 v5, 3277, v13")
        A("v_lshrrev_b32 v5, 16, v5")
        A("v_mul_u32_u24 v6, 20, v5")
        A("v_sub_u32 v6, v13, v6")
        A(f"v_mul_u32_u24 v{l}, {QP}, v6")
        A(f"v_lshl_add_u32 v{l}, v5, 4, v{l}")
        A("v_add_u32 v14, s46, v5")
        A("v_mul_u32_u24 v14, 1280, v14")
        A("v_lshl_add_u32 v14, v6, 4, v14")
        A(f"v_add_u32 v{g}, s47, v14")
        if c == 2:
            A("v_cmp_gt_u32 vcc, 640, v13")
            A("v_mov_b32 v14, 0x7fffffff")
            A("s_nop 0")
            A(f"v_cndmask_b32 v{g}, v14, v{g}, vcc")
    for i in range(80): A(f"v_accvgpr_write_b32 a{i}, 0")
    for s in range(spw):
        A(f"s_waitcnt vmcnt({(spw-1-s)*6})")
        for u in range(5):
            A(f"v_mfma_f32_32x32x16_bf16 a[{16*u}:{16*u+15}], {vr(FR + s*24 + 4 + 4*u, 4)}, {vr(FR + s*24, 4)}, a[{16*u}:{16*u+15}]")
        if s == 0:
            pass
    stamp(A, 1)
    XR, BR = 16, 32
    for c in range(3):
        A(f"buffer_load_dwordx4 {vr(XR+4*c,4)}, v{7+c}, s[20:23], 0 offen")
    A("s_lshl_b32 s48, s25, 10")
    A("s_add_u32 s48, s48, s45")
    for i in range(3):
        A(f"buffer_load_dwordx4 {vr(BR+4*i,4)}, v{2+i}, s[16:19], s48 offen")
    A(f"s_mul_i32 s47, s25, {WP}")
    A("v_add_u32 v13, s47, v2")
    A("s_nop 7")
    T = 64
    for q in range(20):
        for r in range(4):
            A(f"v_accvgpr_read_b32 v{T + (q%4)*4 + r}, a{4*q+r}")
        A(f"ds_write_b128 v13, {vr(T + (q%4)*4, 4)} offset:{q*QP}")
    A(f"s_mul_i32 s47, s25, {2*QP}")
    A(f"s_add_u32 s47, s47, {4*WP}")
    A("v_add_u32 v13, s47, v2")
    A("s_waitcnt vmcnt(0)")
    for i in range(3):
        for j in range(2):
            t = T + 16 + (i*2+j) * 4
            for p in range(2):
                A(f"v_lshlrev_b32 v{t+2*p}, 16, v{BR+4*i+2*j+p}")
                A(f"v_and_b32 v{t+2*p+1}, 0xffff0000, v{BR+4*i+2*j+p}")
            A(f"ds_write_b128 v13, {vr(t,4)} offset:{(8*i+j)*QP}")
    A("s_waitcnt lgkmcnt(0)")
    A("s_barrier")
    R = 112
    for c in range(3):
        A(f"v_add_u32 v13, {2*WP}, v{10+c}")
        A(f"v_add_u32 v14, {4*WP}, v{10+c}")
        for p in range(5):
            va = (10 + c, 10 + c, 13, 13, 14)[p]
            for h in range(2):
                A(f"ds_read_b128 {vr(R + c*40 + (p*2+h)*4, 4)}, v{va} offset:{(p%2)*WP + h*512}")
    pr = lambda r: f"v[{r}:{r+1}]"
    for c in range(3):
        A(f"s_waitcnt lgkmcnt({min(15, (2-c)*10)})")
        b = R + c * 40
        for p in range(1, 5):
            for e in range(0, 8, 2):
                A(f"v_pk_add_f32 {pr(b+e)}, {pr(b+e)}, {pr(b+8*p+e)}")
        for e in range(4):
            A(f"v_lshlrev_b32 v{b+8+2*e}, 16, v{XR+4*c+e}")
            A(f"v_and_b32 v{b+8+2*e+1}, 0xffff0000, v{XR+4*c+e}")
        for e in range(0, 8, 2):
            A(f"v_pk_add_f32 {pr(b+e)}, {pr(b+e)}, {pr(b+8+e)}")
        for e in range(4):
            A(f"v_cvt_pk_bf16_f32 v{b+16+e}, v{b+2*e}, v{b+2*e+1}")
        A(f"buffer_store_dwordx4 {vr(b+16,4)}, v{7+c}, s[28:31], 0 offen")
    stamp(A, 2); stamp_flush(A, 3, 6, kidx, 25); tl_end(A, kidx)
    A(f"{name}_done:")
    A("s_endpgm")
    return kernel_desc(name, 336, accum=256), f"; @launch kernel={name} grid=(256,1,1) block=(256,1,1) lds={5*WP + 8*QP}"
```

```python
from asmlib import *
from layout import *
import os

def red32(A, v, tmp):
    for mod in ("quad_perm:[1,0,3,2]", "quad_perm:[2,3,0,1]", "row_half_mirror", "row_mirror"):
        A("s_nop 1")
        A(f"v_add_f32_dpp v{v}, v{v}, v{v} {mod} row_mask:0xf bank_mask:0xf")
    A(f"v_mov_b32 v{tmp}, v{v}")
    A("s_nop 1")
    A(f"v_permlane16_swap_b32 v{v}, v{tmp}")
    A("s_nop 1")
    A(f"v_add_f32 v{v}, v{v}, v{tmp}")

def bf16r(A, v):
    A(f"v_cvt_pk_bf16_f32 v{v}, v{v}, v{v}")
    A(f"v_and_b32 v{v}, 0xffff0000, v{v}")

def layernorm(A, X, P, t0):
    s, tmp, m, r = t0, t0 + 1, t0 + 2, t0 + 3
    A(f"v_add_f32 v{s}, v{X}, v{X+1}")
    for i in range(2, 20):
        A(f"v_add_f32 v{s}, v{s}, v{X+i}")
    red32(A, s, tmp)
    A(f"v_mul_f32 v{m}, {f32hex(1.0/640)}, v{s}")
    A(f"v_sub_f32 v{tmp}, v{X}, v{m}")
    A(f"v_mul_f32 v{s}, v{tmp}, v{tmp}")
    for i in range(1, 20):
        A(f"v_sub_f32 v{tmp}, v{X+i}, v{m}")
        A(f"v_fmac_f32 v{s}, v{tmp}, v{tmp}")
    red32(A, s, tmp)
    A(f"v_mul_f32 v{s}, {f32hex(1.0/640)}, v{s}")
    bf16r(A, s)
    bf16r(A, m)
    A(f"v_add_f32 v{s}, {f32hex(1e-5)}, v{s}")
    bf16r(A, s)
    A(f"v_sqrt_f32 v{s}, v{s}")
    A("s_nop 0")
    bf16r(A, s)
    A(f"v_rcp_f32 v{r}, v{s}")
    for i in range(20):
        A(f"v_sub_f32 v{X+i}, v{X+i}, v{m}")
    for i in range(10):
        A(f"v_cvt_pk_bf16_f32 v{P+i}, v{X+2*i}, v{X+2*i+1}")
    for i in range(10):
        A(f"v_lshlrev_b32 v{X+2*i}, 16, v{P+i}")
        A(f"v_and_b32 v{X+2*i+1}, 0xffff0000, v{P+i}")
    for i in range(20):
        A(f"v_mul_f32 v{X+i}, v{X+i}, v{r}")
    for i in range(10):
        A(f"v_cvt_pk_bf16_f32 v{P+i}, v{X+2*i}, v{X+2*i+1}")
    for i in range(10):
        A(f"v_lshlrev_b32 v{X+2*i}, 16, v{P+i}")
        A(f"v_and_b32 v{X+2*i+1}, 0xffff0000, v{P+i}")

def gen_k0(A):
    name = "k0_kernel"
    kernel_begin(A, name)
    A("s_cmp_ge_u32 s2, 256")
    A("s_cbranch_scc1 k0_done")
    tl_start(A, 0)
    A("s_load_dwordx2 s[4:5], s[0:1], 0")
    A("s_load_dwordx2 s[6:7], s[0:1], 80")
    A("s_load_dwordx2 s[40:41], s[0:1], 16")
    A("s_load_dwordx2 s[42:43], s[0:1], 48")
    A("s_load_dwordx2 s[52:53], s[0:1], 8")
    A("s_load_dwordx2 s[54:55], s[0:1], 32")
    A("v_lshrrev_b32 v1, 6, v0")
    A("s_nop 0")
    A("v_readfirstlane_b32 s25, v1")
    A("v_lshrrev_b32 v1, 5, v0")
    A("s_lshl_b32 s3, s2, 3")
    A("v_add_u32 v1, s3, v1")
    A("v_mul_u32_u24 v1, 1280, v1")
    A("v_and_b32 v2, 31, v0")
    A("v_lshl_add_u32 v1, v2, 3, v1")
    A("s_waitcnt lgkmcnt(0)")
    tl_mid(A, 0)
    srd(A, 8, 4, XSZ)
    srd(A, 12, 6, XSZ, XN_OFF)
    srd(A, 16, 6, XSZ, Y_OFF)
    P, X, P2, T = 4, 16, 40, 52
    for j in range(5):
        A(f"buffer_load_dwordx2 v[{P+2*j}:{P+2*j+1}], v1, s[8:11], 0 offen offset:{256*j}")
    srd(A, 28, 6, 0x500000, W2F_OFF)
    A("s_lshl_b32 s26, s2, 2")
    A("s_add_u32 s26, s26, s25")
    A("v_bfe_u32 v3, v0, 5, 1")
    A("v_and_b32 v60, 63, v0")
    A("v_lshlrev_b32 v60, 4, v60")
    PK = 64
    for f in range(3):
        r = PK + 4 * f
        A(f"s_add_u32 s27, s26, {1024*f}")
        lab = f"k0_pk{f}"
        if f == 2:
            A("s_cmp_ge_u32 s27, 2720")
            A(f"s_cbranch_scc1 {lab}_skip")
        A("s_cmp_ge_u32 s27, 1920")
        A(f"s_cbranch_scc1 {lab}_wo")
        A("s_mul_i32 s32, s27, 683")
        A("s_lshr_b32 s32, s32, 16")
        A("s_mul_i32 s33, s32, 96")
        A("s_sub_u32 s33, s27, s33")
        A("s_lshl_b32 s34, s33, 4")
        A("s_mov_b32 s35, 4")
        A(f"s_mov_b32 s36, {8*1280}")
        A(f"s_lshl_b32 s{44+f}, s27, 10")
        A("s_mov_b32 s20, s42"); A("s_mov_b32 s21, s43"); A(f"s_mov_b32 s22, {1536*1280}")
        A(f"s_branch {lab}_go")
        A(f"{lab}_wo:")
        A("s_sub_u32 s37, s27, 1920")
        A("s_mul_i32 s32, s37, 1639")
        A("s_lshr_b32 s32, s32, 16")
        A("s_mul_i32 s33, s32, 40")
        A("s_sub_u32 s33, s37, s33")
        A(f"s_lshl_b32 s{44+f}, s37, 10")
        A(f"s_add_u32 s{44+f}, s{44+f}, {WOF_OFF - W2F_OFF}")
        A("s_mul_i32 s34, s33, 20")
        A("s_mov_b32 s35, 4")
        A(f"s_mov_b32 s36, {8*1280}")
        A("s_mov_b32 s20, s40"); A("s_mov_b32 s21, s41"); A(f"s_mov_b32 s22, {640*1280}")
        A("s_cmp_lt_u32 s33, 32")
        A(f"s_cbranch_scc1 {lab}_go")
        A("s_sub_u32 s33, s33, 32")
        A("s_mul_i32 s34, s33, 80")
        A("s_add_u32 s34, s34, 16")
        A("s_mov_b32 s35, 40")
        A(f"s_mov_b32 s36, {20*1280}")
        A(f"{lab}_go:")
        A("s_mov_b32 s23, 0x00020000")
        A("v_mul_u32_u24 v61, s35, v3")
        A("v_add_u32 v61, s34, v61")
        A("v_mul_u32_u24 v61, 1280, v61")
        A("s_lshl_b32 s32, s32, 6")
        A("v_lshl_add_u32 v62, v2, 1, s32")
        A("v_add_u32 v61, v61, v62")
        for e in range(8):
            so = "s36" if e >= 4 else "0"
            A(f"buffer_load_ushort v{80 + 8*f + e}, v61, s[20:23], {so} offen offset:{(e&3)*1280}")
        if f == 2:
            A(f"{lab}_skip:")
    A("s_cmp_ge_u32 s26, 128")
    A("s_cbranch_scc1 k0_noones")
    srd(A, 48, 6, 32 * 64 * VREC, V_OFF)
    A("v_and_b32 v61, 63, v0")
    A("s_lshl_b32 s32, s26, 6")
    A("v_add_u32 v61, s32, v61")
    A("v_lshrrev_b32 v62, 2, v61")
    A("v_and_b32 v61, 3, v61")
    A(f"v_mul_u32_u24 v62, {VREC}, v62")
    A(f"v_mul_u32_u24 v61, {VSB}, v61")
    A("v_add_u32 v61, v61, v62")
    for i in range(4): A(f"v_mov_b32 v{76+i}, 0x3f803f80")
    A(f"buffer_store_dwordx4 v[76:79], v61, s[48:51], 0 offen offset:320")
    A("k0_noones:")
    tl_mid(A, 1)
    A("s_waitcnt vmcnt(0)")
    tl_mid(A, 2)
    if not os.environ.get("NOPF"):
        srd(A, 56, 52, 640 * 1920 * 2)
        srd(A, 60, 54, 640 * 1536 * 2)
        A("v_lshlrev_b32 v61, 4, v0")
        A("s_mul_i32 s32, s2, 9600")
        A("s_mul_i32 s33, s2, 7680")
        A("buffer_load_dwordx4 v[104:107], v61, s[56:59], s32 offen")
        A("v_add_u32 v62, 4096, v61")
        A("buffer_load_dwordx4 v[104:107], v62, s[56:59], s32 offen")
        A("buffer_load_dwordx4 v[104:107], v61, s[60:63], s33 offen")
        A("buffer_load_dwordx4 v[104:107], v62, s[60:63], s33 offen")
        A("v_add_u32 v62, 8192, v61")
        A("s_cmp_ge_u32 s25, 2")
        A("s_cbranch_scc1 k0_nopf")
        A("buffer_load_dwordx4 v[104:107], v62, s[56:59], s32 offen")
        A("k0_nopf:")
    for f in range(3):
        r = PK + 4 * f
        if f == 2:
            A(f"s_cmp_ge_u32 s27, 2720")
            A("s_cbranch_scc1 k0_nost2")
        for e in range(4):
            A(f"v_lshl_or_b32 v{r+e}, v{80+8*f+2*e+1}, 16, v{80+8*f+2*e}")
        A(f"buffer_store_dwordx4 v[{r}:{r+3}], v60, s[28:31], s{44+f} offen")
    A("k0_nost2:")
    for i in range(10):
        A(f"v_lshlrev_b32 v{X+2*i}, 16, v{P+i}")
        A(f"v_and_b32 v{X+2*i+1}, 0xffff0000, v{P+i}")
    layernorm(A, X, P, T)
    for j in range(5):
        A(f"buffer_store_dwordx2 v[{P+2*j}:{P+2*j+1}], v1, s[12:15], 0 offen offset:{256*j}")
    layernorm(A, X, P2, T)
    for j in range(5):
        A(f"buffer_store_dwordx2 v[{P2+2*j}:{P2+2*j+1}], v1, s[16:19], 0 offen offset:{256*j}")
    tl_mid(A, 3)
    tl_end(A, 0); tl_mid_flush(A, 4)
    A("k0_done:")
    A("s_endpgm")
    return kernel_desc(name, 108), "; @launch kernel=k0_kernel grid=(256,1,1) block=(256,1,1) lds=0"
```

```python
from asmlib import *
from layout import *
import math, os

NST = 10
ACC = 128
XF = 48
WF = 80
DV = 16
XAB, WAB, XAC, WAC = 28, 32, 36, 40
BIAS = 104

def interleave(mfmas, fillers, per=2):
    out = []
    n = len(mfmas)
    k = 0
    for i, m in enumerate(mfmas):
        out.append(m)
        tgt = max((len(fillers) * (i + 1) + n - 1) // n, min(len(fillers), per * (i + 1)))
        while k < tgt:
            out.append(fillers[k]); k += 1
    return out

def gemm_core(A, tag, TM, TN, transposed, ldw, init_bias):
    BM, BN = 2 * TM * 32, 2 * TN * 32
    AB = BM * 128; pitch = BN * 2; BB = 64 * pitch; SS = AB + BB
    nA = BM // 32; nB = BB // 4096; ND = nA + nB
    CPR = BN // 8
    A("v_and_b32 v1, 63, v0")
    A("v_lshrrev_b32 v2, 3, v1")
    A("v_and_b32 v3, 7, v1")
    A("v_lshrrev_b32 v4, 4, v1")
    A(f"s_mul_i32 s40, s25, {BM//4}")
    A("s_add_u32 s40, s40, s30")
    A("v_add_u32 v2, s40, v2")
    A("v_mul_u32_u24 v2, 1280, v2")
    A("v_xor_b32 v5, v3, v4")
    A("v_xor_b32 v6, 4, v5")
    A("v_lshl_add_u32 v5, v5, 4, v2")
    A("v_lshl_add_u32 v6, v6, 4, v2")
    for q in range(nA):
        A(f"v_add_u32 v{DV+q}, {q*8*1280 - (q&3)*1024}, v{5 + (q&1)}")
    A(f"s_mul_i32 s41, s25, {nB*64}")
    for q in range(nB):
        A(f"v_add_u32 v7, s41, v1")
        if q: A(f"v_add_u32 v7, {q*64}, v7")
        if CPR == 16:
            A("v_lshrrev_b32 v8, 4, v7")
            A("v_and_b32 v9, 15, v7")
            A("v_and_b32 v10, 3, v8")
        else:
            A("v_mul_u32_u24 v8, 2731, v7")
            A("v_lshrrev_b32 v8, 16, v8")
            A("v_mul_u32_u24 v9, 24, v8")
            A("v_sub_u32 v9, v7, v9")
            A("v_bfe_u32 v10, v8, 1, 1")
        A("v_lshlrev_b32 v10, 2, v10")
        A("v_xor_b32 v9, v9, v10")
        A(f"v_mul_u32_u24 v8, {ldw}, v8")
        A("v_lshl_add_u32 v8, v9, 4, v8")
        A(f"s_lshl_b32 s42, s31, 1")
        A(f"v_add_u32 v8, s42, v8")
        if q & 3:
            A(f"v_subrev_u32 v{DV+nA+q}, {(q&3)*1024}, v8")
        else:
            A(f"v_mov_b32 v{DV+nA+q}, v8")
    A(f"s_mul_i32 s26, s25, {nA*1024}")
    A(f"s_mul_i32 s27, s25, {nB*1024}")
    A(f"s_add_u32 s27, s27, {AB}")
    def dma_list():
        L = []
        for q in range(nA):
            if q % 4 == 0:
                L.append("s_add_u32 m0, s23, s26" if q == 0 else "s_add_u32 m0, m0, 4096")
                L.append("s_nop 0")
            L.append(f"buffer_load_dwordx4 v{DV+q}, s[8:11], s21 offen offset:{(q&3)*1024} lds")
        for q in range(nB):
            if q % 4 == 0:
                L.append("s_add_u32 m0, s23, s27" if q == 0 else "s_add_u32 m0, m0, 4096")
                L.append("s_nop 0")
            L.append(f"buffer_load_dwordx4 v{DV+nA+q}, s[12:15], s22 offen offset:{(q&3)*1024} lds")
        L.append("s_add_u32 s21, s21, 128")
        L.append(f"s_add_u32 s22, s22, {64*ldw}")
        L.append(f"s_add_u32 s23, s23, {SS}")
        L.append(f"s_cmp_eq_u32 s23, {3*SS}")
        L.append("s_cselect_b32 s23, 0, s23")
        return L
    A("s_mov_b32 s21, 0"); A("s_mov_b32 s22, 0"); A("s_mov_b32 s23, 0")
    for st in range(2):
        for l in dma_list(): A(l)
    A("s_and_b32 s43, s25, 1")
    A("s_lshr_b32 s44, s25, 1")
    A("v_and_b32 v2, 31, v1")
    A("v_lshrrev_b32 v3, 5, v1")
    A("v_bfe_u32 v4, v2, 1, 3")
    A(f"s_mul_i32 s45, s43, {TM*32*128}")
    A("v_lshlrev_b32 v5, 7, v2")
    A("v_add_u32 v5, s45, v5")
    for kk in range(4):
        A(f"v_add_u32 v6, {2*kk}, v3")
        A("v_xor_b32 v6, v6, v4")
        A(f"v_lshl_add_u32 v{XAB+kk}, v6, 4, v5")
    A("v_bfe_u32 v6, v1, 2, 2")
    A("v_lshl_add_u32 v7, v3, 3, v6")
    A(f"v_mul_u32_u24 v7, {pitch}, v7")
    A("v_bfe_u32 v8, v1, 4, 1")
    A("v_lshl_add_u32 v7, v8, 5, v7")
    A("v_and_b32 v8, 3, v1")
    A("v_lshl_add_u32 v7, v8, 3, v7")
    A(f"v_add_u32 v7, {AB}, v7")
    if CPR != 16:
        A("v_lshrrev_b32 v6, 1, v6")
    A(f"s_mul_i32 s46, s44, {TN}")
    for u in range(TN):
        A(f"s_add_u32 s47, s46, {u}")
        A("v_xor_b32 v8, s47, v6")
        A(f"v_lshl_add_u32 v{WAB+u}, v8, 6, v7")
    if init_bias:
        A(f"s_waitcnt vmcnt({2*ND})")
        for u in range(TN):
            for j in range(4):
                for p in range(2):
                    src = BIAS + (u * 4 + j) * 2 + p
                    a0 = ACC + u * 16 + 4 * j + 2 * p
                    A(f"v_lshlrev_b32 v{a0}, 16, v{src}")
                    A(f"v_and_b32 v{a0+1}, 0xffff0000, v{src}")
        for t in range(1, TM):
            for i in range(TN * 16):
                A(f"v_mov_b32 v{ACC + t*TN*16 + i}, v{ACC + i}")
    else:
        for i in range(TM * TN * 16):
            A(f"v_mov_b32 v{ACC+i}, 0")
    def reads(kk, buf):
        L = []
        for t in range(TM):
            L.append(f"ds_read_b128 {vr(XF + (buf*4+t)*4, 4)}, v{XAC+kk} offset:{t*4096}")
        for u in range(TN):
            for i in range(2):
                L.append(f"ds_read_b64_tr_b16 {vr(WF + (buf*3+u)*4 + 2*i, 2)}, v{WAC+u} offset:{(16*kk+4*i)*pitch}")
        return L
    def mfmas(buf):
        L = []
        for t in range(TM):
            for u in range(TN):
                a = ACC + (t * TN + u) * 16
                x = vr(XF + (buf*4+t)*4, 4); w = vr(WF + (buf*3+u)*4, 4)
                o = (w, x) if transposed else (x, w)
                L.append(f"v_mfma_f32_32x32x16_bf16 {vr(a,16)}, {o[0]}, {o[1]}, {vr(a,16)}")
        return L
    def setcur():
        L = []
        for kk in range(4): L.append(f"v_add_u32 v{XAC+kk}, s24, v{XAB+kk}")
        for u in range(TN): L.append(f"v_add_u32 v{WAC+u}, s24, v{WAB+u}")
        return L
    A("s_mov_b32 s24, 0"); A("s_mov_b32 s20, 0")
    for l in setcur(): A(l)
    stamp(A, 1)
    A(f"s_waitcnt vmcnt({ND})")
    A("s_barrier")
    stamp(A, 2)
    for l in reads(0, 0): A(l)
    if os.environ.get("NODMA"):
        A("s_mov_b32 s10, 0"); A("s_mov_b32 s14, 0")
    A(f"{tag}_loop:")
    dl = dma_list()
    units = []; cur = []
    for l in dl:
        cur.append(l)
        if l.startswith("buffer_load"):
            units.append(cur); cur = []
    tailu = cur
    per = (len(units) + 2) // 3
    NM = TM * TN
    for kk in range(4):
        buf = kk & 1
        ms = mfmas(buf)
        slots = [[] for _ in ms]
        if kk < 3:
            A("s_waitcnt lgkmcnt(0)")
            rd = reads(kk + 1, buf ^ 1)
        else:
            for l in setcur(): A(l)
            A(f"s_waitcnt vmcnt({ND}) lgkmcnt(0)")
            A("s_barrier")
            rd = reads(0, buf ^ 1)
        for i, l in enumerate(rd):
            slots[i // 2].append(l)
        if kk < 3:
            us = units[kk * per:(kk + 1) * per]
            for i, u in enumerate(us):
                slots[min(NM - 1, (i * NM) // len(us) + 1)] += u
        if kk == 2:
            slots[NM - 1] += tailu + [f"s_add_u32 s24, s24, {SS}", f"s_cmp_eq_u32 s24, {3*SS}", "s_cselect_b32 s24, 0, s24"]
        if kk == 3:
            slots[NM - 2] += ["s_add_u32 s20, s20, 1", f"s_cmp_lt_u32 s20, {NST-2}", "s_cselect_b32 s10, s10, 0", "s_cselect_b32 s14, s14, 0"]
            slots[NM - 1] += [f"s_cmp_lt_u32 s20, {NST}"]
        for m, sl in zip(ms, slots):
            A(m)
            for l in sl: A(l)
    A(f"s_cbranch_scc1 {tag}_loop")
    A("s_waitcnt lgkmcnt(0)")
    stamp(A, 3)
    A("s_nop 15")
    return SS

def gen_k1(A):
    name = "k1_kernel"
    kernel_begin(A, name)
    A("s_cmp_ge_u32 s2, 248")
    A("s_cbranch_scc1 k1_done")
    stamp(A, 0); tl_start(A, 1)
    A("s_load_dwordx2 s[4:5], s[0:1], 8")
    A("s_load_dwordx4 s[48:51], s[0:1], 32")
    A("s_load_dwordx2 s[6:7], s[0:1], 80")
    A("v_lshrrev_b32 v1, 6, v0")
    A("s_nop 0")
    A("v_readfirstlane_b32 s25, v1")
    A("s_and_b32 s32, s2, 7")
    A("s_lshr_b32 s33, s2, 3")
    A("s_lshr_b32 s34, s32, 2")
    A("s_and_b32 s35, s32, 3")
    A("s_waitcnt lgkmcnt(0)")
    A("s_cmp_ge_u32 s33, 15")
    A("s_cbranch_scc1 k1_h")
    A("s_mul_i32 s36, s35, 15")
    A("s_add_u32 s36, s36, s33")
    A("s_lshr_b32 s37, s36, 2")
    A("s_and_b32 s38, s36, 3")
    A("s_lshl_b32 s39, s34, 2")
    A("s_add_u32 s38, s38, s39")
    A("s_lshl_b32 s30, s38, 8")
    A("s_lshl_b32 s31, s37, 7")
    srd(A, 8, 6, XSZ, XN_OFF)
    srd(A, 12, 4, 640 * 1920 * 2)
    A("s_cmp_ge_u32 s37, 10")
    A("s_cbranch_scc1 k1_v")
    SS1 = gemm_core(A, "k1qk", 4, 2, True, 3840, False)
    A("s_cmp_ge_u32 s37, 5")
    A(f"s_cselect_b32 s52, {K_OFF - Q_OFF - 80*32768}, 0")
    A(f"s_cselect_b32 s54, 1.0, {f32hex(DH**-0.5 * math.log2(math.e))}")
    A("s_mov_b32 s55, s54")
    srd(A, 16, 6, K_OFF - Q_OFF + 80 * 32768, Q_OFF)
    A("s_lshl_b32 s57, s37, 4")
    A("s_lshl_b32 s58, s44, 3")
    A("s_add_u32 s57, s57, s58")
    A("s_lshl_b32 s57, s57, 15")
    A("s_add_u32 s57, s57, s52")
    A("s_lshl_b32 s58, s43, 7")
    A("s_add_u32 s58, s58, s30")
    A("s_lshl_b32 s58, s58, 4")
    A("s_add_u32 s57, s57, s58")
    for i in range(1, 4):
        A(f"s_add_u32 s{57+i}, s{56+i}, 65536")
    A("v_and_b32 v1, 63, v0")
    A("v_and_b32 v2, 31, v1")
    A("v_lshrrev_b32 v3, 5, v1")
    A("v_lshlrev_b32 v3, 15, v3")
    A("v_lshl_add_u32 v16, v2, 4, v3")
    for t in range(4):
        for u in range(2):
            a = ACC + (t * 2 + u) * 16
            for i in range(0, 16, 2):
                A(f"v_pk_mul_f32 v[{a+i}:{a+i+1}], v[{a+i}:{a+i+1}], s[54:55]")
            p = 32 + ((t * 2 + u) & 3) * 8
            for i in range(8):
                A(f"v_cvt_pk_bf16_f32 v{p+i}, v{a+2*i}, v{a+2*i+1}")
            A("s_nop 0")
            for j in range(2):
                A(f"v_permlane32_swap_b32 v{p+4*j}, v{p+4*j+2}")
                A(f"v_permlane32_swap_b32 v{p+4*j+1}, v{p+4*j+3}")
            for j in range(2):
                A(f"buffer_store_dwordx4 v[{p+4*j}:{p+4*j+3}], v16, s[16:19], s{57+u*2+j} offen offset:{t*512}")
    stamp(A, 4); stamp_flush(A, 5, 6, 1, 25); tl_end(A, 1)
    A("s_endpgm")
    A("k1_v:")
    gemm_core(A, "k1v", 4, 2, False, 3840, False)
    srd(A, 16, 6, 32 * 64 * VREC, V_OFF)
    A("s_lshr_b32 s57, s30, 5")
    A("s_lshl_b32 s58, s43, 2")
    A("s_add_u32 s57, s57, s58")
    A(f"s_mul_i32 s57, s57, {VREC}")
    for t in range(1, 4):
        A(f"s_add_u32 s{57+t}, s{56+t}, {VREC}")
    A("s_sub_u32 s61, s31, 1280")
    A("s_lshl_b32 s62, s44, 6")
    A("s_add_u32 s61, s61, s62")
    A("v_and_b32 v1, 63, v0")
    A("v_and_b32 v2, 31, v1")
    A("v_lshrrev_b32 v3, 5, v1")
    A(f"v_mul_u32_u24 v3, {VSB}, v3")
    A("v_add_u32 v2, s61, v2")
    A(f"s_mov_b32 s56, {64*VREC}")
    for u in range(2):
        A(f"v_add_u32 v6, {u*32}, v2")
        A("v_mul_u32_u24 v7, 3277, v6")
        A("v_lshrrev_b32 v7, 16, v7")
        A("v_mul_u32_u24 v8, 20, v7")
        A("v_sub_u32 v8, v6, v8")
        A("v_lshl_add_u32 v8, v8, 4, v3")
        A("v_mul_lo_u32 v7, v7, s56")
        A(f"v_add_u32 v{16+u}, v7, v8")
    for t in range(4):
        for u in range(2):
            a = ACC + (t * 2 + u) * 16
            p = 32 + ((t * 2 + u) & 1) * 8
            for i in range(8):
                A(f"v_cvt_pk_bf16_f32 v{p+i}, v{a+2*i}, v{a+2*i+1}")
            A(f"buffer_store_dwordx4 v[{p}:{p+3}], v{16+u}, s[16:19], s{57+t} offen")
            A(f"buffer_store_dwordx4 v[{p+4}:{p+7}], v{16+u}, s[16:19], s{57+t} offen offset:{2*VSB}")
    stamp(A, 4); stamp_flush(A, 5, 6, 1, 25); tl_end(A, 1)
    A("s_endpgm")
    A("k1_h:")
    A("s_sub_u32 s36, s33, 15")
    A("s_lshr_b32 s37, s36, 3")
    A("s_lshl_b32 s38, s35, 1")
    A("s_add_u32 s37, s37, s38")
    A("s_and_b32 s38, s36, 7")
    A("s_lshl_b32 s39, s34, 3")
    A("s_add_u32 s38, s38, s39")
    A("s_lshl_b32 s30, s38, 7")
    A("s_mul_i32 s31, s37, 192")
    srd(A, 8, 6, XSZ, Y_OFF)
    srd(A, 12, 48, 640 * 1536 * 2)
    srd(A, 16, 50, 1536 * 2)
    A("s_lshr_b32 s44, s25, 1")
    A("s_mul_i32 s45, s44, 96")
    A("s_add_u32 s45, s45, s31")
    A("v_bfe_u32 v3, v0, 5, 1")
    A("v_lshlrev_b32 v3, 2, v3")
    A("v_add_u32 v3, s45, v3")
    A("v_lshlrev_b32 v3, 1, v3")
    for u in range(3):
        for j in range(4):
            b = BIAS + (u * 4 + j) * 2
            A(f"buffer_load_dwordx2 v[{b}:{b+1}], v3, s[16:19], 0 offen offset:{(u*32+8*j)*2}")
    SS2 = gemm_core(A, "k1h", 2, 3, True, 3072, True)
    srd(A, 16, 6, 64 * 96 * 1024, HB_OFF)
    A("s_lshr_b32 s57, s30, 5")
    A("s_lshl_b32 s58, s43, 1")
    A("s_add_u32 s57, s57, s58")
    A("s_mul_i32 s57, s57, 96")
    A("s_lshr_b32 s58, s31, 4")
    A("s_add_u32 s57, s57, s58")
    A("s_mul_i32 s58, s44, 6")
    A("s_add_u32 s57, s57, s58")
    A("s_lshl_b32 s57, s57, 10")
    A(f"s_add_u32 s58, s57, {96*1024}")
    A("v_and_b32 v1, 63, v0")
    A("v_lshlrev_b32 v16, 4, v1")
    A(f"v_add_u32 v17, 4096, v16")
    c0 = -2.0 * math.sqrt(2.0 / math.pi) * math.log2(math.e)
    c1 = c0 * 0.044715
    A(f"v_mov_b32 v2, {f32hex(c0)}"); A(f"v_mov_b32 v3, {f32hex(c0)}")
    A(f"v_mov_b32 v4, {f32hex(c1)}"); A(f"v_mov_b32 v5, {f32hex(c1)}")
    A("v_mov_b32 v6, 1.0"); A("v_mov_b32 v7, 1.0")
    T = 64
    for t in range(2):
        for u in range(3):
            a = ACC + (t * 3 + u) * 16
            p = 32 + ((t * 3 + u) & 1) * 8
            pr = lambda b, i: f"v[{b+2*i}:{b+2*i+1}]"
            for i in range(8): A(f"v_pk_mul_f32 {pr(T,i)}, {pr(a,i)}, {pr(a,i)}")
            for i in range(8): A(f"v_pk_fma_f32 {pr(T,i)}, {pr(T,i)}, v[4:5], v[2:3]")
            for i in range(8): A(f"v_pk_mul_f32 {pr(T,i)}, {pr(T,i)}, {pr(a,i)}")
            for i in range(16): A(f"v_exp_f32 v{T+i}, v{T+i}")
            for i in range(8): A(f"v_pk_add_f32 {pr(T,i)}, {pr(T,i)}, v[6:7]")
            for i in range(16): A(f"v_rcp_f32 v{T+i}, v{T+i}")
            for i in range(8): A(f"v_pk_mul_f32 {pr(T,i)}, {pr(T,i)}, {pr(a,i)}")
            for i in range(8): A(f"v_cvt_pk_bf16_f32 v{p+i}, v{T+2*i}, v{T+2*i+1}")
            va = 16 if u < 2 else 17
            off = (2 * u * 1024) % 4096
            A(f"buffer_store_dwordx4 v[{p}:{p+3}], v{va}, s[16:19], s{57+t} offen offset:{off}")
            A(f"buffer_store_dwordx4 v[{p+4}:{p+7}], v{va}, s[16:19], s{57+t} offen offset:{off+1024}")
    stamp(A, 4); stamp_flush(A, 5, 6, 1, 25); tl_end(A, 1)
    A("k1_done:")
    A("s_endpgm")
    lds = 3 * max(SS1, SS2)
    return kernel_desc(name, 256), f"; @launch kernel=k1_kernel grid=(248,1,1) block=(256,1,1) lds={lds}"
```

```python
from asmlib import *
from layout import *
import math, os

NST = 10
ACC = 128
XF = 48
WF = 80
DV = 16
XAB, WAB, XAC, WAC = 28, 32, 36, 40
CS = 43
PKL = 104
PX, PWQ, PW1, PB1, PWO, PW2, PDBG, PWS = 4, 6, 48, 50, 52, 54, 56, 58
EP = 147456
CSL = EP + 4096
BIASL = CSL + 768
LDS_BYTES = EP + 6144
ST_OFF = XN_OFF
SR, SX, ST = 48, 58, 78
TIMEOUT = int(os.environ.get("K1TIMEOUT", "2000"))
FORCE_SLOW = bool(os.environ.get("K1SLOW"))
pr = lambda r: f"v[{r}:{r+1}]"

def red32(A, regs, tmp):
    for mod in ("quad_perm:[1,0,3,2]", "quad_perm:[2,3,0,1]", "row_half_mirror", "row_mirror"):
        A("s_nop 1")
        for v in regs:
            A(f"v_add_f32_dpp v{v}, v{v}, v{v} {mod} row_mask:0xf bank_mask:0xf")
    for v in regs:
        A(f"v_mov_b32 v{tmp}, v{v}")
        A("s_nop 1")
        A(f"v_permlane16_swap_b32 v{v}, v{tmp}")
        A("s_nop 1")
        A(f"v_add_f32 v{v}, v{v}, v{tmp}")

def bf16r(A, v):
    A(f"v_cvt_pk_bf16_f32 v{v}, v{v}, v{v}")
    A(f"v_and_b32 v{v}, 0xffff0000, v{v}")

def st_issue(A):
    A("v_lshrrev_b32 v91, 5, v0")
    A("s_lshl_b32 s32, s70, 3")
    A("v_add_u32 v91, s32, v91")
    A("v_mul_u32_u24 v92, 1280, v91")
    A("v_and_b32 v93, 31, v0")
    A("v_lshl_add_u32 v92, v93, 3, v92")
def st_issue2(A):
    for j in range(5):
        A(f"buffer_load_dwordx2 {pr(SR+2*j)}, v92, s[8:11], 0 offen offset:{256*j}")

def st_compute(A):
    X = SX; s, tmp, mean, var, m, r, t2, r2 = ST, ST + 1, ST + 2, ST + 4, ST + 5, ST + 6, ST + 7, ST + 8
    for i in range(10):
        A(f"v_lshlrev_b32 v{X+2*i}, 16, v{SR+i}")
        A(f"v_and_b32 v{X+2*i+1}, 0xffff0000, v{SR+i}")
    A(f"v_pk_add_f32 {pr(SR)}, {pr(X)}, {pr(X+2)}")
    for i in range(2, 10):
        A(f"v_pk_add_f32 {pr(SR)}, {pr(SR)}, {pr(X+2*i)}")
    A(f"v_add_f32 v{s}, v{SR}, v{SR+1}")
    red32(A, [s], tmp)
    A(f"v_mul_f32 v{mean}, {f32hex(1.0/640)}, v{s}")
    for i in range(10):
        A(f"v_pk_add_f32 {pr(X+2*i)}, {pr(X+2*i)}, {pr(mean)} op_sel_hi:[1,0] neg_lo:[0,1] neg_hi:[0,1]")
    A(f"v_pk_mul_f32 {pr(SR)}, {pr(X)}, {pr(X)}")
    for i in range(1, 10):
        A(f"v_pk_fma_f32 {pr(SR)}, {pr(X+2*i)}, {pr(X+2*i)}, {pr(SR)}")
    A(f"v_add_f32 v{s}, v{SR}, v{SR+1}")
    red32(A, [s], tmp)
    A(f"v_mul_f32 v{var}, {f32hex(1.0/640)}, v{s}")
    A(f"v_mov_b32 v{m}, v{mean}"); bf16r(A, m)
    A(f"v_mov_b32 v{s}, v{var}"); bf16r(A, s)
    A(f"v_add_f32 v{s}, {f32hex(1e-5)}, v{s}"); bf16r(A, s)
    A(f"v_sqrt_f32 v{s}, v{s}"); A("s_nop 0"); bf16r(A, s)
    A(f"v_rcp_f32 v{r}, v{s}")
    A(f"v_sub_f32 v{t2}, v{mean}, v{m}")
    A(f"v_mul_f32 v{t2}, v{t2}, v{r}"); bf16r(A, t2)
    A(f"v_mul_f32 v{s}, v{var}, v{r}")
    A(f"v_mul_f32 v{s}, v{s}, v{r}"); bf16r(A, s)
    A(f"v_add_f32 v{s}, {f32hex(1e-5)}, v{s}"); bf16r(A, s)
    A(f"v_sqrt_f32 v{s}, v{s}"); A("s_nop 0"); bf16r(A, s)
    A(f"v_rcp_f32 v{r2}, v{s}")
    O = X
    A(f"v_mov_b32 v{O}, v{r}")
    A(f"v_mul_f32 v{O+1}, v{m}, v{r}")
    A(f"v_mul_f32 v{O+2}, v{r}, v{r2}")
    A(f"v_add_f32 v{O+3}, v{O+1}, v{t2}")
    A(f"v_mul_f32 v{O+3}, v{O+3}, v{r2}")
    A("v_lshlrev_b32 v92, 4, v91")
    A("s_mov_b32 exec_lo, 1"); A("s_mov_b32 exec_hi, 1")
    A(f"buffer_store_dwordx4 {vr(O,4)}, v92, s[60:63], 0 offen sc1")
    A("s_mov_b64 exec, -1")

def pack_issue(A):
    A("s_lshl_b32 s40, s2, 2")
    A("s_add_u32 s40, s40, s25")
    A("v_bfe_u32 v3, v0, 5, 1")
    A("v_and_b32 v2, 31, v0")
    for f in range(3):
        lab = A.label("pk")
        A(f"s_add_u32 s41, s40, {1024*f}")
        A("s_cmp_ge_u32 s41, 1920")
        A(f"s_cbranch_scc1 {lab}_wo")
        A("s_mul_i32 s32, s41, 683")
        A("s_lshr_b32 s32, s32, 16")
        A("s_mul_i32 s33, s32, 96")
        A("s_sub_u32 s33, s41, s33")
        A("s_lshl_b32 s34, s33, 4")
        A("s_mov_b32 s35, 4")
        A(f"s_mov_b32 s36, {8*1280}")
        A(f"s_lshl_b32 s{71+f}, s41, 10")
        A(f"s_mov_b32 s16, s{PW2}"); A(f"s_mov_b32 s17, s{PW2+1}"); A(f"s_mov_b32 s18, {1536*1280}")
        A(f"s_branch {lab}_go")
        A(f"{lab}_wo:")
        A("s_sub_u32 s37, s41, 1920")
        A("s_mul_i32 s32, s37, 1639")
        A("s_lshr_b32 s32, s32, 16")
        A("s_mul_i32 s33, s32, 40")
        A("s_sub_u32 s33, s37, s33")
        A(f"s_lshl_b32 s{71+f}, s37, 10")
        A(f"s_add_u32 s{71+f}, s{71+f}, {WOF_OFF - W2F_OFF}")
        A("s_mul_i32 s34, s33, 20")
        A("s_mov_b32 s35, 4")
        A(f"s_mov_b32 s36, {8*1280}")
        A(f"s_mov_b32 s16, s{PWO}"); A(f"s_mov_b32 s17, s{PWO+1}"); A(f"s_mov_b32 s18, {640*1280}")
        if f == 2:
            A("s_cmp_lt_u32 s41, 2720")
            A("s_cselect_b32 s18, s18, 0")
            A(f"s_cselect_b32 s{71+f}, s{71+f}, 0x40000000")
        A("s_cmp_lt_u32 s33, 32")
        A(f"s_cbranch_scc1 {lab}_go")
        A("s_sub_u32 s33, s33, 32")
        A("s_mul_i32 s34, s33, 80")
        A("s_add_u32 s34, s34, 16")
        A("s_mov_b32 s35, 40")
        A(f"s_mov_b32 s36, {20*1280}")
        A(f"{lab}_go:")
        A("s_mov_b32 s19, 0x00020000")
        A("v_mul_u32_u24 v12, s35, v3")
        A("v_add_u32 v12, s34, v12")
        A("v_mul_u32_u24 v12, 1280, v12")
        A("s_lshl_b32 s32, s32, 6")
        A("v_lshl_add_u32 v13, v2, 1, s32")
        A("v_add_u32 v12, v12, v13")
        for e in range(8):
            so = "s36" if e >= 4 else "0"
            A(f"buffer_load_ushort v{PKL + 8*f + e}, v12, s[16:19], {so} offen offset:{(e&3)*1280}")

def pack_store(A):
    A("s_waitcnt vmcnt(12)")
    srd(A, 16, PWS, 0x500000, W2F_OFF)
    A("v_and_b32 v1, 63, v0")
    A("v_lshlrev_b32 v1, 4, v1")
    for f in range(3):
        r = PKL + 8 * f
        for e in range(4):
            A(f"v_lshl_or_b32 v{r+e}, v{r+2*e+1}, 16, v{r+2*e}")
        A(f"buffer_store_dwordx4 {vr(r,4)}, v1, s[16:19], s{71+f} offen")
    lab = A.label("on")
    A("s_lshl_b32 s40, s2, 2")
    A("s_add_u32 s40, s40, s25")
    A("s_cmp_ge_u32 s40, 128")
    A(f"s_cbranch_scc1 {lab}")
    srd(A, 16, PWS, 32 * 64 * VREC, V_OFF)
    A("v_and_b32 v2, 63, v0")
    A("s_lshl_b32 s32, s40, 6")
    A("v_add_u32 v2, s32, v2")
    A("v_lshrrev_b32 v3, 2, v2")
    A("v_and_b32 v2, 3, v2")
    A(f"v_mul_u32_u24 v3, {VREC}, v3")
    A(f"v_mul_u32_u24 v2, {VSB}, v2")
    A("v_add_u32 v2, v2, v3")
    for i in range(4): A(f"v_mov_b32 v{8+i}, 0x3f803f80")
    A("buffer_store_dwordx4 v[8:11], v2, s[16:19], 0 offen offset:320")
    A(f"{lab}:")

def prefetch(A):
    if os.environ.get("NOPF"): return 0
    A("v_lshlrev_b32 v5, 4, v0")
    A("v_add_u32 v6, 4096, v5")
    A("v_add_u32 v7, 8192, v5")
    srd(A, 16, PWQ, 640 * 1920 * 2)
    A("s_mul_i32 s32, s2, 9600")
    A("buffer_load_dwordx4 v[94:97], v5, s[16:19], s32 offen")
    A("buffer_load_dwordx4 v[94:97], v6, s[16:19], s32 offen")
    A("s_cmp_lt_u32 s25, 2")
    A("s_cselect_b32 s18, s18, 0")
    A("buffer_load_dwordx4 v[94:97], v7, s[16:19], s32 offen")
    srd(A, 16, PW1, 640 * 1536 * 2)
    A("s_mul_i32 s32, s2, 7680")
    A("buffer_load_dwordx4 v[94:97], v5, s[16:19], s32 offen")
    A("buffer_load_dwordx4 v[94:97], v6, s[16:19], s32 offen")
    return 5

def signal(A):
    lab = A.label("sig")
    A("s_cmp_lg_u32 s25, 0")
    A(f"s_cbranch_scc1 {lab}")
    srd(A, 16, PDBG, 256)
    A("s_lshr_b32 s32, s2, 4")
    A("s_lshl_b32 s32, s32, 2")
    A("s_mov_b64 exec, 1")
    A("v_mov_b32 v13, 1")
    A("v_mov_b32 v4, s32")
    A("buffer_atomic_add v13, v4, s[16:19], 0 offen sc1")
    A("s_mov_b64 exec, -1")
    A(f"{lab}:")

def gemm_core(A, tag, TM, TN, transposed, ldw, isH):
    BM, BN = 2 * TM * 32, 2 * TN * 32
    AB = BM * 128; pitch = BN * 2; BB = 64 * pitch; SS = AB + BB
    nA = BM // 32; nB = BB // 4096; ND = nA + nB
    CPR = BN // 8
    NCS = 2 if isH else 1
    A("v_and_b32 v1, 63, v0")
    A("v_lshrrev_b32 v2, 3, v1")
    A("v_and_b32 v3, 7, v1")
    A("v_lshrrev_b32 v4, 4, v1")
    A(f"s_mul_i32 s40, s25, {BM//4}")
    A("s_add_u32 s40, s40, s30")
    A("v_add_u32 v2, s40, v2")
    A("v_mul_u32_u24 v2, 1280, v2")
    A("v_xor_b32 v5, v3, v4")
    A("v_xor_b32 v6, 4, v5")
    A("v_lshl_add_u32 v5, v5, 4, v2")
    A("v_lshl_add_u32 v6, v6, 4, v2")
    for q in range(nA):
        A(f"v_add_u32 v{DV+q}, {q*8*1280 - (q&3)*1024}, v{5 + (q&1)}")
    A(f"s_mul_i32 s41, s25, {nB*64}")
    A(f"s_lshl_b32 s42, s31, 1")
    for q in range(nB):
        A(f"v_add_u32 v7, s41, v1")
        if q: A(f"v_add_u32 v7, {q*64}, v7")
        if CPR == 16:
            A("v_lshrrev_b32 v8, 4, v7")
            A("v_and_b32 v9, 15, v7")
            A("v_and_b32 v10, 3, v8")
        else:
            A("v_mul_u32_u24 v8, 2731, v7")
            A("v_lshrrev_b32 v8, 16, v8")
            A("v_mul_u32_u24 v9, 24, v8")
            A("v_sub_u32 v9, v7, v9")
            A("v_bfe_u32 v10, v8, 1, 1")
        A("v_lshlrev_b32 v10, 2, v10")
        A("v_xor_b32 v9, v9, v10")
        A(f"v_mul_u32_u24 v8, {ldw}, v8")
        A("v_lshl_add_u32 v8, v9, 4, v8")
        A(f"v_add_u32 v8, s42, v8")
        if q & 3:
            A(f"v_subrev_u32 v{DV+nA+q}, {(q&3)*1024}, v8")
        else:
            A(f"v_mov_b32 v{DV+nA+q}, v8")
    A(f"s_mul_i32 s26, s25, {nA*1024}")
    A(f"s_mul_i32 s27, s25, {nB*1024}")
    A(f"s_add_u32 s27, s27, {AB}")
    def dma_list():
        L = []
        for q in range(nA):
            if q % 4 == 0:
                L.append("s_add_u32 m0, s23, s26" if q == 0 else "s_add_u32 m0, m0, 4096")
                L.append("s_nop 0")
            L.append(f"buffer_load_dwordx4 v{DV+q}, s[8:11], s21 offen offset:{(q&3)*1024} lds")
        for q in range(nB):
            if q % 4 == 0:
                L.append("s_add_u32 m0, s23, s27" if q == 0 else "s_add_u32 m0, m0, 4096")
                L.append("s_nop 0")
            L.append(f"buffer_load_dwordx4 v{DV+nA+q}, s[12:15], s22 offen offset:{(q&3)*1024} lds")
        L.append("s_add_u32 s21, s21, 128")
        L.append(f"s_add_u32 s22, s22, {64*ldw}")
        L.append(f"s_add_u32 s23, s23, {SS}")
        L.append(f"s_cmp_eq_u32 s23, {3*SS}")
        L.append("s_cselect_b32 s23, 0, s23")
        return L
    A("s_mov_b32 s21, 0"); A("s_mov_b32 s22, 0"); A("s_mov_b32 s23, 0")
    A("s_waitcnt lgkmcnt(0)")
    srd(A, 8, PX, XSZ)
    srd(A, 12, PW1 if isH else PWQ, 640 * ldw)
    st_issue2(A)
    for l in dma_list(): A(l)
    npf = prefetch(A)
    for l in dma_list(): A(l)
    nextra = 0
    if isH:
        srd(A, 16, PB1, 1536 * 2)
        A("v_add_u32 v14, s31, v0")
        A("v_lshlrev_b32 v14, 1, v14")
        A("buffer_load_ushort v14, v14, s[16:19], 0 offen")
        nextra = 1
    srd(A, 60, PWS, 2048 * 16, ST_OFF)
    A("s_and_b32 s43, s25, 1")
    A("s_lshr_b32 s44, s25, 1")
    A("v_and_b32 v1, 63, v0")
    A("v_and_b32 v2, 31, v1")
    A("v_lshrrev_b32 v3, 5, v1")
    A("v_bfe_u32 v4, v2, 1, 3")
    A(f"s_mul_i32 s45, s43, {TM*32*128}")
    A("v_lshlrev_b32 v5, 7, v2")
    A("v_add_u32 v5, s45, v5")
    for kk in range(4):
        A(f"v_add_u32 v6, {2*kk}, v3")
        A("v_xor_b32 v6, v6, v4")
        A(f"v_lshl_add_u32 v{XAB+kk}, v6, 4, v5")
    A("v_bfe_u32 v6, v1, 2, 2")
    A("v_lshl_add_u32 v7, v3, 3, v6")
    A(f"v_mul_u32_u24 v7, {pitch}, v7")
    A("v_bfe_u32 v8, v1, 4, 1")
    A("v_lshl_add_u32 v7, v8, 5, v7")
    A("v_and_b32 v8, 3, v1")
    A("v_lshl_add_u32 v7, v8, 3, v7")
    A(f"v_add_u32 v7, {AB}, v7")
    if CPR != 16:
        A("v_lshrrev_b32 v6, 1, v6")
    A(f"s_mul_i32 s46, s44, {TN}")
    for u in range(TN):
        if isH:
            A("s_cmp_eq_u32 s43, 0")
            A(f"s_cselect_b32 s47, {u}, {2-u}")
        else:
            A(f"s_xor_b32 s47, s43, {u}")
        A(f"s_add_u32 s{76+u}, s46, s47")
        A(f"v_xor_b32 v8, s{76+u}, v6")
        A(f"v_lshl_add_u32 v{WAB+u}, v8, 6, v7")
    for i in range(TM * TN * 16):
        A(f"v_mov_b32 v{ACC+i}, 0")
    for i in range(4): A(f"v_mov_b32 v{CS+i}, 0")
    A(f"s_mov_b32 s64, s{PWS}"); A(f"s_mov_b32 s65, s{PWS+1}"); A("s_mov_b32 s66, 0"); A("s_mov_b32 s67, 0x00020000")
    A("v_mov_b32 v12, s29")
    A("s_mov_b32 s28, 0")
    A(f"s_waitcnt vmcnt({2*ND + npf + nextra})")
    A("s_getpc_b64 s[68:69]")
    A("s_add_u32 s68, s68, 12")
    A("s_addc_u32 s69, s69, 0")
    A("s_branch k1_stc")
    def reads(kk, buf):
        L = []
        for t in range(TM):
            L.append(f"ds_read_b128 {vr(XF + (buf*4+t)*4, 4)}, v{XAC+kk} offset:{t*4096}")
        for u in range(TN):
            for i in range(2):
                L.append(f"ds_read_b64_tr_b16 {vr(WF + (buf*3+u)*4 + 2*i, 2)}, v{WAC+u} offset:{(16*kk+4*i)*pitch}")
        return L
    def mfmas(buf):
        L = []
        for t in range(TM):
            for u in range(TN):
                a = ACC + (t * TN + u) * 16
                x = vr(XF + (buf*4+t)*4, 4); w = vr(WF + (buf*3+u)*4, 4)
                o = (w, x) if transposed else (x, w)
                L.append(f"v_mfma_f32_32x32x16_bf16 {vr(a,16)}, {o[0]}, {o[1]}, {vr(a,16)}")
        return L
    def csum(buf):
        L = []
        for u in range(NCS):
            for e in range(4):
                w = WF + (buf*3+u)*4 + e
                L += [f"v_lshlrev_b32 v47, 16, v{w}", f"v_and_b32 v15, 0xffff0000, v{w}",
                      f"v_add_f32 v{CS+2*u}, v{CS+2*u}, v47", f"v_add_f32 v{CS+2*u+1}, v{CS+2*u+1}, v15"]
        return L
    def setcur():
        L = []
        for kk in range(4): L.append(f"v_add_u32 v{XAC+kk}, s24, v{XAB+kk}")
        for u in range(TN): L.append(f"v_add_u32 v{WAC+u}, s24, v{WAB+u}")
        return L
    A("s_mov_b32 s24, 0"); A("s_mov_b32 s20, 0")
    for l in setcur(): A(l)
    stamp(A, 1)
    A(f"s_waitcnt vmcnt({ND + npf + nextra + 1})")
    A("s_barrier")
    stamp(A, 2)
    for l in reads(0, 0): A(l)
    A(f"{tag}_loop:")
    dl = dma_list()
    units = []; cur = []
    for l in dl:
        cur.append(l)
        if l.startswith("buffer_load"):
            units.append(cur); cur = []
    tailu = cur
    per = (len(units) + 2) // 3
    NM = TM * TN
    for kk in range(4):
        buf = kk & 1
        ms = mfmas(buf)
        slots = [[] for _ in ms]
        if kk < 3:
            A("s_waitcnt lgkmcnt(0)")
            rd = reads(kk + 1, buf ^ 1)
        else:
            A(f"s_waitcnt vmcnt({ND}) lgkmcnt(0)")
            A("s_barrier")
            rd = reads(0, buf ^ 1)
        for i, l in enumerate(rd):
            slots[i // 2].append(l)
        if kk < 3:
            us = units[kk * per:(kk + 1) * per]
            for i, u in enumerate(us):
                slots[min(NM - 1, (i * NM) // len(us) + 1)] += u
        cs = csum(buf)
        ng = len(cs) // 4
        for g in range(ng):
            slots[(g * NM) // ng] += cs[4*g:4*g+4]
        if kk == 1:
            slots[NM - 1] += [f"s_add_u32 s24, s24, {SS}", f"s_cmp_eq_u32 s24, {3*SS}", "s_cselect_b32 s24, 0, s24"]
        if kk == 2:
            sc = setcur()
            slots[NM - 2] += sc[:4]
            slots[NM - 1] += [sc[4]] + tailu[:2] + sc[5:] + tailu[2:]
        if kk == 3:
            h = f"{tag}_aux"
            slots[NM - 3] += ["s_sub_u32 s32, s20, 1", "s_cmp_ge_u32 s32, 6", f"s_cbranch_scc1 {h}", f"{h}_ret:",
                              "buffer_load_dwordx4 v[8:11], v12, s[64:67], 0 offen sc1"]
            slots[NM - 2] += ["s_add_u32 s20, s20, 1", f"s_cmp_lt_u32 s20, {NST-2}", "s_cselect_b32 s10, s10, 0", "s_cselect_b32 s14, s14, 0"]
            slots[NM - 1] += [f"s_cmp_lt_u32 s20, {NST}"]
        for m, sl in zip(ms, slots):
            A(m)
            for l in sl: A(l)
    A(f"s_cbranch_scc1 {tag}_loop")
    A(f"s_branch {tag}_post")
    h = f"{tag}_aux"
    A(f"{h}:")
    A("s_cmp_eq_u32 s20, 0")
    A(f"s_cbranch_scc0 {h}_1")
    signal(A)
    A(f"s_branch {h}_ret")
    A(f"{h}_1:")
    A("s_cmp_eq_u32 s20, 7")
    A(f"s_cbranch_scc0 {h}_2")
    A(f"s_mov_b32 s64, s{PDBG}"); A(f"s_mov_b32 s65, s{PDBG+1}"); A("s_mov_b32 s66, 256")
    A(f"s_branch {h}_ret")
    A(f"{h}_2:")
    A("s_mov_b32 s66, 0")
    A("s_cmp_eq_u32 s20, 8")
    A(f"s_cbranch_scc0 {h}_3")
    A("v_readfirstlane_b32 s32, v8")
    A("v_readfirstlane_b32 s33, v9")
    A("s_nop 3")
    if not isH:
        A("s_and_b32 s32, s32, s33")
    A(f"s_cmp_eq_u32 s32, {16 if not FORCE_SLOW else 99}")
    A(f"s_cbranch_scc0 {h}_ret")
    A("s_mov_b32 s28, 1")
    srd(A, 64, PWS, 2048 * 16, ST_OFF)
    A(f"v_and_b32 v12, {BM-1}, v0")
    A("v_add_u32 v12, s30, v12")
    A("v_lshlrev_b32 v12, 4, v12")
    A(f"s_branch {h}_ret")
    A(f"{h}_3:")
    for i in range(4): A(f"v_mov_b32 v{4+i}, v{8+i}")
    A(f"s_branch {h}_ret")
    A(f"{tag}_post:")
    A("s_waitcnt lgkmcnt(0)")
    stamp(A, 3)
    A("s_cmp_eq_u32 s28, 1")
    A(f"s_cbranch_scc1 {tag}_ready")
    A("s_waitcnt vmcnt(0)")
    srd(A, 64, PDBG, 256)
    A("v_mov_b32 v12, s29")
    A("s_mov_b32 s34, 0")
    A(f"{tag}_poll:")
    A("buffer_load_dwordx2 v[8:9], v12, s[64:67], 0 offen sc1")
    A("s_waitcnt vmcnt(0)")
    A("v_readfirstlane_b32 s32, v8")
    A("v_readfirstlane_b32 s33, v9")
    A("s_nop 3")
    if not isH:
        A("s_and_b32 s32, s32, s33")
    A(f"s_cmp_eq_u32 s32, {16 if os.environ.get('K1SLOW') != '2' else 99}")
    A(f"s_cbranch_scc1 {tag}_pollok")
    A("s_sleep 8")
    A("s_add_u32 s34, s34, 1")
    A(f"s_cmp_lt_u32 s34, {TIMEOUT}")
    A(f"s_cbranch_scc1 {tag}_poll")
    A("s_lshr_b32 s70, s30, 3")
    A(f"s_add_u32 s35, s70, {BM//8}")
    A(f"s_mov_b32 s10, {XSZ}")
    A(f"{tag}_self:")
    st_issue(A); st_issue2(A)
    A("s_waitcnt vmcnt(0)")
    A("s_getpc_b64 s[68:69]")
    A("s_add_u32 s68, s68, 12")
    A("s_addc_u32 s69, s69, 0")
    A("s_branch k1_stc")
    A("s_add_u32 s70, s70, 1")
    A("s_cmp_lt_u32 s70, s35")
    A(f"s_cbranch_scc1 {tag}_self")
    A(f"{tag}_pollok:")
    A("s_waitcnt vmcnt(0)")
    A("s_mov_b32 s28, 2")
    A(f"{tag}_ready:")
    pack_issue(A)
    return SS

def post_common(A, tag, BM, isH, TN, pairs, scale_sgpr=None):
    A("v_and_b32 v1, 63, v0")
    A("s_barrier")
    A("s_cmp_eq_u32 s28, 1")
    A(f"s_cbranch_scc1 {tag}_have")
    srd(A, 64, PWS, 2048 * 16, ST_OFF)
    A(f"v_and_b32 v12, {BM-1}, v0")
    A("v_add_u32 v12, s30, v12")
    A("v_lshlrev_b32 v12, 4, v12")
    A("buffer_load_dwordx4 v[4:7], v12, s[64:67], 0 offen sc1")
    A("s_waitcnt vmcnt(0)")
    A(f"{tag}_have:")
    a = 6 if isH else 4
    if scale_sgpr is not None:
        A(f"v_mul_f32 v{a}, s{scale_sgpr}, v{a}")
        A(f"v_mul_f32 v{a+1}, s{scale_sgpr}, v{a+1}")
    A(f"v_and_b32 v2, {BM-1}, v0")
    if pairs:
        A("v_lshlrev_b32 v2, 3, v2")
        A(f"v_add_u32 v2, {EP}, v2")
        A(f"ds_write_b64 v2, {pr(a)}")
    else:
        A("v_lshlrev_b32 v2, 2, v2")
        A(f"v_add_u32 v2, {EP}, v2")
        A(f"ds_write_b32 v2, v{a} offset:2048")
        A(f"ds_write_b32 v2, v{a+1} offset:3072")
    for u in range(2 if isH else 1):
        c = CS + 2 * u
        A(f"v_add_f32 v{c}, v{c}, v{c+1}")
        A(f"v_mov_b32 v{c+1}, v{c}")
        A("s_nop 1")
        A(f"v_permlane32_swap_b32 v{c}, v{c+1}")
        A("s_nop 1")
        A(f"v_add_f32 v{c}, v{c}, v{c+1}")
        A("v_and_b32 v3, 31, v1")
        A(f"s_lshl_b32 s32, s{76+u}, 7")
        A(f"s_add_u32 s32, s32, {CSL}")
        A("v_lshl_add_u32 v3, v3, 2, s32")
        A(f"ds_write_b32 v3, v{c}")
    if isH:
        A("v_lshlrev_b32 v14, 16, v14")
        A("v_lshlrev_b32 v3, 2, v0")
        A(f"v_add_u32 v3, {BIASL}, v3")
        A("ds_write_b32 v3, v14")
    A("s_waitcnt lgkmcnt(0)")
    A("s_barrier")

def gen_k1(A):
    name = "k1_kernel"
    kernel_begin(A, name)
    A("s_cmp_ge_u32 s2, 256")
    A("s_cbranch_scc1 k1_done")
    stamp(A, 0); tl_start(A, 0)
    A("s_load_dwordx4 s[4:7], s[0:1], 0")
    A("s_load_dwordx4 s[48:51], s[0:1], 32")
    A("s_load_dwordx2 s[52:53], s[0:1], 16")
    A("s_load_dwordx2 s[54:55], s[0:1], 48")
    A("s_load_dwordx4 s[56:59], s[0:1], 72")
    A("v_lshrrev_b32 v1, 6, v0")
    A("s_nop 0")
    A("v_readfirstlane_b32 s25, v1")
    A("s_mov_b32 s70, s2")
    st_issue(A)
    A("s_and_b32 s32, s2, 7")
    A("s_lshr_b32 s33, s2, 3")
    A("s_lshr_b32 s34, s32, 2")
    A("s_and_b32 s35, s32, 3")
    A("s_cmp_ge_u32 s33, 31")
    A("s_cbranch_scc1 k1_side")
    A("s_cmp_ge_u32 s33, 15")
    A("s_cbranch_scc1 k1_h")
    A("s_mul_i32 s36, s35, 15")
    A("s_add_u32 s36, s36, s33")
    A("s_lshr_b32 s75, s36, 2")
    A("s_and_b32 s38, s36, 3")
    A("s_lshl_b32 s39, s34, 2")
    A("s_add_u32 s38, s38, s39")
    A("s_lshl_b32 s30, s38, 8")
    A("s_lshl_b32 s31, s75, 7")
    A("s_lshl_b32 s29, s38, 3")
    A("s_cmp_ge_u32 s75, 10")
    A("s_cbranch_scc1 k1_v")
    SS1 = gemm_core(A, "k1qk", 4, 2, True, 3840, False)
    A("s_cmp_ge_u32 s75, 5")
    A(f"s_cselect_b32 s36, {K_OFF - Q_OFF - 80*32768}, 0")
    A(f"s_cselect_b32 s37, 1.0, {f32hex(DH**-0.5 * math.log2(math.e))}")
    post_common(A, "k1qk", 256, False, 2, True, 37)
    srd(A, 16, PWS, K_OFF - Q_OFF + 80 * 32768, Q_OFF)
    A("v_and_b32 v2, 31, v1")
    A("v_lshrrev_b32 v3, 5, v1")
    A("s_lshl_b32 s32, s43, 10")
    A(f"s_add_u32 s32, s32, {EP}")
    A("v_lshl_add_u32 v12, v2, 3, s32")
    for t in range(4):
        A(f"ds_read_b64 {pr(4+2*t)}, v12 offset:{t*256}")
    for u in range(2):
        A(f"s_lshl_b32 s32, s{76+u}, 7")
        A(f"s_add_u32 s32, s32, {CSL}")
        A("v_lshl_add_u32 v12, v3, 4, s32")
        for j in range(4):
            A(f"ds_read_b128 {vr(48+16*u+4*j,4)}, v12 offset:{32*j}")
    A("s_lshl_b32 s33, s43, 7")
    A("s_add_u32 s33, s33, s30")
    A("s_lshl_b32 s33, s33, 4")
    A("s_add_u32 s33, s33, s36")
    for u in range(2):
        A("s_lshl_b32 s32, s75, 2")
        A(f"s_add_u32 s32, s32, s{76+u}")
        A("s_lshl_b32 s32, s32, 17")
        A(f"s_add_u32 s{38+2*u}, s32, s33")
        A(f"s_add_u32 s{39+2*u}, s{38+2*u}, 65536")
    A("v_lshlrev_b32 v3, 15, v3")
    A("v_lshl_add_u32 v16, v2, 4, v3")
    A("s_waitcnt lgkmcnt(0)")
    for t in range(4):
        for u in range(2):
            a = ACC + (t * 2 + u) * 16
            T = 80
            for i in range(0, 16, 2):
                A(f"v_pk_mul_f32 {pr(T+i)}, {pr(48+16*u+i)}, {pr(4+2*t)} op_sel:[0,1] op_sel_hi:[1,1]")
            for i in range(0, 16, 2):
                A(f"v_pk_fma_f32 {pr(a+i)}, {pr(a+i)}, {pr(4+2*t)}, {pr(T+i)} op_sel_hi:[1,0,1] neg_lo:[0,0,1] neg_hi:[0,0,1]")
            p = 18 + ((t * 2 + u) % 3) * 8
            for i in range(8):
                A(f"v_cvt_pk_bf16_f32 v{p+i}, v{a+2*i}, v{a+2*i+1}")
            A("s_nop 0")
            for j in range(2):
                A(f"v_permlane32_swap_b32 v{p+4*j}, v{p+4*j+2}")
                A(f"v_permlane32_swap_b32 v{p+4*j+1}, v{p+4*j+3}")
            for j in range(2):
                A(f"buffer_store_dwordx4 v[{p+4*j}:{p+4*j+3}], v16, s[16:19], s{38+u*2+j} offen offset:{t*512}")
    A("s_branch k1_fin")
    A("k1_v:")
    gemm_core(A, "k1v", 4, 2, False, 3840, False)
    post_common(A, "k1v", 256, False, 2, False)
    srd(A, 16, PWS, 32 * 64 * VREC, V_OFF)
    A("v_and_b32 v2, 31, v1")
    A("v_lshrrev_b32 v3, 5, v1")
    A("s_lshl_b32 s32, s43, 9")
    A(f"s_add_u32 s32, s32, {EP+2048}")
    A("v_lshl_add_u32 v12, v3, 4, s32")
    for u in range(2):
        A(f"s_lshl_b32 s32, s{76+u}, 7")
        A(f"s_add_u32 s32, s32, {CSL}")
        A("v_lshl_add_u32 v13, v2, 2, s32")
        A(f"ds_read_b32 v{4+2*u}, v13")
    A("s_lshr_b32 s38, s30, 5")
    A("s_lshl_b32 s32, s43, 2")
    A("s_add_u32 s38, s38, s32")
    A(f"s_mul_i32 s38, s38, {VREC}")
    for t in range(1, 4):
        A(f"s_add_u32 s{38+t}, s{37+t}, {VREC}")
    A("s_sub_u32 s33, s31, 1280")
    A(f"v_mul_u32_u24 v3, {VSB}, v3")
    A(f"s_mov_b32 s34, {64*VREC}")
    for u in range(2):
        A(f"s_lshl_b32 s32, s{76+u}, 5")
        A("s_add_u32 s32, s32, s33")
        A("v_add_u32 v8, s32, v2")
        A("v_mul_u32_u24 v9, 3277, v8")
        A("v_lshrrev_b32 v9, 16, v9")
        A("v_mul_u32_u24 v10, 20, v9")
        A("v_sub_u32 v10, v8, v10")
        A("v_lshl_add_u32 v10, v10, 4, v3")
        A("v_mul_lo_u32 v9, v9, s34")
        A(f"v_add_u32 v{16+u}, v9, v10")
    for t in range(4):
        for j in range(4):
            A(f"ds_read_b128 {vr(48+4*j,4)}, v12 offset:{t*128+32*j}")
            A(f"ds_read_b128 {vr(64+4*j,4)}, v12 offset:{1024+t*128+32*j}")
        A("s_waitcnt lgkmcnt(0)")
        for u in range(2):
            a = ACC + (t * 2 + u) * 16
            T = 80
            for i in range(0, 16, 2):
                A(f"v_pk_mul_f32 {pr(T+i)}, {pr(64+i)}, {pr(4+2*u)} op_sel_hi:[1,0]")
            for i in range(0, 16, 2):
                A(f"v_pk_fma_f32 {pr(a+i)}, {pr(a+i)}, {pr(48+i)}, {pr(T+i)} neg_lo:[0,0,1] neg_hi:[0,0,1]")
            p = 18 + ((t * 2 + u) % 3) * 8
            for i in range(8):
                A(f"v_cvt_pk_bf16_f32 v{p+i}, v{a+2*i}, v{a+2*i+1}")
            A(f"buffer_store_dwordx4 v[{p}:{p+3}], v{16+u}, s[16:19], s{38+t} offen")
            A(f"buffer_store_dwordx4 v[{p+4}:{p+7}], v{16+u}, s[16:19], s{38+t} offen offset:{2*VSB}")
    A("s_branch k1_fin")
    A("k1_h:")
    A("s_sub_u32 s36, s33, 15")
    A("s_lshr_b32 s37, s36, 3")
    A("s_lshl_b32 s38, s35, 1")
    A("s_add_u32 s37, s37, s38")
    A("s_and_b32 s38, s36, 7")
    A("s_lshl_b32 s39, s34, 3")
    A("s_add_u32 s38, s38, s39")
    A("s_lshl_b32 s30, s38, 7")
    A("s_mul_i32 s31, s37, 192")
    A("s_lshl_b32 s29, s38, 2")
    SS2 = gemm_core(A, "k1h", 2, 3, True, 3072, True)
    post_common(A, "k1h", 128, True, 3, True)
    srd(A, 16, PWS, 64 * 96 * 1024, HB_OFF)
    A("v_and_b32 v2, 31, v1")
    A("v_lshrrev_b32 v3, 5, v1")
    A("s_lshl_b32 s32, s43, 9")
    A(f"s_add_u32 s32, s32, {EP}")
    A("v_lshl_add_u32 v12, v2, 3, s32")
    for t in range(2):
        A(f"ds_read_b64 {pr(8+2*t)}, v12 offset:{t*256}")
    A("s_lshr_b32 s33, s30, 5")
    A("s_lshl_b32 s32, s43, 1")
    A("s_add_u32 s33, s33, s32")
    A("s_mul_i32 s33, s33, 96")
    A("s_lshr_b32 s32, s31, 4")
    A("s_add_u32 s33, s33, s32")
    for u in range(3):
        A(f"s_lshl_b32 s32, s{76+u}, 1")
        A("s_add_u32 s32, s32, s33")
        A(f"s_lshl_b32 s{36+2*u}, s32, 10")
        A(f"s_add_u32 s{37+2*u}, s{36+2*u}, {96*1024}")
    A("v_lshlrev_b32 v16, 4, v1")
    c0 = -2.0 * math.sqrt(2.0 / math.pi) * math.log2(math.e)
    c1 = c0 * 0.044715
    A(f"v_mov_b32 v4, {f32hex(c0)}"); A(f"v_mov_b32 v5, {f32hex(c1)}")
    A("v_mov_b32 v6, 1.0")
    T = 80
    for u in range(3):
        A(f"s_lshl_b32 s32, s{76+u}, 7")
        A(f"s_add_u32 s32, s32, {CSL}")
        A("v_lshl_add_u32 v12, v3, 4, s32")
        for j in range(4):
            A(f"ds_read_b128 {vr(48+4*j,4)}, v12 offset:{32*j}")
            A(f"ds_read_b128 {vr(64+4*j,4)}, v12 offset:{768+32*j}")
        A("s_waitcnt lgkmcnt(0)")
        for t in range(2):
            a = ACC + (t * 3 + u) * 16
            p = 18 + ((u * 2 + t) % 3) * 8
            ab = pr(8 + 2 * t)
            for i in range(0, 16, 2): A(f"v_pk_fma_f32 {pr(T+i)}, {pr(48+i)}, {ab}, {pr(64+i)} op_sel:[0,1,0] op_sel_hi:[1,1,1] neg_lo:[1,0,0] neg_hi:[1,0,0]")
            for i in range(0, 16, 2): A(f"v_pk_fma_f32 {pr(a+i)}, {pr(a+i)}, {ab}, {pr(T+i)} op_sel_hi:[1,0,1]")
            for i in range(0, 16, 2): A(f"v_pk_mul_f32 {pr(T+i)}, {pr(a+i)}, {pr(a+i)}")
            for i in range(0, 16, 2): A(f"v_pk_fma_f32 {pr(T+i)}, {pr(T+i)}, v[4:5], v[4:5] op_sel:[0,1,0] op_sel_hi:[1,1,0]")
            for i in range(0, 16, 2): A(f"v_pk_mul_f32 {pr(T+i)}, {pr(T+i)}, {pr(a+i)}")
            for i in range(16): A(f"v_exp_f32 v{T+i}, v{T+i}")
            for i in range(0, 16, 2): A(f"v_pk_add_f32 {pr(T+i)}, {pr(T+i)}, v[6:7] op_sel_hi:[1,0]")
            for i in range(16): A(f"v_rcp_f32 v{T+i}, v{T+i}")
            for i in range(0, 16, 2): A(f"v_pk_mul_f32 {pr(T+i)}, {pr(T+i)}, {pr(a+i)}")
            for i in range(8): A(f"v_cvt_pk_bf16_f32 v{p+i}, v{T+2*i}, v{T+2*i+1}")
            A(f"buffer_store_dwordx4 v[{p}:{p+3}], v16, s[16:19], s{36+2*u+t} offen")
            A(f"buffer_store_dwordx4 v[{p+4}:{p+7}], v16, s[16:19], s{36+2*u+t} offen offset:1024")
    A("s_branch k1_fin")
    A("k1_side:")
    A("s_waitcnt lgkmcnt(0)")
    srd(A, 8, PX, XSZ)
    st_issue2(A)
    prefetch(A)
    pack_issue(A)
    srd(A, 60, PWS, 2048 * 16, ST_OFF)
    A("s_waitcnt vmcnt(0)")
    A("s_getpc_b64 s[68:69]")
    A("s_add_u32 s68, s68, 12")
    A("s_addc_u32 s69, s69, 0")
    A("s_branch k1_stc")
    A("s_waitcnt vmcnt(0)")
    A("s_barrier")
    signal(A)
    A("k1_fin:")
    pack_store(A)
    stamp(A, 4); stamp_flush(A, 5, PWS, 0, 25); tl_end(A, 0)
    A("k1_done:")
    A("s_endpgm")
    A("k1_stc:")
    st_compute(A)
    A("s_setpc_b64 s[68:69]")
    assert 3 * max(SS1, SS2) <= EP
    return kernel_desc(name, 256), f"; @launch kernel=k1_kernel grid=(256,1,1) block=(256,1,1) lds={LDS_BYTES}"
```

```python
from asmlib import *
from layout import *
import math, os

QA1, QA2, QB1, QB2 = 16, 20, 22, 26
B2R = 28
VW = 36
SA, SB = 68, 84
PA, PB = 100, 108
OA, OB_ = 116, 132
KF = [(148, 152), (154, 158)]
VF = [(160, 164), (168, 172)]
MO, M5 = 176, 192
MF = 208
F5 = 240
VK1, VK2, VV = 4, 5, 6
VP = 8
VD = [12, 34, 35]
L16 = 47
KVSZ = (V_OFF - K_OFF) + 32 * 64 * VREC
SLOT = 24576
XCH = 2 * SLOT
X5 = XCH + 40960
FLAG = X5 + 32768
LDS_BYTES = FLAG + 64
OOB = 0x40000

def m16(d, a, b, c):
    return f"v_mfma_f32_32x32x16_bf16 {vr(d,16)}, {vr(a,4)}, {vr(b,4)}, {c}"
def m8(d, a, b, c):
    return f"v_mfma_f32_32x32x8_bf16 {vr(d,16)}, {vr(a,2)}, {vr(b,2)}, {c}"

def phase(out, s, p, mf, slots):
    E = lambda i: f"v_exp_f32 v{s+i}, v{s+i}"
    C = lambda i: f"v_cvt_pk_bf16_f32 v{p+i}, v{s+2*i}, v{s+2*i+1}"
    groups = [[E(0), E(1), E(2), E(3), C(0)],
              [E(4), E(5), C(1), E(6), E(7)],
              [C(2), E(8), E(9), C(3), E(10)],
              [E(11), C(4), E(12), E(13), C(5)],
              [E(14), E(15), C(6), C(7)]]
    X = os.environ.get("K2X", "")
    if "ord2" in X:
        groups = [[E(0), E(1), E(2), E(3), E(4)],
                  [E(5), C(0), E(6), E(7), C(1)],
                  [E(8), E(9), C(2), E(10), E(11)],
                  [C(3), E(12), E(13), C(4), E(14)],
                  [E(15), C(5), C(6), C(7)]]
    if "ord3" in X:
        groups = [[E(i) for i in range(0, 4)], [E(i) for i in range(4, 8)], [E(i) for i in range(8, 12)], [E(i) for i in range(12, 16)], [C(i) for i in range(8)]]
    for g in range(5):
        out += mf[g]
        out += slots[g]
        out += groups[g]

def rdK(buf, off):
    return [f"ds_read_b128 {vr(KF[buf][0],4)}, v{VK1} offset:{off}", "s_mov_b32 exec_hi, 0",
            f"ds_read_b64 {vr(KF[buf][1],2)}, v{VK2} offset:{off}", "s_mov_b32 exec_hi, -1"]
def rdV(buf, off):
    return [f"ds_read_b128 {vr(VF[buf][0],4)}, v{VV} offset:{off}", f"ds_read_b128 {vr(VF[buf][1],4)}, v{VV} offset:{off+2*VSB}"]
def toffK(i):
    i %= 8
    return (i // 4) * SLOT + (i % 4) * 1024
def toffV(i):
    i %= 8
    return (i // 4) * SLOT + (i % 4) * 2 * VREC

def rowmax(A, s, acc, first):
    if first:
        A(f"v_max3_f32 v{acc}, v{s}, v{s+1}, v{s+2}")
        A(f"v_max_f32 v{acc}, v{acc}, v{s+3}")
        st = 4
    else:
        st = 0
    for i in range(st, 16, 2):
        A(f"v_max3_f32 v{acc}, v{acc}, v{s+i}, v{s+i+1}")

def set_nc(A, acc, q2, tmp):
    A(f"v_mov_b32 v{tmp}, v{acc}")
    A("s_nop 1")
    A(f"v_permlane32_swap_b32 v{acc}, v{tmp}")
    A("s_nop 1")
    A(f"v_max_f32 v{acc}, v{acc}, v{tmp}")
    A(f"v_cvt_pk_bf16_f32 v{tmp}, -v{acc}, -v{acc}")
    A(f"v_lshlrev_b32 v{tmp}, 16, v{tmp}")
    A(f"v_sub_f32 v{tmp}, -v{acc}, v{tmp}")
    A("s_mov_b32 exec_lo, 0")
    A(f"v_cvt_pk_bf16_f32 v{q2}, -v{acc}, v{tmp}")
    A("s_mov_b64 exec, -1")

def dma_ops(slot):
    L = [f"s_add_u32 m0, s46, {slot*SLOT}", "s_nop 0"]
    for j in range(3):
        L.append(f"buffer_load_dwordx4 v{VD[j]}, s[20:23], s47 offen offset:{j*1024} lds")
    L.append("s_add_u32 s47, s47, s45")
    return L

def mlp_loads(st):
    p = st % 4; b = MF + (st % 4) * 8
    L = [(f"buffer_load_dwordx4 {vr(b,4)}, v{VP+p}, s[24:27], s48 offen", f"h{st}"),
         (f"buffer_load_dwordx4 {vr(b+4,4)}, v{VW+p}, s[28:31], s49 offen", f"w{st}")]
    if p == 0:
        L.append((f"buffer_load_dwordx4 {vr(F5 + ((st//4) % 2) * 4, 4)}, v{VP}, s[28:31], s50 offen", f"f{st}"))
    if p == 3:
        L += ["s_add_u32 s48, s48, 4096", "s_add_u32 s49, s49, 4096", "s_add_u32 s50, s50, 4096"]
    return L

def resolve_waits(body):
    isv = lambda x: (x[0] if isinstance(x, tuple) else x).startswith("buffer_")
    n = len(body)
    out = []
    for i, x in enumerate(body):
        if isinstance(x, tuple) and x[0] == "WAIT":
            cnt = 0; j = i
            while True:
                j = (j - 1) % n
                y = body[j]
                if isinstance(y, tuple) and y[0] != "WAIT" and y[1] == x[1]:
                    break
                if not (isinstance(y, tuple) and y[0] == "WAIT") and isv(y):
                    cnt += 1
                assert j != i
            out.append(f"s_waitcnt vmcnt({cnt})")
        else:
            out.append(x[0] if isinstance(x, tuple) else x)
    return out


def build_body():
    mm = []
    for st in range(12):
        b = MF + (st % 4) * 8
        mm.append(([("WAIT", f"w{st}"), m16(MO, b + 4, b, vr(MO, 16))], st if st % 4 else None))
        if st % 4 == 0:
            mm.append(([("WAIT", f"f{st}"), m16(M5, F5 + ((st // 4) % 2) * 4, b, vr(M5, 16))], st))
    body = []
    ph = 0
    for i in range(8):
        b = i & 1; nb = b ^ 1
        k = rdK(nb, toffK(i + 1)); v = rdV(nb, toffV(i + 1))
        last = (i % 4 == 3)
        for half in range(2):
            if ph < 15:
                x5, fin = mm[ph]
                post = mlp_loads((fin + 3) % 12) if fin is not None else []
                if fin == 9:
                    post = ["s_cmp_lt_u32 s39, 3", "s_cselect_b32 s26, s26, 0", "s_cselect_b32 s30, s30, 0"] + post
            else:
                x5, post = [], []
            if half == 0:
                pre = [("WAIT", f"d{i//4}"), "s_waitcnt lgkmcnt(0)", "s_barrier"] if last else []
                dm = dma_ops(i // 4) if last else []
                if dm:
                    dm[4] = (dm[4], f"d{(i//4)^1}")
                    dm = ["s_cmp_lt_u32 s39, 3", "s_cselect_b32 s22, s22, 0"] + dm
                phase(body, SA, PA,
                      [[m16(SB, KF[b][0], QB1, "0")], [m8(SB, KF[b][1], QB2, vr(SB, 16))],
                       [m16(OB_, VF[nb][0], PB, vr(OB_, 16))], [m16(OB_, VF[nb][1], PB + 4, vr(OB_, 16))], x5],
                      [pre + k, [], dm, [], post + ["s_waitcnt lgkmcnt(0)"]])
            else:
                tail = ["s_add_u32 s39, s39, 1", "s_cmp_lt_u32 s39, 4"] if i == 7 else []
                phase(body, SB, PB,
                      [[m16(SA, KF[nb][0], QA1, "0")], [m8(SA, KF[nb][1], QA2, vr(SA, 16))],
                       [m16(OA, VF[b][0], PA, vr(OA, 16))], [m16(OA, VF[b][1], PA + 4, vr(OA, 16))], x5],
                      [v, [], [], [], post + tail])
            ph += 1
    return body

def prologue_vmem(body):
    i0 = next(i for i, x in enumerate(body) if isinstance(x, tuple) and x[1] == "h0" and x[0] != "WAIT")
    out = []
    for x in body[i0:]:
        if isinstance(x, tuple) and x[0] == "WAIT": continue
        t = x[0] if isinstance(x, tuple) else x
        if t.startswith("buffer_") or t.startswith("s_add_u32 m0") or t == "s_nop 0" or t.startswith("s_add_u32 s47") \
           or t.startswith("s_add_u32 s48") or t.startswith("s_add_u32 s49") or t.startswith("s_add_u32 s50"):
            out.append(t)
    return out

def gen_k2(A):
    name = "k2_kernel"
    kernel_begin(A, name)
    A("s_cmp_ge_u32 s2, 256")
    A("s_cbranch_scc1 k2_done")
    stamp(A, 0); tl_start(A, 1)
    A("s_load_dwordx2 s[6:7], s[0:1], 80")
    A("s_load_dwordx2 s[4:5], s[0:1], 56")
    A("v_lshrrev_b32 v1, 6, v0")
    A("s_nop 0")
    A("v_readfirstlane_b32 s64, v1")
    A("s_and_b32 s32, s2, 7")
    A("s_lshr_b32 s33, s2, 3")
    A("s_lshl_b32 s34, s32, 2")
    A("s_lshr_b32 s35, s33, 3")
    A("s_add_u32 s34, s34, s35")
    A("s_and_b32 s35, s33, 7")
    A("s_and_b32 s65, s64, 3")
    A("s_lshr_b32 s66, s64, 2")
    A("v_and_b32 v1, 63, v0")
    A(f"v_lshlrev_b32 v{L16}, 4, v1")
    A("s_mul_i32 s46, s64, 3072")
    A("s_mul_i32 s67, s34, 5")
    A("s_lshr_b32 s67, s67, 1")
    A("s_and_b32 s68, s34, 1")
    A(f"s_mul_i32 s45, s66, {8*VREC - 4096}")
    A("s_add_u32 s45, s45, 4096")
    A("s_mul_i32 s69, s65, 3")
    A(f"s_mul_i32 s70, s34, {64*VREC}")
    A(f"s_add_u32 s70, s70, {V_OFF - K_OFF}")
    for j in range(3):
        A(f"s_add_u32 s54, s69, {j}")
        A("s_lshr_b32 s55, s54, 2")
        A("s_add_u32 s55, s55, s67")
        A("s_lshl_b32 s55, s55, 15")
        A("s_and_b32 s56, s54, 3")
        A("s_lshl_b32 s56, s56, 10")
        A("s_add_u32 s55, s55, s56")
        A("s_lshl_b32 s56, s54, 10")
        A("s_add_u32 s56, s56, s70")
        if j == 2:
            A("s_cmp_eq_u32 s54, 11")
            A("s_cselect_b32 s56, 0x40000000, s56")
        A("s_cmp_eq_u32 s66, 0")
        A("s_cselect_b32 s55, s55, s56")
        if j: A(f"s_sub_u32 s55, s55, {j*1024}")
        A(f"v_add_u32 v{VD[j]}, s55, v{L16}")
    A(f"s_mov_b32 s51, {KVSZ}")
    A("s_mov_b32 s38, 0")
    A("s_lshl_b32 s36, s35, 3")
    A("s_lshl_b32 s37, s65, 1")
    A("s_add_u32 s36, s36, s37")
    A("s_add_u32 s36, s36, s66")
    A("s_lshl_b32 s37, s36, 9")
    A("s_lshl_b32 s54, s67, 15")
    A("s_add_u32 s37, s37, s54")
    A("s_xor_b32 s44, s37, 512")
    A("v_and_b32 v2, 31, v1")
    A("v_lshrrev_b32 v3, 5, v1")
    A("v_add_u32 v7, s68, v3")
    A("v_lshlrev_b32 v15, 4, v2")
    A(f"v_lshl_add_u32 v{VK1}, v7, 12, v15")
    A("v_lshl_add_u32 v40, v7, 15, v15")
    A("s_lshl_b32 s54, s68, 1")
    A("s_sub_u32 s54, 2, s54")
    A("s_lshl_b32 s55, s68, 3")
    A("s_lshl_b32 s56, s54, 12")
    A("s_add_u32 s56, s56, s55")
    A(f"v_add_u32 v{VK2}, s56, v15")
    A("s_lshl_b32 s56, s54, 15")
    A("s_add_u32 s56, s56, s55")
    A("v_add_u32 v41, s56, v15")
    for r in (QA2, QA2 + 1, QB2, QB2 + 1): A(f"v_mov_b32 v{r}, 0")
    for r in (KF[0][1], KF[0][1] + 1, KF[1][1], KF[1][1] + 1): A(f"v_mov_b32 v{r}, 0x3f803f80")
    A("s_lshr_b32 s52, s32, 1")
    A("s_lshl_b32 s52, s52, 4")
    A("s_and_b32 s53, s33, 15")
    A("s_add_u32 s52, s52, s53")
    A("s_and_b32 s53, s32, 1")
    A("s_lshl_b32 s53, s53, 1")
    A("s_lshr_b32 s54, s33, 4")
    A("s_add_u32 s53, s53, s54")
    A("s_lshl_b32 s55, s66, 8")
    A(f"v_xor_b32 v7, s55, v{L16}")
    for p in range(4):
        A(f"s_xor_b32 s54, s65, {p}")
        A("s_lshl_b32 s54, s54, 10")
        A(f"v_add_u32 v{VP+p}, s54, v{L16}")
        A(f"v_add_u32 v{VW+p}, s54, v7")
    A("s_mul_i32 s54, s53, 320")
    A("s_lshl_b32 s55, s65, 6")
    A("s_add_u32 s55, s55, s54")
    A("s_lshl_b32 s56, s66, 5")
    A("s_add_u32 s55, s55, s56")
    A("v_lshlrev_b32 v15, 3, v3")
    A("v_add_u32 v13, s55, v15")
    A("s_lshr_b32 s55, s64, 1")
    A("s_lshl_b32 s55, s55, 4")
    A("s_and_b32 s56, s64, 1")
    A("s_lshl_b32 s56, s56, 2")
    A("s_add_u32 s55, s55, s56")
    A("s_add_u32 s55, s55, s54")
    A("s_add_u32 s55, s55, 256")
    A("v_add_u32 v14, s55, v15")
    A("s_waitcnt lgkmcnt(0)")
    srd(A, 20, 6, KVSZ, K_OFF)
    srd(A, 8, 6, 80 * 32768, Q_OFF)
    A("s_mov_b32 s47, 0")
    for l in dma_ops(0): A(l)
    A(f"buffer_load_dwordx4 {vr(QA1,4)}, v40, s[8:11], s37 offen")
    A(f"buffer_load_dwordx4 {vr(QB1,4)}, v40, s[8:11], s44 offen")
    A("s_mov_b32 exec_hi, 0")
    A(f"buffer_load_dwordx2 {vr(QA2,2)}, v41, s[8:11], s37 offen")
    A(f"buffer_load_dwordx2 {vr(QB2,2)}, v41, s[8:11], s44 offen")
    A("s_mov_b64 exec, -1")
    srd(A, 16, 4, 1280)
    for j in range(2):
        A(f"buffer_load_dwordx2 {vr(B2R+2*j,2)}, v13, s[16:19], 0 offen offset:{16*j}")
    A(f"buffer_load_dword v{B2R+4}, v14, s[16:19], 0 offen")
    srd(A, 24, 6, 64 * 96 * 1024, HB_OFF)
    srd(A, 28, 6, 20 * 96 * 1024, W2F_OFF)
    srd(A, 12, 6, 64 * 40 * 1024, OB_OFF)
    srd(A, 16, 6, XSZ, BM_OFF)
    A("s_lshl_b32 s54, s52, 2")
    A("s_add_u32 s54, s54, s53")
    A("s_mul_i32 s54, s54, 10240")
    A("s_lshl_b32 s55, s65, 1")
    A("s_add_u32 s55, s55, s66")
    A("s_lshl_b32 s55, s55, 10")
    A("s_add_u32 s55, s55, s54")
    A(f"v_add_u32 v13, s55, v{L16}")
    A("s_add_u32 s55, s66, 8")
    A("s_lshl_b32 s55, s55, 10")
    A("s_add_u32 s55, s55, s54")
    A("s_lshl_b32 s56, s65, 2")
    A("s_add_u32 s55, s55, s56")
    A(f"v_add_u32 v14, s55, v{L16}")
    A(f"v_mul_u32_u24 v15, {VSB}, v3")
    A(f"v_lshl_add_u32 v{VV}, v2, 4, v15")
    A(f"s_mul_i32 s57, s66, {VREC}")
    A("s_add_u32 s57, s57, 12288")
    A(f"v_add_u32 v{VV}, s57, v{VV}")
    A("v_cmp_lt_u32 vcc, 20, v2")
    A(f"v_mov_b32 v15, {OOB}")
    A("s_lshl_b32 s57, s66, 9")
    A(f"v_cndmask_b32 v{VV}, v{VV}, v15, vcc")
    A(f"v_mov_b32 v7, {FLAG}")
    A("v_mov_b32 v15, 0")
    A("ds_write_b32 v7, v15")
    A("s_branch k2_main2")
    A("k2_main:")
    A("s_mov_b32 s22, s51")
    A("s_mov_b32 s47, 0")
    for l in dma_ops(0): A(l)
    A("k2_main2:")
    A(f"s_mov_b32 s26, {64 * 96 * 1024}")
    A(f"s_mov_b32 s30, {20 * 96 * 1024}")
    A("s_mul_i32 s54, s66, 48")
    A("s_mul_i32 s48, s52, 96")
    A("s_add_u32 s48, s48, s54")
    A("s_lshl_b32 s48, s48, 10")
    A("s_mul_i32 s49, s53, 5")
    A("s_add_u32 s50, s49, 4")
    A("s_add_u32 s49, s49, s65")
    for r in (49, 50):
        A(f"s_mul_i32 s{r}, s{r}, 96")
        A(f"s_add_u32 s{r}, s{r}, s54")
        A(f"s_lshl_b32 s{r}, s{r}, 10")
    body = build_body()
    pv = prologue_vmem(body)
    npv = 0
    for r in list(range(OA, OA + 32)) + list(range(PB, PB + 8)) + list(range(VF[1][0], VF[1][0] + 8)) + list(range(MO + 8, MO + 32)):
        A(f"v_mov_b32 v{r}, 0")
    A(f"s_waitcnt vmcnt({npv}) lgkmcnt(0)")
    for e in range(4):
        A(f"v_lshlrev_b32 v{MO+2*e}, 16, v{B2R+e}")
        A(f"v_and_b32 v{MO+2*e+1}, 0xffff0000, v{B2R+e}")
    stamp(A, 1)
    A("s_barrier")
    A("s_cmp_lg_u32 s38, 0")
    A("s_cbranch_scc1 k2_havemax")
    for l in rdK(1, 0): A(l)
    for r in (VK1, VK2): A(f"v_add_u32 v{r}, s57, v{r}")
    for l in rdK(0, 0) + rdV(0, 0): A(l)
    for l in pv[:2]: A(l)
    A("s_waitcnt lgkmcnt(4)")
    A(m16(SA, KF[1][0], QA1, "0")); A(m8(SA, KF[1][1], QA2, vr(SA, 16)))
    A(m16(SB, KF[1][0], QB1, "0")); A(m8(SB, KF[1][1], QB2, vr(SB, 16)))
    for l in pv[2:5]: A(l)
    A("s_nop 6")
    rowmax(A, SA, 2, True)
    set_nc(A, 2, QA2, 7)
    A("s_waitcnt lgkmcnt(0)")
    A(m16(SA, KF[0][0], QA1, "0")); A(m8(SA, KF[0][1], QA2, vr(SA, 16)))
    for l in pv[5:11]: A(l)
    rowmax(A, SB, 3, True)
    set_nc(A, 3, QB2, 7)
    for l in pv[11:]: A(l)
    A("s_branch k2_go")
    A("k2_havemax:")
    for l in rdK(0, 0) + rdV(0, 0): A(l)
    for l in pv: A(l)
    A("s_waitcnt lgkmcnt(0)")
    A(m16(SA, KF[0][0], QA1, "0")); A(m8(SA, KF[0][1], QA2, vr(SA, 16)))
    A("s_nop 10")
    A("k2_go:")
    A("s_mov_b32 s39, 0")
    stamp(A, 2)
    A(".p2align 3")
    A("k2_loop:")
    rb = resolve_waits(body)
    X = os.environ.get("K2X", "")
    for l in rb:
        if "nobar" in X and l == "s_barrier": continue
        if "nomlp" in X and (("s[24:27]" in l) or ("s[28:31]" in l) or l.startswith(f"v_mfma_f32_32x32x16_bf16 v[{MO}:") or l.startswith(f"v_mfma_f32_32x32x16_bf16 v[{M5}:")): continue
        A(l)
    A("s_cbranch_scc1 k2_loop")
    A("s_nop 1")
    A(m16(OB_, VF[1][0], PB, vr(OB_, 16))); A(m16(OB_, VF[1][1], PB + 4, vr(OB_, 16)))
    stamp(A, 3)
    A("v_and_b32 v1, 63, v0")
    A("v_lshlrev_b32 v2, 4, v1")
    A("s_lshl_b32 s40, s64, 12")
    A(f"s_add_u32 s40, s40, {X5}")
    A("v_add_u32 v3, s40, v2")
    A("s_mul_i32 s40, s64, 5120")
    A(f"s_add_u32 s40, s40, {XCH}")
    A("v_add_u32 v7, s40, v2")
    for q in range(4):
        A(f"ds_write_b128 v3, {vr(M5+4*q,4)} offset:{q*1024}")
    for q, r in enumerate([MO + 8, MO + 12]):
        A(f"ds_write_b128 v7, {vr(r,4)} offset:{q*1024}")
    A("s_xor_b32 s40, s64, 4")
    A("s_mul_i32 s40, s40, 5120")
    A(f"s_add_u32 s40, s40, {XCH}")
    A("v_add_u32 v15, s40, v2")
    A("s_lshr_b32 s40, s64, 1")
    A("s_lshl_b32 s40, s40, 10")
    A("s_and_b32 s41, s64, 1")
    A("s_lshl_b32 s41, s41, 3")
    A("s_add_u32 s40, s40, s41")
    A(f"s_add_u32 s40, s40, {X5}")
    A("v_add_u32 v3, s40, v2")
    A("s_nop 0")
    for q, r in enumerate([OB_, OB_ + 4, OB_ + 8]):
        A(f"ds_write_b128 v7, {vr(r,4)} offset:{(2+q)*1024}")
    A("s_mul_i32 s40, s36, 40")
    A("s_add_u32 s41, s40, s34")
    A("s_lshl_b32 s41, s41, 10")
    A("s_lshr_b32 s42, s34, 2")
    A("s_add_u32 s42, s42, s40")
    A("s_add_u32 s42, s42, 32")
    A("s_lshl_b32 s42, s42, 10")
    A("s_bfe_u32 s43, s34, 0x10001")
    A("s_lshl_b32 s43, s43, 9")
    A("s_add_u32 s42, s42, s43")
    A("s_and_b32 s43, s34, 1")
    A("s_lshl_b32 s43, s43, 3")
    A("s_add_u32 s42, s42, s43")
    A(f"s_mov_b32 s40, {f32hex(2.0**64)}")
    A("s_waitcnt lgkmcnt(0)")
    stamp(A, 4)
    A("s_barrier")
    stamp(A, 5)
    for q in (2, 3, 4, 0, 1):
        A(f"ds_read_b128 {vr(SA+4*q,4)}, v15 offset:{q*1024}")
    for q in range(8):
        A(f"ds_read_b64 {vr(148+2*q,2)}, v3 offset:{q*4096}")
    pr = lambda r: f"v[{r}:{r+1}]"
    A("v_mov_b32 v40, 0"); A("v_mov_b32 v41, 0"); A("v_mov_b32 v42, 0"); A("v_mov_b32 v43, 0")
    A(f"v_lshlrev_b32 v44, 16, v{B2R+4}")
    A(f"v_and_b32 v45, 0xffff0000, v{B2R+4}")
    A("s_waitcnt lgkmcnt(10)")
    for e in (8, 10, 0, 2, 4, 6):
        A(f"v_pk_add_f32 {pr(OA+e)}, {pr(OA+e)}, {pr(SA+8+e)}")
        if e == 10:
            A(f"v_mov_b32 v7, v{OA+8}")
            A(f"v_mov_b32 v46, v{OA+8}")
    A(f"v_permlane32_swap_b32 v7, v46")
    for e in range(0, 12, 2):
        A(f"v_pk_fma_f32 v[42:43], {pr(OA+e)}, v[40:41], v[42:43]")
    A("v_cmp_nlt_f32 s[58:59], v46, s40")
    A("v_cmp_u_f32 s[60:61], v42, v43")
    A("v_rcp_f32 v46, v46")
    A("s_nop 2")
    A("s_or_b64 s[58:59], s[58:59], s[60:61]")
    A("s_cbranch_scc0 k2_noflag")
    A(f"v_mov_b32 v7, {FLAG}")
    A("v_mov_b32 v15, 1")
    A("ds_write_b32 v7, v15")
    A("k2_noflag:")
    for e in range(0, 12, 2):
        A(f"v_pk_mul_f32 {pr(OA+e)}, {pr(OA+e)}, v[46:47] op_sel_hi:[1,0]")
    for i in range(6):
        A(f"v_cvt_pk_bf16_f32 v{PA+i}, v{OA+2*i}, v{OA+2*i+1}")
    A(f"buffer_store_dwordx4 {vr(PA,4)}, v2, s[12:15], s41 offen")
    A("s_mov_b32 exec_hi, 0")
    A(f"buffer_store_dwordx2 {vr(PA+4,2)}, v2, s[12:15], s42 offen")
    A("s_mov_b64 exec, -1")
    A("s_waitcnt lgkmcnt(0)")
    for e in range(0, 8, 2):
        A(f"v_pk_add_f32 {pr(MO+e)}, {pr(MO+e)}, {pr(SA+e)}")
    for e in range(4):
        A(f"v_cvt_pk_bf16_f32 v{PB+e}, v{MO+2*e}, v{MO+2*e+1}")
    A(f"buffer_store_dwordx4 {vr(PB,4)}, v13, s[16:19], 0 offen")
    for q in range(8):
        A(f"v_pk_add_f32 v[44:45], v[44:45], {pr(148+2*q)}")
    A(f"v_cvt_pk_bf16_f32 v{PB+4}, v44, v45")
    A(f"buffer_store_dword v{PB+4}, v14, s[16:19], 0 offen")
    A("s_waitcnt lgkmcnt(0)")
    stamp(A, 6)
    A("s_barrier")
    A(f"v_mov_b32 v7, {FLAG}")
    A("ds_read_b32 v15, v7")
    A("s_waitcnt lgkmcnt(0)")
    A("v_readfirstlane_b32 s41, v15")
    A("s_nop 3")
    A("s_cmp_eq_u32 s41, 0")
    A("s_cbranch_scc1 k2_fin")
    A("s_cmp_lg_u32 s38, 0")
    A("s_cbranch_scc1 k2_fin")
    A("s_mov_b32 s38, 1")
    A("s_waitcnt vmcnt(0)")
    for r in (KF[0][1], KF[0][1] + 1, KF[1][1], KF[1][1] + 1): A(f"v_mov_b32 v{r}, 0x3f803f80")
    A(f"v_mov_b32 v2, {f32hex(-3.0e38)}")
    A(f"v_mov_b32 v3, {f32hex(-3.0e38)}")
    A("s_mov_b32 exec_lo, 0")
    A(f"v_mov_b32 v{QA2}, 0")
    A(f"v_mov_b32 v{QB2}, 0")
    A("s_mov_b64 exec, -1")
    for r in (VK1, VK2): A(f"v_subrev_u32 v{r}, s57, v{r}")
    A("s_mov_b32 s22, s51")
    A("s_mov_b32 s47, 0")
    A("s_mov_b32 s39, 0")
    A("k2_maxloop:")
    for l in dma_ops(0): A(l)
    A("s_waitcnt vmcnt(0)")
    A("s_barrier")
    A("s_mov_b32 s40, 0")
    A("k2_maxin:")
    for l in rdK(0, 0): A(l)
    A("s_waitcnt lgkmcnt(0)")
    A(m16(SA, KF[0][0], QA1, "0")); A(m8(SA, KF[0][1], QA2, vr(SA, 16)))
    A(m16(SB, KF[0][0], QB1, "0")); A(m8(SB, KF[0][1], QB2, vr(SB, 16)))
    for r in (VK1, VK2): A(f"v_add_u32 v{r}, 512, v{r}")
    A("s_nop 15")
    rowmax(A, SA, 2, False); rowmax(A, SB, 3, False)
    A("s_add_u32 s40, s40, 1")
    A("s_cmp_lt_u32 s40, 8")
    A("s_cbranch_scc1 k2_maxin")
    for r in (VK1, VK2): A(f"v_subrev_u32 v{r}, 4096, v{r}")
    A("s_barrier")
    A("s_add_u32 s39, s39, 1")
    A("s_cmp_lt_u32 s39, 8")
    A("s_cbranch_scc1 k2_maxloop")
    for r in (VK1, VK2): A(f"v_add_u32 v{r}, s57, v{r}")
    set_nc(A, 2, QA2, 7); set_nc(A, 3, QB2, 7)
    A("s_branch k2_main")
    A("k2_fin:")
    stamp_flush(A, 7, 6, 1, 64); tl_end(A, 1)
    A("k2_done:")
    A("s_endpgm")
    return kernel_desc(name, 256), f"; @launch kernel=k2_kernel grid=(256,1,1) block=(512,1,1) lds={LDS_BYTES}"
```

```python
import sys, os
from asmlib import *
HEADER = open("parallel_sum__softmax_full_mha__mixer_channel_mlp__prompt.s.ref").read().split("; Override launch")[0]
def build(parts, out):
    A = Asm()
    descs = []; launches = []
    for p in parts:
        d, l = p(A)
        descs.append(d); launches.append(l)
    s = HEADER + "\n".join(launches) + "\n" + '.amdgcn_target "amdgcn-amd-amdhsa--gfx950"\n' + A.text() + "".join(descs)
    open(out, "w").write(s)
if __name__ == "__main__":
    import k1g as k1f, k2, k3
    parts = [k1f.gen_k1, k2.gen_k2, k3.gen_k3]
    if os.environ.get("OLD01"):
        import k0, k1
        parts = [k0.gen_k0, k1.gen_k1, k2.gen_k2, k3.gen_k3]
    out = sys.argv[1] if len(sys.argv) > 1 else "parallel_sum__softmax_full_mha__mixer_channel_mlp__prompt.s"
    build(parts, out)
```

```python
from asmlib import *
from layout import *
import math, os

NST = 10
ACC = 128
XF = 48
WF = 80
DV = 16
XAB, WAB, XAC, WAC = 28, 32, 36, 40
PX, PWQ, PW1, PB1, PWO, PW2, PDBG, PWS = 4, 6, 48, 50, 52, 54, 56, 58
EP = 147456
CSL = EP + 4096
BIASL = CSL + 768
LDS_BYTES = EP + 6144
ST_OFF = XN_OFF
CS_OFF = XN_OFF + 0x10000
PRIV_OFF = 0x8000000
NONL = EP + 6136
TIMEOUT = int(os.environ.get("K1TIMEOUT", "3000"))
SLOW = os.environ.get("K1SLOW", "")
pr = lambda r: f"v[{r}:{r+1}]"

def bf16r(A, v):
    A(f"v_cvt_pk_bf16_f32 v{v}, v{v}, v{v}")
    A(f"v_and_b32 v{v}, 0xffff0000, v{v}")

RX, UX, RW = 16, 56, 136
def h_rows_issue(A):
    A("v_lshrrev_b32 v2, 3, v1")
    A("s_lshl_b32 s32, s70, 3")
    A("v_add_u32 v2, s32, v2")
    A("v_mul_u32_u24 v3, 1280, v2")
    A("v_and_b32 v4, 7, v1")
    A("v_lshl_add_u32 v3, v4, 4, v3")
    for j in range(10):
        A(f"buffer_load_dwordx4 {vr(RX+4*j,4)}, v3, s[8:11], 0 offen offset:{128*j}")
def red8(A, v):
    for mod in ("quad_perm:[1,0,3,2]", "quad_perm:[2,3,0,1]", "row_half_mirror"):
        A("s_nop 1")
        A(f"v_add_f32_dpp v{v}, v{v}, v{v} {mod} row_mask:0xf bank_mask:0xf")
def h_rows_p1a(A):
    for i in range(20):
        A(f"v_lshlrev_b32 v{UX+2*i}, 16, v{RX+i}")
        A(f"v_and_b32 v{UX+2*i+1}, 0xffff0000, v{RX+i}")
    A(f"v_add_f32 v5, v{UX}, v{UX+1}")
    A(f"v_add_f32 v6, v{UX+2}, v{UX+3}")
    for i in range(4, 40, 2):
        A(f"v_add_f32 v5, v5, v{UX+i}")
        A(f"v_add_f32 v6, v6, v{UX+i+1}")
def h_rows_p1b(A):
    for i in range(20, 40):
        A(f"v_lshlrev_b32 v{UX+2*i}, 16, v{RX+i}")
        A(f"v_and_b32 v{UX+2*i+1}, 0xffff0000, v{RX+i}")
    for i in range(40, 80, 2):
        A(f"v_add_f32 v5, v5, v{UX+i}")
        A(f"v_add_f32 v6, v6, v{UX+i+1}")
    A("v_add_f32 v5, v5, v6")
    red8(A, 5)
    A(f"v_mul_f32 v7, {f32hex(1.0/640)}, v5")
def h_rows_p1(A):
    h_rows_p1a(A); h_rows_p1b(A)
def h_rows_p2a(A):
    A("v_mov_b32 v5, 0"); A("v_mov_b32 v6, 0")
    for i in range(0, 52, 2):
        A(f"v_sub_f32 v13, v{UX+i}, v7")
        A(f"v_sub_f32 v14, v{UX+i+1}, v7")
        A("v_fmac_f32 v5, v13, v13")
        A("v_fmac_f32 v6, v14, v14")
def h_rows_p2(A):
    h_rows_p2a(A); h_rows_p2b(A)
def h_rows_p2b(A):
    s, mean, var, m, r, t2, r2 = 5, 7, 8, 9, 10, 11, 12
    for i in range(52, 80, 2):
        A(f"v_sub_f32 v13, v{UX+i}, v7")
        A(f"v_sub_f32 v14, v{UX+i+1}, v7")
        A("v_fmac_f32 v5, v13, v13")
        A("v_fmac_f32 v6, v14, v14")
    A("v_add_f32 v5, v5, v6")
    red8(A, 5)
    A(f"v_mul_f32 v{var}, {f32hex(1.0/640)}, v{s}")
    A(f"v_mov_b32 v{m}, v{mean}"); bf16r(A, m)
    A(f"v_mov_b32 v{s}, v{var}"); bf16r(A, s)
    A(f"v_add_f32 v{s}, {f32hex(1e-5)}, v{s}"); bf16r(A, s)
    A(f"v_sqrt_f32 v{s}, v{s}"); A("s_nop 0"); bf16r(A, s)
    A(f"v_rcp_f32 v{r}, v{s}")
    A(f"v_sub_f32 v{t2}, v{mean}, v{m}")
    A(f"v_mul_f32 v{t2}, v{t2}, v{r}"); bf16r(A, t2)
    A(f"v_mul_f32 v{s}, v{var}, v{r}")
    A(f"v_mul_f32 v{s}, v{s}, v{r}"); bf16r(A, s)
    A(f"v_add_f32 v{s}, {f32hex(1e-5)}, v{s}"); bf16r(A, s)
    A(f"v_sqrt_f32 v{s}, v{s}"); A("s_nop 0"); bf16r(A, s)
    A(f"v_rcp_f32 v{r2}, v{s}")
    O = RX
    A(f"v_mov_b32 v{O}, v{r}")
    A(f"v_mul_f32 v{O+1}, v{m}, v{r}")
    A(f"v_mul_f32 v{O+4}, v{r}, v{r2}")
    A(f"v_add_f32 v{O+5}, v{O+1}, v{t2}")
    A(f"v_mul_f32 v{O+5}, v{O+5}, v{r2}")
def h_rows_store(A):
    O = RX
    for i in (2, 3, 6, 7): A(f"v_mov_b32 v{O+i}, s76")
    A("v_lshlrev_b32 v3, 4, v2")
    A("v_add_u32 v4, 0x8000, v3")
    A("s_mov_b32 exec_lo, 0x01010101"); A("s_mov_b32 exec_hi, 0x01010101")
    A(f"buffer_store_dwordx4 {vr(O,4)}, v3, s[60:63], 0 offen sc1")
    A(f"buffer_store_dwordx4 {vr(O+4,4)}, v4, s[60:63], 0 offen sc1")
    A("s_mov_b64 exec, -1")
def h_strip_issue(A):
    A("s_lshr_b32 s35, s71, 2")
    A("s_cmp_lt_u32 s35, 30")
    A(f"s_cselect_b32 s12, s{PWQ}, s{PW1}")
    A(f"s_cselect_b32 s13, s{PWQ+1}, s{PW1+1}")
    A("s_cselect_b32 s33, 768, 0")
    A("s_cselect_b32 s34, 0, 30")
    A("s_add_u32 s33, s33, 3072")
    A("s_mul_i32 s14, s33, 640")
    A("s_mov_b32 s15, 0x00020000")
    A("s_cmp_lt_u32 s71, 216")
    A("s_cselect_b32 s14, s14, 0")
    A("s_sub_u32 s34, s35, s34")
    A("s_lshl_b32 s34, s34, 7")
    A("v_lshrrev_b32 v13, 3, v1")
    A("v_mul_lo_u32 v13, v13, s33")
    A("v_and_b32 v14, 7, v1")
    A("v_lshl_add_u32 v13, v14, 4, v13")
    A("v_add_u32 v13, s34, v13")
    A("s_and_b32 s34, s71, 3")
    A("s_mul_i32 s34, s34, 160")
    A("s_mul_i32 s34, s34, s33")
    A("s_lshl_b32 s33, s33, 3")
    for i in range(20):
        A(f"buffer_load_dwordx4 {vr(RW+4*i,4)}, v13, s[12:15], s34 offen")
        if i < 19: A("s_add_u32 s34, s34, s33")
def h_strip_p(A, lo, hi):
    C = 216
    for i in range(lo, hi):
        for e in range(4):
            w = RW + 4 * i + e
            if i == 0:
                A(f"v_lshlrev_b32 v{C+2*e}, 16, v{w}")
                A(f"v_and_b32 v{C+2*e+1}, 0xffff0000, v{w}")
            else:
                A(f"v_lshlrev_b32 v13, 16, v{w}")
                A(f"v_and_b32 v14, 0xffff0000, v{w}")
                A(f"v_add_f32 v{C+2*e}, v{C+2*e}, v13")
                A(f"v_add_f32 v{C+2*e+1}, v{C+2*e+1}, v14")
def h_strip_fin(A):
    C = 216; T = 224
    for mod in ("row_ror:8",):
        A("s_nop 1")
        for e in range(8):
            A(f"v_add_f32_dpp v{C+e}, v{C+e}, v{C+e} {mod} row_mask:0xf bank_mask:0xf")
    for op in ("v_permlane16_swap_b32", "v_permlane32_swap_b32"):
        for e in range(8): A(f"v_mov_b32 v{T+e}, v{C+e}")
        A("s_nop 1")
        for e in range(8): A(f"{op} v{C+e}, v{T+e}")
        A("s_nop 1")
        for e in range(8): A(f"v_add_f32 v{C+e}, v{C+e}, v{T+e}")
def h_strip_store(A):
    C = 216; T = 224
    A("v_lshrrev_b32 v13, 3, v1")
    A(f"v_mov_b32 v{T}, v{C}")
    for e in range(1, 8):
        A(f"v_cmp_eq_u32 vcc, {e}, v13")
        A("s_nop 1")
        A(f"v_cndmask_b32 v{T}, v{T}, v{C+e}, vcc")
    A(f"v_mov_b32 v{T+1}, s76")
    A("v_and_b32 v14, 7, v1")
    A("v_lshl_add_u32 v13, v14, 3, v13")
    A("s_lshr_b32 s33, s71, 2")
    A("s_lshl_b32 s33, s33, 9")
    A("s_and_b32 s34, s71, 3")
    A("s_lshl_b32 s34, s34, 15")
    A("s_add_u32 s33, s33, s34")
    A(f"s_add_u32 s33, s33, {CS_OFF - ST_OFF}")
    A("v_lshl_add_u32 v13, v13, 3, s33")
    A("s_cmp_lt_u32 s71, 216")
    A("s_cselect_b32 s33, 0, 0x40000000")
    A(f"buffer_store_dwordx2 {pr(T)}, v13, s[60:63], s33 offen sc1")

def h_pack_issue(A, f, base):
    lab = A.label("pk")
    d = 84 + (f % 8)
    A("s_mul_i32 s41, s2, 11")
    A(f"s_add_u32 s41, s41, {f}")
    A("s_cmp_ge_u32 s41, 1920")
    A(f"s_cbranch_scc1 {lab}_wo")
    A("s_mul_i32 s33, s41, 3277")
    A("s_lshr_b32 s33, s33, 16")
    A("s_mul_i32 s32, s33, 20")
    A("s_sub_u32 s32, s41, s32")
    A("s_mul_i32 s41, s32, 96")
    A("s_add_u32 s41, s41, s33")
    A("s_lshl_b32 s34, s33, 4")
    A("s_mov_b32 s35, 4")
    A(f"s_mov_b32 s36, {8*1280}")
    A(f"s_lshl_b32 s{d}, s41, 10")
    A(f"s_mov_b32 s16, s{PW2}"); A(f"s_mov_b32 s17, s{PW2+1}"); A(f"s_mov_b32 s18, {1536*1280}")
    A(f"s_branch {lab}_go")
    A(f"{lab}_wo:")
    A("s_sub_u32 s37, s41, 1920")
    A("s_mul_i32 s33, s37, 3277")
    A("s_lshr_b32 s33, s33, 16")
    A("s_mul_i32 s32, s33, 20")
    A("s_sub_u32 s32, s37, s32")
    A("s_mul_i32 s37, s32, 40")
    A("s_add_u32 s37, s37, s33")
    A(f"s_lshl_b32 s{d}, s37, 10")
    A(f"s_add_u32 s{d}, s{d}, {WOF_OFF - W2F_OFF}")
    A("s_mul_i32 s34, s33, 20")
    A("s_mov_b32 s35, 4")
    A(f"s_mov_b32 s36, {8*1280}")
    A(f"s_mov_b32 s16, s{PWO}"); A(f"s_mov_b32 s17, s{PWO+1}"); A(f"s_mov_b32 s18, {640*1280}")
    A("s_cmp_lt_u32 s41, 2720")
    A("s_cselect_b32 s18, s18, 0")
    A(f"s_cselect_b32 s{d}, s{d}, 0x40000000")
    A("s_cmp_lt_u32 s33, 32")
    A(f"s_cbranch_scc1 {lab}_go")
    A("s_sub_u32 s33, s33, 32")
    A("s_mul_i32 s34, s33, 80")
    A("s_add_u32 s34, s34, 16")
    A("s_mov_b32 s35, 40")
    A(f"s_mov_b32 s36, {20*1280}")
    A(f"{lab}_go:")
    A("s_mov_b32 s19, 0x00020000")
    A("v_mul_u32_u24 v12, s35, v246")
    A("v_add_u32 v12, s34, v12")
    A("v_mul_u32_u24 v12, 1280, v12")
    A("s_lshl_b32 s32, s32, 6")
    A("v_lshl_add_u32 v248, v245, 1, s32")
    A("v_add_u32 v12, v12, v248")
    for e in range(8):
        so = "s36" if e >= 4 else "0"
        A(f"buffer_load_ushort v{base + e}, v12, s[16:19], {so} offen offset:{(e&3)*1280}")
def h_pack_store(A, f, base):
    for e in range(4):
        A(f"v_lshl_or_b32 v{base+e}, v{base+2*e+1}, 16, v{base+2*e}")
    A(f"buffer_store_dwordx4 {vr(base,4)}, v247, s[64:67], s{84 + (f % 8)} offen")

def helper(A):
    A("k1_helper:")
    A("s_waitcnt lgkmcnt(0)")
    srd(A, 8, PX, XSZ)
    srd(A, 60, PWS, 0x30000, ST_OFF)
    srd(A, 20, PDBG, 256)
    srd(A, 64, PWS, 0x500000, W2F_OFF)
    A("s_mov_b32 s70, s2")
    A("s_mov_b32 s71, s2")
    A("v_mov_b32 v240, 0")
    A(f"v_mov_b32 v241, {NONL}")
    A("v_and_b32 v245, 31, v1")
    A("v_lshrrev_b32 v246, 5, v1")
    A("v_lshlrev_b32 v247, 4, v1")
    A("s_cmp_eq_u32 s25, 5")
    A("s_cbranch_scc1 k1_hB")
    h_rows_issue(A)
    A("s_cmp_lg_u32 s2, 0")
    A("s_cbranch_scc1 k1_hA1")
    A("s_memrealtime s[32:33]")
    A("s_waitcnt lgkmcnt(0)")
    A("s_or_b32 s32, s32, 1")
    A("v_mov_b32 v13, s32")
    A("s_mov_b64 exec, 1")
    A("buffer_store_dword v13, v240, s[20:23], 0 offen sc1")
    A("s_mov_b64 exec, -1")
    A("k1_hA1:")
    srd(A, 16, PB1, 1536 * 2)
    A("s_cmp_eq_u32 s28, 2")
    A("s_cselect_b32 s18, s18, 0")
    A("v_add_u32 v15, s31, v1")
    A("v_lshlrev_b32 v15, 1, v15")
    for i in range(3):
        A(f"buffer_load_ushort v{232+i}, v15, s[16:19], 0 offen offset:{128*i}")
    A("s_barrier")
    A("s_waitcnt vmcnt(3)")
    h_rows_p1a(A)
    A("s_barrier")
    A("buffer_load_dword v242, v240, s[20:23], 0 offen")
    h_rows_p1b(A)
    A("s_barrier")
    h_rows_p2a(A)
    A("s_barrier")
    h_rows_p2b(A)
    A("s_mov_b32 s34, 0")
    A("k1_hn:")
    A("s_waitcnt vmcnt(0)")
    A("v_readfirstlane_b32 s76, v242")
    A("s_nop 3")
    A("s_cmp_lg_u32 s76, 0")
    A("s_cbranch_scc1 k1_hn_ok")
    A("buffer_load_dword v242, v240, s[20:23], 0 offen sc1")
    A("s_add_u32 s34, s34, 1")
    A("s_sleep 1")
    A("s_cmp_lt_u32 s34, 400")
    A("s_cbranch_scc1 k1_hn")
    A("k1_hn_ok:")
    A("v_mov_b32 v242, s76")
    A("ds_write_b32 v241, v242")
    h_rows_store(A)
    A("s_waitcnt lgkmcnt(0)")
    A("s_barrier")
    for f in range(2): h_pack_issue(A, f, 64 + 8 * f)
    A("s_barrier")
    h_pack_issue(A, 2, 80)
    A("s_barrier")
    A("s_barrier")
    A("s_waitcnt vmcnt(0)")
    for f in range(3): h_pack_store(A, f, 64 + 8 * f)
    A("s_cmp_eq_u32 s28, 3")
    A("s_cbranch_scc1 k1_done")
    A("v_add_u32 v243, s30, v1")
    A("v_lshlrev_b32 v243, 4, v243")
    A("s_cmp_eq_u32 s28, 2")
    A("s_cselect_b32 s32, 0x8000, 0")
    A("v_add_u32 v243, s32, v243")
    A("v_add_u32 v244, s29, v1")
    A("v_lshlrev_b32 v244, 3, v244")
    A(f"v_add_u32 v244, {CS_OFF - ST_OFF}, v244")
    A("s_mov_b32 s68, 0"); A("s_mov_b32 s69, 0x8000"); A("s_mov_b32 s74, 0x10000"); A("s_mov_b32 s75, 0x18000")
    def gl():
        for i in range(4):
            A(f"buffer_load_dwordx4 {vr(16+4*i,4)}, v243, s[60:63], 0 offen offset:{1024*i} sc1")
        for q in range(4):
            for i in range(3):
                A(f"buffer_load_dwordx2 {pr(32+6*q+2*i)}, v244, s[60:63], s{68+q if q < 2 else 72+q} offen offset:{512*i} sc1")
    gl()
    A("s_barrier")
    A("s_barrier")
    A("s_mov_b32 s34, 0")
    A("s_mov_b32 s38, 1")
    A("k1_hpoll:")
    A("s_waitcnt vmcnt(0)")
    A("v_xor_b32 v60, s76, v18")
    A("v_xor_b32 v61, s76, v22")
    A("v_or_b32 v60, v60, v61")
    for q in range(4):
        for i in range(2):
            A(f"v_xor_b32 v61, s76, v{33+6*q+2*i}")
            A("v_or_b32 v60, v60, v61")
    A("v_xor_b32 v62, s76, v26")
    A("v_xor_b32 v61, s76, v30")
    A("v_or_b32 v62, v62, v61")
    A("v_xor_b32 v63, s76, v37")
    for q in range(1, 4):
        A(f"v_xor_b32 v61, s76, v{37+6*q}")
        A("v_or_b32 v63, v63, v61")
    A("v_cmp_ne_u32 s[40:41], 0, v60")
    A("v_cmp_ne_u32 s[42:43], 0, v62")
    A("v_cmp_ne_u32 s[46:47], 0, v63")
    A("s_nop 3")
    A("s_cmp_eq_u32 s28, 2")
    A("s_cselect_b64 s[42:43], s[46:47], s[42:43]")
    A("s_or_b64 s[40:41], s[40:41], s[42:43]")
    A("s_cselect_b32 s32, 1, 0")
    A("s_cmp_eq_u32 s76, 0")
    A("s_cselect_b32 s32, 1, s32")
    A(f"s_cmp_eq_u32 s32, {0 if SLOW != '2' else 5}")
    A("s_cbranch_scc1 k1_hok")
    A("s_cmp_eq_u32 s38, 0")
    A("s_cbranch_scc0 k1_hp2")
    A("s_mov_b32 s38, 1")
    A("s_barrier")
    A("k1_hp2:")
    A("s_sleep 2")
    gl()
    A("s_add_u32 s34, s34, 1")
    A("s_cmp_eq_u32 s76, 0")
    A("s_cbranch_scc1 k1_hself")
    A(f"s_cmp_lt_u32 s34, {TIMEOUT}")
    A("s_cbranch_scc1 k1_hpoll")
    A("k1_hself:")
    A("s_lshl_b32 s32, s2, 18")
    A(f"s_add_u32 s32, s32, {PRIV_OFF}")
    A(f"s_add_u32 s60, s{PWS}, s32")
    A(f"s_addc_u32 s61, s{PWS+1}, 0")
    A("s_lshr_b32 s70, s30, 3")
    A("s_lshr_b32 s39, s27, 3")
    A("s_add_u32 s39, s39, s70")
    A("k1_hs1:")
    h_rows_issue(A)
    A("s_waitcnt vmcnt(0)")
    h_rows_p1(A); h_rows_p2(A); h_rows_store(A)
    A("s_add_u32 s70, s70, 1")
    A("s_cmp_lt_u32 s70, s39")
    A("s_cbranch_scc1 k1_hs1")
    A("s_lshr_b32 s71, s29, 4")
    A("s_lshr_b32 s39, s26, 4")
    A("s_add_u32 s39, s39, s71")
    A("k1_hs2:")
    h_strip_issue(A)
    A("s_waitcnt vmcnt(0)")
    h_strip_p(A, 0, 20); h_strip_fin(A); h_strip_store(A)
    A("s_add_u32 s71, s71, 1")
    A("s_cmp_lt_u32 s71, s39")
    A("s_cbranch_scc1 k1_hs2")
    A("s_waitcnt vmcnt(0)")
    gl()
    A("s_waitcnt vmcnt(0)")
    A("k1_hok:")
    A("v_lshlrev_b32 v12, 3, v1")
    A(f"v_add_u32 v12, {EP}, v12")
    A("v_lshlrev_b32 v13, 2, v1")
    A(f"v_add_u32 v13, {EP}, v13")
    for i in range(4):
        A(f"v_mul_f32 v{16+4*i}, s45, v{16+4*i}")
        A(f"v_mul_f32 v{17+4*i}, s45, v{17+4*i}")
        A(f"ds_write_b64 v12, {pr(16+4*i)} offset:{512*i}")
        A(f"ds_write_b32 v13, v{16+4*i} offset:{2048+256*i}")
        A(f"ds_write_b32 v13, v{17+4*i} offset:{3072+256*i}")
    for i in range(3):
        A(f"v_lshlrev_b32 v{232+i}, 16, v{232+i}")
        for q in range(1, 4):
            A(f"v_add_f32 v{32+2*i}, v{32+2*i}, v{32+6*q+2*i}")
        A(f"ds_write_b32 v13, v{32+2*i} offset:{CSL-EP+256*i}")
        A(f"ds_write_b32 v13, v{232+i} offset:{BIASL-EP+256*i}")
    A("s_waitcnt lgkmcnt(0)")
    A("s_cmp_eq_u32 s38, 0")
    A("s_cbranch_scc0 k1_hw")
    A("s_barrier")
    A("k1_hw:")
    A("s_barrier")
    A("s_endpgm")
    A("k1_hB:")
    PB = lambda i: 16 + 8 * i
    h_strip_issue(A)
    A("s_barrier")
    A("s_waitcnt vmcnt(15)")
    h_strip_p(A, 0, 5)
    A("s_barrier")
    A("s_waitcnt vmcnt(10)")
    h_strip_p(A, 5, 10)
    A("s_barrier")
    A("s_waitcnt vmcnt(0)")
    h_strip_p(A, 10, 15)
    h_pack_issue(A, 3, PB(0))
    A("s_barrier")
    h_strip_p(A, 15, 20)
    h_strip_fin(A)
    A("s_barrier")
    A("ds_read_b32 v242, v241")
    A("s_waitcnt lgkmcnt(0)")
    A("v_readfirstlane_b32 s76, v242")
    A("s_nop 1")
    h_strip_store(A)
    for i in (1, 2): h_pack_issue(A, 3 + i, PB(i))
    A("s_barrier")
    for i in (3, 4, 5): h_pack_issue(A, 3 + i, PB(i))
    A("s_barrier")
    A("s_waitcnt vmcnt(24)")
    for i in (0, 1, 2): h_pack_store(A, 3 + i, PB(i))
    for i in (6, 7): h_pack_issue(A, 3 + i, PB(i))
    A("s_barrier")
    A("s_waitcnt vmcnt(19)")
    for i in (3, 4, 5): h_pack_store(A, 3 + i, PB(i))
    srd(A, 16, PWS, 32 * 64 * VREC, V_OFF)
    A("s_cmp_lt_u32 s2, 128")
    A("s_cselect_b32 s18, s18, 0")
    A("s_lshl_b32 s32, s2, 6")
    A("v_add_u32 v12, s32, v1")
    A("v_lshrrev_b32 v13, 2, v12")
    A("v_and_b32 v12, 3, v12")
    A(f"v_mul_u32_u24 v13, {VREC}, v13")
    A(f"v_mul_u32_u24 v12, {VSB}, v12")
    A("v_add_u32 v12, v12, v13")
    for i in range(4): A(f"v_mov_b32 v{124+i}, 0x3f803f80")
    A("buffer_store_dwordx4 v[124:127], v12, s[16:19], 0 offen offset:320")
    A("s_cmp_eq_u32 s28, 3")
    A("s_cbranch_scc1 k1_hB2")
    A("s_barrier")
    A("k1_hB2:")
    A("s_waitcnt vmcnt(4)")
    for i in (6, 7): h_pack_store(A, 3 + i, PB(i))
    A("s_endpgm")

def gemm_core(A, tag, TM, TN, transposed, ldw, isH):
    BM, BN = 2 * TM * 32, 2 * TN * 32
    AB = BM * 128; pitch = BN * 2; BB = 64 * pitch; SS = AB + BB
    nA = BM // 32; nB = BB // 4096; ND = nA + nB
    CPR = BN // 8
    A("v_lshrrev_b32 v2, 3, v1")
    A("v_and_b32 v3, 7, v1")
    A("v_lshrrev_b32 v4, 4, v1")
    A(f"s_mul_i32 s40, s25, {BM//4}")
    A("s_add_u32 s40, s40, s30")
    A("v_add_u32 v2, s40, v2")
    A("v_mul_u32_u24 v2, 1280, v2")
    A("v_xor_b32 v5, v3, v4")
    A("v_xor_b32 v6, 4, v5")
    A("v_lshl_add_u32 v5, v5, 4, v2")
    A("v_lshl_add_u32 v6, v6, 4, v2")
    for q in range(nA):
        A(f"v_add_u32 v{DV+q}, {q*8*1280 - (q&3)*1024}, v{5 + (q&1)}")
    A(f"s_mul_i32 s41, s25, {nB*64}")
    A(f"s_lshl_b32 s42, s31, 1")
    for q in range(nB):
        A(f"v_add_u32 v7, s41, v1")
        if q: A(f"v_add_u32 v7, {q*64}, v7")
        if CPR == 16:
            A("v_lshrrev_b32 v8, 4, v7")
            A("v_and_b32 v9, 15, v7")
            A("v_and_b32 v10, 3, v8")
        else:
            A("v_mul_u32_u24 v8, 2731, v7")
            A("v_lshrrev_b32 v8, 16, v8")
            A("v_mul_u32_u24 v9, 24, v8")
            A("v_sub_u32 v9, v7, v9")
            A("v_bfe_u32 v10, v8, 1, 1")
        A("v_lshlrev_b32 v10, 2, v10")
        A("v_xor_b32 v9, v9, v10")
        A(f"v_mul_u32_u24 v8, {ldw}, v8")
        A("v_lshl_add_u32 v8, v9, 4, v8")
        A(f"v_add_u32 v8, s42, v8")
        if q & 3:
            A(f"v_subrev_u32 v{DV+nA+q}, {(q&3)*1024}, v8")
        else:
            A(f"v_mov_b32 v{DV+nA+q}, v8")
    A(f"s_mul_i32 s26, s25, {nA*1024}")
    A(f"s_mul_i32 s27, s25, {nB*1024}")
    A(f"s_add_u32 s27, s27, {AB}")
    def dma_list():
        L = []
        for q in range(nA):
            if q % 4 == 0:
                L.append("s_add_u32 m0, s23, s26" if q == 0 else "s_add_u32 m0, m0, 4096")
                L.append("s_nop 0")
            L.append(f"buffer_load_dwordx4 v{DV+q}, s[8:11], s21 offen offset:{(q&3)*1024} lds")
        for q in range(nB):
            if q % 4 == 0:
                L.append("s_add_u32 m0, s23, s27" if q == 0 else "s_add_u32 m0, m0, 4096")
                L.append("s_nop 0")
            L.append(f"buffer_load_dwordx4 v{DV+nA+q}, s[12:15], s22 offen offset:{(q&3)*1024} lds")
        L.append("s_add_u32 s21, s21, 128")
        L.append(f"s_add_u32 s22, s22, {64*ldw}")
        L.append(f"s_add_u32 s23, s23, {SS}")
        L.append(f"s_cmp_eq_u32 s23, {3*SS}")
        L.append("s_cselect_b32 s23, 0, s23")
        return L
    A("s_mov_b32 s21, 0"); A("s_mov_b32 s22, 0"); A("s_mov_b32 s23, 0")
    A("s_waitcnt lgkmcnt(0)")
    srd(A, 8, PX, XSZ)
    srd(A, 12, PW1 if isH else PWQ, 640 * ldw)
    for l in dma_list(): A(l)
    for l in dma_list(): A(l)
    A("s_and_b32 s43, s25, 1")
    A("s_lshr_b32 s44, s25, 1")
    A("v_and_b32 v2, 31, v1")
    A("v_lshrrev_b32 v3, 5, v1")
    A("v_bfe_u32 v4, v2, 1, 3")
    A(f"s_mul_i32 s45, s43, {TM*32*128}")
    A("v_lshlrev_b32 v5, 7, v2")
    A("v_add_u32 v5, s45, v5")
    for kk in range(4):
        A(f"v_add_u32 v6, {2*kk}, v3")
        A("v_xor_b32 v6, v6, v4")
        A(f"v_lshl_add_u32 v{XAB+kk}, v6, 4, v5")
    A("v_bfe_u32 v6, v1, 2, 2")
    A("v_lshl_add_u32 v7, v3, 3, v6")
    A(f"v_mul_u32_u24 v7, {pitch}, v7")
    A("v_bfe_u32 v8, v1, 4, 1")
    A("v_lshl_add_u32 v7, v8, 5, v7")
    A("v_and_b32 v8, 3, v1")
    A("v_lshl_add_u32 v7, v8, 3, v7")
    A(f"v_add_u32 v7, {AB}, v7")
    if CPR != 16:
        A("v_lshrrev_b32 v6, 1, v6")
    A(f"s_mul_i32 s46, s44, {TN}")
    for u in range(TN):
        A(f"s_add_u32 s47, s46, {u}")
        A("v_xor_b32 v8, s47, v6")
        A(f"v_lshl_add_u32 v{WAB+u}, v8, 6, v7")
    for i in range(TM * TN * 16):
        A(f"v_mov_b32 v{ACC+i}, 0")
    def reads(kk, buf):
        L = []
        for t in range(TM):
            L.append(f"ds_read_b128 {vr(XF + (buf*4+t)*4, 4)}, v{XAC+kk} offset:{t*4096}")
        for u in range(TN):
            for i in range(2):
                L.append(f"ds_read_b64_tr_b16 {vr(WF + (buf*3+u)*4 + 2*i, 2)}, v{WAC+u} offset:{(16*kk+4*i)*pitch}")
        return L
    def mfmas(buf):
        L = []
        for t in range(TM):
            for u in range(TN):
                a = ACC + (t * TN + u) * 16
                x = vr(XF + (buf*4+t)*4, 4); w = vr(WF + (buf*3+u)*4, 4)
                o = (w, x) if transposed else (x, w)
                L.append(f"v_mfma_f32_32x32x16_bf16 {vr(a,16)}, {o[0]}, {o[1]}, {vr(a,16)}")
        return L
    def setcur():
        L = []
        for kk in range(4): L.append(f"v_add_u32 v{XAC+kk}, s24, v{XAB+kk}")
        for u in range(TN): L.append(f"v_add_u32 v{WAC+u}, s24, v{WAB+u}")
        return L
    A("s_mov_b32 s24, 0"); A("s_mov_b32 s20, 0")
    for l in setcur(): A(l)
    stamp(A, 1)
    A(f"s_waitcnt vmcnt({ND})")
    A("s_barrier")
    stamp(A, 2)
    for l in reads(0, 0): A(l)
    A(f"{tag}_loop:")
    dl = dma_list()
    units = []; cur = []
    for l in dl:
        cur.append(l)
        if l.startswith("buffer_load"):
            units.append(cur); cur = []
    tailu = cur
    per = (len(units) + 2) // 3
    NM = TM * TN
    for kk in range(4):
        buf = kk & 1
        ms = mfmas(buf)
        slots = [[] for _ in ms]
        if kk < 3:
            A("s_waitcnt lgkmcnt(0)")
            rd = reads(kk + 1, buf ^ 1)
        else:
            if os.environ.get("ITST"):
                A("s_memtime s[90:91]")
            A(f"s_waitcnt vmcnt({ND}) lgkmcnt(0)")
            if os.environ.get("ITST"):
                A("s_memtime s[92:93]")
            A("s_barrier")
            if os.environ.get("ITST"):
                A("s_memtime s[94:95]")
                A("s_waitcnt lgkmcnt(0)")
                A("s_mul_i32 m0, s20, 3")
                A("s_nop 1")
                A("v_writelane_b32 v47, s90, m0")
                A("s_add_u32 m0, m0, 1")
                A("s_nop 1")
                A("v_writelane_b32 v47, s92, m0")
                A("s_add_u32 m0, m0, 1")
                A("s_nop 1")
                A("v_writelane_b32 v47, s94, m0")
            rd = reads(0, buf ^ 1)
        for i, l in enumerate(rd):
            slots[i // 2].append(l)
        if kk < 3:
            us = units[kk * per:(kk + 1) * per]
            for i, u in enumerate(us):
                slots[min(NM - 1, (i * NM) // len(us) + 1)] += u
        if kk == 1:
            slots[NM - 1] += [f"s_add_u32 s24, s24, {SS}", f"s_cmp_eq_u32 s24, {3*SS}", "s_cselect_b32 s24, 0, s24"]
        if kk == 2:
            sc = setcur()
            slots[NM - 2] += sc
        if kk == 3:
            slots[NM - 3] += tailu
            slots[NM - 2] += ["s_add_u32 s20, s20, 1", f"s_cmp_lt_u32 s20, {NST-2}", "s_cselect_b32 s10, s10, 0", "s_cselect_b32 s14, s14, 0"]
            slots[NM - 1] += [f"s_cmp_lt_u32 s20, {NST}"]
        for m, sl in zip(ms, slots):
            A(m)
            for l in sl: A(l)
    A(f"s_cbranch_scc1 {tag}_loop")
    A("s_waitcnt lgkmcnt(0)")
    stamp(A, 3)
    return SS

def fin(A):
    if os.environ.get("ITST"):
        srd(A, 72, PWS, 1 << 20, 0x4800000)
        A("s_lshl_b32 s76, s2, 2")
        A("s_add_u32 s76, s76, s25")
        A("s_lshl_b32 s76, s76, 8")
        A("v_and_b32 v1, 63, v0")
        A("v_lshlrev_b32 v1, 2, v1")
        A("v_mov_b32 v2, s80")
        A("v_sub_u32 v47, v47, v2")
        A("buffer_store_dword v47, v1, s[72:75], s76 offen")
    stamp(A, 4); stamp_flush(A, 5, PWS, 0, 25); tl_end(A, 0)
    A("s_endpgm")

def gen_k1(A):
    name = "k1_kernel"
    kernel_begin(A, name)
    A("s_cmp_ge_u32 s2, 256")
    A("s_cbranch_scc1 k1_done")
    stamp(A, 0); tl_start(A, 0)
    A("s_load_dwordx4 s[4:7], s[0:1], 0")
    A("s_load_dwordx4 s[48:51], s[0:1], 32")
    A("s_load_dwordx2 s[52:53], s[0:1], 16")
    A("s_load_dwordx2 s[54:55], s[0:1], 48")
    A("s_load_dwordx4 s[56:59], s[0:1], 72")
    A("v_lshrrev_b32 v1, 6, v0")
    A("s_and_b32 s32, s2, 7")
    A("v_readfirstlane_b32 s25, v1")
    A("v_and_b32 v1, 63, v0")
    A("s_lshr_b32 s33, s2, 3")
    A("s_lshr_b32 s34, s32, 2")
    A("s_and_b32 s35, s32, 3")
    A("s_mov_b32 s45, 1.0")
    A("s_cmp_ge_u32 s33, 15")
    A("s_cbranch_scc1 k1_dh")
    A("s_mul_i32 s36, s35, 15")
    A("s_add_u32 s36, s36, s33")
    A("s_lshr_b32 s75, s36, 2")
    A("s_and_b32 s38, s36, 3")
    A("s_lshl_b32 s39, s34, 2")
    A("s_add_u32 s38, s38, s39")
    A("s_lshl_b32 s30, s38, 8")
    A("s_lshl_b32 s31, s75, 7")
    A("s_mov_b32 s29, s31")
    A("s_movk_i32 s27, 256"); A("s_movk_i32 s26, 128")
    A("s_cmp_lt_u32 s75, 5")
    A(f"s_cselect_b32 s45, {f32hex(DH**-0.5 * math.log2(math.e))}, s45")
    A("s_cmp_ge_u32 s75, 10")
    A("s_cselect_b32 s28, 1, 0")
    A("s_branch k1_dd")
    A("k1_dh:")
    A("s_sub_u32 s36, s33, 15")
    A("s_lshr_b32 s37, s36, 3")
    A("s_lshl_b32 s38, s35, 1")
    A("s_add_u32 s37, s37, s38")
    A("s_and_b32 s38, s36, 7")
    A("s_lshl_b32 s39, s34, 3")
    A("s_add_u32 s38, s38, s39")
    A("s_lshl_b32 s30, s38, 7")
    A("s_mul_i32 s31, s37, 192")
    A("s_add_u32 s29, s31, 1920")
    A("s_movk_i32 s27, 128"); A("s_movk_i32 s26, 192")
    A("s_cmp_ge_u32 s33, 31")
    A("s_cselect_b32 s28, 3, 2")
    A("k1_dd:")
    A("s_cmp_ge_u32 s25, 4")
    A("s_cbranch_scc1 k1_helper")
    A("s_cmp_eq_u32 s28, 1")
    A("s_cbranch_scc1 k1_v")
    A("s_cmp_eq_u32 s28, 2")
    A("s_cbranch_scc1 k1_h")
    A("s_cmp_eq_u32 s28, 3")
    A("s_cbranch_scc1 k1_done")
    SS1 = gemm_core(A, "k1qk", 4, 2, True, 3840, False)
    A("v_and_b32 v2, 31, v1")
    A("v_lshrrev_b32 v3, 5, v1")
    A("s_lshl_b32 s32, s43, 10")
    A(f"s_add_u32 s32, s32, {EP}")
    A("v_lshl_add_u32 v12, v2, 3, s32")
    for t in range(4):
        A(f"ds_read_b64 {pr(4+2*t)}, v12 offset:{t*256}")
    A("s_lshl_b32 s32, s44, 8")
    A(f"s_add_u32 s32, s32, {CSL}")
    A("v_lshl_add_u32 v12, v3, 4, s32")
    for u in range(2):
        for j in range(4):
            A(f"ds_read_b128 {vr(48+16*u+4*j,4)}, v12 offset:{128*u+32*j}")
    A("s_cmp_ge_u32 s75, 5")
    A(f"s_cselect_b32 s36, {K_OFF - Q_OFF - 80*32768}, 0")
    srd(A, 16, PWS, K_OFF - Q_OFF + 80 * 32768, Q_OFF)
    A("s_lshl_b32 s38, s75, 4")
    A("s_lshl_b32 s32, s44, 3")
    A("s_add_u32 s38, s38, s32")
    A("s_lshl_b32 s38, s38, 15")
    A("s_add_u32 s38, s38, s36")
    A("s_lshl_b32 s32, s43, 7")
    A("s_add_u32 s32, s32, s30")
    A("s_lshl_b32 s32, s32, 4")
    A("s_add_u32 s38, s38, s32")
    for i in range(1, 4):
        A(f"s_add_u32 s{38+i}, s{37+i}, 65536")
    A("v_lshlrev_b32 v3, 15, v3")
    A("v_lshl_add_u32 v16, v2, 4, v3")
    A("s_waitcnt lgkmcnt(0)")
    for t in range(4):
        for u in range(2):
            a = ACC + (t * 2 + u) * 16
            T = 80
            for i in range(0, 16, 2):
                A(f"v_pk_mul_f32 {pr(T+i)}, {pr(48+16*u+i)}, {pr(4+2*t)} op_sel:[0,1] op_sel_hi:[1,1]")
            for i in range(0, 16, 2):
                A(f"v_pk_fma_f32 {pr(a+i)}, {pr(a+i)}, {pr(4+2*t)}, {pr(T+i)} op_sel_hi:[1,0,1] neg_lo:[0,0,1] neg_hi:[0,0,1]")
            p = 18 + ((t * 2 + u) % 3) * 8
            for i in range(8):
                A(f"v_cvt_pk_bf16_f32 v{p+i}, v{a+2*i}, v{a+2*i+1}")
            A("s_nop 0")
            for j in range(2):
                A(f"v_permlane32_swap_b32 v{p+4*j}, v{p+4*j+2}")
                A(f"v_permlane32_swap_b32 v{p+4*j+1}, v{p+4*j+3}")
            for j in range(2):
                A(f"buffer_store_dwordx4 v[{p+4*j}:{p+4*j+3}], v16, s[16:19], s{38+u*2+j} offen offset:{t*512}")
    fin(A)
    A("k1_v:")
    gemm_core(A, "k1v", 4, 2, False, 3840, False)
    A("v_and_b32 v2, 31, v1")
    A("v_lshrrev_b32 v3, 5, v1")
    A("s_lshl_b32 s32, s43, 9")
    A(f"s_add_u32 s32, s32, {EP+2048}")
    A("v_lshl_add_u32 v12, v3, 4, s32")
    A("s_lshl_b32 s32, s44, 8")
    A(f"s_add_u32 s32, s32, {CSL}")
    A("v_lshl_add_u32 v13, v2, 2, s32")
    for u in range(2):
        A(f"ds_read_b32 v{4+2*u}, v13 offset:{128*u}")
    def vrd(t):
        b = 48 + (t & 1) * 32
        for j in range(4):
            A(f"ds_read_b128 {vr(b+4*j,4)}, v12 offset:{t*128+32*j}")
            A(f"ds_read_b128 {vr(b+16+4*j,4)}, v12 offset:{1024+t*128+32*j}")
    vrd(0)
    srd(A, 16, PWS, 32 * 64 * VREC, V_OFF)
    A("s_lshr_b32 s38, s30, 5")
    A("s_lshl_b32 s32, s43, 2")
    A("s_add_u32 s38, s38, s32")
    A(f"s_mul_i32 s38, s38, {VREC}")
    for t in range(1, 4):
        A(f"s_add_u32 s{38+t}, s{37+t}, {VREC}")
    A("s_sub_u32 s33, s31, 1280")
    A("s_lshl_b32 s32, s44, 6")
    A("s_add_u32 s33, s33, s32")
    A(f"v_mul_u32_u24 v3, {VSB}, v3")
    A(f"s_mov_b32 s34, {64*VREC}")
    for u in range(2):
        A("v_add_u32 v8, s33, v2")
        if u: A("v_add_u32 v8, 32, v8")
        A("v_mul_u32_u24 v9, 3277, v8")
        A("v_lshrrev_b32 v9, 16, v9")
        A("v_mul_u32_u24 v10, 20, v9")
        A("v_sub_u32 v10, v8, v10")
        A("v_lshl_add_u32 v10, v10, 4, v3")
        A("v_mul_lo_u32 v9, v9, s34")
        A(f"v_add_u32 v{16+u}, v9, v10")
    for t in range(4):
        A("s_waitcnt lgkmcnt(0)")
        if t < 3: vrd(t + 1)
        b = 48 + (t & 1) * 32
        for u in range(2):
            a = ACC + (t * 2 + u) * 16
            T = 112
            for i in range(0, 16, 2):
                A(f"v_pk_mul_f32 {pr(T+i)}, {pr(b+16+i)}, {pr(4+2*u)} op_sel_hi:[1,0]")
            for i in range(0, 16, 2):
                A(f"v_pk_fma_f32 {pr(a+i)}, {pr(a+i)}, {pr(b+i)}, {pr(T+i)} neg_lo:[0,0,1] neg_hi:[0,0,1]")
            p = 18 + ((t * 2 + u) % 3) * 8
            for i in range(8):
                A(f"v_cvt_pk_bf16_f32 v{p+i}, v{a+2*i}, v{a+2*i+1}")
            A(f"buffer_store_dwordx4 v[{p}:{p+3}], v{16+u}, s[16:19], s{38+t} offen")
            A(f"buffer_store_dwordx4 v[{p+4}:{p+7}], v{16+u}, s[16:19], s{38+t} offen offset:{2*VSB}")
    fin(A)
    A("k1_h:")
    SS2 = gemm_core(A, "k1h", 2, 3, True, 3072, True)
    A("v_and_b32 v2, 31, v1")
    A("v_lshrrev_b32 v3, 5, v1")
    A("s_lshl_b32 s32, s43, 9")
    A(f"s_add_u32 s32, s32, {EP}")
    A("v_lshl_add_u32 v12, v2, 3, s32")
    for t in range(2):
        A(f"ds_read_b64 {pr(8+2*t)}, v12 offset:{t*256}")
    A("s_mul_i32 s32, s44, 384")
    A(f"s_add_u32 s32, s32, {CSL}")
    A("v_lshl_add_u32 v12, v3, 4, s32")
    def hrd(u):
        b = 48 + (u & 1) * 32
        for j in range(4):
            A(f"ds_read_b128 {vr(b+4*j,4)}, v12 offset:{128*u+32*j}")
            A(f"ds_read_b128 {vr(b+16+4*j,4)}, v12 offset:{768+128*u+32*j}")
    hrd(0)
    srd(A, 16, PWS, 64 * 96 * 1024, HB_OFF)
    A("s_lshr_b32 s33, s30, 5")
    A("s_lshl_b32 s32, s43, 1")
    A("s_add_u32 s33, s33, s32")
    A("s_mul_i32 s33, s33, 96")
    A("s_lshr_b32 s32, s31, 4")
    A("s_add_u32 s33, s33, s32")
    A("s_mul_i32 s32, s44, 6")
    A("s_add_u32 s33, s33, s32")
    A("s_lshl_b32 s36, s33, 10")
    A(f"s_add_u32 s37, s36, {96*1024}")
    A("v_lshlrev_b32 v16, 4, v1")
    A("v_add_u32 v17, 4096, v16")
    c0 = -2.0 * math.sqrt(2.0 / math.pi) * math.log2(math.e)
    c1 = c0 * 0.044715
    A(f"v_mov_b32 v4, {f32hex(c0)}"); A(f"v_mov_b32 v5, {f32hex(c1)}")
    A("v_mov_b32 v6, 1.0")
    T = 112
    for u in range(3):
        A("s_waitcnt lgkmcnt(0)")
        if u < 2: hrd(u + 1)
        b = 48 + (u & 1) * 32
        for t in range(2):
            a = ACC + (t * 3 + u) * 16
            p = 18 + ((u * 2 + t) % 3) * 8
            ab = pr(8 + 2 * t)
            for i in range(0, 16, 2): A(f"v_pk_fma_f32 {pr(T+i)}, {pr(b+i)}, {ab}, {pr(b+16+i)} op_sel:[0,1,0] op_sel_hi:[1,1,1] neg_lo:[1,0,0] neg_hi:[1,0,0]")
            for i in range(0, 16, 2): A(f"v_pk_fma_f32 {pr(a+i)}, {pr(a+i)}, {ab}, {pr(T+i)} op_sel_hi:[1,0,1]")
            for i in range(0, 16, 2): A(f"v_pk_mul_f32 {pr(T+i)}, {pr(a+i)}, {pr(a+i)}")
            for i in range(0, 16, 2): A(f"v_pk_fma_f32 {pr(T+i)}, {pr(T+i)}, v[4:5], v[4:5] op_sel:[0,1,0] op_sel_hi:[1,1,0]")
            for i in range(0, 16, 2): A(f"v_pk_mul_f32 {pr(T+i)}, {pr(T+i)}, {pr(a+i)}")
            for i in range(16): A(f"v_exp_f32 v{T+i}, v{T+i}")
            for i in range(0, 16, 2): A(f"v_pk_add_f32 {pr(T+i)}, {pr(T+i)}, v[6:7] op_sel_hi:[1,0]")
            for i in range(16): A(f"v_rcp_f32 v{T+i}, v{T+i}")
            for i in range(0, 16, 2): A(f"v_pk_mul_f32 {pr(T+i)}, {pr(T+i)}, {pr(a+i)}")
            for i in range(8): A(f"v_cvt_pk_bf16_f32 v{p+i}, v{T+2*i}, v{T+2*i+1}")
            va = 16 if u < 2 else 17
            off = (2 * u * 1024) % 4096
            A(f"buffer_store_dwordx4 v[{p}:{p+3}], v{va}, s[16:19], s{36+t} offen offset:{off}")
            A(f"buffer_store_dwordx4 v[{p+4}:{p+7}], v{va}, s[16:19], s{36+t} offen offset:{off+1024}")
    fin(A)
    helper(A)
    A("k1_done:")
    A("s_endpgm")
    assert 3 * max(SS1, SS2) <= EP
    return kernel_desc(name, 256), f"; @launch kernel=k1_kernel grid=(256,1,1) block=(384,1,1) lds={LDS_BYTES}"
```

```python
from asmlib import *
from layout import *
import math, os

NST = 10
ACC = 128
XF = 48
WF = 80
DV = 16
XAB, WAB, XAC, WAC = 28, 32, 36, 40
PX, PWQ, PW1, PB1, PWO, PW2, PDBG, PWS = 4, 6, 48, 50, 52, 54, 56, 58
EP = 147456
CSL = EP + 4096
BIASL = CSL + 768
LDS_BYTES = EP + 6144
ST_OFF = XN_OFF
CS_OFF = XN_OFF + 0x10000
PRIV_OFF = 0x8000000
NONL = EP + 6136
TIMEOUT = int(os.environ.get("K1TIMEOUT", "3000"))
SLOW = os.environ.get("K1SLOW", "")
pr = lambda r: f"v[{r}:{r+1}]"

def bf16r(A, v):
    A(f"v_cvt_pk_bf16_f32 v{v}, v{v}, v{v}")
    A(f"v_and_b32 v{v}, 0xffff0000, v{v}")

RX, UX, RW = 16, 56, 136
def h_rows_issue(A):
    A("v_lshrrev_b32 v2, 3, v1")
    A("s_lshl_b32 s32, s70, 3")
    A("v_add_u32 v2, s32, v2")
    A("v_mul_u32_u24 v3, 1280, v2")
    A("v_and_b32 v4, 7, v1")
    A("v_lshl_add_u32 v3, v4, 4, v3")
    for j in range(10):
        A(f"buffer_load_dwordx4 {vr(RX+4*j,4)}, v3, s[8:11], 0 offen offset:{128*j}")
def red8(A, v):
    for mod in ("quad_perm:[1,0,3,2]", "quad_perm:[2,3,0,1]", "row_half_mirror"):
        A("s_nop 1")
        A(f"v_add_f32_dpp v{v}, v{v}, v{v} {mod} row_mask:0xf bank_mask:0xf")
def h_rows_p1a(A):
    for i in range(20):
        A(f"v_lshlrev_b32 v{UX+2*i}, 16, v{RX+i}")
        A(f"v_and_b32 v{UX+2*i+1}, 0xffff0000, v{RX+i}")
    A(f"v_add_f32 v5, v{UX}, v{UX+1}")
    A(f"v_add_f32 v6, v{UX+2}, v{UX+3}")
    for i in range(4, 40, 2):
        A(f"v_add_f32 v5, v5, v{UX+i}")
        A(f"v_add_f32 v6, v6, v{UX+i+1}")
def h_rows_p1b(A):
    for i in range(20, 40):
        A(f"v_lshlrev_b32 v{UX+2*i}, 16, v{RX+i}")
        A(f"v_and_b32 v{UX+2*i+1}, 0xffff0000, v{RX+i}")
    for i in range(40, 80, 2):
        A(f"v_add_f32 v5, v5, v{UX+i}")
        A(f"v_add_f32 v6, v6, v{UX+i+1}")
    A("v_add_f32 v5, v5, v6")
    red8(A, 5)
    A(f"v_mul_f32 v7, {f32hex(1.0/640)}, v5")
def h_rows_p1(A):
    h_rows_p1a(A); h_rows_p1b(A)
def h_rows_p2a(A):
    A("v_mov_b32 v5, 0"); A("v_mov_b32 v6, 0")
    for i in range(0, 52, 2):
        A(f"v_sub_f32 v13, v{UX+i}, v7")
        A(f"v_sub_f32 v14, v{UX+i+1}, v7")
        A("v_fmac_f32 v5, v13, v13")
        A("v_fmac_f32 v6, v14, v14")
def h_rows_p2(A):
    h_rows_p2a(A); h_rows_p2b(A)
def h_rows_p2b(A):
    s, mean, var, m, r, t2, r2 = 5, 7, 8, 9, 10, 11, 12
    for i in range(52, 80, 2):
        A(f"v_sub_f32 v13, v{UX+i}, v7")
        A(f"v_sub_f32 v14, v{UX+i+1}, v7")
        A("v_fmac_f32 v5, v13, v13")
        A("v_fmac_f32 v6, v14, v14")
    A("v_add_f32 v5, v5, v6")
    red8(A, 5)
    A(f"v_mul_f32 v{var}, {f32hex(1.0/640)}, v{s}")
    A(f"v_mov_b32 v{m}, v{mean}"); bf16r(A, m)
    A(f"v_mov_b32 v{s}, v{var}"); bf16r(A, s)
    A(f"v_add_f32 v{s}, {f32hex(1e-5)}, v{s}"); bf16r(A, s)
    A(f"v_sqrt_f32 v{s}, v{s}"); A("s_nop 0"); bf16r(A, s)
    A(f"v_rcp_f32 v{r}, v{s}")
    A(f"v_sub_f32 v{t2}, v{mean}, v{m}")
    A(f"v_mul_f32 v{t2}, v{t2}, v{r}"); bf16r(A, t2)
    A(f"v_mul_f32 v{s}, v{var}, v{r}")
    A(f"v_mul_f32 v{s}, v{s}, v{r}"); bf16r(A, s)
    A(f"v_add_f32 v{s}, {f32hex(1e-5)}, v{s}"); bf16r(A, s)
    A(f"v_sqrt_f32 v{s}, v{s}"); A("s_nop 0"); bf16r(A, s)
    A(f"v_rcp_f32 v{r2}, v{s}")
    O = RX
    A(f"v_mov_b32 v{O}, v{r}")
    A(f"v_mul_f32 v{O+1}, v{m}, v{r}")
    A(f"v_mul_f32 v{O+4}, v{r}, v{r2}")
    A(f"v_add_f32 v{O+5}, v{O+1}, v{t2}")
    A(f"v_mul_f32 v{O+5}, v{O+5}, v{r2}")
def h_rows_store(A):
    O = RX
    for i in (2, 3, 6, 7): A(f"v_mov_b32 v{O+i}, s76")
    A("v_lshlrev_b32 v3, 4, v2")
    A("v_add_u32 v4, 0x8000, v3")
    A("s_mov_b32 exec_lo, 0x01010101"); A("s_mov_b32 exec_hi, 0x01010101")
    A(f"buffer_store_dwordx4 {vr(O,4)}, v3, s[60:63], 0 offen sc1")
    A(f"buffer_store_dwordx4 {vr(O+4,4)}, v4, s[60:63], 0 offen sc1")
    A("s_mov_b64 exec, -1")
def h_strip_issue(A):
    A("s_lshr_b32 s35, s71, 2")
    A("s_cmp_lt_u32 s35, 30")
    A(f"s_cselect_b32 s12, s{PWQ}, s{PW1}")
    A(f"s_cselect_b32 s13, s{PWQ+1}, s{PW1+1}")
    A("s_cselect_b32 s33, 768, 0")
    A("s_cselect_b32 s34, 0, 30")
    A("s_add_u32 s33, s33, 3072")
    A("s_mul_i32 s14, s33, 640")
    A("s_mov_b32 s15, 0x00020000")
    A("s_cmp_lt_u32 s71, 216")
    A("s_cselect_b32 s14, s14, 0")
    A("s_sub_u32 s34, s35, s34")
    A("s_lshl_b32 s34, s34, 7")
    A("v_lshrrev_b32 v13, 3, v1")
    A("v_mul_lo_u32 v13, v13, s33")
    A("v_and_b32 v14, 7, v1")
    A("v_lshl_add_u32 v13, v14, 4, v13")
    A("v_add_u32 v13, s34, v13")
    A("s_and_b32 s34, s71, 3")
    A("s_mul_i32 s34, s34, 160")
    A("s_mul_i32 s34, s34, s33")
    A("s_lshl_b32 s33, s33, 3")
    for i in range(20):
        A(f"buffer_load_dwordx4 {vr(RW+4*i,4)}, v13, s[12:15], s34 offen")
        if i < 19: A("s_add_u32 s34, s34, s33")
def h_strip_p(A, lo, hi):
    C = 216
    for i in range(lo, hi):
        for e in range(4):
            w = RW + 4 * i + e
            if i == 0:
                A(f"v_lshlrev_b32 v{C+2*e}, 16, v{w}")
                A(f"v_and_b32 v{C+2*e+1}, 0xffff0000, v{w}")
            else:
                A(f"v_lshlrev_b32 v13, 16, v{w}")
                A(f"v_and_b32 v14, 0xffff0000, v{w}")
                A(f"v_add_f32 v{C+2*e}, v{C+2*e}, v13")
                A(f"v_add_f32 v{C+2*e+1}, v{C+2*e+1}, v14")
def h_strip_fin(A):
    C = 216; T = 224
    for mod in ("row_ror:8",):
        A("s_nop 1")
        for e in range(8):
            A(f"v_add_f32_dpp v{C+e}, v{C+e}, v{C+e} {mod} row_mask:0xf bank_mask:0xf")
    for op in ("v_permlane16_swap_b32", "v_permlane32_swap_b32"):
        for e in range(8): A(f"v_mov_b32 v{T+e}, v{C+e}")
        A("s_nop 1")
        for e in range(8): A(f"{op} v{C+e}, v{T+e}")
        A("s_nop 1")
        for e in range(8): A(f"v_add_f32 v{C+e}, v{C+e}, v{T+e}")
def h_strip_store(A):
    C = 216; T = 224
    A("v_lshrrev_b32 v13, 3, v1")
    A(f"v_mov_b32 v{T}, v{C}")
    for e in range(1, 8):
        A(f"v_cmp_eq_u32 vcc, {e}, v13")
        A("s_nop 1")
        A(f"v_cndmask_b32 v{T}, v{T}, v{C+e}, vcc")
    A(f"v_mov_b32 v{T+1}, s76")
    A("v_and_b32 v14, 7, v1")
    A("v_lshl_add_u32 v13, v14, 3, v13")
    A("s_lshr_b32 s33, s71, 2")
    A("s_lshl_b32 s33, s33, 9")
    A("s_and_b32 s34, s71, 3")
    A("s_lshl_b32 s34, s34, 15")
    A("s_add_u32 s33, s33, s34")
    A(f"s_add_u32 s33, s33, {CS_OFF - ST_OFF}")
    A("v_lshl_add_u32 v13, v13, 3, s33")
    A("s_cmp_lt_u32 s71, 216")
    A("s_cselect_b32 s33, 0, 0x40000000")
    A(f"buffer_store_dwordx2 {pr(T)}, v13, s[60:63], s33 offen sc1")

def h_pack_issue(A, f, base):
    lab = A.label("pk")
    d = 84 + (f % 8)
    A("s_mul_i32 s41, s2, 11")
    A(f"s_add_u32 s41, s41, {f}")
    A("s_cmp_ge_u32 s41, 1920")
    A(f"s_cbranch_scc1 {lab}_wo")
    A("s_mul_i32 s33, s41, 3277")
    A("s_lshr_b32 s33, s33, 16")
    A("s_mul_i32 s32, s33, 20")
    A("s_sub_u32 s32, s41, s32")
    A("s_mul_i32 s41, s32, 96")
    A("s_add_u32 s41, s41, s33")
    A("s_lshl_b32 s34, s33, 4")
    A("s_mov_b32 s35, 4")
    A(f"s_mov_b32 s36, {8*1280}")
    A(f"s_lshl_b32 s{d}, s41, 10")
    A(f"s_mov_b32 s16, s{PW2}"); A(f"s_mov_b32 s17, s{PW2+1}"); A(f"s_mov_b32 s18, {1536*1280}")
    A(f"s_branch {lab}_go")
    A(f"{lab}_wo:")
    A("s_sub_u32 s37, s41, 1920")
    A("s_mul_i32 s33, s37, 3277")
    A("s_lshr_b32 s33, s33, 16")
    A("s_mul_i32 s32, s33, 20")
    A("s_sub_u32 s32, s37, s32")
    A("s_mul_i32 s37, s32, 40")
    A("s_add_u32 s37, s37, s33")
    A(f"s_lshl_b32 s{d}, s37, 10")
    A(f"s_add_u32 s{d}, s{d}, {WOF_OFF - W2F_OFF}")
    A("s_mul_i32 s34, s33, 20")
    A("s_mov_b32 s35, 4")
    A(f"s_mov_b32 s36, {8*1280}")
    A(f"s_mov_b32 s16, s{PWO}"); A(f"s_mov_b32 s17, s{PWO+1}"); A(f"s_mov_b32 s18, {640*1280}")
    A("s_cmp_lt_u32 s41, 2720")
    A("s_cselect_b32 s18, s18, 0")
    A(f"s_cselect_b32 s{d}, s{d}, 0x40000000")
    A("s_cmp_lt_u32 s33, 32")
    A(f"s_cbranch_scc1 {lab}_go")
    A("s_sub_u32 s33, s33, 32")
    A("s_mul_i32 s34, s33, 80")
    A("s_add_u32 s34, s34, 16")
    A("s_mov_b32 s35, 40")
    A(f"s_mov_b32 s36, {20*1280}")
    A(f"{lab}_go:")
    A("s_mov_b32 s19, 0x00020000")
    A("v_mul_u32_u24 v12, s35, v246")
    A("v_add_u32 v12, s34, v12")
    A("v_mul_u32_u24 v12, 1280, v12")
    A("s_lshl_b32 s32, s32, 6")
    A("v_lshl_add_u32 v248, v245, 1, s32")
    A("v_add_u32 v12, v12, v248")
    for e in range(8):
        so = "s36" if e >= 4 else "0"
        A(f"buffer_load_ushort v{base + e}, v12, s[16:19], {so} offen offset:{(e&3)*1280}")
def h_pack_store(A, f, base):
    for e in range(4):
        A(f"v_lshl_or_b32 v{base+e}, v{base+2*e+1}, 16, v{base+2*e}")
    A(f"buffer_store_dwordx4 {vr(base,4)}, v247, s[64:67], s{84 + (f % 8)} offen")

def helper(A):
    A("k1_helper:")
    A("s_waitcnt lgkmcnt(0)")
    srd(A, 8, PX, XSZ)
    srd(A, 60, PWS, 0x30000, ST_OFF)
    srd(A, 20, PDBG, 256)
    srd(A, 64, PWS, 0x500000, W2F_OFF)
    A("s_mov_b32 s70, s2")
    A("s_mov_b32 s71, s2")
    A("v_mov_b32 v240, 0")
    A(f"v_mov_b32 v241, {NONL}")
    A("v_and_b32 v245, 31, v1")
    A("v_lshrrev_b32 v246, 5, v1")
    A("v_lshlrev_b32 v247, 4, v1")
    A("s_cmp_eq_u32 s25, 5")
    A("s_cbranch_scc1 k1_hB")
    h_rows_issue(A)
    A("s_cmp_lg_u32 s2, 0")
    A("s_cbranch_scc1 k1_hA1")
    A("s_memrealtime s[32:33]")
    A("s_waitcnt lgkmcnt(0)")
    A("s_or_b32 s32, s32, 1")
    A("v_mov_b32 v13, s32")
    A("s_mov_b64 exec, 1")
    A("buffer_store_dword v13, v240, s[20:23], 0 offen sc1")
    A("s_mov_b64 exec, -1")
    A("k1_hA1:")
    srd(A, 16, PB1, 1536 * 2)
    A("s_cmp_eq_u32 s28, 2")
    A("s_cselect_b32 s18, s18, 0")
    A("v_add_u32 v15, s31, v1")
    A("v_lshlrev_b32 v15, 1, v15")
    for i in range(3):
        A(f"buffer_load_ushort v{232+i}, v15, s[16:19], 0 offen offset:{128*i}")
    A("s_barrier")
    A("s_waitcnt vmcnt(3)")
    h_rows_p1a(A)
    A("s_barrier")
    A("buffer_load_dword v242, v240, s[20:23], 0 offen")
    h_rows_p1b(A)
    A("s_barrier")
    h_rows_p2a(A)
    A("s_barrier")
    h_rows_p2b(A)
    A("s_mov_b32 s34, 0")
    A("k1_hn:")
    A("s_waitcnt vmcnt(0)")
    A("v_readfirstlane_b32 s76, v242")
    A("s_nop 3")
    A("s_cmp_lg_u32 s76, 0")
    A("s_cbranch_scc1 k1_hn_ok")
    A("buffer_load_dword v242, v240, s[20:23], 0 offen sc1")
    A("s_add_u32 s34, s34, 1")
    A("s_sleep 1")
    A("s_cmp_lt_u32 s34, 400")
    A("s_cbranch_scc1 k1_hn")
    A("k1_hn_ok:")
    A("v_mov_b32 v242, s76")
    A("ds_write_b32 v241, v242")
    h_rows_store(A)
    A("s_waitcnt lgkmcnt(0)")
    A("s_barrier")
    for f in range(2): h_pack_issue(A, f, 64 + 8 * f)
    A("s_barrier")
    h_pack_issue(A, 2, 80)
    A("s_barrier")
    A("s_barrier")
    A("s_waitcnt vmcnt(0)")
    for f in range(3): h_pack_store(A, f, 64 + 8 * f)
    A("s_cmp_eq_u32 s28, 3")
    A("s_cbranch_scc1 k1_done")
    A("v_add_u32 v243, s30, v1")
    A("v_lshlrev_b32 v243, 4, v243")
    A("s_cmp_eq_u32 s28, 2")
    A("s_cselect_b32 s32, 0x8000, 0")
    A("v_add_u32 v243, s32, v243")
    A("v_add_u32 v244, s29, v1")
    A("v_lshlrev_b32 v244, 3, v244")
    A(f"v_add_u32 v244, {CS_OFF - ST_OFF}, v244")
    A("s_mov_b32 s68, 0"); A("s_mov_b32 s69, 0x8000"); A("s_mov_b32 s74, 0x10000"); A("s_mov_b32 s75, 0x18000")
    def gl():
        for i in range(4):
            A(f"buffer_load_dwordx4 {vr(16+4*i,4)}, v243, s[60:63], 0 offen offset:{1024*i} sc1")
        for q in range(4):
            for i in range(3):
                A(f"buffer_load_dwordx2 {pr(32+6*q+2*i)}, v244, s[60:63], s{68+q if q < 2 else 72+q} offen offset:{512*i} sc1")
    gl()
    A("s_barrier")
    A("s_barrier")
    A("s_mov_b32 s34, 0")
    A("s_mov_b32 s38, 1")
    A("k1_hpoll:")
    A("s_waitcnt vmcnt(0)")
    A("v_xor_b32 v60, s76, v18")
    A("v_xor_b32 v61, s76, v22")
    A("v_or_b32 v60, v60, v61")
    for q in range(4):
        for i in range(2):
            A(f"v_xor_b32 v61, s76, v{33+6*q+2*i}")
            A("v_or_b32 v60, v60, v61")
    A("v_xor_b32 v62, s76, v26")
    A("v_xor_b32 v61, s76, v30")
    A("v_or_b32 v62, v62, v61")
    A("v_xor_b32 v63, s76, v37")
    for q in range(1, 4):
        A(f"v_xor_b32 v61, s76, v{37+6*q}")
        A("v_or_b32 v63, v63, v61")
    A("v_cmp_ne_u32 s[40:41], 0, v60")
    A("v_cmp_ne_u32 s[42:43], 0, v62")
    A("v_cmp_ne_u32 s[46:47], 0, v63")
    A("s_nop 3")
    A("s_cmp_eq_u32 s28, 2")
    A("s_cselect_b64 s[42:43], s[46:47], s[42:43]")
    A("s_or_b64 s[40:41], s[40:41], s[42:43]")
    A("s_cselect_b32 s32, 1, 0")
    A("s_cmp_eq_u32 s76, 0")
    A("s_cselect_b32 s32, 1, s32")
    A(f"s_cmp_eq_u32 s32, {0 if SLOW != '2' else 5}")
    A("s_cbranch_scc1 k1_hok")
    A("s_cmp_eq_u32 s38, 0")
    A("s_cbranch_scc0 k1_hp2")
    A("s_mov_b32 s38, 1")
    A("s_barrier")
    A("k1_hp2:")
    A("s_sleep 2")
    gl()
    A("s_add_u32 s34, s34, 1")
    A("s_cmp_eq_u32 s76, 0")
    A("s_cbranch_scc1 k1_hself")
    A(f"s_cmp_lt_u32 s34, {TIMEOUT}")
    A("s_cbranch_scc1 k1_hpoll")
    A("k1_hself:")
    A("s_lshl_b32 s32, s2, 18")
    A(f"s_add_u32 s32, s32, {PRIV_OFF}")
    A(f"s_add_u32 s60, s{PWS}, s32")
    A(f"s_addc_u32 s61, s{PWS+1}, 0")
    A("s_lshr_b32 s70, s30, 3")
    A("s_lshr_b32 s39, s27, 3")
    A("s_add_u32 s39, s39, s70")
    A("k1_hs1:")
    h_rows_issue(A)
    A("s_waitcnt vmcnt(0)")
    h_rows_p1(A); h_rows_p2(A); h_rows_store(A)
    A("s_add_u32 s70, s70, 1")
    A("s_cmp_lt_u32 s70, s39")
    A("s_cbranch_scc1 k1_hs1")
    A("s_lshr_b32 s71, s29, 4")
    A("s_lshr_b32 s39, s26, 4")
    A("s_add_u32 s39, s39, s71")
    A("k1_hs2:")
    h_strip_issue(A)
    A("s_waitcnt vmcnt(0)")
    h_strip_p(A, 0, 20); h_strip_fin(A); h_strip_store(A)
    A("s_add_u32 s71, s71, 1")
    A("s_cmp_lt_u32 s71, s39")
    A("s_cbranch_scc1 k1_hs2")
    A("s_waitcnt vmcnt(0)")
    gl()
    A("s_waitcnt vmcnt(0)")
    A("k1_hok:")
    A("v_lshlrev_b32 v12, 3, v1")
    A(f"v_add_u32 v12, {EP}, v12")
    A("v_lshlrev_b32 v13, 2, v1")
    A(f"v_add_u32 v13, {EP}, v13")
    for i in range(4):
        A(f"v_mul_f32 v{16+4*i}, s45, v{16+4*i}")
        A(f"v_mul_f32 v{17+4*i}, s45, v{17+4*i}")
        A(f"ds_write_b64 v12, {pr(16+4*i)} offset:{512*i}")
        A(f"ds_write_b32 v13, v{16+4*i} offset:{2048+256*i}")
        A(f"ds_write_b32 v13, v{17+4*i} offset:{3072+256*i}")
    for i in range(3):
        A(f"v_lshlrev_b32 v{232+i}, 16, v{232+i}")
        for q in range(1, 4):
            A(f"v_add_f32 v{32+2*i}, v{32+2*i}, v{32+6*q+2*i}")
        A(f"ds_write_b32 v13, v{32+2*i} offset:{CSL-EP+256*i}")
        A(f"ds_write_b32 v13, v{232+i} offset:{BIASL-EP+256*i}")
    A("s_waitcnt lgkmcnt(0)")
    A("s_cmp_eq_u32 s38, 0")
    A("s_cbranch_scc0 k1_hw")
    A("s_barrier")
    A("k1_hw:")
    A("s_barrier")
    A("s_endpgm")
    A("k1_hB:")
    PB = lambda i: 16 + 8 * i
    h_strip_issue(A)
    A("s_barrier")
    A("s_waitcnt vmcnt(15)")
    h_strip_p(A, 0, 5)
    A("s_barrier")
    A("s_waitcnt vmcnt(10)")
    h_strip_p(A, 5, 10)
    A("s_barrier")
    A("s_waitcnt vmcnt(0)")
    h_strip_p(A, 10, 15)
    h_pack_issue(A, 3, PB(0))
    A("s_barrier")
    h_strip_p(A, 15, 20)
    h_strip_fin(A)
    A("s_barrier")
    A("ds_read_b32 v242, v241")
    A("s_waitcnt lgkmcnt(0)")
    A("v_readfirstlane_b32 s76, v242")
    A("s_nop 1")
    h_strip_store(A)
    for i in (1, 2): h_pack_issue(A, 3 + i, PB(i))
    A("s_barrier")
    for i in (3, 4, 5): h_pack_issue(A, 3 + i, PB(i))
    A("s_barrier")
    A("s_waitcnt vmcnt(24)")
    for i in (0, 1, 2): h_pack_store(A, 3 + i, PB(i))
    for i in (6, 7): h_pack_issue(A, 3 + i, PB(i))
    A("s_barrier")
    A("s_waitcnt vmcnt(19)")
    for i in (3, 4, 5): h_pack_store(A, 3 + i, PB(i))
    srd(A, 16, PWS, 32 * 64 * VREC, V_OFF)
    A("s_cmp_lt_u32 s2, 128")
    A("s_cselect_b32 s18, s18, 0")
    A("s_lshl_b32 s32, s2, 6")
    A("v_add_u32 v12, s32, v1")
    A("v_lshrrev_b32 v13, 2, v12")
    A("v_and_b32 v12, 3, v12")
    A(f"v_mul_u32_u24 v13, {VREC}, v13")
    A(f"v_mul_u32_u24 v12, {VSB}, v12")
    A("v_add_u32 v12, v12, v13")
    for i in range(4): A(f"v_mov_b32 v{124+i}, 0x3f803f80")
    A("buffer_store_dwordx4 v[124:127], v12, s[16:19], 0 offen offset:320")
    srd(A, 16, PWS, 8 * 4096, SYNC_OFF)
    A("s_lshl_b32 s32, s2, 12")
    A("v_lshlrev_b32 v12, 2, v1")
    A("buffer_store_dword v240, v12, s[16:19], s32 offen")
    A("s_cmp_eq_u32 s28, 3")
    A("s_cbranch_scc1 k1_hB2")
    A("s_barrier")
    A("k1_hB2:")
    A("s_waitcnt vmcnt(5)")
    for i in (6, 7): h_pack_store(A, 3 + i, PB(i))
    A("s_endpgm")

def gemm_core(A, tag, TM, TN, transposed, ldw, isH):
    BM, BN = 2 * TM * 32, 2 * TN * 32
    AB = BM * 128; pitch = BN * 2; BB = 64 * pitch; SS = AB + BB
    nA = BM // 32; nB = BB // 4096; ND = nA + nB
    CPR = BN // 8
    A("v_lshrrev_b32 v2, 3, v1")
    A("v_and_b32 v3, 7, v1")
    A("v_lshrrev_b32 v4, 4, v1")
    A(f"s_mul_i32 s40, s25, {BM//4}")
    A("s_add_u32 s40, s40, s30")
    A("v_add_u32 v2, s40, v2")
    A("v_mul_u32_u24 v2, 1280, v2")
    A("v_xor_b32 v5, v3, v4")
    A("v_xor_b32 v6, 4, v5")
    A("v_lshl_add_u32 v5, v5, 4, v2")
    A("v_lshl_add_u32 v6, v6, 4, v2")
    for q in range(nA):
        A(f"v_add_u32 v{DV+q}, {q*8*1280 - (q&3)*1024}, v{5 + (q&1)}")
    A(f"s_mul_i32 s41, s25, {nB*64}")
    A(f"s_lshl_b32 s42, s31, 1")
    for q in range(nB):
        A(f"v_add_u32 v7, s41, v1")
        if q: A(f"v_add_u32 v7, {q*64}, v7")
        if CPR == 16:
            A("v_lshrrev_b32 v8, 4, v7")
            A("v_and_b32 v9, 15, v7")
            A("v_and_b32 v10, 3, v8")
        else:
            A("v_mul_u32_u24 v8, 2731, v7")
            A("v_lshrrev_b32 v8, 16, v8")
            A("v_mul_u32_u24 v9, 24, v8")
            A("v_sub_u32 v9, v7, v9")
            A("v_bfe_u32 v10, v8, 1, 1")
        A("v_lshlrev_b32 v10, 2, v10")
        A("v_xor_b32 v9, v9, v10")
        A(f"v_mul_u32_u24 v8, {ldw}, v8")
        A("v_lshl_add_u32 v8, v9, 4, v8")
        A(f"v_add_u32 v8, s42, v8")
        if q & 3:
            A(f"v_subrev_u32 v{DV+nA+q}, {(q&3)*1024}, v8")
        else:
            A(f"v_mov_b32 v{DV+nA+q}, v8")
    A(f"s_mul_i32 s26, s25, {nA*1024}")
    A(f"s_mul_i32 s27, s25, {nB*1024}")
    A(f"s_add_u32 s27, s27, {AB}")
    def dma_list():
        L = []
        for q in range(nA):
            if q % 4 == 0:
                L.append("s_add_u32 m0, s23, s26" if q == 0 else "s_add_u32 m0, m0, 4096")
                L.append("s_nop 0")
            L.append(f"buffer_load_dwordx4 v{DV+q}, s[8:11], s21 offen offset:{(q&3)*1024} lds")
        for q in range(nB):
            if q % 4 == 0:
                L.append("s_add_u32 m0, s23, s27" if q == 0 else "s_add_u32 m0, m0, 4096")
                L.append("s_nop 0")
            L.append(f"buffer_load_dwordx4 v{DV+nA+q}, s[12:15], s22 offen offset:{(q&3)*1024} lds")
        L.append("s_add_u32 s21, s21, 128")
        L.append(f"s_add_u32 s22, s22, {64*ldw}")
        L.append(f"s_add_u32 s23, s23, {SS}")
        L.append(f"s_cmp_eq_u32 s23, {3*SS}")
        L.append("s_cselect_b32 s23, 0, s23")
        return L
    A("s_mov_b32 s21, 0"); A("s_mov_b32 s22, 0"); A("s_mov_b32 s23, 0")
    A("s_waitcnt lgkmcnt(0)")
    srd(A, 8, PX, XSZ)
    srd(A, 12, PW1 if isH else PWQ, 640 * ldw)
    for l in dma_list(): A(l)
    for l in dma_list(): A(l)
    A("s_and_b32 s43, s25, 1")
    A("s_lshr_b32 s44, s25, 1")
    A("v_and_b32 v2, 31, v1")
    A("v_lshrrev_b32 v3, 5, v1")
    A("v_bfe_u32 v4, v2, 1, 3")
    A(f"s_mul_i32 s45, s43, {TM*32*128}")
    A("v_lshlrev_b32 v5, 7, v2")
    A("v_add_u32 v5, s45, v5")
    for kk in range(4):
        A(f"v_add_u32 v6, {2*kk}, v3")
        A("v_xor_b32 v6, v6, v4")
        A(f"v_lshl_add_u32 v{XAB+kk}, v6, 4, v5")
    A("v_bfe_u32 v6, v1, 2, 2")
    A("v_lshl_add_u32 v7, v3, 3, v6")
    A(f"v_mul_u32_u24 v7, {pitch}, v7")
    A("v_bfe_u32 v8, v1, 4, 1")
    A("v_lshl_add_u32 v7, v8, 5, v7")
    A("v_and_b32 v8, 3, v1")
    A("v_lshl_add_u32 v7, v8, 3, v7")
    A(f"v_add_u32 v7, {AB}, v7")
    if CPR != 16:
        A("v_lshrrev_b32 v6, 1, v6")
    A(f"s_mul_i32 s46, s44, {TN}")
    for u in range(TN):
        A(f"s_add_u32 s47, s46, {u}")
        A("v_xor_b32 v8, s47, v6")
        A(f"v_lshl_add_u32 v{WAB+u}, v8, 6, v7")
    for i in range(TM * TN * 16):
        A(f"v_mov_b32 v{ACC+i}, 0")
    def reads(kk, buf):
        L = []
        for t in range(TM):
            L.append(f"ds_read_b128 {vr(XF + (buf*4+t)*4, 4)}, v{XAC+kk} offset:{t*4096}")
        for u in range(TN):
            for i in range(2):
                L.append(f"ds_read_b64_tr_b16 {vr(WF + (buf*3+u)*4 + 2*i, 2)}, v{WAC+u} offset:{(16*kk+4*i)*pitch}")
        return L
    def mfmas(buf):
        L = []
        for t in range(TM):
            for u in range(TN):
                a = ACC + (t * TN + u) * 16
                x = vr(XF + (buf*4+t)*4, 4); w = vr(WF + (buf*3+u)*4, 4)
                o = (w, x) if transposed else (x, w)
                L.append(f"v_mfma_f32_32x32x16_bf16 {vr(a,16)}, {o[0]}, {o[1]}, {vr(a,16)}")
        return L
    def setcur():
        L = []
        for kk in range(4): L.append(f"v_add_u32 v{XAC+kk}, s24, v{XAB+kk}")
        for u in range(TN): L.append(f"v_add_u32 v{WAC+u}, s24, v{WAB+u}")
        return L
    A("s_mov_b32 s24, 0"); A("s_mov_b32 s20, 0")
    for l in setcur(): A(l)
    stamp(A, 1)
    A(f"s_waitcnt vmcnt({ND})")
    A("s_barrier")
    stamp(A, 2)
    for l in reads(0, 0): A(l)
    A(f"{tag}_loop:")
    dl = dma_list()
    units = []; cur = []
    for l in dl:
        cur.append(l)
        if l.startswith("buffer_load"):
            units.append(cur); cur = []
    tailu = cur
    per = (len(units) + 2) // 3
    NM = TM * TN
    for kk in range(4):
        buf = kk & 1
        ms = mfmas(buf)
        slots = [[] for _ in ms]
        if kk < 3:
            A("s_waitcnt lgkmcnt(0)")
            rd = reads(kk + 1, buf ^ 1)
        else:
            if os.environ.get("ITST"):
                A("s_memtime s[90:91]")
            A(f"s_waitcnt vmcnt({ND}) lgkmcnt(0)")
            if os.environ.get("ITST"):
                A("s_memtime s[92:93]")
            A("s_barrier")
            if os.environ.get("ITST"):
                A("s_memtime s[94:95]")
                A("s_waitcnt lgkmcnt(0)")
                A("s_mul_i32 m0, s20, 3")
                A("s_nop 1")
                A("v_writelane_b32 v47, s90, m0")
                A("s_add_u32 m0, m0, 1")
                A("s_nop 1")
                A("v_writelane_b32 v47, s92, m0")
                A("s_add_u32 m0, m0, 1")
                A("s_nop 1")
                A("v_writelane_b32 v47, s94, m0")
            rd = reads(0, buf ^ 1)
        for i, l in enumerate(rd):
            slots[i // 2].append(l)
        if kk < 3:
            us = units[kk * per:(kk + 1) * per]
            for i, u in enumerate(us):
                slots[min(NM - 1, (i * NM) // len(us) + 1)] += u
        if kk == 1:
            slots[NM - 1] += [f"s_add_u32 s24, s24, {SS}", f"s_cmp_eq_u32 s24, {3*SS}", "s_cselect_b32 s24, 0, s24"]
        if kk == 2:
            sc = setcur()
            slots[NM - 2] += sc
        if kk == 3:
            slots[NM - 3] += tailu
            slots[NM - 2] += ["s_add_u32 s20, s20, 1", f"s_cmp_lt_u32 s20, {NST-2}", "s_cselect_b32 s10, s10, 0", "s_cselect_b32 s14, s14, 0"]
            slots[NM - 1] += [f"s_cmp_lt_u32 s20, {NST}"]
        for m, sl in zip(ms, slots):
            A(m)
            for l in sl: A(l)
    A(f"s_cbranch_scc1 {tag}_loop")
    A("s_waitcnt lgkmcnt(0)")
    stamp(A, 3)
    return SS

def fin(A):
    if os.environ.get("ITST"):
        srd(A, 72, PWS, 1 << 20, 0x4800000)
        A("s_lshl_b32 s76, s2, 2")
        A("s_add_u32 s76, s76, s25")
        A("s_lshl_b32 s76, s76, 8")
        A("v_and_b32 v1, 63, v0")
        A("v_lshlrev_b32 v1, 2, v1")
        A("v_mov_b32 v2, s80")
        A("v_sub_u32 v47, v47, v2")
        A("buffer_store_dword v47, v1, s[72:75], s76 offen")
    stamp(A, 4); stamp_flush(A, 5, PWS, 0, 25); tl_end(A, 0)
    A("s_endpgm")

def gen_k1(A):
    name = "k1_kernel"
    kernel_begin(A, name)
    A("s_cmp_ge_u32 s2, 256")
    A("s_cbranch_scc1 k1_done")
    stamp(A, 0); tl_start(A, 0)
    A("s_load_dwordx4 s[4:7], s[0:1], 0")
    A("s_load_dwordx4 s[48:51], s[0:1], 32")
    A("s_load_dwordx2 s[52:53], s[0:1], 16")
    A("s_load_dwordx2 s[54:55], s[0:1], 48")
    A("s_load_dwordx4 s[56:59], s[0:1], 72")
    A("v_lshrrev_b32 v1, 6, v0")
    A("s_and_b32 s32, s2, 7")
    A("v_readfirstlane_b32 s25, v1")
    A("v_and_b32 v1, 63, v0")
    A("s_lshr_b32 s33, s2, 3")
    A("s_lshr_b32 s34, s32, 2")
    A("s_and_b32 s35, s32, 3")
    A("s_mov_b32 s45, 1.0")
    A("s_cmp_ge_u32 s33, 15")
    A("s_cbranch_scc1 k1_dh")
    A("s_mul_i32 s36, s35, 15")
    A("s_add_u32 s36, s36, s33")
    A("s_lshr_b32 s75, s36, 2")
    A("s_and_b32 s38, s36, 3")
    A("s_lshl_b32 s39, s34, 2")
    A("s_add_u32 s38, s38, s39")
    A("s_lshl_b32 s30, s38, 8")
    A("s_lshl_b32 s31, s75, 7")
    A("s_mov_b32 s29, s31")
    A("s_movk_i32 s27, 256"); A("s_movk_i32 s26, 128")
    A("s_cmp_lt_u32 s75, 5")
    A(f"s_cselect_b32 s45, {f32hex(DH**-0.5 * math.log2(math.e))}, s45")
    A("s_cmp_ge_u32 s75, 10")
    A("s_cselect_b32 s28, 1, 0")
    A("s_branch k1_dd")
    A("k1_dh:")
    A("s_sub_u32 s36, s33, 15")
    A("s_lshr_b32 s37, s36, 3")
    A("s_lshl_b32 s38, s35, 1")
    A("s_add_u32 s37, s37, s38")
    A("s_and_b32 s38, s36, 7")
    A("s_lshl_b32 s39, s34, 3")
    A("s_add_u32 s38, s38, s39")
    A("s_lshl_b32 s30, s38, 7")
    A("s_mul_i32 s31, s37, 192")
    A("s_add_u32 s29, s31, 1920")
    A("s_movk_i32 s27, 128"); A("s_movk_i32 s26, 192")
    A("s_cmp_ge_u32 s33, 31")
    A("s_cselect_b32 s28, 3, 2")
    A("k1_dd:")
    A("s_cmp_ge_u32 s25, 4")
    A("s_cbranch_scc1 k1_helper")
    A("s_cmp_eq_u32 s28, 1")
    A("s_cbranch_scc1 k1_v")
    A("s_cmp_eq_u32 s28, 2")
    A("s_cbranch_scc1 k1_h")
    A("s_cmp_eq_u32 s28, 3")
    A("s_cbranch_scc1 k1_done")
    SS1 = gemm_core(A, "k1qk", 4, 2, True, 3840, False)
    A("v_and_b32 v2, 31, v1")
    A("v_lshrrev_b32 v3, 5, v1")
    A("s_lshl_b32 s32, s43, 10")
    A(f"s_add_u32 s32, s32, {EP}")
    A("v_lshl_add_u32 v12, v2, 3, s32")
    for t in range(4):
        A(f"ds_read_b64 {pr(4+2*t)}, v12 offset:{t*256}")
    A("s_lshl_b32 s32, s44, 8")
    A(f"s_add_u32 s32, s32, {CSL}")
    A("v_lshl_add_u32 v12, v3, 4, s32")
    for u in range(2):
        for j in range(4):
            A(f"ds_read_b128 {vr(48+16*u+4*j,4)}, v12 offset:{128*u+32*j}")
    A("s_cmp_ge_u32 s75, 5")
    A(f"s_cselect_b32 s36, {K_OFF - Q_OFF - 80*32768}, 0")
    srd(A, 16, PWS, K_OFF - Q_OFF + 80 * 32768, Q_OFF)
    A("s_lshl_b32 s38, s75, 4")
    A("s_lshl_b32 s32, s44, 3")
    A("s_add_u32 s38, s38, s32")
    A("s_lshl_b32 s38, s38, 15")
    A("s_add_u32 s38, s38, s36")
    A("s_lshl_b32 s32, s43, 7")
    A("s_add_u32 s32, s32, s30")
    A("s_lshl_b32 s32, s32, 4")
    A("s_add_u32 s38, s38, s32")
    for i in range(1, 4):
        A(f"s_add_u32 s{38+i}, s{37+i}, 65536")
    A("v_lshlrev_b32 v3, 15, v3")
    A("v_lshl_add_u32 v16, v2, 4, v3")
    A("s_waitcnt lgkmcnt(0)")
    for t in range(4):
        for u in range(2):
            a = ACC + (t * 2 + u) * 16
            T = 80
            for i in range(0, 16, 2):
                A(f"v_pk_mul_f32 {pr(T+i)}, {pr(48+16*u+i)}, {pr(4+2*t)} op_sel:[0,1] op_sel_hi:[1,1]")
            for i in range(0, 16, 2):
                A(f"v_pk_fma_f32 {pr(a+i)}, {pr(a+i)}, {pr(4+2*t)}, {pr(T+i)} op_sel_hi:[1,0,1] neg_lo:[0,0,1] neg_hi:[0,0,1]")
            p = 18 + ((t * 2 + u) % 3) * 8
            for i in range(8):
                A(f"v_cvt_pk_bf16_f32 v{p+i}, v{a+2*i}, v{a+2*i+1}")
            A("s_nop 0")
            for j in range(2):
                A(f"v_permlane32_swap_b32 v{p+4*j}, v{p+4*j+2}")
                A(f"v_permlane32_swap_b32 v{p+4*j+1}, v{p+4*j+3}")
            for j in range(2):
                A(f"buffer_store_dwordx4 v[{p+4*j}:{p+4*j+3}], v16, s[16:19], s{38+u*2+j} offen offset:{t*512}")
    fin(A)
    A("k1_v:")
    gemm_core(A, "k1v", 4, 2, False, 3840, False)
    A("v_and_b32 v2, 31, v1")
    A("v_lshrrev_b32 v3, 5, v1")
    A("s_lshl_b32 s32, s43, 9")
    A(f"s_add_u32 s32, s32, {EP+2048}")
    A("v_lshl_add_u32 v12, v3, 4, s32")
    A("s_lshl_b32 s32, s44, 8")
    A(f"s_add_u32 s32, s32, {CSL}")
    A("v_lshl_add_u32 v13, v2, 2, s32")
    for u in range(2):
        A(f"ds_read_b32 v{4+2*u}, v13 offset:{128*u}")
    def vrd(t):
        b = 48 + (t & 1) * 32
        for j in range(4):
            A(f"ds_read_b128 {vr(b+4*j,4)}, v12 offset:{t*128+32*j}")
            A(f"ds_read_b128 {vr(b+16+4*j,4)}, v12 offset:{1024+t*128+32*j}")
    vrd(0)
    srd(A, 16, PWS, 32 * 64 * VREC, V_OFF)
    A("s_lshr_b32 s38, s30, 5")
    A("s_lshl_b32 s32, s43, 2")
    A("s_add_u32 s38, s38, s32")
    A(f"s_mul_i32 s38, s38, {VREC}")
    for t in range(1, 4):
        A(f"s_add_u32 s{38+t}, s{37+t}, {VREC}")
    A("s_sub_u32 s33, s31, 1280")
    A("s_lshl_b32 s32, s44, 6")
    A("s_add_u32 s33, s33, s32")
    A(f"v_mul_u32_u24 v3, {VSB}, v3")
    A(f"s_mov_b32 s34, {64*VREC}")
    for u in range(2):
        A("v_add_u32 v8, s33, v2")
        if u: A("v_add_u32 v8, 32, v8")
        A("v_mul_u32_u24 v9, 3277, v8")
        A("v_lshrrev_b32 v9, 16, v9")
        A("v_mul_u32_u24 v10, 20, v9")
        A("v_sub_u32 v10, v8, v10")
        A("v_lshl_add_u32 v10, v10, 4, v3")
        A("v_mul_lo_u32 v9, v9, s34")
        A(f"v_add_u32 v{16+u}, v9, v10")
    for t in range(4):
        A("s_waitcnt lgkmcnt(0)")
        if t < 3: vrd(t + 1)
        b = 48 + (t & 1) * 32
        for u in range(2):
            a = ACC + (t * 2 + u) * 16
            T = 112
            for i in range(0, 16, 2):
                A(f"v_pk_mul_f32 {pr(T+i)}, {pr(b+16+i)}, {pr(4+2*u)} op_sel_hi:[1,0]")
            for i in range(0, 16, 2):
                A(f"v_pk_fma_f32 {pr(a+i)}, {pr(a+i)}, {pr(b+i)}, {pr(T+i)} neg_lo:[0,0,1] neg_hi:[0,0,1]")
            p = 18 + ((t * 2 + u) % 3) * 8
            for i in range(8):
                A(f"v_cvt_pk_bf16_f32 v{p+i}, v{a+2*i}, v{a+2*i+1}")
            A(f"buffer_store_dwordx4 v[{p}:{p+3}], v{16+u}, s[16:19], s{38+t} offen")
            A(f"buffer_store_dwordx4 v[{p+4}:{p+7}], v{16+u}, s[16:19], s{38+t} offen offset:{2*VSB}")
    fin(A)
    A("k1_h:")
    SS2 = gemm_core(A, "k1h", 2, 3, True, 3072, True)
    A("v_and_b32 v2, 31, v1")
    A("v_lshrrev_b32 v3, 5, v1")
    A("s_lshl_b32 s32, s43, 9")
    A(f"s_add_u32 s32, s32, {EP}")
    A("v_lshl_add_u32 v12, v2, 3, s32")
    for t in range(2):
        A(f"ds_read_b64 {pr(8+2*t)}, v12 offset:{t*256}")
    A("s_mul_i32 s32, s44, 384")
    A(f"s_add_u32 s32, s32, {CSL}")
    A("v_lshl_add_u32 v12, v3, 4, s32")
    def hrd(u):
        b = 48 + (u & 1) * 32
        for j in range(4):
            A(f"ds_read_b128 {vr(b+4*j,4)}, v12 offset:{128*u+32*j}")
            A(f"ds_read_b128 {vr(b+16+4*j,4)}, v12 offset:{768+128*u+32*j}")
    hrd(0)
    srd(A, 16, PWS, 64 * 96 * 1024, HB_OFF)
    A("s_lshr_b32 s33, s30, 5")
    A("s_lshl_b32 s32, s43, 1")
    A("s_add_u32 s33, s33, s32")
    A("s_mul_i32 s33, s33, 96")
    A("s_lshr_b32 s32, s31, 4")
    A("s_add_u32 s33, s33, s32")
    A("s_mul_i32 s32, s44, 6")
    A("s_add_u32 s33, s33, s32")
    A("s_lshl_b32 s36, s33, 10")
    A(f"s_add_u32 s37, s36, {96*1024}")
    A("v_lshlrev_b32 v16, 4, v1")
    A("v_add_u32 v17, 4096, v16")
    c0 = -2.0 * math.sqrt(2.0 / math.pi) * math.log2(math.e)
    c1 = c0 * 0.044715
    A(f"v_mov_b32 v4, {f32hex(c0)}"); A(f"v_mov_b32 v5, {f32hex(c1)}")
    A("v_mov_b32 v6, 1.0")
    T = 112
    for u in range(3):
        A("s_waitcnt lgkmcnt(0)")
        if u < 2: hrd(u + 1)
        b = 48 + (u & 1) * 32
        for t in range(2):
            a = ACC + (t * 3 + u) * 16
            p = 18 + ((u * 2 + t) % 3) * 8
            ab = pr(8 + 2 * t)
            for i in range(0, 16, 2): A(f"v_pk_fma_f32 {pr(T+i)}, {pr(b+i)}, {ab}, {pr(b+16+i)} op_sel:[0,1,0] op_sel_hi:[1,1,1] neg_lo:[1,0,0] neg_hi:[1,0,0]")
            for i in range(0, 16, 2): A(f"v_pk_fma_f32 {pr(a+i)}, {pr(a+i)}, {ab}, {pr(T+i)} op_sel_hi:[1,0,1]")
            for i in range(0, 16, 2): A(f"v_pk_mul_f32 {pr(T+i)}, {pr(a+i)}, {pr(a+i)}")
            for i in range(0, 16, 2): A(f"v_pk_fma_f32 {pr(T+i)}, {pr(T+i)}, v[4:5], v[4:5] op_sel:[0,1,0] op_sel_hi:[1,1,0]")
            for i in range(0, 16, 2): A(f"v_pk_mul_f32 {pr(T+i)}, {pr(T+i)}, {pr(a+i)}")
            for i in range(16): A(f"v_exp_f32 v{T+i}, v{T+i}")
            for i in range(0, 16, 2): A(f"v_pk_add_f32 {pr(T+i)}, {pr(T+i)}, v[6:7] op_sel_hi:[1,0]")
            for i in range(16): A(f"v_rcp_f32 v{T+i}, v{T+i}")
            for i in range(0, 16, 2): A(f"v_pk_mul_f32 {pr(T+i)}, {pr(T+i)}, {pr(a+i)}")
            for i in range(8): A(f"v_cvt_pk_bf16_f32 v{p+i}, v{T+2*i}, v{T+2*i+1}")
            va = 16 if u < 2 else 17
            off = (2 * u * 1024) % 4096
            A(f"buffer_store_dwordx4 v[{p}:{p+3}], v{va}, s[16:19], s{36+t} offen offset:{off}")
            A(f"buffer_store_dwordx4 v[{p+4}:{p+7}], v{va}, s[16:19], s{36+t} offen offset:{off+1024}")
    fin(A)
    helper(A)
    A("k1_done:")
    A("s_endpgm")
    assert 3 * max(SS1, SS2) <= EP
    return kernel_desc(name, 256), f"; @launch kernel=k1_kernel grid=(256,1,1) block=(384,1,1) lds={LDS_BYTES}"
```

```python
from asmlib import *
from layout import *
import math, os

QA1, QA2, QB1, QB2 = 16, 20, 22, 26
B2R = 28
VW = 36
SA, SB = 68, 84
PA, PB = 100, 108
OA, OB_ = 116, 132
KF = [(148, 152), (154, 158)]
VF = [(160, 164), (168, 172)]
MO, M5 = 176, 192
MF = 208
F5 = 240
VK1, VK2, VV = 4, 5, 6
VP = 8
VD = [12, 34, 35]
L16 = 47
KVSZ = (V_OFF - K_OFF) + 32 * 64 * VREC
SLOT = 24576
XCH = 0
WL = 2 * SLOT
FLAG = WL + 8 * 12288
LDS_BYTES = FLAG + 64
OOB = 0x40000

def m16(d, a, b, c):
    return f"v_mfma_f32_32x32x16_bf16 {vr(d,16)}, {vr(a,4)}, {vr(b,4)}, {c}"
def m8(d, a, b, c):
    return f"v_mfma_f32_32x32x8_bf16 {vr(d,16)}, {vr(a,2)}, {vr(b,2)}, {c}"

def phase(out, s, p, mf, slots):
    E = lambda i: f"v_exp_f32 v{s+i}, v{s+i}"
    C = lambda i: f"v_cvt_pk_bf16_f32 v{p+i}, v{s+2*i}, v{s+2*i+1}"
    groups = [[E(0), E(1), E(2), E(3), C(0)],
              [E(4), E(5), C(1), E(6), E(7)],
              [C(2), E(8), E(9), C(3), E(10)],
              [E(11), C(4), E(12), E(13), C(5)],
              [E(14), E(15), C(6), C(7)]]
    X = os.environ.get("K2X", "")
    if "ord2" in X:
        groups = [[E(0), E(1), E(2), E(3), E(4)],
                  [E(5), C(0), E(6), E(7), C(1)],
                  [E(8), E(9), C(2), E(10), E(11)],
                  [C(3), E(12), E(13), C(4), E(14)],
                  [E(15), C(5), C(6), C(7)]]
    if "ord3" in X:
        groups = [[E(i) for i in range(0, 4)], [E(i) for i in range(4, 8)], [E(i) for i in range(8, 12)], [E(i) for i in range(12, 16)], [C(i) for i in range(8)]]
    for g in range(5):
        out += mf[g]
        out += slots[g]
        out += groups[g]

def rdK(buf, off):
    return [f"ds_read_b128 {vr(KF[buf][0],4)}, v{VK1} offset:{off}", "s_mov_b32 exec_hi, 0",
            f"ds_read_b64 {vr(KF[buf][1],2)}, v{VK2} offset:{off}", "s_mov_b32 exec_hi, -1"]
def rdV(buf, off):
    return [f"ds_read_b128 {vr(VF[buf][0],4)}, v{VV} offset:{off}", f"ds_read_b128 {vr(VF[buf][1],4)}, v{VV} offset:{off+2*VSB}"]
def toffK(i):
    i %= 8
    return (i // 4) * SLOT + (i % 4) * 1024
def toffV(i):
    i %= 8
    return (i // 4) * SLOT + (i % 4) * 2 * VREC

def rowmax(A, s, acc, first):
    if first:
        A(f"v_max3_f32 v{acc}, v{s}, v{s+1}, v{s+2}")
        A(f"v_max_f32 v{acc}, v{acc}, v{s+3}")
        st = 4
    else:
        st = 0
    for i in range(st, 16, 2):
        A(f"v_max3_f32 v{acc}, v{acc}, v{s+i}, v{s+i+1}")

def set_nc(A, acc, q2, tmp):
    A(f"v_mov_b32 v{tmp}, v{acc}")
    A("s_nop 1")
    A(f"v_permlane32_swap_b32 v{acc}, v{tmp}")
    A("s_nop 1")
    A(f"v_max_f32 v{acc}, v{acc}, v{tmp}")
    A(f"v_cvt_pk_bf16_f32 v{tmp}, -v{acc}, -v{acc}")
    A(f"v_lshlrev_b32 v{tmp}, 16, v{tmp}")
    A(f"v_sub_f32 v{tmp}, -v{acc}, v{tmp}")
    A("s_mov_b32 exec_lo, 0")
    A(f"v_cvt_pk_bf16_f32 v{q2}, -v{acc}, v{tmp}")
    A("s_mov_b64 exec, -1")

def dma_ops(slot):
    L = [f"s_add_u32 m0, s46, {slot*SLOT}", "s_nop 0"]
    for j in range(3):
        L.append(f"buffer_load_dwordx4 v{VD[j]}, s[20:23], s47 offen offset:{j*1024} lds")
    L.append("s_add_u32 s47, s47, s45")
    return L

def mlp_loads(st):
    p = st % 4; b = MF + (st % 4) * 8
    L = [(f"buffer_load_dwordx4 {vr(b,4)}, v{VP+p}, s[24:27], s48 offen", f"h{st}"),
         (f"buffer_load_dwordx4 {vr(b+4,4)}, v{VP+p}, s[28:31], s49 offen", f"w{st}")]
    if p == 0:
        L.append((f"buffer_load_dwordx4 {vr(F5 + ((st//4) % 2) * 4, 4)}, v{VP}, s[28:31], s50 offen", f"f{st}"))
    if p == 3:
        L += ["s_add_u32 s48, s48, 4096", "s_add_u32 s49, s49, 4096", "s_add_u32 s50, s50, 4096"]
    return L

def resolve_waits(body):
    isv = lambda x: (x[0] if isinstance(x, tuple) else x).startswith("buffer_")
    n = len(body)
    out = []
    for i, x in enumerate(body):
        if isinstance(x, tuple) and x[0] == "WAIT":
            cnt = 0; j = i
            while True:
                j = (j - 1) % n
                y = body[j]
                if isinstance(y, tuple) and y[0] != "WAIT" and y[1] == x[1]:
                    break
                if not (isinstance(y, tuple) and y[0] == "WAIT") and isv(y):
                    cnt += 1
                assert j != i
            out.append(f"s_waitcnt vmcnt({cnt})")
        else:
            out.append(x[0] if isinstance(x, tuple) else x)
    return out


def build_body():
    mm = []
    for st in range(12):
        b = MF + (st % 4) * 8
        mm.append(([("WAIT", f"w{st}"), m16(MO, b + 4, b, vr(MO, 16))], st if st % 4 else None))
        if st % 4 == 0:
            mm.append(([("WAIT", f"f{st}"), m16(M5, F5 + ((st // 4) % 2) * 4, b, vr(M5, 16))], st))
    body = []
    ph = 0
    for i in range(8):
        b = i & 1; nb = b ^ 1
        k = rdK(nb, toffK(i + 1)); v = rdV(nb, toffV(i + 1))
        last = (i % 4 == 3)
        for half in range(2):
            if ph < 15:
                x5, fin = mm[ph]
                post = mlp_loads((fin + 3) % 12) if fin is not None else []
                if fin == 9:
                    post = ["s_cmp_lt_u32 s39, 3", "s_cselect_b32 s26, s26, 0", "s_cselect_b32 s30, s30, 0"] + post
            else:
                x5, post = [], []
            if half == 0:
                pre = [("WAIT", f"d{i//4}"), "s_waitcnt lgkmcnt(0)", "s_barrier"] if last else []
                dm = dma_ops(i // 4) if last else []
                if dm:
                    dm[4] = (dm[4], f"d{(i//4)^1}")
                    dm = ["s_cmp_lt_u32 s39, 3", "s_cselect_b32 s22, s22, 0", "s_cselect_b32 s46, s46, 0x30000"] + dm
                phase(body, SA, PA,
                      [[m16(SB, KF[b][0], QB1, "0")], [m8(SB, KF[b][1], QB2, vr(SB, 16))],
                       [m16(OB_, VF[nb][0], PB, vr(OB_, 16))], [m16(OB_, VF[nb][1], PB + 4, vr(OB_, 16))], x5],
                      [pre + k, [], dm, [], post + ["s_waitcnt lgkmcnt(0)"]])
            else:
                tail = ["s_add_u32 s39, s39, 1", "s_cmp_lt_u32 s39, 4"] if i == 7 else []
                wl = []
                if i in (0, 2, 4):
                    wl = ["s_mov_b32 m0, s71", "s_add_u32 s71, s71, 1024",
                          f"buffer_load_dwordx4 v{L16}, s[72:75], s58 offen lds", "s_add_u32 s58, s58, 1024"]
                phase(body, SB, PB,
                      [[m16(SA, KF[nb][0], QA1, "0")], [m8(SA, KF[nb][1], QA2, vr(SA, 16))],
                       [m16(OA, VF[b][0], PA, vr(OA, 16))], [m16(OA, VF[b][1], PA + 4, vr(OA, 16))], x5],
                      [v, [], wl, [], post + tail])
            ph += 1
    return body

def prologue_vmem(body):
    i0 = next(i for i, x in enumerate(body) if isinstance(x, tuple) and x[1] == "h0" and x[0] != "WAIT")
    out = []
    for x in body[i0:]:
        if isinstance(x, tuple) and x[0] == "WAIT": continue
        t = x[0] if isinstance(x, tuple) else x
        if t.startswith("buffer_") or t.startswith("s_add_u32 m0") or t == "s_nop 0" or t.startswith("s_add_u32 s47") \
           or t.startswith("s_add_u32 s48") or t.startswith("s_add_u32 s49") or t.startswith("s_add_u32 s50"):
            out.append(t)
    return out


QP = 1040
RES = FLAG + 4
W0, W5, OS = 68, 148, 208
WB = 100
XO, X5R, BO, B5R = 28, 32, 36, 40
TIMEOUT = int(os.environ.get("K2TIMEOUT", "4000"))
pr = lambda r: f"v[{r}:{r+1}]"

def wof_loads(A):
    for g in range(5):
        A(f"buffer_load_dwordx4 {vr(W5 + 4*g, 4)}, v{VP}, s[72:75], s59 offen")
        if g < 4: A("s_add_u32 s59, s59, 4096")
    for g in range(2):
        for p in range(4):
            A(f"buffer_load_dwordx4 {vr(W0 + (4*g+p)*4, 4)}, v{VP+p}, s[72:75], s58 offen")
        if g < 1: A("s_add_u32 s58, s58, 4096")
    A(f"buffer_load_dwordx4 {vr(XO,4)}, v13, s[8:11], 0 offen")
    A(f"buffer_load_dwordx2 {pr(X5R)}, v14, s[8:11], 0 offen")
    A(f"buffer_load_dwordx4 {vr(BO,4)}, v42, s[24:27], 0 offen")
    A(f"buffer_load_dwordx2 {pr(B5R)}, v43, s[24:27], 0 offen")

def gen_k2(A):
    name = "k2_kernel"
    kernel_begin(A, name)
    A("s_cmp_ge_u32 s2, 256")
    A("s_cbranch_scc1 k2_done")
    stamp(A, 0); tl_start(A, 1)
    A("s_load_dwordx2 s[6:7], s[0:1], 80")
    A("s_load_dwordx4 s[76:79], s[0:1], 56")
    A("s_load_dwordx2 s[4:5], s[0:1], 0")
    A("v_lshrrev_b32 v1, 6, v0")
    A("s_nop 0")
    A("v_readfirstlane_b32 s64, v1")
    A("s_and_b32 s32, s2, 7")
    A("s_lshr_b32 s33, s2, 3")
    A("s_lshl_b32 s34, s32, 2")
    A("s_lshr_b32 s53, s33, 3")
    A("s_add_u32 s34, s34, s53")
    A("s_and_b32 s35, s33, 7")
    A("s_lshl_b32 s52, s35, 3")
    A("s_add_u32 s52, s52, s32")
    A("s_and_b32 s65, s64, 3")
    A("s_lshr_b32 s66, s64, 2")
    A("k2_restart:")
    A("v_and_b32 v1, 63, v0")
    A(f"v_lshlrev_b32 v{L16}, 4, v1")
    A("s_mul_i32 s46, s64, 3072")
    A("s_mul_i32 s67, s34, 5")
    A("s_lshr_b32 s67, s67, 1")
    A("s_and_b32 s68, s34, 1")
    A(f"s_mul_i32 s45, s66, {8*VREC - 4096}")
    A("s_add_u32 s45, s45, 4096")
    A("s_mul_i32 s69, s65, 3")
    A(f"s_mul_i32 s70, s34, {64*VREC}")
    A(f"s_add_u32 s70, s70, {V_OFF - K_OFF}")
    for j in range(3):
        A(f"s_add_u32 s54, s69, {j}")
        A("s_lshr_b32 s55, s54, 2")
        A("s_add_u32 s55, s55, s67")
        A("s_lshl_b32 s55, s55, 15")
        A("s_and_b32 s56, s54, 3")
        A("s_lshl_b32 s56, s56, 10")
        A("s_add_u32 s55, s55, s56")
        A("s_lshl_b32 s56, s54, 10")
        A("s_add_u32 s56, s56, s70")
        if j == 2:
            A("s_cmp_eq_u32 s54, 11")
            A("s_cselect_b32 s56, 0x40000000, s56")
        A("s_cmp_eq_u32 s66, 0")
        A("s_cselect_b32 s55, s55, s56")
        if j: A(f"s_sub_u32 s55, s55, {j*1024}")
        A(f"v_add_u32 v{VD[j]}, s55, v{L16}")
    A(f"s_mov_b32 s51, {KVSZ}")
    A("s_mov_b32 s38, 0")
    A("s_lshl_b32 s36, s35, 3")
    A("s_lshl_b32 s37, s65, 1")
    A("s_add_u32 s36, s36, s37")
    A("s_add_u32 s36, s36, s66")
    A("s_lshl_b32 s37, s36, 9")
    A("s_lshl_b32 s54, s67, 15")
    A("s_add_u32 s37, s37, s54")
    A("s_xor_b32 s44, s37, 512")
    A("v_and_b32 v2, 31, v1")
    A("v_lshrrev_b32 v3, 5, v1")
    A("v_add_u32 v7, s68, v3")
    A("v_lshlrev_b32 v15, 4, v2")
    A(f"v_lshl_add_u32 v{VK1}, v7, 12, v15")
    A("v_lshl_add_u32 v40, v7, 15, v15")
    A("s_lshl_b32 s54, s68, 1")
    A("s_sub_u32 s54, 2, s54")
    A("s_lshl_b32 s55, s68, 3")
    A("s_lshl_b32 s56, s54, 12")
    A("s_add_u32 s56, s56, s55")
    A(f"v_add_u32 v{VK2}, s56, v15")
    A("s_lshl_b32 s56, s54, 15")
    A("s_add_u32 s56, s56, s55")
    A("v_add_u32 v41, s56, v15")
    for r in (QA2, QA2 + 1, QB2, QB2 + 1): A(f"v_mov_b32 v{r}, 0")
    for r in (KF[0][1], KF[0][1] + 1, KF[1][1], KF[1][1] + 1): A(f"v_mov_b32 v{r}, 0x3f803f80")
    for p in range(4):
        A(f"s_xor_b32 s54, s65, {p}")
        A("s_lshl_b32 s54, s54, 10")
        A(f"v_add_u32 v{VP+p}, s54, v{L16}")
    A("s_waitcnt lgkmcnt(0)")
    srd(A, 20, 6, KVSZ, K_OFF)
    srd(A, 8, 6, 80 * 32768, Q_OFF)
    A("s_mov_b32 s47, 0")
    for l in dma_ops(0): A(l)
    A(f"buffer_load_dwordx4 {vr(QA1,4)}, v40, s[8:11], s37 offen")
    A(f"buffer_load_dwordx4 {vr(QB1,4)}, v40, s[8:11], s44 offen")
    A("s_mov_b32 exec_hi, 0")
    A(f"buffer_load_dwordx2 {vr(QA2,2)}, v41, s[8:11], s37 offen")
    A(f"buffer_load_dwordx2 {vr(QB2,2)}, v41, s[8:11], s44 offen")
    A("s_mov_b64 exec, -1")
    srd(A, 12, 6, 64 * 40 * 1024, OB_OFF)
    A(f"v_mul_u32_u24 v15, {VSB}, v3")
    A(f"v_lshl_add_u32 v{VV}, v2, 4, v15")
    A(f"s_mul_i32 s57, s66, {VREC}")
    A("s_add_u32 s57, s57, 12288")
    A(f"v_add_u32 v{VV}, s57, v{VV}")
    A("v_cmp_lt_u32 vcc, 20, v2")
    A(f"v_mov_b32 v15, {OOB}")
    A("s_lshl_b32 s57, s66, 9")
    A(f"v_cndmask_b32 v{VV}, v{VV}, v15, vcc")
    A(f"v_mov_b32 v7, {FLAG}")
    A("v_mov_b32 v15, 0")
    A("ds_write_b32 v7, v15")
    A("s_branch k2_main2")
    A("k2_main:")
    A("s_mul_i32 s46, s64, 3072")
    A("s_mov_b32 s22, s51")
    A("s_mov_b32 s47, 0")
    for l in dma_ops(0): A(l)
    A("k2_main2:")
    srd(A, 24, 6, 64 * 96 * 1024, HB_OFF)
    srd(A, 28, 6, 20 * 96 * 1024, W2F_OFF)
    A("s_mul_i32 s54, s66, 48")
    A("s_mul_i32 s48, s52, 96")
    A("s_add_u32 s48, s48, s54")
    A("s_lshl_b32 s48, s48, 10")
    A("s_mul_i32 s49, s53, 5")
    A("s_add_u32 s50, s49, 4")
    A("s_add_u32 s49, s49, s65")
    for r in (49, 50):
        A(f"s_mul_i32 s{r}, s{r}, 96")
        A(f"s_add_u32 s{r}, s{r}, s54")
        A(f"s_lshl_b32 s{r}, s{r}, 10")
    srd(A, 72, 6, 20 * 40 * 1024, WOF_OFF)
    A("s_mul_i32 s54, s66, 20")
    A("s_mul_i32 s58, s53, 5")
    A("s_add_u32 s59, s58, 4")
    A("s_add_u32 s58, s58, s65")
    for r in (58, 59):
        A(f"s_mul_i32 s{r}, s{r}, 40")
        A(f"s_add_u32 s{r}, s{r}, s54")
        A(f"s_lshl_b32 s{r}, s{r}, 10")
    A("s_mul_i32 s71, s64, 12288")
    A(f"s_add_u32 s71, s71, {WL}")
    body = build_body()
    pv = prologue_vmem(body)
    for r in list(range(OA, OA + 32)) + list(range(PB, PB + 8)) + list(range(VF[1][0], VF[1][0] + 8)) + list(range(MO, MO + 32)):
        A(f"v_mov_b32 v{r}, 0")
    A("s_waitcnt vmcnt(0) lgkmcnt(0)")
    stamp(A, 1)
    A("s_barrier")
    A("s_cmp_lg_u32 s38, 0")
    A("s_cbranch_scc1 k2_havemax")
    for l in rdK(1, 0): A(l)
    for r in (VK1, VK2): A(f"v_add_u32 v{r}, s57, v{r}")
    for l in rdK(0, 0) + rdV(0, 0): A(l)
    for l in pv[:2]: A(l)
    A("s_waitcnt lgkmcnt(4)")
    A(m16(SA, KF[1][0], QA1, "0")); A(m8(SA, KF[1][1], QA2, vr(SA, 16)))
    A(m16(SB, KF[1][0], QB1, "0")); A(m8(SB, KF[1][1], QB2, vr(SB, 16)))
    for l in pv[2:5]: A(l)
    A("s_nop 6")
    rowmax(A, SA, 2, True)
    set_nc(A, 2, QA2, 7)
    A("s_waitcnt lgkmcnt(0)")
    A(m16(SA, KF[0][0], QA1, "0")); A(m8(SA, KF[0][1], QA2, vr(SA, 16)))
    for l in pv[5:11]: A(l)
    rowmax(A, SB, 3, True)
    set_nc(A, 3, QB2, 7)
    for l in pv[11:]: A(l)
    A("s_branch k2_go")
    A("k2_havemax:")
    for l in rdK(0, 0) + rdV(0, 0): A(l)
    for l in pv: A(l)
    A("s_waitcnt lgkmcnt(0)")
    A(m16(SA, KF[0][0], QA1, "0")); A(m8(SA, KF[0][1], QA2, vr(SA, 16)))
    A("s_nop 10")
    A("k2_go:")
    A("s_mov_b32 s39, 0")
    stamp(A, 2)
    A(".p2align 3")
    A("k2_loop:")
    for l in resolve_waits(body): A(l)
    A("s_cbranch_scc1 k2_loop")
    A("s_nop 1")
    A(m16(OB_, VF[1][0], PB, vr(OB_, 16))); A(m16(OB_, VF[1][1], PB + 4, vr(OB_, 16)))
    stamp(A, 3)
    A("s_mul_i32 s40, s64, 3072")
    A(f"s_add_u32 s40, s40, {XCH}")
    A(f"v_add_u32 v7, s40, v{L16}")
    A("s_xor_b32 s40, s64, 4")
    A("s_mul_i32 s40, s40, 3072")
    A(f"s_add_u32 s40, s40, {XCH}")
    A(f"v_add_u32 v15, s40, v{L16}")
    A("s_mul_i32 s40, s36, 40")
    A("s_add_u32 s41, s40, s34")
    A("s_lshl_b32 s41, s41, 10")
    A("s_lshr_b32 s42, s34, 2")
    A("s_add_u32 s42, s42, s40")
    A("s_add_u32 s42, s42, 32")
    A("s_lshl_b32 s42, s42, 10")
    for q, r in enumerate([OB_, OB_ + 4, OB_ + 8]):
        A(f"ds_write_b128 v7, {vr(r,4)} offset:{q*1024}")
    A("s_bfe_u32 s43, s34, 0x10001")
    A("s_lshl_b32 s43, s43, 9")
    A("s_add_u32 s42, s42, s43")
    A("s_and_b32 s43, s34, 1")
    A("s_lshl_b32 s43, s43, 3")
    A("s_add_u32 s42, s42, s43")
    A(f"s_mov_b32 s40, {f32hex(2.0**64)}")
    A("v_lshrrev_b32 v2, 4, v0")
    A("v_and_b32 v3, 15, v0")
    A("s_lshl_b32 s54, s52, 5")
    A("s_mul_i32 s55, s53, 320")
    A("v_lshl_add_u32 v42, v3, 4, s55")
    A("v_add_u32 v13, s54, v2")
    A("v_mul_u32_u24 v13, 1280, v13")
    A("v_add_u32 v13, v13, v42")
    A("v_lshrrev_b32 v2, 3, v0")
    A("v_and_b32 v3, 7, v0")
    A("s_add_u32 s55, s55, 256")
    A("v_lshl_add_u32 v43, v3, 3, s55")
    A("v_add_u32 v14, s54, v2")
    A("v_mul_u32_u24 v14, 1280, v14")
    A("v_add_u32 v14, v14, v43")
    A("v_cmp_gt_u32 vcc, 256, v0")
    A("v_mov_b32 v2, 0x7fffffff")
    A("s_waitcnt lgkmcnt(0)")
    A("v_cndmask_b32 v14, v2, v14, vcc")
    stamp(A, 4)
    A("s_barrier")
    for q in range(3):
        A(f"ds_read_b128 {vr(SA+4*q,4)}, v15 offset:{q*1024}")
    A("v_mov_b32 v44, 0"); A("v_mov_b32 v45, 0"); A("v_mov_b32 v2, 0"); A("v_mov_b32 v3, 0")
    srd(A, 8, 4, XSZ)
    srd(A, 24, 76, 1280)
    A("s_waitcnt lgkmcnt(0)")
    for e in (8, 10, 0, 2, 4, 6):
        A(f"v_pk_add_f32 {pr(OA+e)}, {pr(OA+e)}, {pr(SA+e)}")
        if e == 10:
            A(f"v_mov_b32 v7, v{OA+8}")
            A(f"v_mov_b32 v46, v{OA+8}")
    A(f"v_permlane32_swap_b32 v7, v46")
    for e in range(0, 12, 2):
        A(f"v_pk_fma_f32 v[2:3], {pr(OA+e)}, v[44:45], v[2:3]")
    A("v_cmp_nlt_f32 s[60:61], v46, s40")
    A("v_cmp_u_f32 s[62:63], v2, v3")
    A("v_rcp_f32 v46, v46")
    A("s_nop 2")
    A("s_or_b64 s[60:61], s[60:61], s[62:63]")
    A("s_cbranch_scc0 k2_noflag")
    A(f"v_mov_b32 v7, {FLAG}")
    A("v_mov_b32 v15, 1")
    A("ds_write_b32 v7, v15")
    A("k2_noflag:")
    for e in range(0, 12, 2):
        A(f"v_pk_mul_f32 {pr(OA+e)}, {pr(OA+e)}, v[46:47] op_sel_hi:[1,0]")
    for i in range(6):
        A(f"v_cvt_pk_bf16_f32 v{168+i}, v{OA+2*i}, v{OA+2*i+1}")
    A(f"buffer_store_dwordx4 {vr(168,4)}, v{L16}, s[12:15], s41 offen sc1")
    A("s_mov_b32 exec_hi, 0")
    A(f"buffer_store_dwordx2 {vr(172,2)}, v{L16}, s[12:15], s42 offen sc1")
    A("s_mov_b64 exec, -1")
    A("s_waitcnt vmcnt(0) lgkmcnt(0)")
    stamp(A, 5)
    A("s_barrier")
    A(f"v_mov_b32 v7, {FLAG}")
    A("ds_read_b32 v15, v7")
    A("s_waitcnt lgkmcnt(0)")
    A("v_readfirstlane_b32 s41, v15")
    A("s_nop 3")
    A("s_cmp_eq_u32 s41, 0")
    A("s_cbranch_scc1 k2_pub")
    A("s_cmp_eq_u32 s38, 0")
    A("s_cbranch_scc1 k2_fallback")
    A("k2_pub:")
    A("s_cmp_eq_u32 s64, 0")
    A("s_cbranch_scc1 k2_w0")
    wof_loads(A)
    A("s_branch k2_bp")
    A("k2_w0:")
    srd(A, 16, 6, 8 * 4096, SYNC_OFF)
    A("s_lshl_b32 s40, s35, 12")
    A("s_lshl_b32 s41, s34, 2")
    A("v_mov_b32 v2, s41")
    A("v_mov_b32 v3, 1")
    A("s_mov_b64 exec, 1")
    A("buffer_store_dword v3, v2, s[16:19], s40 offen sc1")
    A("s_mov_b64 exec, -1")
    wof_loads(A)
    A("v_and_b32 v2, 31, v1")
    A("v_lshlrev_b32 v2, 2, v2")
    A("s_mov_b32 s41, 0")
    A("k2_poll:")
    A("buffer_load_dword v3, v2, s[16:19], s40 offen sc1")
    A("s_waitcnt vmcnt(0)")
    A("v_cmp_ne_u32 vcc, 1, v3")
    A("s_mov_b32 s42, 1")
    A("s_nop 3")
    A("s_cmp_eq_u32 vcc_lo, 0")
    A("s_cbranch_scc1 k2_pres")
    A("s_add_u32 s41, s41, 1")
    A(f"s_cmp_lt_u32 s41, {TIMEOUT}")
    A("s_cbranch_scc1 k2_poll")
    A("s_ff1_i32_b32 s42, vcc_lo")
    A("s_add_u32 s42, s42, 2")
    A("k2_pres:")
    A(f"v_mov_b32 v7, {RES}")
    A("v_mov_b32 v15, s42")
    A("ds_write_b32 v7, v15")
    A("s_waitcnt lgkmcnt(0)")
    A("k2_bp:")
    A("s_barrier")
    A(f"v_mov_b32 v7, {RES}")
    A("ds_read_b32 v15, v7")
    A("s_mul_i32 s40, s52, 40")
    A("s_mul_i32 s41, s64, 5")
    A("s_add_u32 s40, s40, s41")
    A("s_lshl_b32 s40, s40, 10")
    A("s_lshl_b32 s41, s41, 10")
    A(f"v_add_u32 v2, s41, v{L16}")
    A(f"v_add_u32 v3, 4096, v{L16}")
    A("s_waitcnt lgkmcnt(0)")
    A("v_readfirstlane_b32 s42, v15")
    A("s_nop 3")
    A("s_cmp_eq_u32 s42, 1")
    A("s_cbranch_scc1 k2_oproj")
    A("s_sub_u32 s34, s42, 2")
    A("s_waitcnt vmcnt(0)")
    A("s_barrier")
    A("s_branch k2_restart")
    A("k2_oproj:")
    stamp(A, 6)
    for i in range(5):
        va = L16 if i < 4 else 3
        A(f"buffer_load_dwordx4 {vr(OS+4*i,4)}, v{va}, s[12:15], s40 offen offset:{(i%4)*1024} sc1")
    A("s_mul_i32 s41, s66, 20480")
    A("s_mul_i32 s42, s64, 12288")
    A(f"s_add_u32 s42, s42, {WL}")
    for p in range(4):
        A(f"v_add_u32 v{16+p}, s42, v{VP+p}")
        A(f"v_add_u32 v{VP+p}, s41, v{VP+p}")
    def wrd(s): return f"ds_read_b128 {vr(WB + (s % 8) * 4, 4)}, v{16 + s % 4} offset:{(s // 4) * 4096}"
    for s_ in range(6): A(wrd(s_))
    for i in range(5):
        A(f"s_waitcnt vmcnt({4-i})")
        A(f"ds_write_b128 v2, {vr(OS+4*i,4)} offset:{i*1024}")
    A("s_waitcnt lgkmcnt(0)")
    A("s_barrier")
    def ord_(s): return f"ds_read_b128 {vr(OS + (s % 8) * 4, 4)}, v{VP + s % 4} offset:{(s // 4) * 4096}"
    ops = []
    def issue(l, tag): A(l); ops.append(tag)
    for s_ in range(6): issue(ord_(s_), f"o{s_}")
    for s_ in range(20):
        need = [f"o{s_}"] + ([f"w{s_}"] if 6 <= s_ < 12 else [])
        last = max(ops.index(t) for t in need)
        A(f"s_waitcnt lgkmcnt({len(ops) - 1 - last})")
        wreg = WB + (s_ % 8) * 4 if s_ < 12 else W0 + 4 * (s_ - 12)
        A(m16(MO, wreg, OS + (s_ % 8) * 4, vr(MO, 16)))
        if s_ % 4 == 0:
            A(m16(M5, W5 + s_, OS + (s_ % 8) * 4, vr(M5, 16)))
        if s_ + 6 < 20: issue(ord_(s_ + 6), f"o{s_+6}")
        if s_ + 6 < 12: issue(wrd(s_ + 6), f"w{s_+6}")
    A(f"v_add_u32 v2, s42, v{L16}")
    A("v_lshrrev_b32 v7, 4, v0")
    A("v_bfe_u32 v15, v0, 2, 2")
    A("v_mul_u32_u24 v15, 12288, v15")
    A("v_lshl_add_u32 v7, v7, 4, v15")
    A("v_and_b32 v15, 3, v0")
    A(f"v_mul_u32_u24 v15, {QP}, v15")
    A("v_add_u32 v7, v7, v15")
    A(f"v_add_u32 v7, {WL}, v7")
    for q in range(4):
        A(f"ds_write_b128 v2, {vr(M5+4*q,4)} offset:{(4+q)*QP}")
    A("v_lshrrev_b32 v15, 3, v0")
    A("v_and_b32 v44, 1, v0")
    A("v_lshl_add_u32 v15, v44, 5, v15")
    A("v_bfe_u32 v44, v0, 1, 2")
    A(f"v_mul_u32_u24 v44, {QP}, v44")
    A("v_lshl_add_u32 v15, v15, 4, v44")
    A(f"v_add_u32 v15, {WL + 4*QP}, v15")
    A(f"v_add_u32 v44, {4*12288}, v15")
    for q in range(4):
        A(f"ds_write_b128 v2, {vr(MO+4*q,4)} offset:{q*QP}")
    srd(A, 16, 78, XSZ)
    A("s_waitcnt lgkmcnt(0)")
    A("s_barrier")
    R = 68
    for k in range(2):
        for h in range(2):
            A(f"ds_read_b128 {vr(R + (k*2+h)*4, 4)}, v7 offset:{k*4*12288 + h*512}")
    A("s_cmp_ge_u32 s64, 4")
    A("s_cbranch_scc1 k2_no5")
    for w in range(8):
        A(f"ds_read_b128 {vr(R + 16 + 4*w, 4)}, v{15 if w < 4 else 44} offset:{(w%4)*12288}")
    A("k2_no5:")
    T = 120
    for e in range(4):
        A(f"v_lshlrev_b32 v{T+2*e}, 16, v{XO+e}")
        A(f"v_and_b32 v{T+2*e+1}, 0xffff0000, v{XO+e}")
        A(f"v_lshlrev_b32 v{T+8+2*e}, 16, v{BO+e}")
        A(f"v_and_b32 v{T+8+2*e+1}, 0xffff0000, v{BO+e}")
    for e in range(0, 8, 2):
        A(f"v_pk_add_f32 {pr(T+e)}, {pr(T+e)}, {pr(T+8+e)}")
    for e in range(2):
        A(f"v_lshlrev_b32 v{T+16+2*e}, 16, v{X5R+e}")
        A(f"v_and_b32 v{T+16+2*e+1}, 0xffff0000, v{X5R+e}")
        A(f"v_lshlrev_b32 v{T+20+2*e}, 16, v{B5R+e}")
        A(f"v_and_b32 v{T+20+2*e+1}, 0xffff0000, v{B5R+e}")
    for e in range(0, 4, 2):
        A(f"v_pk_add_f32 {pr(T+16+e)}, {pr(T+16+e)}, {pr(T+20+e)}")
    A("s_waitcnt lgkmcnt(0)")
    for e in range(0, 8, 2):
        A(f"v_pk_add_f32 {pr(R+e)}, {pr(R+e)}, {pr(R+8+e)}")
        A(f"v_pk_add_f32 {pr(R+e)}, {pr(R+e)}, {pr(T+e)}")
    for e in range(4):
        A(f"v_cvt_pk_bf16_f32 v{R+8+e}, v{R+2*e}, v{R+2*e+1}")
    A(f"buffer_store_dwordx4 {vr(R+8,4)}, v13, s[16:19], 0 offen")
    A("s_cmp_ge_u32 s64, 4")
    A("s_cbranch_scc1 k2_fin")
    for w in range(8):
        for e in range(0, 4, 2):
            A(f"v_pk_add_f32 {pr(T+16+e)}, {pr(T+16+e)}, {pr(R+16+4*w+e)}")
    for e in range(2):
        A(f"v_cvt_pk_bf16_f32 v{T+e}, v{T+16+2*e}, v{T+16+2*e+1}")
    A(f"buffer_store_dwordx2 {pr(T)}, v14, s[16:19], 0 offen")
    A("k2_fin:")
    stamp_flush(A, 7, 6, 1, 64); tl_end(A, 1)
    A("k2_done:")
    A("s_endpgm")
    A("k2_fallback:")
    A("s_mul_i32 s46, s64, 3072")
    A("s_mov_b32 s38, 1")
    A("s_waitcnt vmcnt(0)")
    for r in (KF[0][1], KF[0][1] + 1, KF[1][1], KF[1][1] + 1): A(f"v_mov_b32 v{r}, 0x3f803f80")
    A(f"v_mov_b32 v2, {f32hex(-3.0e38)}")
    A(f"v_mov_b32 v3, {f32hex(-3.0e38)}")
    A("s_mov_b32 exec_lo, 0")
    A(f"v_mov_b32 v{QA2}, 0")
    A(f"v_mov_b32 v{QB2}, 0")
    A("s_mov_b64 exec, -1")
    for r in (VK1, VK2): A(f"v_subrev_u32 v{r}, s57, v{r}")
    A("s_mov_b32 s22, s51")
    A("s_mov_b32 s47, 0")
    A("s_mov_b32 s39, 0")
    A("k2_maxloop:")
    for l in dma_ops(0): A(l)
    A("s_waitcnt vmcnt(0)")
    A("s_barrier")
    A("s_mov_b32 s40, 0")
    A("k2_maxin:")
    for l in rdK(0, 0): A(l)
    A("s_waitcnt lgkmcnt(0)")
    A(m16(SA, KF[0][0], QA1, "0")); A(m8(SA, KF[0][1], QA2, vr(SA, 16)))
    A(m16(SB, KF[0][0], QB1, "0")); A(m8(SB, KF[0][1], QB2, vr(SB, 16)))
    for r in (VK1, VK2): A(f"v_add_u32 v{r}, 512, v{r}")
    A("s_nop 15")
    rowmax(A, SA, 2, False); rowmax(A, SB, 3, False)
    A("s_add_u32 s40, s40, 1")
    A("s_cmp_lt_u32 s40, 8")
    A("s_cbranch_scc1 k2_maxin")
    for r in (VK1, VK2): A(f"v_subrev_u32 v{r}, 4096, v{r}")
    A("s_barrier")
    A("s_add_u32 s39, s39, 1")
    A("s_cmp_lt_u32 s39, 8")
    A("s_cbranch_scc1 k2_maxloop")
    for r in (VK1, VK2): A(f"v_add_u32 v{r}, s57, v{r}")
    set_nc(A, 2, QA2, 7); set_nc(A, 3, QB2, 7)
    A("s_branch k2_main")
    return kernel_desc(name, 256), f"; @launch kernel=k2_kernel grid=(256,1,1) block=(512,1,1) lds={LDS_BYTES}"
```

```python
from asmlib import *
from layout import *
import os
def gen_touch(A):
    stride = int(os.environ.get("TOUCH", "65536"))
    name = "kt_kernel"
    kernel_begin(A, name)
    A("s_cmp_ge_u32 s2, 64")
    A("s_cbranch_scc1 kt_done")
    bufs = [(0, 2621440), (8, 2457600), (16, 819200), (32, 1966080), (48, 1966080), (64, 2621440), (80, 0x2500000)]
    for i, (off, sz) in enumerate(bufs):
        A(f"s_load_dwordx2 s[{40+2*i}:{41+2*i}], s[0:1], {off}")
    A("s_lshr_b32 s3, s2, 3")
    A("s_lshl_b32 s3, s3, 8")
    A("v_add_u32 v1, s3, v0")
    A(f"s_mov_b32 s4, {stride}")
    A("v_mul_lo_u32 v1, v1, s4")
    A("s_waitcnt lgkmcnt(0)")
    for i, (off, sz) in enumerate(bufs):
        srd(A, 8, 40 + 2 * i, sz)
        n = (sz + stride * 2048 - 1) // (stride * 2048)
        A("s_mov_b32 s5, 0")
        for j in range(n):
            A("buffer_load_dword v2, v1, s[8:11], s5 offen")
            if j < n - 1: A(f"s_add_u32 s5, s5, {stride*2048}")
    A("s_waitcnt vmcnt(0)")
    A("kt_done:")
    A("s_endpgm")
    return kernel_desc(name, 8), "; @launch kernel=kt_kernel grid=(64,1,1) block=(256,1,1) lds=0"
```

```python
import sys, os
from asmlib import *
HEADER = open("parallel_sum__softmax_full_mha__mixer_channel_mlp__prompt.s.ref").read().split("; Override launch")[0]
def build(parts, out):
    A = Asm()
    descs = []; launches = []
    for p in parts:
        d, l = p(A)
        descs.append(d); launches.append(l)
    s = HEADER + "\n".join(launches) + "\n" + '.amdgcn_target "amdgcn-amd-amdhsa--gfx950"\n' + A.text() + "".join(descs)
    open(out, "w").write(s)
if __name__ == "__main__":
    import k1g as k1f, k2, k3
    parts = [k1f.gen_k1, k2.gen_k2, k3.gen_k3]
    if not os.environ.get("NO23"):
        import k23
        parts = [k1f.gen_k1, k23.gen_k2]
    if os.environ.get("OLD01"):
        import k0, k1
        parts = [k0.gen_k0, k1.gen_k1, k2.gen_k2, k3.gen_k3]
    if os.environ.get("TOUCH"):
        import ktouch
        parts = [ktouch.gen_touch] + parts
    out = sys.argv[1] if len(sys.argv) > 1 else "parallel_sum__softmax_full_mha__mixer_channel_mlp__prompt.s"
    build(parts, out)
```

```python
from asmlib import *
from layout import *
import math, os

NST = 10
ACC = 128
XF = 48
WF = 80
DV = 16
XAB, WAB, XAC, WAC = 28, 32, 36, 40
PX, PWQ, PW1, PB1, PWO, PW2, PDBG, PWS = 4, 6, 48, 50, 52, 54, 56, 58
EP = 147456
CSL = EP + 4096
BIASL = CSL + 768
PKS = EP + 6144
LDS_BYTES = PKS + 8192
ST_OFF = XN_OFF
CS_OFF = XN_OFF + 0x10000
PRIV_OFF = 0x8000000
NONL = EP + 6136
TIMEOUT = int(os.environ.get("K1TIMEOUT", "3000"))
SLOW = os.environ.get("K1SLOW", "")
pr = lambda r: f"v[{r}:{r+1}]"

def bf16r(A, v):
    A(f"v_cvt_pk_bf16_f32 v{v}, v{v}, v{v}")
    A(f"v_and_b32 v{v}, 0xffff0000, v{v}")

RX, UX, RW = 16, 56, 136
def h_rows_issue(A):
    A("v_lshrrev_b32 v2, 3, v1")
    A("s_lshl_b32 s32, s70, 3")
    A("v_add_u32 v2, s32, v2")
    A("v_mul_u32_u24 v3, 1280, v2")
    A("v_and_b32 v4, 7, v1")
    A("v_lshl_add_u32 v3, v4, 4, v3")
    for j in range(10):
        A(f"buffer_load_dwordx4 {vr(RX+4*j,4)}, v3, s[8:11], 0 offen offset:{128*j}")
def red8(A, v):
    for mod in ("quad_perm:[1,0,3,2]", "quad_perm:[2,3,0,1]", "row_half_mirror"):
        A("s_nop 1")
        A(f"v_add_f32_dpp v{v}, v{v}, v{v} {mod} row_mask:0xf bank_mask:0xf")
def h_rows_p1a(A):
    for i in range(20):
        A(f"v_lshlrev_b32 v{UX+2*i}, 16, v{RX+i}")
        A(f"v_and_b32 v{UX+2*i+1}, 0xffff0000, v{RX+i}")
    A(f"v_add_f32 v5, v{UX}, v{UX+1}")
    A(f"v_add_f32 v6, v{UX+2}, v{UX+3}")
    for i in range(4, 40, 2):
        A(f"v_add_f32 v5, v5, v{UX+i}")
        A(f"v_add_f32 v6, v6, v{UX+i+1}")
def h_rows_p1b(A):
    for i in range(20, 40):
        A(f"v_lshlrev_b32 v{UX+2*i}, 16, v{RX+i}")
        A(f"v_and_b32 v{UX+2*i+1}, 0xffff0000, v{RX+i}")
    for i in range(40, 80, 2):
        A(f"v_add_f32 v5, v5, v{UX+i}")
        A(f"v_add_f32 v6, v6, v{UX+i+1}")
    A("v_add_f32 v5, v5, v6")
    red8(A, 5)
    A(f"v_mul_f32 v7, {f32hex(1.0/640)}, v5")
def h_rows_p1(A):
    h_rows_p1a(A); h_rows_p1b(A)
def h_rows_p2a(A):
    A("v_mov_b32 v5, 0"); A("v_mov_b32 v6, 0")
    for i in range(0, 52, 2):
        A(f"v_sub_f32 v13, v{UX+i}, v7")
        A(f"v_sub_f32 v14, v{UX+i+1}, v7")
        A("v_fmac_f32 v5, v13, v13")
        A("v_fmac_f32 v6, v14, v14")
def h_rows_p2(A):
    h_rows_p2a(A); h_rows_p2b(A)
def h_rows_p2b(A):
    s, mean, var, m, r, t2, r2 = 5, 7, 8, 9, 10, 11, 12
    for i in range(52, 80, 2):
        A(f"v_sub_f32 v13, v{UX+i}, v7")
        A(f"v_sub_f32 v14, v{UX+i+1}, v7")
        A("v_fmac_f32 v5, v13, v13")
        A("v_fmac_f32 v6, v14, v14")
    A("v_add_f32 v5, v5, v6")
    red8(A, 5)
    A(f"v_mul_f32 v{var}, {f32hex(1.0/640)}, v{s}")
    A(f"v_mov_b32 v{m}, v{mean}"); bf16r(A, m)
    A(f"v_mov_b32 v{s}, v{var}"); bf16r(A, s)
    A(f"v_add_f32 v{s}, {f32hex(1e-5)}, v{s}"); bf16r(A, s)
    A(f"v_sqrt_f32 v{s}, v{s}"); A("s_nop 0"); bf16r(A, s)
    A(f"v_rcp_f32 v{r}, v{s}")
    A(f"v_sub_f32 v{t2}, v{mean}, v{m}")
    A(f"v_mul_f32 v{t2}, v{t2}, v{r}"); bf16r(A, t2)
    A(f"v_mul_f32 v{s}, v{var}, v{r}")
    A(f"v_mul_f32 v{s}, v{s}, v{r}"); bf16r(A, s)
    A(f"v_add_f32 v{s}, {f32hex(1e-5)}, v{s}"); bf16r(A, s)
    A(f"v_sqrt_f32 v{s}, v{s}"); A("s_nop 0"); bf16r(A, s)
    A(f"v_rcp_f32 v{r2}, v{s}")
    O = RX
    A(f"v_mov_b32 v{O}, v{r}")
    A(f"v_mul_f32 v{O+1}, v{m}, v{r}")
    A(f"v_mul_f32 v{O+4}, v{r}, v{r2}")
    A(f"v_add_f32 v{O+5}, v{O+1}, v{t2}")
    A(f"v_mul_f32 v{O+5}, v{O+5}, v{r2}")
def h_rows_store(A):
    O = RX
    for i in (2, 3, 6, 7): A(f"v_mov_b32 v{O+i}, s76")
    A("v_lshlrev_b32 v3, 4, v2")
    A("v_add_u32 v4, 0x8000, v3")
    A("s_mov_b32 exec_lo, 0x01010101"); A("s_mov_b32 exec_hi, 0x01010101")
    A(f"buffer_store_dwordx4 {vr(O,4)}, v3, s[60:63], 0 offen sc1")
    A(f"buffer_store_dwordx4 {vr(O+4,4)}, v4, s[60:63], 0 offen sc1")
    A("s_mov_b64 exec, -1")
def h_strip_issue(A):
    A("s_lshr_b32 s35, s71, 2")
    A("s_cmp_lt_u32 s35, 30")
    A(f"s_cselect_b32 s12, s{PWQ}, s{PW1}")
    A(f"s_cselect_b32 s13, s{PWQ+1}, s{PW1+1}")
    A("s_cselect_b32 s33, 768, 0")
    A("s_cselect_b32 s34, 0, 30")
    A("s_add_u32 s33, s33, 3072")
    A("s_mul_i32 s14, s33, 640")
    A("s_mov_b32 s15, 0x00020000")
    A("s_cmp_lt_u32 s71, 216")
    A("s_cselect_b32 s14, s14, 0")
    A("s_sub_u32 s34, s35, s34")
    A("s_lshl_b32 s34, s34, 7")
    A("v_lshrrev_b32 v13, 3, v1")
    A("v_mul_lo_u32 v13, v13, s33")
    A("v_and_b32 v14, 7, v1")
    A("v_lshl_add_u32 v13, v14, 4, v13")
    A("v_add_u32 v13, s34, v13")
    A("s_and_b32 s34, s71, 3")
    A("s_mul_i32 s34, s34, 160")
    A("s_mul_i32 s34, s34, s33")
    A("s_lshl_b32 s33, s33, 3")
    for i in range(20):
        A(f"buffer_load_dwordx4 {vr(RW+4*i,4)}, v13, s[12:15], s34 offen")
        if i < 19: A("s_add_u32 s34, s34, s33")
def h_strip_p(A, lo, hi):
    C = 216
    for i in range(lo, hi):
        for e in range(4):
            w = RW + 4 * i + e
            if i == 0:
                A(f"v_lshlrev_b32 v{C+2*e}, 16, v{w}")
                A(f"v_and_b32 v{C+2*e+1}, 0xffff0000, v{w}")
            else:
                A(f"v_lshlrev_b32 v13, 16, v{w}")
                A(f"v_and_b32 v14, 0xffff0000, v{w}")
                A(f"v_add_f32 v{C+2*e}, v{C+2*e}, v13")
                A(f"v_add_f32 v{C+2*e+1}, v{C+2*e+1}, v14")
def h_strip_fin(A):
    C = 216; T = 224
    for mod in ("row_ror:8",):
        A("s_nop 1")
        for e in range(8):
            A(f"v_add_f32_dpp v{C+e}, v{C+e}, v{C+e} {mod} row_mask:0xf bank_mask:0xf")
    for op in ("v_permlane16_swap_b32", "v_permlane32_swap_b32"):
        for e in range(8): A(f"v_mov_b32 v{T+e}, v{C+e}")
        A("s_nop 1")
        for e in range(8): A(f"{op} v{C+e}, v{T+e}")
        A("s_nop 1")
        for e in range(8): A(f"v_add_f32 v{C+e}, v{C+e}, v{T+e}")
def h_strip_store(A):
    C = 216; T = 224
    A("v_lshrrev_b32 v13, 3, v1")
    A(f"v_mov_b32 v{T}, v{C}")
    for e in range(1, 8):
        A(f"v_cmp_eq_u32 vcc, {e}, v13")
        A("s_nop 1")
        A(f"v_cndmask_b32 v{T}, v{T}, v{C+e}, vcc")
    A(f"v_mov_b32 v{T+1}, s76")
    A("v_and_b32 v14, 7, v1")
    A("v_lshl_add_u32 v13, v14, 3, v13")
    A("s_lshr_b32 s33, s71, 2")
    A("s_lshl_b32 s33, s33, 9")
    A("s_and_b32 s34, s71, 3")
    A("s_lshl_b32 s34, s34, 15")
    A("s_add_u32 s33, s33, s34")
    A(f"s_add_u32 s33, s33, {CS_OFF - ST_OFF}")
    A("v_lshl_add_u32 v13, v13, 3, s33")
    A("s_cmp_lt_u32 s71, 216")
    A("s_cselect_b32 s33, 0, 0x40000000")
    A(f"buffer_store_dwordx2 {pr(T)}, v13, s[60:63], s33 offen sc1")

def h_pack_issue(A, f, base):
    lab = A.label("pk")
    d = 84 + (f % 8)
    A("s_mul_i32 s41, s2, 11")
    A(f"s_add_u32 s41, s41, {f}")
    A("s_cmp_ge_u32 s41, 1920")
    A(f"s_cbranch_scc1 {lab}_wo")
    A("s_mul_i32 s33, s41, 3277")
    A("s_lshr_b32 s33, s33, 16")
    A("s_mul_i32 s32, s33, 20")
    A("s_sub_u32 s32, s41, s32")
    A("s_mul_i32 s41, s32, 96")
    A("s_add_u32 s41, s41, s33")
    A("s_lshl_b32 s34, s33, 4")
    A("s_mov_b32 s35, 4")
    A(f"s_mov_b32 s36, {8*1280}")
    A(f"s_lshl_b32 s{d}, s41, 10")
    A(f"s_mov_b32 s16, s{PW2}"); A(f"s_mov_b32 s17, s{PW2+1}"); A(f"s_mov_b32 s18, {1536*1280}")
    A(f"s_branch {lab}_go")
    A(f"{lab}_wo:")
    A("s_sub_u32 s37, s41, 1920")
    A("s_mul_i32 s33, s37, 3277")
    A("s_lshr_b32 s33, s33, 16")
    A("s_mul_i32 s32, s33, 20")
    A("s_sub_u32 s32, s37, s32")
    A("s_mul_i32 s37, s32, 40")
    A("s_add_u32 s37, s37, s33")
    A(f"s_lshl_b32 s{d}, s37, 10")
    A(f"s_add_u32 s{d}, s{d}, {WOF_OFF - W2F_OFF}")
    A("s_mul_i32 s34, s33, 20")
    A("s_mov_b32 s35, 4")
    A(f"s_mov_b32 s36, {8*1280}")
    A(f"s_mov_b32 s16, s{PWO}"); A(f"s_mov_b32 s17, s{PWO+1}"); A(f"s_mov_b32 s18, {640*1280}")
    A("s_cmp_lt_u32 s41, 2720")
    A("s_cselect_b32 s18, s18, 0")
    A(f"s_cselect_b32 s{d}, s{d}, 0x40000000")
    A("s_cmp_lt_u32 s33, 32")
    A(f"s_cbranch_scc1 {lab}_go")
    A("s_sub_u32 s33, s33, 32")
    A("s_mul_i32 s34, s33, 80")
    A("s_add_u32 s34, s34, 16")
    A("s_mov_b32 s35, 40")
    A(f"s_mov_b32 s36, {20*1280}")
    A(f"{lab}_go:")
    A("s_mov_b32 s19, 0x00020000")
    A("v_mul_u32_u24 v12, s35, v246")
    A("v_add_u32 v12, s34, v12")
    A("v_add_u32 v12, v12, v245")
    A("v_mul_u32_u24 v12, 1280, v12")
    A("v_mul_lo_u32 v248, v249, s36")
    A("v_add_u32 v12, v12, v248")
    A("s_lshl_b32 s32, s32, 6")
    A("v_add_u32 v12, s32, v12")
    A("v_add_u32 v12, v12, v250")
    A(f"s_add_u32 m0, s77, {base*1024}")
    A("s_nop 0")
    A("buffer_load_dwordx4 v12, s[16:19], 0 offen lds")
def h_pack_read(A, base, reg):
    A(f"ds_read_b64_tr_b16 {pr(reg)}, v251 offset:{base*1024}")
    A(f"ds_read_b64_tr_b16 {pr(reg+2)}, v251 offset:{base*1024+256}")
def h_pack_store(A, f, reg):
    A(f"buffer_store_dwordx4 {vr(reg,4)}, v247, s[64:67], s{84 + (f % 8)} offen")

def helper(A):
    A("k1_helper:")
    A("s_waitcnt lgkmcnt(0)")
    srd(A, 8, PX, XSZ)
    srd(A, 60, PWS, 0x30000, ST_OFF)
    srd(A, 20, PDBG, 256)
    srd(A, 64, PWS, 0x500000, W2F_OFF)
    A("s_mov_b32 s70, s2")
    A("s_mov_b32 s71, s2")
    A("v_mov_b32 v240, 0")
    A(f"v_mov_b32 v241, {NONL}")
    A("v_bfe_u32 v245, v1, 2, 2")
    A("v_lshrrev_b32 v246, 5, v1")
    A("v_lshlrev_b32 v247, 4, v1")
    A("v_bfe_u32 v249, v1, 4, 1")
    A("v_and_b32 v250, 3, v1")
    A("v_lshlrev_b32 v250, 4, v250")
    A("s_sub_u32 s77, s25, 4")
    A("s_lshl_b32 s77, s77, 12")
    A(f"s_add_u32 s77, s77, {PKS}")
    A("v_lshl_add_u32 v251, v246, 3, v245")
    A("v_lshlrev_b32 v251, 6, v251")
    A("v_lshl_add_u32 v251, v249, 5, v251")
    A("v_and_b32 v252, 3, v1")
    A("v_lshl_add_u32 v251, v252, 3, v251")
    A("v_add_u32 v251, s77, v251")
    A("s_cmp_eq_u32 s25, 5")
    A("s_cbranch_scc1 k1_hB")
    h_rows_issue(A)
    A("s_cmp_lg_u32 s2, 0")
    A("s_cbranch_scc1 k1_hA1")
    A("s_memrealtime s[32:33]")
    A("s_waitcnt lgkmcnt(0)")
    A("s_or_b32 s32, s32, 1")
    A("v_mov_b32 v13, s32")
    A("s_mov_b64 exec, 1")
    A("buffer_store_dword v13, v240, s[20:23], 0 offen sc1")
    A("s_mov_b64 exec, -1")
    A("k1_hA1:")
    srd(A, 16, PB1, 1536 * 2)
    A("s_cmp_eq_u32 s28, 2")
    A("s_cselect_b32 s18, s18, 0")
    A("v_add_u32 v15, s31, v1")
    A("v_lshlrev_b32 v15, 1, v15")
    for i in range(3):
        A(f"buffer_load_ushort v{232+i}, v15, s[16:19], 0 offen offset:{128*i}")
    A("s_barrier")
    A("s_waitcnt vmcnt(3)")
    h_rows_p1a(A)
    A("s_barrier")
    A("buffer_load_dword v242, v240, s[20:23], 0 offen")
    h_rows_p1b(A)
    A("s_barrier")
    h_rows_p2a(A)
    A("s_barrier")
    h_rows_p2b(A)
    A("s_mov_b32 s34, 0")
    A("k1_hn:")
    A("s_waitcnt vmcnt(0)")
    A("v_readfirstlane_b32 s76, v242")
    A("s_nop 3")
    A("s_cmp_lg_u32 s76, 0")
    A("s_cbranch_scc1 k1_hn_ok")
    A("buffer_load_dword v242, v240, s[20:23], 0 offen sc1")
    A("s_add_u32 s34, s34, 1")
    A("s_sleep 1")
    A("s_cmp_lt_u32 s34, 400")
    A("s_cbranch_scc1 k1_hn")
    A("k1_hn_ok:")
    A("v_mov_b32 v242, s76")
    A("ds_write_b32 v241, v242")
    h_rows_store(A)
    A("s_waitcnt lgkmcnt(0)")
    A("s_barrier")
    for f in range(4): h_pack_issue(A, f, f)
    A("s_barrier")
    A("s_barrier")
    A("s_waitcnt vmcnt(0)")
    for f in range(4): h_pack_read(A, f, 64 + 4 * f)
    A("s_waitcnt lgkmcnt(0)")
    for f in range(4): h_pack_store(A, f, 64 + 4 * f)
    A("s_barrier")
    A("s_cmp_eq_u32 s28, 3")
    A("s_cbranch_scc1 k1_done")
    A("v_add_u32 v243, s30, v1")
    A("v_lshlrev_b32 v243, 4, v243")
    A("s_cmp_eq_u32 s28, 2")
    A("s_cselect_b32 s32, 0x8000, 0")
    A("v_add_u32 v243, s32, v243")
    A("v_add_u32 v244, s29, v1")
    A("v_lshlrev_b32 v244, 3, v244")
    A(f"v_add_u32 v244, {CS_OFF - ST_OFF}, v244")
    A("s_mov_b32 s68, 0"); A("s_mov_b32 s69, 0x8000"); A("s_mov_b32 s74, 0x10000"); A("s_mov_b32 s75, 0x18000")
    def gl():
        for i in range(4):
            A(f"buffer_load_dwordx4 {vr(16+4*i,4)}, v243, s[60:63], 0 offen offset:{1024*i} sc1")
        for q in range(4):
            for i in range(3):
                A(f"buffer_load_dwordx2 {pr(32+6*q+2*i)}, v244, s[60:63], s{68+q if q < 2 else 72+q} offen offset:{512*i} sc1")
    gl()
    A("s_barrier")
    A("s_barrier")
    A("s_mov_b32 s34, 0")
    A("s_mov_b32 s38, 1")
    A("k1_hpoll:")
    A("s_waitcnt vmcnt(0)")
    A("v_xor_b32 v60, s76, v18")
    A("v_xor_b32 v61, s76, v22")
    A("v_or_b32 v60, v60, v61")
    for q in range(4):
        for i in range(2):
            A(f"v_xor_b32 v61, s76, v{33+6*q+2*i}")
            A("v_or_b32 v60, v60, v61")
    A("v_xor_b32 v62, s76, v26")
    A("v_xor_b32 v61, s76, v30")
    A("v_or_b32 v62, v62, v61")
    A("v_xor_b32 v63, s76, v37")
    for q in range(1, 4):
        A(f"v_xor_b32 v61, s76, v{37+6*q}")
        A("v_or_b32 v63, v63, v61")
    A("v_cmp_ne_u32 s[40:41], 0, v60")
    A("v_cmp_ne_u32 s[42:43], 0, v62")
    A("v_cmp_ne_u32 s[46:47], 0, v63")
    A("s_nop 3")
    A("s_cmp_eq_u32 s28, 2")
    A("s_cselect_b64 s[42:43], s[46:47], s[42:43]")
    A("s_or_b64 s[40:41], s[40:41], s[42:43]")
    A("s_cselect_b32 s32, 1, 0")
    A("s_cmp_eq_u32 s76, 0")
    A("s_cselect_b32 s32, 1, s32")
    A(f"s_cmp_eq_u32 s32, {0 if SLOW != '2' else 5}")
    A("s_cbranch_scc1 k1_hok")
    A("s_cmp_eq_u32 s38, 0")
    A("s_cbranch_scc0 k1_hp2")
    A("s_mov_b32 s38, 1")
    A("s_barrier")
    A("k1_hp2:")
    A("s_sleep 2")
    gl()
    A("s_add_u32 s34, s34, 1")
    A("s_cmp_eq_u32 s76, 0")
    A("s_cbranch_scc1 k1_hself")
    A(f"s_cmp_lt_u32 s34, {TIMEOUT}")
    A("s_cbranch_scc1 k1_hpoll")
    A("k1_hself:")
    A("s_lshl_b32 s32, s2, 18")
    A(f"s_add_u32 s32, s32, {PRIV_OFF}")
    A(f"s_add_u32 s60, s{PWS}, s32")
    A(f"s_addc_u32 s61, s{PWS+1}, 0")
    A("s_lshr_b32 s70, s30, 3")
    A("s_lshr_b32 s39, s27, 3")
    A("s_add_u32 s39, s39, s70")
    A("k1_hs1:")
    h_rows_issue(A)
    A("s_waitcnt vmcnt(0)")
    h_rows_p1(A); h_rows_p2(A); h_rows_store(A)
    A("s_add_u32 s70, s70, 1")
    A("s_cmp_lt_u32 s70, s39")
    A("s_cbranch_scc1 k1_hs1")
    A("s_lshr_b32 s71, s29, 4")
    A("s_lshr_b32 s39, s26, 4")
    A("s_add_u32 s39, s39, s71")
    A("k1_hs2:")
    h_strip_issue(A)
    A("s_waitcnt vmcnt(0)")
    h_strip_p(A, 0, 20); h_strip_fin(A); h_strip_store(A)
    A("s_add_u32 s71, s71, 1")
    A("s_cmp_lt_u32 s71, s39")
    A("s_cbranch_scc1 k1_hs2")
    A("s_waitcnt vmcnt(0)")
    gl()
    A("s_waitcnt vmcnt(0)")
    A("k1_hok:")
    A("v_lshlrev_b32 v12, 3, v1")
    A(f"v_add_u32 v12, {EP}, v12")
    A("v_lshlrev_b32 v13, 2, v1")
    A(f"v_add_u32 v13, {EP}, v13")
    for i in range(4):
        A(f"v_mul_f32 v{16+4*i}, s45, v{16+4*i}")
        A(f"v_mul_f32 v{17+4*i}, s45, v{17+4*i}")
        A(f"ds_write_b64 v12, {pr(16+4*i)} offset:{512*i}")
        A(f"ds_write_b32 v13, v{16+4*i} offset:{2048+256*i}")
        A(f"ds_write_b32 v13, v{17+4*i} offset:{3072+256*i}")
    for i in range(3):
        A(f"v_lshlrev_b32 v{232+i}, 16, v{232+i}")
        for q in range(1, 4):
            A(f"v_add_f32 v{32+2*i}, v{32+2*i}, v{32+6*q+2*i}")
        A(f"ds_write_b32 v13, v{32+2*i} offset:{CSL-EP+256*i}")
        A(f"ds_write_b32 v13, v{232+i} offset:{BIASL-EP+256*i}")
    A("s_waitcnt lgkmcnt(0)")
    A("s_cmp_eq_u32 s38, 0")
    A("s_cbranch_scc0 k1_hw")
    A("s_barrier")
    A("k1_hw:")
    A("s_barrier")
    A("s_endpgm")
    A("k1_hB:")
    PB = lambda i: 16 + 8 * i
    if os.environ.get("LATEB"):
        A("s_barrier")
        h_strip_issue(A)
        A("s_barrier")
        A("s_barrier")
        A("s_waitcnt vmcnt(5)")
        h_strip_p(A, 0, 10)
    else:
        h_strip_issue(A)
        A("s_barrier")
        A("s_waitcnt vmcnt(15)")
        h_strip_p(A, 0, 5)
        A("s_barrier")
        A("s_waitcnt vmcnt(10)")
        h_strip_p(A, 5, 10)
        A("s_barrier")
    A("s_waitcnt vmcnt(0)")
    h_strip_p(A, 10, 15)
    A("s_barrier")
    h_strip_p(A, 15, 20)
    h_strip_fin(A)
    A("s_barrier")
    A("ds_read_b32 v242, v241")
    A("s_waitcnt lgkmcnt(0)")
    A("v_readfirstlane_b32 s76, v242")
    A("s_nop 1")
    h_strip_store(A)
    for i in range(4): h_pack_issue(A, 4 + i, i)
    A("s_barrier")
    A("s_barrier")
    A("s_waitcnt vmcnt(0)")
    for i in range(4): h_pack_read(A, i, 16 + 4 * i)
    A("s_waitcnt lgkmcnt(0)")
    for i in range(4): h_pack_store(A, 4 + i, 16 + 4 * i)
    for i in range(3): h_pack_issue(A, 8 + i, i)
    A("s_barrier")
    srd(A, 16, PWS, 32 * 64 * VREC, V_OFF)
    A("s_cmp_lt_u32 s2, 128")
    A("s_cselect_b32 s18, s18, 0")
    A("s_lshl_b32 s32, s2, 6")
    A("v_add_u32 v12, s32, v1")
    A("v_lshrrev_b32 v13, 2, v12")
    A("v_and_b32 v12, 3, v12")
    A(f"v_mul_u32_u24 v13, {VREC}, v13")
    A(f"v_mul_u32_u24 v12, {VSB}, v12")
    A("v_add_u32 v12, v12, v13")
    for i in range(4): A(f"v_mov_b32 v{124+i}, 0x3f803f80")
    A("buffer_store_dwordx4 v[124:127], v12, s[16:19], 0 offen offset:320")
    srd(A, 16, PWS, 8 * 4096, SYNC_OFF)
    A("s_lshl_b32 s32, s2, 12")
    A("v_lshlrev_b32 v12, 2, v1")
    A("buffer_store_dword v240, v12, s[16:19], s32 offen")
    A("s_cmp_eq_u32 s28, 3")
    A("s_cbranch_scc1 k1_hB2")
    A("s_barrier")
    A("k1_hB2:")
    A("s_waitcnt vmcnt(2)")
    for i in range(3): h_pack_read(A, i, 32 + 4 * i)
    A("s_waitcnt lgkmcnt(0)")
    for i in range(3): h_pack_store(A, 8 + i, 32 + 4 * i)
    A("s_endpgm")

def loader(A, tag, TM, TN, ldw, isH):
    BM, BN = 2 * TM * 32, 2 * TN * 32
    AB = BM * 128; pitch = BN * 2; BB = 64 * pitch; SS = AB + BB
    nA = BM // 16; nB = BB // 2048; ND = nA + nB
    CPR = BN // 8
    A(f"{tag}:")
    for q in range(8, nA):
        A(f"v_add_u32 v{DV+q}, {q*8*1280 - (q&3)*1024}, v{5 + (q&1)}")
    A(f"s_mul_i32 s27, s25, {nB*1024}")
    A(f"s_add_u32 s27, s27, {AB}")
    def dmaA(q0=0):
        for q in range(q0, nA):
            if q % 4 == 0:
                A("s_add_u32 m0, s23, s26" if q == 0 else "s_add_u32 m0, m0, 4096")
                A("s_nop 0")
            A(f"buffer_load_dwordx4 v{DV+q}, s[8:11], s21 offen offset:{(q&3)*1024} lds")
    def dmaB():
        for q in range(nB):
            if q % 4 == 0:
                A("s_add_u32 m0, s23, s27" if q == 0 else "s_add_u32 m0, m0, 4096")
                A("s_nop 0")
            A(f"buffer_load_dwordx4 v{DV+nA+q}, s[12:15], s22 offen offset:{(q&3)*1024} lds")
    def adv():
        A("s_add_u32 s21, s21, 128")
        A(f"s_add_u32 s22, s22, {64*ldw}")
        A(f"s_add_u32 s23, s23, {SS}")
        A(f"s_cmp_eq_u32 s23, {3*SS}")
        A("s_cselect_b32 s23, 0, s23")
    dmaA(8)
    A(f"s_mul_i32 s41, s25, {nB*64}")
    A(f"s_lshl_b32 s42, s31, 1")
    for q in range(nB):
        A(f"v_add_u32 v7, s41, v1")
        if q: A(f"v_add_u32 v7, {q*64}, v7")
        if CPR == 16:
            A("v_lshrrev_b32 v8, 4, v7")
            A("v_and_b32 v9, 15, v7")
            A("v_and_b32 v10, 3, v8")
        else:
            A("v_mul_u32_u24 v8, 2731, v7")
            A("v_lshrrev_b32 v8, 16, v8")
            A("v_mul_u32_u24 v9, 24, v8")
            A("v_sub_u32 v9, v7, v9")
            A("v_bfe_u32 v10, v8, 1, 1")
        A("v_lshlrev_b32 v10, 2, v10")
        A("v_xor_b32 v9, v9, v10")
        A(f"v_mul_u32_u24 v8, {ldw}, v8")
        A("v_lshl_add_u32 v8, v9, 4, v8")
        A(f"v_add_u32 v8, s42, v8")
        if q & 3:
            A(f"v_subrev_u32 v{DV+nA+q}, {(q&3)*1024}, v8")
        else:
            A(f"v_mov_b32 v{DV+nA+q}, v8")
    srd(A, 12, PW1 if isH else PWQ, 640 * ldw)
    dmaB(); adv()
    if not os.environ.get("LDOLD"):
        dmaB()
        A(f"s_waitcnt vmcnt({nB})")
        A("s_barrier")
        dmaA(); adv()
        A("s_mov_b32 s20, 1")
    A(f"{tag}_loop:")
    dmaA(); dmaB(); adv()
    A(f"s_waitcnt vmcnt({ND})")
    A("s_barrier")
    A("s_add_u32 s20, s20, 1")
    A(f"s_cmp_lt_u32 s20, {NST-1}")
    A(f"s_cbranch_scc1 {tag}_loop")
    A("s_waitcnt vmcnt(0)")
    A("s_barrier")
    A("s_endpgm")

def gemm_core(A, tag, TM, TN, transposed, ldw, isH):
    BM, BN = 2 * TM * 32, 2 * TN * 32
    AB = BM * 128; pitch = BN * 2; BB = 64 * pitch; SS = AB + BB
    CPR = BN // 8
    A("s_and_b32 s43, s25, 1")
    A("s_lshr_b32 s44, s25, 1")
    A("v_and_b32 v2, 31, v1")
    A("v_lshrrev_b32 v3, 5, v1")
    A("v_bfe_u32 v4, v2, 1, 3")
    A(f"s_mul_i32 s45, s43, {TM*32*128}")
    A("v_lshlrev_b32 v5, 7, v2")
    A("v_add_u32 v5, s45, v5")
    for kk in range(4):
        A(f"v_add_u32 v6, {2*kk}, v3")
        A("v_xor_b32 v6, v6, v4")
        A(f"v_lshl_add_u32 v{XAB+kk}, v6, 4, v5")
    A("v_bfe_u32 v6, v1, 2, 2")
    A("v_lshl_add_u32 v7, v3, 3, v6")
    A(f"v_mul_u32_u24 v7, {pitch}, v7")
    A("v_bfe_u32 v8, v1, 4, 1")
    A("v_lshl_add_u32 v7, v8, 5, v7")
    A("v_and_b32 v8, 3, v1")
    A("v_lshl_add_u32 v7, v8, 3, v7")
    A(f"v_add_u32 v7, {AB}, v7")
    if CPR != 16:
        A("v_lshrrev_b32 v6, 1, v6")
    A(f"s_mul_i32 s46, s44, {TN}")
    for u in range(TN):
        A(f"s_add_u32 s47, s46, {u}")
        A("v_xor_b32 v8, s47, v6")
        A(f"v_lshl_add_u32 v{WAB+u}, v8, 6, v7")
    for i in range(TM * TN * 16):
        A(f"v_mov_b32 v{ACC+i}, 0")
    def reads(kk, buf):
        L = []
        for t in range(TM):
            L.append(f"ds_read_b128 {vr(XF + (buf*4+t)*4, 4)}, v{XAC+kk} offset:{t*4096}")
        for u in range(TN):
            for i in range(2):
                L.append(f"ds_read_b64_tr_b16 {vr(WF + (buf*3+u)*4 + 2*i, 2)}, v{WAC+u} offset:{(16*kk+4*i)*pitch}")
        return L
    def mfmas(buf):
        L = []
        for t in range(TM):
            for u in range(TN):
                a = ACC + (t * TN + u) * 16
                x = vr(XF + (buf*4+t)*4, 4); w = vr(WF + (buf*3+u)*4, 4)
                o = (w, x) if transposed else (x, w)
                L.append(f"v_mfma_f32_32x32x16_bf16 {vr(a,16)}, {o[0]}, {o[1]}, {vr(a,16)}")
        return L
    def setcur():
        L = []
        for kk in range(4): L.append(f"v_add_u32 v{XAC+kk}, s24, v{XAB+kk}")
        for u in range(TN): L.append(f"v_add_u32 v{WAC+u}, s24, v{WAB+u}")
        return L
    A("s_mov_b32 s24, 0"); A("s_mov_b32 s20, 0")
    for l in setcur(): A(l)
    A("s_setprio 2")
    stamp(A, 1)
    A("s_waitcnt lgkmcnt(0)")
    A("s_barrier")
    stamp(A, 2)
    for l in reads(0, 0): A(l)
    A(f"{tag}_loop:")
    NM = TM * TN
    for kk in range(4):
        buf = kk & 1
        ms = mfmas(buf)
        slots = [[] for _ in ms]
        if kk < 3:
            A("s_waitcnt lgkmcnt(0)")
            rd = reads(kk + 1, buf ^ 1)
        else:
            if os.environ.get("ITST"):
                A("s_memtime s[90:91]")
            A("s_waitcnt lgkmcnt(0)")
            if os.environ.get("ITST"):
                A("s_memtime s[92:93]")
            A("s_barrier")
            if os.environ.get("ITST"):
                A("s_memtime s[94:95]")
                A("s_waitcnt lgkmcnt(0)")
                A("s_mul_i32 m0, s20, 3")
                A("s_nop 1")
                A("v_writelane_b32 v47, s90, m0")
                A("s_add_u32 m0, m0, 1")
                A("s_nop 1")
                A("v_writelane_b32 v47, s92, m0")
                A("s_add_u32 m0, m0, 1")
                A("s_nop 1")
                A("v_writelane_b32 v47, s94, m0")
            rd = reads(0, buf ^ 1)
        for i, l in enumerate(rd):
            slots[i // 2].append(l)
        if kk == 1:
            slots[NM - 1] += [f"s_add_u32 s24, s24, {SS}", f"s_cmp_eq_u32 s24, {3*SS}", "s_cselect_b32 s24, 0, s24"]
        if kk == 2:
            sc = setcur()
            slots[NM - 2] += sc[:4]; slots[NM - 1] += sc[4:]
        if kk == 3:
            slots[NM - 1] += ["s_add_u32 s20, s20, 1", f"s_cmp_lt_u32 s20, {NST}"]
        for m, sl in zip(ms, slots):
            A(m)
            for l in sl: A(l)
    A(f"s_cbranch_scc1 {tag}_loop")
    A("s_waitcnt lgkmcnt(0)")
    stamp(A, 3)
    return SS

def fin(A):
    if os.environ.get("ITST"):
        srd(A, 72, PWS, 1 << 20, 0x4800000)
        A("s_lshl_b32 s76, s2, 2")
        A("s_add_u32 s76, s76, s25")
        A("s_lshl_b32 s76, s76, 8")
        A("v_and_b32 v1, 63, v0")
        A("v_lshlrev_b32 v1, 2, v1")
        A("v_mov_b32 v2, s80")
        A("v_sub_u32 v47, v47, v2")
        A("buffer_store_dword v47, v1, s[72:75], s76 offen")
    stamp(A, 4); stamp_flush(A, 5, PWS, 0, 25); tl_end(A, 0)
    A("s_endpgm")

def gen_k1(A):
    name = "k1_kernel"
    kernel_begin(A, name)
    A("s_cmp_ge_u32 s2, 256")
    A("s_cbranch_scc1 k1_done")
    stamp(A, 0); tl_start(A, 0)
    A("s_load_dwordx4 s[4:7], s[0:1], 0")
    A("s_load_dwordx4 s[48:51], s[0:1], 32")
    A("s_load_dwordx2 s[52:53], s[0:1], 16")
    A("s_load_dwordx2 s[54:55], s[0:1], 48")
    A("s_load_dwordx4 s[56:59], s[0:1], 72")
    A("v_lshrrev_b32 v1, 6, v0")
    A("s_and_b32 s32, s2, 7")
    A("v_readfirstlane_b32 s25, v1")
    A("v_and_b32 v1, 63, v0")
    A("s_lshr_b32 s33, s2, 3")
    A("s_lshr_b32 s34, s32, 2")
    A("s_and_b32 s35, s32, 3")
    A("s_mov_b32 s45, 1.0")
    A("s_cmp_ge_u32 s33, 15")
    A("s_cbranch_scc1 k1_dh")
    A("s_mul_i32 s36, s35, 15")
    A("s_add_u32 s36, s36, s33")
    A("s_lshr_b32 s75, s36, 2")
    A("s_and_b32 s38, s36, 3")
    A("s_lshl_b32 s39, s34, 2")
    A("s_add_u32 s38, s38, s39")
    A("s_lshl_b32 s30, s38, 8")
    A("s_lshl_b32 s31, s75, 7")
    A("s_mov_b32 s29, s31")
    A("s_movk_i32 s27, 256"); A("s_movk_i32 s26, 128")
    A("s_cmp_lt_u32 s75, 5")
    A(f"s_cselect_b32 s45, {f32hex(DH**-0.5 * math.log2(math.e))}, s45")
    A("s_cmp_ge_u32 s75, 10")
    A("s_cselect_b32 s28, 1, 0")
    A("s_branch k1_dd")
    A("k1_dh:")
    A("s_sub_u32 s36, s33, 15")
    A("s_lshr_b32 s37, s36, 3")
    A("s_lshl_b32 s38, s35, 1")
    A("s_add_u32 s37, s37, s38")
    A("s_and_b32 s38, s36, 7")
    A("s_lshl_b32 s39, s34, 3")
    A("s_add_u32 s38, s38, s39")
    A("s_lshl_b32 s30, s38, 7")
    A("s_mul_i32 s31, s37, 192")
    A("s_add_u32 s29, s31, 1920")
    A("s_movk_i32 s27, 128"); A("s_movk_i32 s26, 192")
    A("s_cmp_ge_u32 s33, 31")
    A("s_cselect_b32 s28, 3, 2")
    A("k1_dd:")
    A("s_cmp_lt_u32 s25, 6")
    A("s_cbranch_scc1 k1_other")
    A("s_cmp_eq_u32 s28, 3")
    A("s_cbranch_scc1 k1_done")
    A("s_sub_u32 s25, s25, 6")
    A("v_lshrrev_b32 v2, 3, v1")
    A("v_and_b32 v3, 7, v1")
    A("v_lshrrev_b32 v4, 4, v1")
    A("s_lshr_b32 s40, s27, 1")
    A("s_mul_i32 s40, s40, s25")
    A("s_lshl_b32 s26, s40, 7")
    A("s_add_u32 s40, s40, s30")
    A("v_add_u32 v2, s40, v2")
    A("v_mul_u32_u24 v2, 1280, v2")
    A("v_xor_b32 v5, v3, v4")
    A("v_xor_b32 v6, 4, v5")
    A("v_lshl_add_u32 v5, v5, 4, v2")
    A("v_lshl_add_u32 v6, v6, 4, v2")
    for q in range(8):
        A(f"v_add_u32 v{DV+q}, {q*8*1280 - (q&3)*1024}, v{5 + (q&1)}")
    A("s_mov_b32 s21, 0"); A("s_mov_b32 s22, 0"); A("s_mov_b32 s23, 0")
    A("s_mov_b32 s20, 0")
    A("s_mov_b32 m0, s26")
    A("s_waitcnt lgkmcnt(0)")
    srd(A, 8, PX, XSZ)
    for q in range(8):
        if q == 4:
            A("s_add_u32 m0, m0, 4096"); A("s_nop 0")
        A(f"buffer_load_dwordx4 v{DV+q}, s[8:11], s21 offen offset:{(q&3)*1024} lds")
    A("s_cmp_eq_u32 s28, 2")
    A("s_cbranch_scc1 k1_ldh")
    loader(A, "k1_ldq", 4, 2, 3840, False)
    loader(A, "k1_ldh", 2, 3, 3072, True)
    A("k1_other:")
    A("s_cmp_ge_u32 s25, 4")
    A("s_cbranch_scc1 k1_helper")
    A("s_cmp_eq_u32 s28, 1")
    A("s_cbranch_scc1 k1_v")
    A("s_cmp_eq_u32 s28, 2")
    A("s_cbranch_scc1 k1_h")
    A("s_cmp_eq_u32 s28, 3")
    A("s_cbranch_scc1 k1_done")
    SS1 = gemm_core(A, "k1qk", 4, 2, True, 3840, False)
    A("v_and_b32 v2, 31, v1")
    A("v_lshrrev_b32 v3, 5, v1")
    A("s_lshl_b32 s32, s43, 10")
    A(f"s_add_u32 s32, s32, {EP}")
    A("v_lshl_add_u32 v12, v2, 3, s32")
    for t in range(4):
        A(f"ds_read_b64 {pr(4+2*t)}, v12 offset:{t*256}")
    A("s_lshl_b32 s32, s44, 8")
    A(f"s_add_u32 s32, s32, {CSL}")
    A("v_lshl_add_u32 v12, v3, 4, s32")
    for u in range(2):
        for j in range(4):
            A(f"ds_read_b128 {vr(48+16*u+4*j,4)}, v12 offset:{128*u+32*j}")
    A("s_cmp_ge_u32 s75, 5")
    A(f"s_cselect_b32 s36, {K_OFF - Q_OFF - 80*32768}, 0")
    srd(A, 16, PWS, K_OFF - Q_OFF + 80 * 32768, Q_OFF)
    A("s_lshl_b32 s38, s75, 4")
    A("s_lshl_b32 s32, s44, 3")
    A("s_add_u32 s38, s38, s32")
    A("s_lshl_b32 s38, s38, 15")
    A("s_add_u32 s38, s38, s36")
    A("s_lshl_b32 s32, s43, 7")
    A("s_add_u32 s32, s32, s30")
    A("s_lshl_b32 s32, s32, 4")
    A("s_add_u32 s38, s38, s32")
    for i in range(1, 4):
        A(f"s_add_u32 s{38+i}, s{37+i}, 65536")
    A("v_lshlrev_b32 v3, 15, v3")
    A("v_lshl_add_u32 v16, v2, 4, v3")
    A("s_waitcnt lgkmcnt(0)")
    for t in range(4):
        for u in range(2):
            a = ACC + (t * 2 + u) * 16
            T = 80
            for i in range(0, 16, 2):
                A(f"v_pk_mul_f32 {pr(T+i)}, {pr(48+16*u+i)}, {pr(4+2*t)} op_sel:[0,1] op_sel_hi:[1,1]")
            for i in range(0, 16, 2):
                A(f"v_pk_fma_f32 {pr(a+i)}, {pr(a+i)}, {pr(4+2*t)}, {pr(T+i)} op_sel_hi:[1,0,1] neg_lo:[0,0,1] neg_hi:[0,0,1]")
            p = 18 + ((t * 2 + u) % 3) * 8
            for i in range(8):
                A(f"v_cvt_pk_bf16_f32 v{p+i}, v{a+2*i}, v{a+2*i+1}")
            A("s_nop 0")
            for j in range(2):
                A(f"v_permlane32_swap_b32 v{p+4*j}, v{p+4*j+2}")
                A(f"v_permlane32_swap_b32 v{p+4*j+1}, v{p+4*j+3}")
            for j in range(2):
                A(f"buffer_store_dwordx4 v[{p+4*j}:{p+4*j+3}], v16, s[16:19], s{38+u*2+j} offen offset:{t*512}")
    fin(A)
    A("k1_v:")
    gemm_core(A, "k1v", 4, 2, False, 3840, False)
    A("v_and_b32 v2, 31, v1")
    A("v_lshrrev_b32 v3, 5, v1")
    A("s_lshl_b32 s32, s43, 9")
    A(f"s_add_u32 s32, s32, {EP+2048}")
    A("v_lshl_add_u32 v12, v3, 4, s32")
    A("s_lshl_b32 s32, s44, 8")
    A(f"s_add_u32 s32, s32, {CSL}")
    A("v_lshl_add_u32 v13, v2, 2, s32")
    for u in range(2):
        A(f"ds_read_b32 v{4+2*u}, v13 offset:{128*u}")
    def vrd(t):
        b = 48 + (t & 1) * 32
        for j in range(4):
            A(f"ds_read_b128 {vr(b+4*j,4)}, v12 offset:{t*128+32*j}")
            A(f"ds_read_b128 {vr(b+16+4*j,4)}, v12 offset:{1024+t*128+32*j}")
    vrd(0)
    srd(A, 16, PWS, 32 * 64 * VREC, V_OFF)
    A("s_lshr_b32 s38, s30, 5")
    A("s_lshl_b32 s32, s43, 2")
    A("s_add_u32 s38, s38, s32")
    A(f"s_mul_i32 s38, s38, {VREC}")
    for t in range(1, 4):
        A(f"s_add_u32 s{38+t}, s{37+t}, {VREC}")
    A("s_sub_u32 s33, s31, 1280")
    A("s_lshl_b32 s32, s44, 6")
    A("s_add_u32 s33, s33, s32")
    A(f"v_mul_u32_u24 v3, {VSB}, v3")
    A(f"s_mov_b32 s34, {64*VREC}")
    for u in range(2):
        A("v_add_u32 v8, s33, v2")
        if u: A("v_add_u32 v8, 32, v8")
        A("v_mul_u32_u24 v9, 3277, v8")
        A("v_lshrrev_b32 v9, 16, v9")
        A("v_mul_u32_u24 v10, 20, v9")
        A("v_sub_u32 v10, v8, v10")
        A("v_lshl_add_u32 v10, v10, 4, v3")
        A("v_mul_lo_u32 v9, v9, s34")
        A(f"v_add_u32 v{16+u}, v9, v10")
    for t in range(4):
        A("s_waitcnt lgkmcnt(0)")
        if t < 3: vrd(t + 1)
        b = 48 + (t & 1) * 32
        for u in range(2):
            a = ACC + (t * 2 + u) * 16
            T = 112
            for i in range(0, 16, 2):
                A(f"v_pk_mul_f32 {pr(T+i)}, {pr(b+16+i)}, {pr(4+2*u)} op_sel_hi:[1,0]")
            for i in range(0, 16, 2):
                A(f"v_pk_fma_f32 {pr(a+i)}, {pr(a+i)}, {pr(b+i)}, {pr(T+i)} neg_lo:[0,0,1] neg_hi:[0,0,1]")
            p = 18 + ((t * 2 + u) % 3) * 8
            for i in range(8):
                A(f"v_cvt_pk_bf16_f32 v{p+i}, v{a+2*i}, v{a+2*i+1}")
            A(f"buffer_store_dwordx4 v[{p}:{p+3}], v{16+u}, s[16:19], s{38+t} offen")
            A(f"buffer_store_dwordx4 v[{p+4}:{p+7}], v{16+u}, s[16:19], s{38+t} offen offset:{2*VSB}")
    fin(A)
    A("k1_h:")
    SS2 = gemm_core(A, "k1h", 2, 3, True, 3072, True)
    A("v_and_b32 v2, 31, v1")
    A("v_lshrrev_b32 v3, 5, v1")
    A("s_lshl_b32 s32, s43, 9")
    A(f"s_add_u32 s32, s32, {EP}")
    A("v_lshl_add_u32 v12, v2, 3, s32")
    for t in range(2):
        A(f"ds_read_b64 {pr(8+2*t)}, v12 offset:{t*256}")
    A("s_mul_i32 s32, s44, 384")
    A(f"s_add_u32 s32, s32, {CSL}")
    A("v_lshl_add_u32 v12, v3, 4, s32")
    def hrd(u):
        b = 48 + (u & 1) * 32
        for j in range(4):
            A(f"ds_read_b128 {vr(b+4*j,4)}, v12 offset:{128*u+32*j}")
            A(f"ds_read_b128 {vr(b+16+4*j,4)}, v12 offset:{768+128*u+32*j}")
    hrd(0)
    srd(A, 16, PWS, 64 * 96 * 1024, HB_OFF)
    A("s_lshr_b32 s33, s30, 5")
    A("s_lshl_b32 s32, s43, 1")
    A("s_add_u32 s33, s33, s32")
    A("s_mul_i32 s33, s33, 96")
    A("s_lshr_b32 s32, s31, 4")
    A("s_add_u32 s33, s33, s32")
    A("s_mul_i32 s32, s44, 6")
    A("s_add_u32 s33, s33, s32")
    A("s_lshl_b32 s36, s33, 10")
    A(f"s_add_u32 s37, s36, {96*1024}")
    A("v_lshlrev_b32 v16, 4, v1")
    A("v_add_u32 v17, 4096, v16")
    c0 = -2.0 * math.sqrt(2.0 / math.pi) * math.log2(math.e)
    c1 = c0 * 0.044715
    A(f"v_mov_b32 v4, {f32hex(c0)}"); A(f"v_mov_b32 v5, {f32hex(c1)}")
    A("v_mov_b32 v6, 1.0")
    T = 112
    for u in range(3):
        A("s_waitcnt lgkmcnt(0)")
        if u < 2: hrd(u + 1)
        b = 48 + (u & 1) * 32
        for t in range(2):
            a = ACC + (t * 3 + u) * 16
            p = 18 + ((u * 2 + t) % 3) * 8
            ab = pr(8 + 2 * t)
            for i in range(0, 16, 2): A(f"v_pk_fma_f32 {pr(T+i)}, {pr(b+i)}, {ab}, {pr(b+16+i)} op_sel:[0,1,0] op_sel_hi:[1,1,1] neg_lo:[1,0,0] neg_hi:[1,0,0]")
            for i in range(0, 16, 2): A(f"v_pk_fma_f32 {pr(a+i)}, {pr(a+i)}, {ab}, {pr(T+i)} op_sel_hi:[1,0,1]")
            for i in range(0, 16, 2): A(f"v_pk_mul_f32 {pr(T+i)}, {pr(a+i)}, {pr(a+i)}")
            for i in range(0, 16, 2): A(f"v_pk_fma_f32 {pr(T+i)}, {pr(T+i)}, v[4:5], v[4:5] op_sel:[0,1,0] op_sel_hi:[1,1,0]")
            for i in range(0, 16, 2): A(f"v_pk_mul_f32 {pr(T+i)}, {pr(T+i)}, {pr(a+i)}")
            for i in range(16): A(f"v_exp_f32 v{T+i}, v{T+i}")
            for i in range(0, 16, 2): A(f"v_pk_add_f32 {pr(T+i)}, {pr(T+i)}, v[6:7] op_sel_hi:[1,0]")
            for i in range(16): A(f"v_rcp_f32 v{T+i}, v{T+i}")
            for i in range(0, 16, 2): A(f"v_pk_mul_f32 {pr(T+i)}, {pr(T+i)}, {pr(a+i)}")
            for i in range(8): A(f"v_cvt_pk_bf16_f32 v{p+i}, v{T+2*i}, v{T+2*i+1}")
            va = 16 if u < 2 else 17
            off = (2 * u * 1024) % 4096
            A(f"buffer_store_dwordx4 v[{p}:{p+3}], v{va}, s[16:19], s{36+t} offen offset:{off}")
            A(f"buffer_store_dwordx4 v[{p+4}:{p+7}], v{va}, s[16:19], s{36+t} offen offset:{off+1024}")
    fin(A)
    helper(A)
    A("k1_done:")
    A("s_endpgm")
    assert 3 * max(SS1, SS2) <= EP
    return kernel_desc(name, 256), f"; @launch kernel=k1_kernel grid=(256,1,1) block=(512,1,1) lds={LDS_BYTES}"
```

```python
from asmlib import *
from layout import *
import math, os

NST = 10
ACC = 128
XF = 48
WF = 80
DV = 16
XAB, WAB, XAC, WAC = 28, 32, 36, 40
PX, PWQ, PW1, PB1, PWO, PW2, PDBG, PWS = 4, 6, 48, 50, 52, 54, 56, 58
EP = 147456
CSL = EP + 4096
BIASL = CSL + 768
LDS_BYTES = EP + 6144
ST_OFF = XN_OFF
CS_OFF = XN_OFF + 0x10000
PRIV_OFF = 0x8000000
NONL = EP + 6136
TIMEOUT = int(os.environ.get("K1TIMEOUT", "3000"))
SLOW = os.environ.get("K1SLOW", "")
NT = os.environ.get("NT", "rsp")
def NTF(c): return " nt" if c in NT else ""
STF = os.environ.get("STF", "")
STH = os.environ.get("STH", "")
STP = os.environ.get("STP", "")
pr = lambda r: f"v[{r}:{r+1}]"

def bf16r(A, v):
    A(f"v_cvt_pk_bf16_f32 v{v}, v{v}, v{v}")
    A(f"v_and_b32 v{v}, 0xffff0000, v{v}")

RX, UX, RW = 16, 56, 136
def h_rows_issue(A):
    A("v_lshrrev_b32 v2, 3, v1")
    A("s_lshl_b32 s32, s70, 3")
    A("v_add_u32 v2, s32, v2")
    A("v_mul_u32_u24 v3, 1280, v2")
    A("v_and_b32 v4, 7, v1")
    A("v_lshl_add_u32 v3, v4, 4, v3")
    for j in range(10):
        A(f"buffer_load_dwordx4 {vr(RX+4*j,4)}, v3, s[8:11], 0 offen offset:{128*j}" + NTF("r"))
def red8(A, v):
    for mod in ("quad_perm:[1,0,3,2]", "quad_perm:[2,3,0,1]", "row_half_mirror"):
        A("s_nop 1")
        A(f"v_add_f32_dpp v{v}, v{v}, v{v} {mod} row_mask:0xf bank_mask:0xf")
def h_rows_p1a(A):
    for i in range(20):
        A(f"v_lshlrev_b32 v{UX+2*i}, 16, v{RX+i}")
        A(f"v_and_b32 v{UX+2*i+1}, 0xffff0000, v{RX+i}")
    A(f"v_add_f32 v5, v{UX}, v{UX+1}")
    A(f"v_add_f32 v6, v{UX+2}, v{UX+3}")
    for i in range(4, 40, 2):
        A(f"v_add_f32 v5, v5, v{UX+i}")
        A(f"v_add_f32 v6, v6, v{UX+i+1}")
def h_rows_p1b(A):
    for i in range(20, 40):
        A(f"v_lshlrev_b32 v{UX+2*i}, 16, v{RX+i}")
        A(f"v_and_b32 v{UX+2*i+1}, 0xffff0000, v{RX+i}")
    for i in range(40, 80, 2):
        A(f"v_add_f32 v5, v5, v{UX+i}")
        A(f"v_add_f32 v6, v6, v{UX+i+1}")
    A("v_add_f32 v5, v5, v6")
    red8(A, 5)
    A(f"v_mul_f32 v7, {f32hex(1.0/640)}, v5")
def h_rows_p1(A):
    h_rows_p1a(A); h_rows_p1b(A)
def h_rows_p2a(A):
    A("v_mov_b32 v5, 0"); A("v_mov_b32 v6, 0")
    for i in range(0, 52, 2):
        A(f"v_sub_f32 v13, v{UX+i}, v7")
        A(f"v_sub_f32 v14, v{UX+i+1}, v7")
        A("v_fmac_f32 v5, v13, v13")
        A("v_fmac_f32 v6, v14, v14")
def h_rows_p2(A):
    h_rows_p2a(A); h_rows_p2b(A)
def h_rows_p2b(A):
    s, mean, var, m, r, t2, r2 = 5, 7, 8, 9, 10, 11, 12
    for i in range(52, 80, 2):
        A(f"v_sub_f32 v13, v{UX+i}, v7")
        A(f"v_sub_f32 v14, v{UX+i+1}, v7")
        A("v_fmac_f32 v5, v13, v13")
        A("v_fmac_f32 v6, v14, v14")
    A("v_add_f32 v5, v5, v6")
    red8(A, 5)
    A(f"v_mul_f32 v{var}, {f32hex(1.0/640)}, v{s}")
    A(f"v_mov_b32 v{m}, v{mean}"); bf16r(A, m)
    A(f"v_mov_b32 v{s}, v{var}"); bf16r(A, s)
    A(f"v_add_f32 v{s}, {f32hex(1e-5)}, v{s}"); bf16r(A, s)
    A(f"v_sqrt_f32 v{s}, v{s}"); A("s_nop 0"); bf16r(A, s)
    A(f"v_rcp_f32 v{r}, v{s}")
    A(f"v_sub_f32 v{t2}, v{mean}, v{m}")
    A(f"v_mul_f32 v{t2}, v{t2}, v{r}"); bf16r(A, t2)
    A(f"v_mul_f32 v{s}, v{var}, v{r}")
    A(f"v_mul_f32 v{s}, v{s}, v{r}"); bf16r(A, s)
    A(f"v_add_f32 v{s}, {f32hex(1e-5)}, v{s}"); bf16r(A, s)
    A(f"v_sqrt_f32 v{s}, v{s}"); A("s_nop 0"); bf16r(A, s)
    A(f"v_rcp_f32 v{r2}, v{s}")
    O = RX
    A(f"v_mov_b32 v{O}, v{r}")
    A(f"v_mul_f32 v{O+1}, v{m}, v{r}")
    A(f"v_mul_f32 v{O+4}, v{r}, v{r2}")
    A(f"v_add_f32 v{O+5}, v{O+1}, v{t2}")
    A(f"v_mul_f32 v{O+5}, v{O+5}, v{r2}")
def h_rows_store(A):
    O = RX
    for i in (2, 3, 6, 7): A(f"v_mov_b32 v{O+i}, s76")
    A("v_lshlrev_b32 v3, 4, v2")
    A("v_add_u32 v4, 0x8000, v3")
    A("s_mov_b32 exec_lo, 0x01010101"); A("s_mov_b32 exec_hi, 0x01010101")
    A(f"buffer_store_dwordx4 {vr(O,4)}, v3, s[60:63], 0 offen sc1")
    A(f"buffer_store_dwordx4 {vr(O+4,4)}, v4, s[60:63], 0 offen sc1")
    A("s_mov_b64 exec, -1")
def h_strip_issue(A):
    A("s_lshr_b32 s35, s71, 2")
    A("s_cmp_lt_u32 s35, 30")
    A(f"s_cselect_b32 s12, s{PWQ}, s{PW1}")
    A(f"s_cselect_b32 s13, s{PWQ+1}, s{PW1+1}")
    A("s_cselect_b32 s33, 768, 0")
    A("s_cselect_b32 s34, 0, 30")
    A("s_add_u32 s33, s33, 3072")
    A("s_mul_i32 s14, s33, 640")
    A("s_mov_b32 s15, 0x00020000")
    A("s_cmp_lt_u32 s71, 216")
    A("s_cselect_b32 s14, s14, 0")
    A("s_sub_u32 s34, s35, s34")
    A("s_lshl_b32 s34, s34, 7")
    A("v_lshrrev_b32 v13, 3, v1")
    A("v_mul_lo_u32 v13, v13, s33")
    A("v_and_b32 v14, 7, v1")
    A("v_lshl_add_u32 v13, v14, 4, v13")
    A("v_add_u32 v13, s34, v13")
    A("s_and_b32 s34, s71, 3")
    A("s_mul_i32 s34, s34, 160")
    A("s_mul_i32 s34, s34, s33")
    A("s_lshl_b32 s33, s33, 3")
    for i in range(20):
        A(f"buffer_load_dwordx4 {vr(RW+4*i,4)}, v13, s[12:15], s34 offen" + NTF("s"))
        if i < 19: A("s_add_u32 s34, s34, s33")
def h_strip_p(A, lo, hi):
    C = 216
    for i in range(lo, hi):
        for e in range(4):
            w = RW + 4 * i + e
            if i == 0:
                A(f"v_lshlrev_b32 v{C+2*e}, 16, v{w}")
                A(f"v_and_b32 v{C+2*e+1}, 0xffff0000, v{w}")
            else:
                A(f"v_lshlrev_b32 v13, 16, v{w}")
                A(f"v_and_b32 v14, 0xffff0000, v{w}")
                A(f"v_add_f32 v{C+2*e}, v{C+2*e}, v13")
                A(f"v_add_f32 v{C+2*e+1}, v{C+2*e+1}, v14")
def h_strip_fin(A):
    C = 216; T = 224
    for mod in ("row_ror:8",):
        A("s_nop 1")
        for e in range(8):
            A(f"v_add_f32_dpp v{C+e}, v{C+e}, v{C+e} {mod} row_mask:0xf bank_mask:0xf")
    for op in ("v_permlane16_swap_b32", "v_permlane32_swap_b32"):
        for e in range(8): A(f"v_mov_b32 v{T+e}, v{C+e}")
        A("s_nop 1")
        for e in range(8): A(f"{op} v{C+e}, v{T+e}")
        A("s_nop 1")
        for e in range(8): A(f"v_add_f32 v{C+e}, v{C+e}, v{T+e}")
def h_strip_store(A):
    C = 216; T = 224
    A("v_lshrrev_b32 v13, 3, v1")
    A(f"v_mov_b32 v{T}, v{C}")
    for e in range(1, 8):
        A(f"v_cmp_eq_u32 vcc, {e}, v13")
        A("s_nop 1")
        A(f"v_cndmask_b32 v{T}, v{T}, v{C+e}, vcc")
    A(f"v_mov_b32 v{T+1}, s76")
    A("v_and_b32 v14, 7, v1")
    A("v_lshl_add_u32 v13, v14, 3, v13")
    A("s_lshr_b32 s33, s71, 2")
    A("s_lshl_b32 s33, s33, 9")
    A("s_and_b32 s34, s71, 3")
    A("s_lshl_b32 s34, s34, 15")
    A("s_add_u32 s33, s33, s34")
    A(f"s_add_u32 s33, s33, {CS_OFF - ST_OFF}")
    A("v_lshl_add_u32 v13, v13, 3, s33")
    A("s_cmp_lt_u32 s71, 216")
    A("s_cselect_b32 s33, 0, 0x40000000")
    A(f"buffer_store_dwordx2 {pr(T)}, v13, s[60:63], s33 offen sc1")

def h_pack_setup(A):
    A("s_cmp_ge_u32 s2, 96")
    A("s_cbranch_scc1 pk_n1")
    A("s_lshl_b32 s34, s2, 4"); A("s_mov_b32 s35, 4"); A("s_mov_b32 s36, 8"); A("s_movk_i32 s37, 1280")
    A(f"s_mov_b32 s16, s{PW2}"); A(f"s_mov_b32 s17, s{PW2+1}"); A(f"s_mov_b32 s18, {1536*1280}")
    A("s_lshl_b32 s84, s2, 10"); A(f"s_mov_b32 s85, {96*1024}"); A("s_mov_b32 s86, 10"); A("s_mov_b32 s32, 0")
    A("s_branch pk_go")
    A("pk_n1:")
    A("s_cmp_ge_u32 s2, 136")
    A("s_cbranch_scc1 pk_n2")
    A("s_sub_u32 s33, s2, 96")
    A("s_mul_i32 s34, s33, 20"); A("s_mov_b32 s35, 4"); A("s_mov_b32 s36, 8"); A("s_movk_i32 s37, 1280")
    A(f"s_mov_b32 s16, s{PWO}"); A(f"s_mov_b32 s17, s{PWO+1}"); A(f"s_mov_b32 s18, {640*1280}")
    A("s_lshl_b32 s84, s33, 10"); A(f"s_add_u32 s84, s84, {WOF_OFF - W2F_OFF}")
    A(f"s_mov_b32 s85, {40*1024}"); A("s_mov_b32 s86, 10"); A("s_mov_b32 s32, 0")
    A("s_cmp_lt_u32 s33, 32")
    A("s_cbranch_scc1 pk_go")
    A("s_sub_u32 s33, s33, 32")
    A("s_mul_i32 s34, s33, 80"); A("s_add_u32 s34, s34, 16"); A("s_mov_b32 s35, 40"); A("s_mov_b32 s36, 20")
    A("s_branch pk_go")
    A("pk_n2:")
    A("s_mov_b32 s34, 0"); A("s_mov_b32 s35, 0"); A("s_mov_b32 s36, 0"); A("s_mov_b32 s37, 0"); A("s_mov_b32 s32, 0")
    A(f"s_mov_b32 s16, s{PW1}"); A(f"s_mov_b32 s17, s{PW1+1}"); A("s_mov_b32 s18, 0")
    A("s_mov_b32 s84, 0x40000000"); A("s_mov_b32 s85, 0"); A("s_mov_b32 s86, 10")
    A("pk_go:")
    A("s_mov_b32 s19, 0x00020000")
    A("s_mul_i32 s38, s86, s78")
    A("s_add_u32 s32, s32, s38")
    A("s_mul_i32 s38, s32, s85")
    A("s_add_u32 s84, s84, s38")
    A("v_mul_u32_u24 v12, s35, v246")
    A("v_add_u32 v12, s34, v12")
    A("v_add_u32 v12, v12, v245")
    A("v_mul_u32_u24 v248, s36, v249")
    A("v_add_u32 v12, v12, v248")
    A("v_mul_lo_u32 v12, v12, s37")
    A("s_lshl_b32 s32, s32, 6")
    A("v_add_u32 v12, s32, v12")
    A("v_add_u32 v253, v12, v250")
    A("s_mov_b32 s88, s16"); A("s_mov_b32 s89, s17"); A("s_mov_b32 s90, s18"); A("s_mov_b32 s91, s19")
def h_pack_issue(A):
    A("s_mov_b32 s32, 0")
    A("s_mov_b32 m0, s77")
    for j in range(10):
        if j == 8:
            A("s_cmp_eq_u32 s86, 8")
            A("s_cselect_b32 s90, 0, s90")
        A("buffer_load_dwordx4 v253, s[88:91], s32 offen lds" + NTF("p"))
        A("s_add_u32 m0, m0, 1024")
        A("s_add_u32 s32, s32, 64")
def h_pack_finish(A):
    lab = A.label("pf")
    for j in range(10):
        A(f"ds_read_b64_tr_b16 {pr(64+4*j)}, v251 offset:{j*1024}")
        A(f"ds_read_b64_tr_b16 {pr(66+4*j)}, v251 offset:{j*1024+256}")
    A("s_waitcnt lgkmcnt(0)")
    for j in range(10):
        if j == 8:
            A("s_cmp_eq_u32 s86, 8")
            A(f"s_cbranch_scc1 {lab}")
        A(f"buffer_store_dwordx4 {vr(64+4*j,4)}, v247, s[64:67], s84 offen {STP}")
        A("s_add_u32 s84, s84, s85")
    A(f"{lab}:")

def h_pack_lanes(A):
    A("v_bfe_u32 v245, v1, 2, 2")
    A("v_lshrrev_b32 v246, 5, v1")
    A("v_lshlrev_b32 v247, 4, v1")
    A("v_bfe_u32 v249, v1, 4, 1")
    A("v_and_b32 v250, 3, v1")
    A("v_lshlrev_b32 v250, 4, v250")
    A("s_mov_b32 s78, s25")
    A("s_mul_i32 s77, s78, 10240")
    A("s_add_u32 s77, s77, 49152")
    A("v_lshl_add_u32 v251, v246, 3, v245")
    A("v_lshlrev_b32 v251, 6, v251")
    A("v_lshl_add_u32 v251, v249, 5, v251")
    A("v_and_b32 v252, 3, v1")
    A("v_lshl_add_u32 v251, v252, 3, v251")
    A("v_add_u32 v251, s77, v251")

def helper(A):
    A("k1_helper:")
    A("s_waitcnt lgkmcnt(0)")
    srd(A, 8, PX, XSZ)
    srd(A, 60, PWS, 0x30000, ST_OFF)
    srd(A, 20, PDBG, 256)
    srd(A, 64, PWS, 0x500000, W2F_OFF)
    if not os.environ.get("NOXLOC"):
        A("s_and_b32 s32, s2, 7")
        A("s_lshr_b32 s33, s2, 3")
        A("s_lshl_b32 s70, s32, 5")
        A("s_add_u32 s70, s70, s33")
        A("s_and_b32 s34, s32, 3")
        A("s_lshr_b32 s35, s32, 2")
        A("s_mul_i32 s35, s35, 27")
        A("s_add_u32 s35, s35, s33")
        A("s_mul_i32 s36, s34, 30")
        A("s_add_u32 s36, s36, s35")
        A("s_mul_i32 s37, s34, 24")
        A("s_add_u32 s37, s37, s35")
        A("s_add_u32 s37, s37, 90")
        A("s_cmp_lt_u32 s35, 30")
        A("s_cselect_b32 s71, s36, s37")
        A("s_cmp_lt_u32 s33, 27")
        A("s_cselect_b32 s71, s71, 255")
    else:
        A("s_mov_b32 s70, s2")
        A("s_mov_b32 s71, s2")
    A("v_mov_b32 v240, 0")
    A(f"v_mov_b32 v241, {NONL}")
    A("s_cmp_eq_u32 s25, 5")
    A("s_cbranch_scc1 k1_hB")
    h_rows_issue(A)
    A("s_cmp_lg_u32 s2, 0")
    A("s_cbranch_scc1 k1_hA1")
    A("s_memrealtime s[32:33]")
    A("s_waitcnt lgkmcnt(0)")
    A("s_or_b32 s32, s32, 1")
    A("v_mov_b32 v13, s32")
    A("s_mov_b64 exec, 1")
    A("buffer_store_dword v13, v240, s[20:23], 0 offen sc1")
    srd(A, 16, PWS, 64, SYNC_OFF)
    A("buffer_store_dword v13, v240, s[16:19], 0 offen")
    A("s_mov_b64 exec, -1")
    A("k1_hA1:")
    srd(A, 16, PB1, 1536 * 2)
    A("s_cmp_eq_u32 s28, 2")
    A("s_cselect_b32 s18, s18, 0")
    A("v_add_u32 v15, s31, v1")
    A("v_lshlrev_b32 v15, 1, v15")
    for i in range(3):
        A(f"buffer_load_ushort v{232+i}, v15, s[16:19], 0 offen offset:{128*i}")
    A("s_barrier")
    A("s_waitcnt vmcnt(3)")
    h_rows_p1a(A)
    A("s_barrier")
    A("buffer_load_dword v242, v240, s[20:23], 0 offen")
    h_rows_p1b(A)
    A("s_barrier")
    h_rows_p2a(A)
    A("s_barrier")
    h_rows_p2b(A)
    A("s_mov_b32 s34, 0")
    A("k1_hn:")
    A("s_waitcnt vmcnt(0)")
    A("v_readfirstlane_b32 s76, v242")
    A("s_nop 3")
    A("s_cmp_lg_u32 s76, 0")
    A("s_cbranch_scc1 k1_hn_ok")
    A("buffer_load_dword v242, v240, s[20:23], 0 offen sc1")
    A("s_add_u32 s34, s34, 1")
    A("s_sleep 1")
    A("s_cmp_lt_u32 s34, 400")
    A("s_cbranch_scc1 k1_hn")
    A("k1_hn_ok:")
    A("v_mov_b32 v242, s76")
    A("ds_write_b32 v241, v242")
    h_rows_store(A)
    A("s_waitcnt lgkmcnt(0)")
    A("s_barrier")
    A("s_cmp_eq_u32 s28, 3")
    A("s_cbranch_scc1 k1_done")
    A("s_barrier")
    A("s_barrier")
    A("s_barrier")
    A("v_add_u32 v243, s30, v1")
    A("v_lshlrev_b32 v243, 4, v243")
    A("s_cmp_eq_u32 s28, 2")
    A("s_cselect_b32 s32, 0x8000, 0")
    A("v_add_u32 v243, s32, v243")
    A("v_add_u32 v244, s29, v1")
    A("v_lshlrev_b32 v244, 3, v244")
    A(f"v_add_u32 v244, {CS_OFF - ST_OFF}, v244")
    A("s_mov_b32 s68, 0"); A("s_mov_b32 s69, 0x8000"); A("s_mov_b32 s74, 0x10000"); A("s_mov_b32 s75, 0x18000")
    def gl():
        for i in range(4):
            A(f"buffer_load_dwordx4 {vr(16+4*i,4)}, v243, s[60:63], 0 offen offset:{1024*i} sc1")
        for q in range(4):
            for i in range(3):
                A(f"buffer_load_dwordx2 {pr(32+6*q+2*i)}, v244, s[60:63], s{68+q if q < 2 else 72+q} offen offset:{512*i} sc1")
    gl()
    A("s_barrier")
    A("s_barrier")
    A("s_mov_b32 s34, 0")
    A("s_mov_b32 s38, 1")
    A("k1_hpoll:")
    A("s_waitcnt vmcnt(0)")
    A("v_xor_b32 v60, s76, v18")
    A("v_xor_b32 v61, s76, v22")
    A("v_or_b32 v60, v60, v61")
    for q in range(4):
        for i in range(2):
            A(f"v_xor_b32 v61, s76, v{33+6*q+2*i}")
            A("v_or_b32 v60, v60, v61")
    A("v_xor_b32 v62, s76, v26")
    A("v_xor_b32 v61, s76, v30")
    A("v_or_b32 v62, v62, v61")
    A("v_xor_b32 v63, s76, v37")
    for q in range(1, 4):
        A(f"v_xor_b32 v61, s76, v{37+6*q}")
        A("v_or_b32 v63, v63, v61")
    A("v_cmp_ne_u32 s[40:41], 0, v60")
    A("v_cmp_ne_u32 s[42:43], 0, v62")
    A("v_cmp_ne_u32 s[46:47], 0, v63")
    A("s_nop 3")
    A("s_cmp_eq_u32 s28, 2")
    A("s_cselect_b64 s[42:43], s[46:47], s[42:43]")
    A("s_or_b64 s[40:41], s[40:41], s[42:43]")
    A("s_cselect_b32 s32, 1, 0")
    A("s_cmp_eq_u32 s76, 0")
    A("s_cselect_b32 s32, 1, s32")
    A(f"s_cmp_eq_u32 s32, {0 if SLOW != '2' else 5}")
    A("s_cbranch_scc1 k1_hok")
    A("s_cmp_eq_u32 s38, 0")
    A("s_cbranch_scc0 k1_hp2")
    A("s_mov_b32 s38, 1")
    A("s_barrier")
    A("k1_hp2:")
    A("s_sleep 2")
    gl()
    A("s_add_u32 s34, s34, 1")
    A("s_cmp_eq_u32 s76, 0")
    A("s_cbranch_scc1 k1_hself")
    A(f"s_cmp_lt_u32 s34, {TIMEOUT}")
    A("s_cbranch_scc1 k1_hpoll")
    A("k1_hself:")
    A("s_lshl_b32 s32, s2, 18")
    A(f"s_add_u32 s32, s32, {PRIV_OFF}")
    A(f"s_add_u32 s60, s{PWS}, s32")
    A(f"s_addc_u32 s61, s{PWS+1}, 0")
    A("s_lshr_b32 s70, s30, 3")
    A("s_lshr_b32 s39, s27, 3")
    A("s_add_u32 s39, s39, s70")
    A("k1_hs1:")
    h_rows_issue(A)
    A("s_waitcnt vmcnt(0)")
    h_rows_p1(A); h_rows_p2(A); h_rows_store(A)
    A("s_add_u32 s70, s70, 1")
    A("s_cmp_lt_u32 s70, s39")
    A("s_cbranch_scc1 k1_hs1")
    A("s_lshr_b32 s71, s29, 4")
    A("s_lshr_b32 s39, s26, 4")
    A("s_add_u32 s39, s39, s71")
    A("k1_hs2:")
    h_strip_issue(A)
    A("s_waitcnt vmcnt(0)")
    h_strip_p(A, 0, 20); h_strip_fin(A); h_strip_store(A)
    A("s_add_u32 s71, s71, 1")
    A("s_cmp_lt_u32 s71, s39")
    A("s_cbranch_scc1 k1_hs2")
    A("s_waitcnt vmcnt(0)")
    gl()
    A("s_waitcnt vmcnt(0)")
    A("k1_hok:")
    A("v_lshlrev_b32 v12, 3, v1")
    A(f"v_add_u32 v12, {EP}, v12")
    A("v_lshlrev_b32 v13, 2, v1")
    A(f"v_add_u32 v13, {EP}, v13")
    for i in range(4):
        A(f"v_mul_f32 v{16+4*i}, s45, v{16+4*i}")
        A(f"v_mul_f32 v{17+4*i}, s45, v{17+4*i}")
        A(f"ds_write_b64 v12, {pr(16+4*i)} offset:{512*i}")
        A(f"ds_write_b32 v13, v{16+4*i} offset:{2048+256*i}")
        A(f"ds_write_b32 v13, v{17+4*i} offset:{3072+256*i}")
    for i in range(3):
        A(f"v_lshlrev_b32 v{232+i}, 16, v{232+i}")
        for q in range(1, 4):
            A(f"v_add_f32 v{32+2*i}, v{32+2*i}, v{32+6*q+2*i}")
        A(f"ds_write_b32 v13, v{32+2*i} offset:{CSL-EP+256*i}")
        A(f"ds_write_b32 v13, v{232+i} offset:{BIASL-EP+256*i}")
    A("s_waitcnt lgkmcnt(0)")
    A("s_cmp_eq_u32 s38, 0")
    A("s_cbranch_scc0 k1_hw")
    A("s_barrier")
    A("k1_hw:")
    A("s_barrier")
    A("s_endpgm")
    A("k1_hB:")
    PB = lambda i: 16 + 8 * i
    if os.environ.get("LATEB"):
        A("s_barrier")
        h_strip_issue(A)
        A("s_barrier")
        A("s_barrier")
        A("s_waitcnt vmcnt(5)")
        h_strip_p(A, 0, 10)
    else:
        h_strip_issue(A)
        A("s_barrier")
        A("s_waitcnt vmcnt(15)")
        h_strip_p(A, 0, 5)
        A("s_barrier")
        A("s_waitcnt vmcnt(10)")
        h_strip_p(A, 5, 10)
        A("s_barrier")
    A("s_waitcnt vmcnt(0)")
    h_strip_p(A, 10, 15)
    A("s_barrier")
    h_strip_p(A, 15, 20)
    h_strip_fin(A)
    A("s_barrier")
    A("ds_read_b32 v242, v241")
    A("s_waitcnt lgkmcnt(0)")
    A("v_readfirstlane_b32 s76, v242")
    A("s_nop 1")
    h_strip_store(A)
    srd(A, 16, PWS, 32 * 64 * VREC, V_OFF)
    A("s_cmp_lt_u32 s2, 128")
    A("s_cselect_b32 s18, s18, 0")
    A("s_lshl_b32 s32, s2, 6")
    A("v_add_u32 v12, s32, v1")
    A("v_lshrrev_b32 v13, 2, v12")
    A("v_and_b32 v12, 3, v12")
    A(f"v_mul_u32_u24 v13, {VREC}, v13")
    A(f"v_mul_u32_u24 v12, {VSB}, v12")
    A("v_add_u32 v12, v12, v13")
    for i in range(4): A(f"v_mov_b32 v{124+i}, 0x3f803f80")
    A("buffer_store_dwordx4 v[124:127], v12, s[16:19], 0 offen offset:320")
    A("s_cmp_eq_u32 s28, 3")
    A("s_cbranch_scc1 k1_done")
    A("s_barrier")
    A("s_barrier")
    A("s_endpgm")

def loader(A, tag, TM, TN, ldw, isH):
    BM, BN = 2 * TM * 32, 2 * TN * 32
    AB = BM * 128; pitch = BN * 2; BB = 64 * pitch; SS = AB + BB
    nA = BM // 16; nB = BB // 2048; ND = nA + nB
    CPR = BN // 8
    A(f"{tag}:")
    for q in range(8, nA):
        A(f"v_add_u32 v{DV+q}, {q*8*1280 - (q&3)*1024}, v{5 + (q&1)}")
    A(f"s_mul_i32 s27, s25, {nB*1024}")
    A(f"s_add_u32 s27, s27, {AB}")
    def dmaA(q0=0):
        for q in range(q0, nA):
            if q % 4 == 0:
                A("s_add_u32 m0, s23, s26" if q == 0 else "s_add_u32 m0, m0, 4096")
                A("s_nop 0")
            A(f"buffer_load_dwordx4 v{DV+q}, s[8:11], s21 offen offset:{(q&3)*1024} lds" + NTF("a"))
    def dmaB():
        for q in range(nB):
            if q % 4 == 0:
                A("s_add_u32 m0, s23, s27" if q == 0 else "s_add_u32 m0, m0, 4096")
                A("s_nop 0")
            A(f"buffer_load_dwordx4 v{DV+nA+q}, s[12:15], s22 offen offset:{(q&3)*1024} lds" + NTF("b"))
    def adv():
        A("s_add_u32 s21, s21, 128")
        A(f"s_add_u32 s22, s22, {64*ldw}")
        A(f"s_add_u32 s23, s23, {SS}")
        A(f"s_cmp_eq_u32 s23, {3*SS}")
        A("s_cselect_b32 s23, 0, s23")
    dmaA(8)
    A(f"s_mul_i32 s41, s25, {nB*64}")
    A(f"s_lshl_b32 s42, s31, 1")
    for q in range(nB):
        A(f"v_add_u32 v7, s41, v1")
        if q: A(f"v_add_u32 v7, {q*64}, v7")
        if CPR == 16:
            A("v_lshrrev_b32 v8, 4, v7")
            A("v_and_b32 v9, 15, v7")
            A("v_and_b32 v10, 3, v8")
        else:
            A("v_mul_u32_u24 v8, 2731, v7")
            A("v_lshrrev_b32 v8, 16, v8")
            A("v_mul_u32_u24 v9, 24, v8")
            A("v_sub_u32 v9, v7, v9")
            A("v_bfe_u32 v10, v8, 1, 1")
        A("v_lshlrev_b32 v10, 2, v10")
        A("v_xor_b32 v9, v9, v10")
        A(f"v_mul_u32_u24 v8, {ldw}, v8")
        A("v_lshl_add_u32 v8, v9, 4, v8")
        A(f"v_add_u32 v8, s42, v8")
        if q & 3:
            A(f"v_subrev_u32 v{DV+nA+q}, {(q&3)*1024}, v8")
        else:
            A(f"v_mov_b32 v{DV+nA+q}, v8")
    srd(A, 12, PW1 if isH else PWQ, 640 * ldw)
    dmaB(); adv()
    if not os.environ.get("LDOLD"):
        dmaB()
        A(f"s_waitcnt vmcnt({nB})")
        A("s_barrier")
        dmaA(); adv()
        A("s_mov_b32 s20, 1")
    A(f"{tag}_loop:")
    dmaA(); dmaB(); adv()
    A(f"s_waitcnt vmcnt({ND})")
    A("s_barrier")
    A("s_add_u32 s20, s20, 1")
    A(f"s_cmp_lt_u32 s20, {NST-1}")
    A(f"s_cbranch_scc1 {tag}_loop")
    A("s_branch k1_ld_pack")

def loader_tail(A):
    A("k1_ld_pack:")
    h_pack_lanes(A)
    h_pack_setup(A)
    srd(A, 64, PWS, 0x800000, W2F_OFF)
    h_pack_issue(A)
    A("s_cmp_eq_u32 s28, 3")
    A("s_cbranch_scc1 k1_ld_fin")
    A("s_waitcnt vmcnt(10)")
    A("s_barrier")
    A("s_barrier")
    A("k1_ld_fin:")
    A("s_waitcnt vmcnt(0)")
    h_pack_finish(A)
    A("s_endpgm")

def gemm_core(A, tag, TM, TN, transposed, ldw, isH):
    BM, BN = 2 * TM * 32, 2 * TN * 32
    AB = BM * 128; pitch = BN * 2; BB = 64 * pitch; SS = AB + BB
    CPR = BN // 8
    A("s_and_b32 s43, s25, 1")
    A("s_lshr_b32 s44, s25, 1")
    A("v_and_b32 v2, 31, v1")
    A("v_lshrrev_b32 v3, 5, v1")
    A("v_bfe_u32 v4, v2, 1, 3")
    A(f"s_mul_i32 s45, s43, {TM*32*128}")
    A("v_lshlrev_b32 v5, 7, v2")
    A("v_add_u32 v5, s45, v5")
    for kk in range(4):
        A(f"v_add_u32 v6, {2*kk}, v3")
        A("v_xor_b32 v6, v6, v4")
        A(f"v_lshl_add_u32 v{XAB+kk}, v6, 4, v5")
    A("v_bfe_u32 v6, v1, 2, 2")
    A("v_lshl_add_u32 v7, v3, 3, v6")
    A(f"v_mul_u32_u24 v7, {pitch}, v7")
    A("v_bfe_u32 v8, v1, 4, 1")
    A("v_lshl_add_u32 v7, v8, 5, v7")
    A("v_and_b32 v8, 3, v1")
    A("v_lshl_add_u32 v7, v8, 3, v7")
    A(f"v_add_u32 v7, {AB}, v7")
    if CPR != 16:
        A("v_lshrrev_b32 v6, 1, v6")
    A(f"s_mul_i32 s46, s44, {TN}")
    for u in range(TN):
        A(f"s_add_u32 s47, s46, {u}")
        A("v_xor_b32 v8, s47, v6")
        A(f"v_lshl_add_u32 v{WAB+u}, v8, 6, v7")
    for i in range(TM * TN * 16):
        A(f"v_mov_b32 v{ACC+i}, 0")
    def reads(kk, buf):
        L = []
        for t in range(TM):
            L.append(f"ds_read_b128 {vr(XF + (buf*4+t)*4, 4)}, v{XAC+kk} offset:{t*4096}")
        for u in range(TN):
            for i in range(2):
                L.append(f"ds_read_b64_tr_b16 {vr(WF + (buf*3+u)*4 + 2*i, 2)}, v{WAC+u} offset:{(16*kk+4*i)*pitch}")
        return L
    def mfmas(buf):
        L = []
        for t in range(TM):
            for u in range(TN):
                a = ACC + (t * TN + u) * 16
                x = vr(XF + (buf*4+t)*4, 4); w = vr(WF + (buf*3+u)*4, 4)
                o = (w, x) if transposed else (x, w)
                L.append(f"v_mfma_f32_32x32x16_bf16 {vr(a,16)}, {o[0]}, {o[1]}, {vr(a,16)}")
        return L
    def setcur():
        L = []
        for kk in range(4): L.append(f"v_add_u32 v{XAC+kk}, s24, v{XAB+kk}")
        for u in range(TN): L.append(f"v_add_u32 v{WAC+u}, s24, v{WAB+u}")
        return L
    A("s_mov_b32 s24, 0"); A("s_mov_b32 s20, 0")
    for l in setcur(): A(l)
    A("s_setprio 2")
    stamp(A, 1)
    A("s_waitcnt lgkmcnt(0)")
    A("s_barrier")
    stamp(A, 2)
    for l in reads(0, 0): A(l)
    A(f"{tag}_loop:")
    NM = TM * TN
    for kk in range(4):
        buf = kk & 1
        ms = mfmas(buf)
        slots = [[] for _ in ms]
        if kk < 3:
            A("s_waitcnt lgkmcnt(0)")
            rd = reads(kk + 1, buf ^ 1)
        else:
            if os.environ.get("ITST"):
                A("s_memtime s[90:91]")
            A("s_waitcnt lgkmcnt(0)")
            if os.environ.get("ITST"):
                A("s_memtime s[92:93]")
            A("s_barrier")
            if os.environ.get("ITST"):
                A("s_memtime s[94:95]")
                A("s_waitcnt lgkmcnt(0)")
                A("s_mul_i32 m0, s20, 3")
                A("s_nop 1")
                A("v_writelane_b32 v47, s90, m0")
                A("s_add_u32 m0, m0, 1")
                A("s_nop 1")
                A("v_writelane_b32 v47, s92, m0")
                A("s_add_u32 m0, m0, 1")
                A("s_nop 1")
                A("v_writelane_b32 v47, s94, m0")
            rd = reads(0, buf ^ 1)
        for i, l in enumerate(rd):
            slots[i // 2].append(l)
        if kk == 1:
            slots[NM - 1] += [f"s_add_u32 s24, s24, {SS}", f"s_cmp_eq_u32 s24, {3*SS}", "s_cselect_b32 s24, 0, s24"]
        if kk == 2:
            sc = setcur()
            slots[NM - 2] += sc[:4]; slots[NM - 1] += sc[4:]
        if kk == 3:
            slots[NM - 1] += ["s_add_u32 s20, s20, 1", f"s_cmp_lt_u32 s20, {NST}"]
        for m, sl in zip(ms, slots):
            A(m)
            for l in sl: A(l)
    A(f"s_cbranch_scc1 {tag}_loop")
    A("s_waitcnt lgkmcnt(0)")
    stamp(A, 3)
    return SS

def fin(A):
    if os.environ.get("ITST"):
        srd(A, 72, PWS, 1 << 20, 0x4800000)
        A("s_lshl_b32 s76, s2, 2")
        A("s_add_u32 s76, s76, s25")
        A("s_lshl_b32 s76, s76, 8")
        A("v_and_b32 v1, 63, v0")
        A("v_lshlrev_b32 v1, 2, v1")
        A("v_mov_b32 v2, s80")
        A("v_sub_u32 v47, v47, v2")
        A("buffer_store_dword v47, v1, s[72:75], s76 offen")
    stamp(A, 4); stamp_flush(A, 5, PWS, 0, 25); tl_end(A, 0)
    A("s_endpgm")

def gen_k1(A):
    name = "k1_kernel"
    kernel_begin(A, name)
    A("s_cmp_ge_u32 s2, 256")
    A("s_cbranch_scc1 k1_done")
    stamp(A, 0); tl_start(A, 0)
    A("s_load_dwordx4 s[4:7], s[0:1], 0")
    A("s_load_dwordx4 s[48:51], s[0:1], 32")
    A("s_load_dwordx2 s[52:53], s[0:1], 16")
    A("s_load_dwordx2 s[54:55], s[0:1], 48")
    A("s_load_dwordx4 s[56:59], s[0:1], 72")
    A("v_lshrrev_b32 v1, 6, v0")
    A("s_and_b32 s32, s2, 7")
    A("v_readfirstlane_b32 s25, v1")
    A("v_and_b32 v1, 63, v0")
    A("s_lshr_b32 s33, s2, 3")
    A("s_lshr_b32 s34, s32, 2")
    A("s_and_b32 s35, s32, 3")
    A("s_mov_b32 s45, 1.0")
    A("s_cmp_ge_u32 s33, 15")
    A("s_cbranch_scc1 k1_dh")
    A("s_mul_i32 s36, s35, 15")
    A("s_add_u32 s36, s36, s33")
    A("s_lshr_b32 s75, s36, 2")
    A("s_and_b32 s38, s36, 3")
    A("s_lshl_b32 s39, s34, 2")
    A("s_add_u32 s38, s38, s39")
    A("s_lshl_b32 s30, s38, 8")
    A("s_lshl_b32 s31, s75, 7")
    A("s_mov_b32 s29, s31")
    A("s_movk_i32 s27, 256"); A("s_movk_i32 s26, 128")
    A("s_cmp_lt_u32 s75, 5")
    A(f"s_cselect_b32 s45, {f32hex(DH**-0.5 * math.log2(math.e))}, s45")
    A("s_cmp_ge_u32 s75, 10")
    A("s_cselect_b32 s28, 1, 0")
    A("s_branch k1_dd")
    A("k1_dh:")
    A("s_sub_u32 s36, s33, 15")
    A("s_lshr_b32 s37, s36, 3")
    A("s_lshl_b32 s38, s35, 1")
    A("s_add_u32 s37, s37, s38")
    A("s_and_b32 s38, s36, 7")
    A("s_lshl_b32 s39, s34, 3")
    A("s_add_u32 s38, s38, s39")
    A("s_lshl_b32 s30, s38, 7")
    A("s_mul_i32 s31, s37, 192")
    A("s_add_u32 s29, s31, 1920")
    A("s_movk_i32 s27, 128"); A("s_movk_i32 s26, 192")
    A("s_cmp_ge_u32 s33, 31")
    A("s_cselect_b32 s28, 3, 2")
    A("k1_dd:")
    A("s_cmp_lt_u32 s25, 6")
    A("s_cbranch_scc1 k1_other")
    A("s_sub_u32 s25, s25, 6")
    A("s_cmp_eq_u32 s28, 3")
    A("s_cbranch_scc0 k1_ld0")
    A("s_waitcnt lgkmcnt(0)")
    A("s_branch k1_ld_pack")
    A("k1_ld0:")
    A("v_lshrrev_b32 v2, 3, v1")
    A("v_and_b32 v3, 7, v1")
    A("v_lshrrev_b32 v4, 4, v1")
    A("s_lshr_b32 s40, s27, 1")
    A("s_mul_i32 s40, s40, s25")
    A("s_lshl_b32 s26, s40, 7")
    A("s_add_u32 s40, s40, s30")
    A("v_add_u32 v2, s40, v2")
    A("v_mul_u32_u24 v2, 1280, v2")
    A("v_xor_b32 v5, v3, v4")
    A("v_xor_b32 v6, 4, v5")
    A("v_lshl_add_u32 v5, v5, 4, v2")
    A("v_lshl_add_u32 v6, v6, 4, v2")
    for q in range(8):
        A(f"v_add_u32 v{DV+q}, {q*8*1280 - (q&3)*1024}, v{5 + (q&1)}")
    A("s_mov_b32 s21, 0"); A("s_mov_b32 s22, 0"); A("s_mov_b32 s23, 0")
    A("s_mov_b32 s20, 0")
    A("s_mov_b32 m0, s26")
    A("s_waitcnt lgkmcnt(0)")
    srd(A, 8, PX, XSZ)
    for q in range(8):
        if q == 4:
            A("s_add_u32 m0, m0, 4096"); A("s_nop 0")
        A(f"buffer_load_dwordx4 v{DV+q}, s[8:11], s21 offen offset:{(q&3)*1024} lds" + NTF("a"))
    A("s_cmp_eq_u32 s28, 2")
    A("s_cbranch_scc1 k1_ldh")
    loader(A, "k1_ldq", 4, 2, 3840, False)
    loader(A, "k1_ldh", 2, 3, 3072, True)
    loader_tail(A)
    A("k1_other:")
    A("s_cmp_ge_u32 s25, 4")
    A("s_cbranch_scc1 k1_helper")
    A("s_cmp_eq_u32 s28, 1")
    A("s_cbranch_scc1 k1_v")
    A("s_cmp_eq_u32 s28, 2")
    A("s_cbranch_scc1 k1_h")
    A("s_cmp_eq_u32 s28, 3")
    A("s_cbranch_scc1 k1_done")
    SS1 = gemm_core(A, "k1qk", 4, 2, True, 3840, False)
    A("v_and_b32 v2, 31, v1")
    A("v_lshrrev_b32 v3, 5, v1")
    A("s_lshl_b32 s32, s43, 10")
    A(f"s_add_u32 s32, s32, {EP}")
    A("v_lshl_add_u32 v12, v2, 3, s32")
    for t in range(4):
        A(f"ds_read_b64 {pr(4+2*t)}, v12 offset:{t*256}")
    A("s_lshl_b32 s32, s44, 8")
    A(f"s_add_u32 s32, s32, {CSL}")
    A("v_lshl_add_u32 v12, v3, 4, s32")
    for u in range(2):
        for j in range(4):
            A(f"ds_read_b128 {vr(48+16*u+4*j,4)}, v12 offset:{128*u+32*j}")
    A("s_cmp_ge_u32 s75, 5")
    A(f"s_cselect_b32 s36, {K_OFF - Q_OFF - 80*32768}, 0")
    srd(A, 16, PWS, K_OFF - Q_OFF + 80 * 32768, Q_OFF)
    A("s_lshl_b32 s38, s75, 4")
    A("s_lshl_b32 s32, s44, 3")
    A("s_add_u32 s38, s38, s32")
    A("s_lshl_b32 s38, s38, 15")
    A("s_add_u32 s38, s38, s36")
    A("s_lshl_b32 s32, s43, 7")
    A("s_add_u32 s32, s32, s30")
    A("s_lshl_b32 s32, s32, 4")
    A("s_add_u32 s38, s38, s32")
    for i in range(1, 4):
        A(f"s_add_u32 s{38+i}, s{37+i}, 65536")
    A("v_lshlrev_b32 v3, 15, v3")
    A("v_lshl_add_u32 v16, v2, 4, v3")
    A("s_waitcnt lgkmcnt(0)")
    for t in range(4):
        for u in range(2):
            a = ACC + (t * 2 + u) * 16
            T = 80
            for i in range(0, 16, 2):
                A(f"v_pk_mul_f32 {pr(T+i)}, {pr(48+16*u+i)}, {pr(4+2*t)} op_sel:[0,1] op_sel_hi:[1,1]")
            for i in range(0, 16, 2):
                A(f"v_pk_fma_f32 {pr(a+i)}, {pr(a+i)}, {pr(4+2*t)}, {pr(T+i)} op_sel_hi:[1,0,1] neg_lo:[0,0,1] neg_hi:[0,0,1]")
            p = 18 + ((t * 2 + u) % 3) * 8
            for i in range(8):
                A(f"v_cvt_pk_bf16_f32 v{p+i}, v{a+2*i}, v{a+2*i+1}")
            A("s_nop 0")
            for j in range(2):
                A(f"v_permlane32_swap_b32 v{p+4*j}, v{p+4*j+2}")
                A(f"v_permlane32_swap_b32 v{p+4*j+1}, v{p+4*j+3}")
            for j in range(2):
                A(f"buffer_store_dwordx4 v[{p+4*j}:{p+4*j+3}], v16, s[16:19], s{38+u*2+j} offen offset:{t*512} {STF}")
    fin(A)
    A("k1_v:")
    gemm_core(A, "k1v", 4, 2, False, 3840, False)
    A("v_and_b32 v2, 31, v1")
    A("v_lshrrev_b32 v3, 5, v1")
    A("s_lshl_b32 s32, s43, 9")
    A(f"s_add_u32 s32, s32, {EP+2048}")
    A("v_lshl_add_u32 v12, v3, 4, s32")
    A("s_lshl_b32 s32, s44, 8")
    A(f"s_add_u32 s32, s32, {CSL}")
    A("v_lshl_add_u32 v13, v2, 2, s32")
    for u in range(2):
        A(f"ds_read_b32 v{4+2*u}, v13 offset:{128*u}")
    def vrd(t):
        b = 48 + (t & 1) * 32
        for j in range(4):
            A(f"ds_read_b128 {vr(b+4*j,4)}, v12 offset:{t*128+32*j}")
            A(f"ds_read_b128 {vr(b+16+4*j,4)}, v12 offset:{1024+t*128+32*j}")
    vrd(0)
    srd(A, 16, PWS, 32 * 64 * VREC, V_OFF)
    A("s_lshr_b32 s38, s30, 5")
    A("s_lshl_b32 s32, s43, 2")
    A("s_add_u32 s38, s38, s32")
    A(f"s_mul_i32 s38, s38, {VREC}")
    for t in range(1, 4):
        A(f"s_add_u32 s{38+t}, s{37+t}, {VREC}")
    A("s_sub_u32 s33, s31, 1280")
    A("s_lshl_b32 s32, s44, 6")
    A("s_add_u32 s33, s33, s32")
    A(f"v_mul_u32_u24 v3, {VSB}, v3")
    A(f"s_mov_b32 s34, {64*VREC}")
    for u in range(2):
        A("v_add_u32 v8, s33, v2")
        if u: A("v_add_u32 v8, 32, v8")
        A("v_mul_u32_u24 v9, 3277, v8")
        A("v_lshrrev_b32 v9, 16, v9")
        A("v_mul_u32_u24 v10, 20, v9")
        A("v_sub_u32 v10, v8, v10")
        A("v_lshl_add_u32 v10, v10, 4, v3")
        A("v_mul_lo_u32 v9, v9, s34")
        A(f"v_add_u32 v{16+u}, v9, v10")
    for t in range(4):
        A("s_waitcnt lgkmcnt(0)")
        if t < 3: vrd(t + 1)
        b = 48 + (t & 1) * 32
        for u in range(2):
            a = ACC + (t * 2 + u) * 16
            T = 112
            for i in range(0, 16, 2):
                A(f"v_pk_mul_f32 {pr(T+i)}, {pr(b+16+i)}, {pr(4+2*u)} op_sel_hi:[1,0]")
            for i in range(0, 16, 2):
                A(f"v_pk_fma_f32 {pr(a+i)}, {pr(a+i)}, {pr(b+i)}, {pr(T+i)} neg_lo:[0,0,1] neg_hi:[0,0,1]")
            p = 18 + ((t * 2 + u) % 3) * 8
            for i in range(8):
                A(f"v_cvt_pk_bf16_f32 v{p+i}, v{a+2*i}, v{a+2*i+1}")
            A(f"buffer_store_dwordx4 v[{p}:{p+3}], v{16+u}, s[16:19], s{38+t} offen {STF}")
            A(f"buffer_store_dwordx4 v[{p+4}:{p+7}], v{16+u}, s[16:19], s{38+t} offen offset:{2*VSB} {STF}")
    fin(A)
    A("k1_h:")
    SS2 = gemm_core(A, "k1h", 2, 3, True, 3072, True)
    A("v_and_b32 v2, 31, v1")
    A("v_lshrrev_b32 v3, 5, v1")
    A("s_lshl_b32 s32, s43, 9")
    A(f"s_add_u32 s32, s32, {EP}")
    A("v_lshl_add_u32 v12, v2, 3, s32")
    for t in range(2):
        A(f"ds_read_b64 {pr(8+2*t)}, v12 offset:{t*256}")
    A("s_mul_i32 s32, s44, 384")
    A(f"s_add_u32 s32, s32, {CSL}")
    A("v_lshl_add_u32 v12, v3, 4, s32")
    def hrd(u):
        b = 48 + (u & 1) * 32
        for j in range(4):
            A(f"ds_read_b128 {vr(b+4*j,4)}, v12 offset:{128*u+32*j}")
            A(f"ds_read_b128 {vr(b+16+4*j,4)}, v12 offset:{768+128*u+32*j}")
    hrd(0)
    srd(A, 16, PWS, 64 * 96 * 1024, HB_OFF)
    A("s_lshr_b32 s33, s30, 5")
    A("s_lshl_b32 s32, s43, 1")
    A("s_add_u32 s33, s33, s32")
    A("s_mul_i32 s33, s33, 96")
    A("s_lshr_b32 s32, s31, 4")
    A("s_add_u32 s33, s33, s32")
    A("s_mul_i32 s32, s44, 6")
    A("s_add_u32 s33, s33, s32")
    A("s_lshl_b32 s36, s33, 10")
    A(f"s_add_u32 s37, s36, {96*1024}")
    A("v_lshlrev_b32 v16, 4, v1")
    A("v_add_u32 v17, 4096, v16")
    c0 = -2.0 * math.sqrt(2.0 / math.pi) * math.log2(math.e)
    c1 = c0 * 0.044715
    A(f"v_mov_b32 v4, {f32hex(c0)}"); A(f"v_mov_b32 v5, {f32hex(c1)}")
    A("v_mov_b32 v6, 1.0")
    T = 112
    for u in range(3):
        A("s_waitcnt lgkmcnt(0)")
        if u < 2: hrd(u + 1)
        b = 48 + (u & 1) * 32
        for t in range(2):
            a = ACC + (t * 3 + u) * 16
            p = 18 + ((u * 2 + t) % 3) * 8
            ab = pr(8 + 2 * t)
            for i in range(0, 16, 2): A(f"v_pk_fma_f32 {pr(T+i)}, {pr(b+i)}, {ab}, {pr(b+16+i)} op_sel:[0,1,0] op_sel_hi:[1,1,1] neg_lo:[1,0,0] neg_hi:[1,0,0]")
            for i in range(0, 16, 2): A(f"v_pk_fma_f32 {pr(a+i)}, {pr(a+i)}, {ab}, {pr(T+i)} op_sel_hi:[1,0,1]")
            for i in range(0, 16, 2): A(f"v_pk_mul_f32 {pr(T+i)}, {pr(a+i)}, {pr(a+i)}")
            for i in range(0, 16, 2): A(f"v_pk_fma_f32 {pr(T+i)}, {pr(T+i)}, v[4:5], v[4:5] op_sel:[0,1,0] op_sel_hi:[1,1,0]")
            for i in range(0, 16, 2): A(f"v_pk_mul_f32 {pr(T+i)}, {pr(T+i)}, {pr(a+i)}")
            for i in range(16): A(f"v_exp_f32 v{T+i}, v{T+i}")
            for i in range(0, 16, 2): A(f"v_pk_add_f32 {pr(T+i)}, {pr(T+i)}, v[6:7] op_sel_hi:[1,0]")
            for i in range(16): A(f"v_rcp_f32 v{T+i}, v{T+i}")
            for i in range(0, 16, 2): A(f"v_pk_mul_f32 {pr(T+i)}, {pr(T+i)}, {pr(a+i)}")
            for i in range(8): A(f"v_cvt_pk_bf16_f32 v{p+i}, v{T+2*i}, v{T+2*i+1}")
            va = 16 if u < 2 else 17
            off = (2 * u * 1024) % 4096
            A(f"buffer_store_dwordx4 v[{p}:{p+3}], v{va}, s[16:19], s{36+t} offen offset:{off} {STH}")
            A(f"buffer_store_dwordx4 v[{p+4}:{p+7}], v{va}, s[16:19], s{36+t} offen offset:{off+1024} {STH}")
    fin(A)
    helper(A)
    A("k1_done:")
    A("s_endpgm")
    assert 3 * max(SS1, SS2) <= EP
    return kernel_desc(name, 256), f"; @launch kernel=k1_kernel grid=(256,1,1) block=(512,1,1) lds={LDS_BYTES}"
```

```python
from asmlib import *
from layout import *
import math, os

NST = 10
ACC = 128
XF = 48
WF = 80
DV = 16
XAB, WAB, XAC, WAC = 28, 32, 36, 40
PX, PWQ, PW1, PB1, PWO, PW2, PDBG, PWS = 4, 6, 48, 50, 52, 54, 56, 58
NSLOT = 4
EP = NSLOT * 32768
CSL = EP + 4096
BIASL = CSL + 768
PKS = EP + 6144
LDS_BYTES = PKS + 20480
ST_OFF = XN_OFF
CS_OFF = XN_OFF + 0x10000
PRIV_OFF = 0x8000000
NONL = EP + 6136
TIMEOUT = int(os.environ.get("K1TIMEOUT", "3000"))
SLOW = os.environ.get("K1SLOW", "")
NT = os.environ.get("NT", "")
def NTF(c): return " nt" if c in NT else ""
pr = lambda r: f"v[{r}:{r+1}]"

def bf16r(A, v):
    A(f"v_cvt_pk_bf16_f32 v{v}, v{v}, v{v}")
    A(f"v_and_b32 v{v}, 0xffff0000, v{v}")

RX, UX, RW = 16, 56, 136
def h_rows_issue(A):
    A("v_lshrrev_b32 v2, 3, v1")
    A("s_lshl_b32 s32, s70, 3")
    A("v_add_u32 v2, s32, v2")
    A("v_mul_u32_u24 v3, 1280, v2")
    A("v_and_b32 v4, 7, v1")
    A("v_lshl_add_u32 v3, v4, 4, v3")
    for j in range(10):
        A(f"buffer_load_dwordx4 {vr(RX+4*j,4)}, v3, s[8:11], 0 offen offset:{128*j}" + NTF("r"))
def red8(A, v):
    for mod in ("quad_perm:[1,0,3,2]", "quad_perm:[2,3,0,1]", "row_half_mirror"):
        A("s_nop 1")
        A(f"v_add_f32_dpp v{v}, v{v}, v{v} {mod} row_mask:0xf bank_mask:0xf")
def h_rows_p1a(A):
    for i in range(20):
        A(f"v_lshlrev_b32 v{UX+2*i}, 16, v{RX+i}")
        A(f"v_and_b32 v{UX+2*i+1}, 0xffff0000, v{RX+i}")
    A(f"v_add_f32 v5, v{UX}, v{UX+1}")
    A(f"v_add_f32 v6, v{UX+2}, v{UX+3}")
    for i in range(4, 40, 2):
        A(f"v_add_f32 v5, v5, v{UX+i}")
        A(f"v_add_f32 v6, v6, v{UX+i+1}")
def h_rows_p1b(A):
    for i in range(20, 40):
        A(f"v_lshlrev_b32 v{UX+2*i}, 16, v{RX+i}")
        A(f"v_and_b32 v{UX+2*i+1}, 0xffff0000, v{RX+i}")
    for i in range(40, 80, 2):
        A(f"v_add_f32 v5, v5, v{UX+i}")
        A(f"v_add_f32 v6, v6, v{UX+i+1}")
    A("v_add_f32 v5, v5, v6")
    red8(A, 5)
    A(f"v_mul_f32 v7, {f32hex(1.0/640)}, v5")
def h_rows_p1(A):
    h_rows_p1a(A); h_rows_p1b(A)
def h_rows_p2a(A):
    A("v_mov_b32 v5, 0"); A("v_mov_b32 v6, 0")
    for i in range(0, 52, 2):
        A(f"v_sub_f32 v13, v{UX+i}, v7")
        A(f"v_sub_f32 v14, v{UX+i+1}, v7")
        A("v_fmac_f32 v5, v13, v13")
        A("v_fmac_f32 v6, v14, v14")
def h_rows_p2(A):
    h_rows_p2a(A); h_rows_p2b(A)
def h_rows_p2b(A):
    s, mean, var, m, r, t2, r2 = 5, 7, 8, 9, 10, 11, 12
    for i in range(52, 80, 2):
        A(f"v_sub_f32 v13, v{UX+i}, v7")
        A(f"v_sub_f32 v14, v{UX+i+1}, v7")
        A("v_fmac_f32 v5, v13, v13")
        A("v_fmac_f32 v6, v14, v14")
    A("v_add_f32 v5, v5, v6")
    red8(A, 5)
    A(f"v_mul_f32 v{var}, {f32hex(1.0/640)}, v{s}")
    A(f"v_mov_b32 v{m}, v{mean}"); bf16r(A, m)
    A(f"v_mov_b32 v{s}, v{var}"); bf16r(A, s)
    A(f"v_add_f32 v{s}, {f32hex(1e-5)}, v{s}"); bf16r(A, s)
    A(f"v_sqrt_f32 v{s}, v{s}"); A("s_nop 0"); bf16r(A, s)
    A(f"v_rcp_f32 v{r}, v{s}")
    A(f"v_sub_f32 v{t2}, v{mean}, v{m}")
    A(f"v_mul_f32 v{t2}, v{t2}, v{r}"); bf16r(A, t2)
    A(f"v_mul_f32 v{s}, v{var}, v{r}")
    A(f"v_mul_f32 v{s}, v{s}, v{r}"); bf16r(A, s)
    A(f"v_add_f32 v{s}, {f32hex(1e-5)}, v{s}"); bf16r(A, s)
    A(f"v_sqrt_f32 v{s}, v{s}"); A("s_nop 0"); bf16r(A, s)
    A(f"v_rcp_f32 v{r2}, v{s}")
    O = RX
    A(f"v_mov_b32 v{O}, v{r}")
    A(f"v_mul_f32 v{O+1}, v{m}, v{r}")
    A(f"v_mul_f32 v{O+4}, v{r}, v{r2}")
    A(f"v_add_f32 v{O+5}, v{O+1}, v{t2}")
    A(f"v_mul_f32 v{O+5}, v{O+5}, v{r2}")
def h_rows_store(A):
    O = RX
    for i in (2, 3, 6, 7): A(f"v_mov_b32 v{O+i}, s76")
    A("v_lshlrev_b32 v3, 4, v2")
    A("v_add_u32 v4, 0x8000, v3")
    A("s_mov_b32 exec_lo, 0x01010101"); A("s_mov_b32 exec_hi, 0x01010101")
    A(f"buffer_store_dwordx4 {vr(O,4)}, v3, s[60:63], 0 offen sc1")
    A(f"buffer_store_dwordx4 {vr(O+4,4)}, v4, s[60:63], 0 offen sc1")
    A("s_mov_b64 exec, -1")
def h_strip_issue(A):
    A("s_lshr_b32 s35, s71, 2")
    A("s_cmp_lt_u32 s35, 30")
    A(f"s_cselect_b32 s12, s{PWQ}, s{PW1}")
    A(f"s_cselect_b32 s13, s{PWQ+1}, s{PW1+1}")
    A("s_cselect_b32 s33, 768, 0")
    A("s_cselect_b32 s34, 0, 30")
    A("s_add_u32 s33, s33, 3072")
    A("s_mul_i32 s14, s33, 640")
    A("s_mov_b32 s15, 0x00020000")
    A("s_cmp_lt_u32 s71, 216")
    A("s_cselect_b32 s14, s14, 0")
    A("s_sub_u32 s34, s35, s34")
    A("s_lshl_b32 s34, s34, 7")
    A("v_lshrrev_b32 v13, 3, v1")
    A("v_mul_lo_u32 v13, v13, s33")
    A("v_and_b32 v14, 7, v1")
    A("v_lshl_add_u32 v13, v14, 4, v13")
    A("v_add_u32 v13, s34, v13")
    A("s_and_b32 s34, s71, 3")
    A("s_mul_i32 s34, s34, 160")
    A("s_mul_i32 s34, s34, s33")
    A("s_lshl_b32 s33, s33, 3")
    for i in range(20):
        A(f"buffer_load_dwordx4 {vr(RW+4*i,4)}, v13, s[12:15], s34 offen" + NTF("s"))
        if i < 19: A("s_add_u32 s34, s34, s33")
def h_strip_p(A, lo, hi):
    C = 216
    for i in range(lo, hi):
        for e in range(4):
            w = RW + 4 * i + e
            if i == 0:
                A(f"v_lshlrev_b32 v{C+2*e}, 16, v{w}")
                A(f"v_and_b32 v{C+2*e+1}, 0xffff0000, v{w}")
            else:
                A(f"v_lshlrev_b32 v13, 16, v{w}")
                A(f"v_and_b32 v14, 0xffff0000, v{w}")
                A(f"v_add_f32 v{C+2*e}, v{C+2*e}, v13")
                A(f"v_add_f32 v{C+2*e+1}, v{C+2*e+1}, v14")
def h_strip_fin(A):
    C = 216; T = 224
    for mod in ("row_ror:8",):
        A("s_nop 1")
        for e in range(8):
            A(f"v_add_f32_dpp v{C+e}, v{C+e}, v{C+e} {mod} row_mask:0xf bank_mask:0xf")
    for op in ("v_permlane16_swap_b32", "v_permlane32_swap_b32"):
        for e in range(8): A(f"v_mov_b32 v{T+e}, v{C+e}")
        A("s_nop 1")
        for e in range(8): A(f"{op} v{C+e}, v{T+e}")
        A("s_nop 1")
        for e in range(8): A(f"v_add_f32 v{C+e}, v{C+e}, v{T+e}")
def h_strip_store(A):
    C = 216; T = 224
    A("v_lshrrev_b32 v13, 3, v1")
    A(f"v_mov_b32 v{T}, v{C}")
    for e in range(1, 8):
        A(f"v_cmp_eq_u32 vcc, {e}, v13")
        A("s_nop 1")
        A(f"v_cndmask_b32 v{T}, v{T}, v{C+e}, vcc")
    A(f"v_mov_b32 v{T+1}, s76")
    A("v_and_b32 v14, 7, v1")
    A("v_lshl_add_u32 v13, v14, 3, v13")
    A("s_lshr_b32 s33, s71, 2")
    A("s_lshl_b32 s33, s33, 9")
    A("s_and_b32 s34, s71, 3")
    A("s_lshl_b32 s34, s34, 15")
    A("s_add_u32 s33, s33, s34")
    A(f"s_add_u32 s33, s33, {CS_OFF - ST_OFF}")
    A("v_lshl_add_u32 v13, v13, 3, s33")
    A("s_cmp_lt_u32 s71, 216")
    A("s_cselect_b32 s33, 0, 0x40000000")
    A(f"buffer_store_dwordx2 {pr(T)}, v13, s[60:63], s33 offen sc1")

def h_pack_setup(A):
    A("s_cmp_ge_u32 s2, 96")
    A("s_cbranch_scc1 pk_n1")
    A("s_lshl_b32 s34, s2, 4"); A("s_mov_b32 s35, 4"); A("s_mov_b32 s36, 8"); A("s_movk_i32 s37, 1280")
    A(f"s_mov_b32 s16, s{PW2}"); A(f"s_mov_b32 s17, s{PW2+1}"); A(f"s_mov_b32 s18, {1536*1280}")
    A("s_lshl_b32 s84, s2, 10"); A(f"s_mov_b32 s85, {96*1024}"); A("s_mov_b32 s86, 10"); A("s_mov_b32 s32, 0")
    A("s_branch pk_go")
    A("pk_n1:")
    A("s_cmp_ge_u32 s2, 136")
    A("s_cbranch_scc1 pk_n2")
    A("s_sub_u32 s33, s2, 96")
    A("s_mul_i32 s34, s33, 20"); A("s_mov_b32 s35, 4"); A("s_mov_b32 s36, 8"); A("s_movk_i32 s37, 1280")
    A(f"s_mov_b32 s16, s{PWO}"); A(f"s_mov_b32 s17, s{PWO+1}"); A(f"s_mov_b32 s18, {640*1280}")
    A("s_lshl_b32 s84, s33, 10"); A(f"s_add_u32 s84, s84, {WOF_OFF - W2F_OFF}")
    A(f"s_mov_b32 s85, {40*1024}"); A("s_mov_b32 s86, 10"); A("s_mov_b32 s32, 0")
    A("s_cmp_lt_u32 s33, 32")
    A("s_cbranch_scc1 pk_go")
    A("s_sub_u32 s33, s33, 32")
    A("s_mul_i32 s34, s33, 80"); A("s_add_u32 s34, s34, 16"); A("s_mov_b32 s35, 40"); A("s_mov_b32 s36, 20")
    A("s_branch pk_go")
    A("pk_n2:")
    A("s_sub_u32 s33, s2, 136")
    A("s_mul_i32 s38, s33, 21846"); A("s_lshr_b32 s38, s38, 16")
    A("s_mul_i32 s32, s38, 3"); A("s_sub_u32 s32, s33, s32"); A("s_lshl_b32 s32, s32, 4")
    A("s_lshl_b32 s34, s38, 4"); A("s_mov_b32 s35, 8"); A("s_mov_b32 s36, 4"); A("s_movk_i32 s37, 3072")
    A(f"s_mov_b32 s16, s{PW1}"); A(f"s_mov_b32 s17, s{PW1+1}"); A(f"s_mov_b32 s18, {640*3072}")
    A("s_lshl_b32 s84, s38, 10"); A(f"s_add_u32 s84, s84, {W1F_OFF - W2F_OFF}")
    A(f"s_mov_b32 s85, {40*1024}"); A("s_mov_b32 s86, 8")
    A("pk_go:")
    A("s_mov_b32 s19, 0x00020000")
    A("s_mul_i32 s38, s86, s78")
    A("s_add_u32 s32, s32, s38")
    A("s_mul_i32 s38, s32, s85")
    A("s_add_u32 s84, s84, s38")
    A("v_mul_u32_u24 v12, s35, v246")
    A("v_add_u32 v12, s34, v12")
    A("v_add_u32 v12, v12, v245")
    A("v_mul_u32_u24 v248, s36, v249")
    A("v_add_u32 v12, v12, v248")
    A("v_mul_lo_u32 v12, v12, s37")
    A("s_lshl_b32 s32, s32, 6")
    A("v_add_u32 v12, s32, v12")
    A("v_add_u32 v253, v12, v250")
    A("s_mov_b32 s88, s16"); A("s_mov_b32 s89, s17"); A("s_mov_b32 s90, s18"); A("s_mov_b32 s91, s19")
def h_pack_issue(A):
    A("s_mov_b32 s32, 0")
    A("s_mov_b32 m0, s77")
    for j in range(10):
        if j == 8:
            A("s_cmp_eq_u32 s86, 8")
            A("s_cselect_b32 s90, 0, s90")
        A("buffer_load_dwordx4 v253, s[88:91], s32 offen lds" + NTF("p"))
        A("s_add_u32 m0, m0, 1024")
        A("s_add_u32 s32, s32, 64")
def h_pack_finish(A):
    lab = A.label("pf")
    for j in range(10):
        A(f"ds_read_b64_tr_b16 {pr(64+4*j)}, v251 offset:{j*1024}")
        A(f"ds_read_b64_tr_b16 {pr(66+4*j)}, v251 offset:{j*1024+256}")
    A("s_waitcnt lgkmcnt(0)")
    for j in range(10):
        if j == 8:
            A("s_cmp_eq_u32 s86, 8")
            A(f"s_cbranch_scc1 {lab}")
        A(f"buffer_store_dwordx4 {vr(64+4*j,4)}, v247, s[64:67], s84 offen")
        A("s_add_u32 s84, s84, s85")
    A(f"{lab}:")

def h_pack_lanes(A):
    A("v_bfe_u32 v245, v1, 2, 2")
    A("v_lshrrev_b32 v246, 5, v1")
    A("v_lshlrev_b32 v247, 4, v1")
    A("v_bfe_u32 v249, v1, 4, 1")
    A("v_and_b32 v250, 3, v1")
    A("v_lshlrev_b32 v250, 4, v250")
    A("s_mov_b32 s78, s25")
    A("s_mul_i32 s77, s78, 10240")
    A(f"s_add_u32 s77, s77, {PKS}")
    A("v_lshl_add_u32 v251, v246, 3, v245")
    A("v_lshlrev_b32 v251, 6, v251")
    A("v_lshl_add_u32 v251, v249, 5, v251")
    A("v_and_b32 v252, 3, v1")
    A("v_lshl_add_u32 v251, v252, 3, v251")
    A("v_add_u32 v251, s77, v251")

def helper(A):
    A("k1_helper:")
    A("v_mov_b32 v240, 0")
    A(f"v_mov_b32 v241, {NONL}")
    A("s_mov_b32 s70, s2")
    A("s_mov_b32 s71, s2")
    A("s_waitcnt lgkmcnt(0)")
    srd(A, 8, PX, XSZ)
    srd(A, 60, PWS, 0x30000, ST_OFF)
    srd(A, 20, PDBG, 256)
    A("s_cmp_eq_u32 s25, 5")
    A("s_cbranch_scc1 k1_hB0")
    h_rows_issue(A)
    A("s_cmp_lg_u32 s2, 0")
    A("s_cbranch_scc1 k1_hC")
    A("s_memrealtime s[32:33]")
    A("s_waitcnt lgkmcnt(0)")
    A("s_or_b32 s32, s32, 1")
    A("v_mov_b32 v13, s32")
    A("s_mov_b64 exec, 1")
    A("buffer_store_dword v13, v240, s[20:23], 0 offen sc1")
    A("s_mov_b64 exec, -1")
    A("k1_hC:")
    A("s_barrier")
    A("s_waitcnt vmcnt(0)")
    A("buffer_load_dword v242, v240, s[20:23], 0 offen")
    srd(A, 16, PWS, 64 * 40 * 1024, XF_OFF)
    A("v_lshrrev_b32 v13, 5, v2")
    A("v_mul_u32_u24 v13, 40960, v13")
    A("v_and_b32 v14, 31, v2")
    A("v_lshl_add_u32 v13, v14, 4, v13")
    A("v_lshl_add_u32 v13, v4, 9, v13")
    A("s_mov_b32 s32, 0")
    for i in range(10):
        A(f"buffer_store_dwordx4 {vr(RX+4*i,4)}, v13, s[16:19], s32 offen")
        if i < 9: A("s_add_u32 s32, s32, 4096")
    h_rows_p1a(A)
    A("s_barrier")
    h_rows_p1b(A)
    A("s_barrier")
    h_rows_p2a(A)
    A("s_barrier")
    h_rows_p2b(A)
    A("s_mov_b32 s34, 0")
    A("k1_hn:")
    A("s_waitcnt vmcnt(0)")
    A("v_readfirstlane_b32 s76, v242")
    A("s_nop 3")
    A("s_cmp_lg_u32 s76, 0")
    A("s_cbranch_scc1 k1_hn_ok")
    A("buffer_load_dword v242, v240, s[20:23], 0 offen sc1")
    A("s_add_u32 s34, s34, 1")
    A("s_sleep 1")
    A("s_cmp_lt_u32 s34, 400")
    A("s_cbranch_scc1 k1_hn")
    A("k1_hn_ok:")
    A("v_mov_b32 v242, s76")
    A("ds_write_b32 v241, v242")
    h_rows_store(A)
    A("s_waitcnt lgkmcnt(0)")
    A("s_barrier")
    A("s_cmp_eq_u32 s28, 3")
    A("s_cbranch_scc1 k1_done")
    A("v_add_u32 v243, s30, v1")
    A("v_lshlrev_b32 v243, 4, v243")
    A("v_add_u32 v244, s31, v1")
    A("v_lshlrev_b32 v244, 3, v244")
    A(f"v_add_u32 v244, {CS_OFF - ST_OFF}, v244")
    A("s_mov_b32 s68, 0"); A("s_mov_b32 s69, 0x8000"); A("s_mov_b32 s74, 0x10000"); A("s_mov_b32 s75, 0x18000")
    def gl():
        for i in range(2):
            A(f"buffer_load_dwordx4 {vr(16+4*i,4)}, v243, s[60:63], 0 offen offset:{1024*i} sc1")
        for q in range(4):
            for i in range(2):
                A(f"buffer_load_dwordx2 {pr(32+4*q+2*i)}, v244, s[60:63], s{68+q if q < 2 else 72+q} offen offset:{512*i} sc1")
    A("s_barrier")
    A("s_barrier")
    A("s_barrier")
    gl()
    A("s_barrier")
    A("s_barrier")
    A("s_mov_b32 s34, 0")
    A("k1_hpoll:")
    A("s_waitcnt vmcnt(0)")
    A("v_xor_b32 v60, s76, v18")
    A("v_xor_b32 v61, s76, v22")
    A("v_or_b32 v60, v60, v61")
    for q in range(8):
        A(f"v_xor_b32 v61, s76, v{33+2*q}")
        A("v_or_b32 v60, v60, v61")
    A("v_cmp_ne_u32 s[40:41], 0, v60")
    A("s_nop 3")
    A("s_or_b64 s[40:41], s[40:41], s[40:41]")
    A("s_cselect_b32 s32, 1, 0")
    A("s_cmp_eq_u32 s76, 0")
    A("s_cselect_b32 s32, 1, s32")
    A(f"s_cmp_eq_u32 s32, {0 if SLOW != '2' else 5}")
    A("s_cbranch_scc1 k1_hok")
    gl()
    A("s_add_u32 s34, s34, 1")
    A("s_cmp_eq_u32 s76, 0")
    A("s_cbranch_scc1 k1_hself")
    A(f"s_cmp_lt_u32 s34, {TIMEOUT}")
    A("s_cbranch_scc1 k1_hpoll")
    A("k1_hself:")
    A("s_lshl_b32 s32, s2, 18")
    A(f"s_add_u32 s32, s32, {PRIV_OFF}")
    A(f"s_add_u32 s60, s{PWS}, s32")
    A(f"s_addc_u32 s61, s{PWS+1}, 0")
    A("s_lshr_b32 s70, s30, 3")
    A("s_add_u32 s39, s70, 16")
    A("k1_hs1:")
    h_rows_issue(A)
    A("s_waitcnt vmcnt(0)")
    h_rows_p1(A); h_rows_p2(A); h_rows_store(A)
    A("s_add_u32 s70, s70, 1")
    A("s_cmp_lt_u32 s70, s39")
    A("s_cbranch_scc1 k1_hs1")
    A("s_lshr_b32 s71, s31, 4")
    A("s_add_u32 s39, s71, 8")
    A("k1_hs2:")
    h_strip_issue(A)
    A("s_waitcnt vmcnt(0)")
    h_strip_p(A, 0, 20); h_strip_fin(A); h_strip_store(A)
    A("s_add_u32 s71, s71, 1")
    A("s_cmp_lt_u32 s71, s39")
    A("s_cbranch_scc1 k1_hs2")
    A("s_waitcnt vmcnt(0)")
    gl()
    A("s_waitcnt vmcnt(0)")
    A("k1_hok:")
    A("v_lshlrev_b32 v12, 3, v1")
    A(f"v_add_u32 v12, {EP}, v12")
    A("v_lshlrev_b32 v13, 2, v1")
    A(f"v_add_u32 v13, {EP}, v13")
    for i in range(2):
        A(f"v_mul_f32 v{16+4*i}, s45, v{16+4*i}")
        A(f"v_mul_f32 v{17+4*i}, s45, v{17+4*i}")
        A(f"ds_write_b64 v12, {pr(16+4*i)} offset:{512*i}")
        A(f"ds_write_b32 v13, v{16+4*i} offset:{2048+256*i}")
        A(f"ds_write_b32 v13, v{17+4*i} offset:{3072+256*i}")
    for i in range(2):
        for q in range(1, 4):
            A(f"v_add_f32 v{32+2*i}, v{32+2*i}, v{32+4*q+2*i}")
        A(f"ds_write_b32 v13, v{32+2*i} offset:{CSL-EP+256*i}")
    A("s_waitcnt lgkmcnt(0)")
    A("s_barrier")
    A("s_endpgm")
    A("k1_hB0:")
    h_strip_issue(A)
    A("s_barrier")
    A("s_waitcnt vmcnt(15)")
    h_strip_p(A, 0, 5)
    A("s_barrier")
    A("s_waitcnt vmcnt(10)")
    h_strip_p(A, 5, 10)
    A("s_barrier")
    A("s_waitcnt vmcnt(0)")
    h_strip_p(A, 10, 16)
    A("s_barrier")
    h_strip_p(A, 16, 20)
    h_strip_fin(A)
    A("s_barrier")
    A("ds_read_b32 v242, v241")
    A("s_waitcnt lgkmcnt(0)")
    A("v_readfirstlane_b32 s76, v242")
    A("s_nop 1")
    h_strip_store(A)
    srd(A, 16, PWS, 32 * 64 * VREC, V_OFF)
    A("s_cmp_lt_u32 s2, 128")
    A("s_cselect_b32 s18, s18, 0")
    A("s_lshl_b32 s32, s2, 6")
    A("v_add_u32 v12, s32, v1")
    A("v_lshrrev_b32 v13, 2, v12")
    A("v_and_b32 v12, 3, v12")
    A(f"v_mul_u32_u24 v13, {VREC}, v13")
    A(f"v_mul_u32_u24 v12, {VSB}, v12")
    A("v_add_u32 v12, v12, v13")
    for i in range(4): A(f"v_mov_b32 v{124+i}, 0x3f803f80")
    A("buffer_store_dwordx4 v[124:127], v12, s[16:19], 0 offen offset:320")
    srd(A, 16, PWS, NSYNC * 4096, SYNC_OFF)
    A("s_lshl_b32 s32, s2, 12")
    A("v_lshlrev_b32 v12, 2, v1")
    A("buffer_store_dword v240, v12, s[16:19], s32 offen")
    A("s_cmp_eq_u32 s28, 3")
    A("s_cbranch_scc1 k1_done")
    A("s_barrier")
    A("s_barrier")
    A("s_barrier")
    A("s_endpgm")

BM = BN = 128
AB = BM * 128; PITCH = 256; SS = 32768
def loader(A):
    A("s_sub_u32 s25, s25, 6")
    A("v_lshrrev_b32 v2, 3, v1")
    A("v_and_b32 v3, 7, v1")
    A("v_lshrrev_b32 v4, 4, v1")
    A("s_lshl_b32 s40, s25, 6")
    A("s_lshl_b32 s26, s25, 13")
    A(f"s_add_u32 s27, s26, {AB}")
    A("s_add_u32 s40, s40, s30")
    A("v_add_u32 v2, s40, v2")
    A("v_mul_u32_u24 v2, 1280, v2")
    A("v_xor_b32 v5, v3, v4")
    A("v_xor_b32 v6, 4, v5")
    A("v_lshl_add_u32 v5, v5, 4, v2")
    A("v_lshl_add_u32 v6, v6, 4, v2")
    for q in range(8):
        A(f"v_add_u32 v{DV+q}, {q*8*1280 - (q&3)*1024}, v{5 + (q&1)}")
    A("v_and_b32 v9, 15, v1")
    A("v_lshlrev_b32 v10, 2, v4")
    A("v_xor_b32 v9, v9, v10")
    A("s_lshl_b32 s41, s25, 5")
    A("v_add_u32 v8, s41, v4")
    A("v_mul_u32_u24 v8, 3840, v8")
    A("v_lshl_add_u32 v8, v9, 4, v8")
    A("s_lshl_b32 s42, s31, 1")
    A("v_add_u32 v8, s42, v8")
    for q in range(8):
        A(f"v_add_u32 v{DV+8+q}, {q*4*3840 - (q&3)*1024}, v8")
    def stage():
        for part, (base, srdr, so) in enumerate((("s26", "s[8:11]", "s21"), ("s27", "s[12:15]", "s22"))):
            for q in range(8):
                if q % 4 == 0:
                    A(f"s_add_u32 m0, s23, {base}" if q == 0 else "s_add_u32 m0, m0, 4096")
                    A("s_nop 0")
                A(f"buffer_load_dwordx4 v{DV+8*part+q}, {srdr}, {so} offen offset:{(q&3)*1024} lds" + NTF("ab"[part]))
        A("s_add_u32 s21, s21, 128")
        A(f"s_add_u32 s22, s22, {64*3840}")
        A(f"s_add_u32 s23, s23, {SS}")
        A(f"s_and_b32 s23, s23, {NSLOT*SS-1}")
    A("s_mov_b32 s21, 0"); A("s_mov_b32 s22, 0"); A("s_mov_b32 s23, 0")
    A("s_mov_b32 s20, 0")
    A("s_waitcnt lgkmcnt(0)")
    srd(A, 8, PX, XSZ)
    srd(A, 12, PWQ, 640 * 3840)
    stage(); stage()
    A("k1_ld_loop:")
    stage()
    A("s_waitcnt vmcnt(32)")
    A("s_barrier")
    A("s_add_u32 s20, s20, 1")
    A(f"s_cmp_lt_u32 s20, {NST-2}")
    A("s_cbranch_scc1 k1_ld_loop")
    A("k1_ld_pack:")
    h_pack_lanes(A)
    h_pack_setup(A)
    srd(A, 64, PWS, 0x800000, W2F_OFF)
    h_pack_issue(A)
    A("s_cmp_eq_u32 s28, 3")
    A("s_cbranch_scc1 k1_ld_fin")
    A("s_waitcnt vmcnt(26)")
    A("s_barrier")
    A("s_waitcnt vmcnt(10)")
    A("s_barrier")
    A("s_barrier")
    A("k1_ld_fin:")
    A("s_waitcnt vmcnt(0)")
    h_pack_finish(A)
    A("s_endpgm")

def gemm_core(A, tag, transposed):
    TM = TN = 2
    A("s_and_b32 s43, s25, 1")
    A("s_lshr_b32 s44, s25, 1")
    A("v_and_b32 v2, 31, v1")
    A("v_lshrrev_b32 v3, 5, v1")
    A("v_bfe_u32 v4, v2, 1, 3")
    A(f"s_mul_i32 s46, s43, {TM*32*128}")
    A("v_lshlrev_b32 v5, 7, v2")
    A("v_add_u32 v5, s46, v5")
    for kk in range(4):
        A(f"v_add_u32 v6, {2*kk}, v3")
        A("v_xor_b32 v6, v6, v4")
        A(f"v_lshl_add_u32 v{XAB+kk}, v6, 4, v5")
    A("v_bfe_u32 v6, v1, 2, 2")
    A("v_lshl_add_u32 v7, v3, 3, v6")
    A(f"v_mul_u32_u24 v7, {PITCH}, v7")
    A("v_bfe_u32 v8, v1, 4, 1")
    A("v_lshl_add_u32 v7, v8, 5, v7")
    A("v_and_b32 v8, 3, v1")
    A("v_lshl_add_u32 v7, v8, 3, v7")
    A(f"v_add_u32 v7, {AB}, v7")
    A(f"s_mul_i32 s46, s44, {TN}")
    for u in range(TN):
        A(f"s_add_u32 s47, s46, {u}")
        A("v_xor_b32 v8, s47, v6")
        A(f"v_lshl_add_u32 v{WAB+u}, v8, 6, v7")
    for i in range(TM * TN * 16):
        A(f"v_mov_b32 v{ACC+i}, 0")
    def reads(kk, buf):
        L = []
        for t in range(TM):
            L.append(f"ds_read_b128 {vr(XF + (buf*4+t)*4, 4)}, v{XAC+kk} offset:{t*4096}")
        for u in range(TN):
            for i in range(2):
                L.append(f"ds_read_b64_tr_b16 {vr(WF + (buf*3+u)*4 + 2*i, 2)}, v{WAC+u} offset:{(16*kk+4*i)*PITCH}")
        return L
    def mfmas(buf):
        L = []
        for t in range(TM):
            for u in range(TN):
                a = ACC + (t * TN + u) * 16
                x = vr(XF + (buf*4+t)*4, 4); w = vr(WF + (buf*3+u)*4, 4)
                o = (w, x) if transposed else (x, w)
                L.append(f"v_mfma_f32_32x32x16_bf16 {vr(a,16)}, {o[0]}, {o[1]}, {vr(a,16)}")
        return L
    def setcur():
        L = []
        for kk in range(4): L.append(f"v_add_u32 v{XAC+kk}, s24, v{XAB+kk}")
        for u in range(TN): L.append(f"v_add_u32 v{WAC+u}, s24, v{WAB+u}")
        return L
    A("s_mov_b32 s24, 0"); A("s_mov_b32 s20, 0")
    for l in setcur(): A(l)
    A("s_setprio 2")
    stamp(A, 1)
    A("s_waitcnt lgkmcnt(0)")
    A("s_barrier")
    stamp(A, 2)
    for l in reads(0, 0): A(l)
    A(f"{tag}_loop:")
    NM = TM * TN
    for kk in range(4):
        buf = kk & 1
        ms = mfmas(buf)
        slots = [[] for _ in ms]
        A("s_waitcnt lgkmcnt(0)")
        if kk < 3:
            rd = reads(kk + 1, buf ^ 1)
        else:
            if os.environ.get("ITST"):
                A("s_memtime s[90:91]"); A("s_memtime s[92:93]")
            A("s_barrier")
            if os.environ.get("ITST"):
                A("s_memtime s[94:95]")
                A("s_waitcnt lgkmcnt(0)")
                A("s_mul_i32 m0, s20, 3")
                A("s_nop 1")
                A("v_writelane_b32 v47, s90, m0")
                A("s_add_u32 m0, m0, 1")
                A("s_nop 1")
                A("v_writelane_b32 v47, s92, m0")
                A("s_add_u32 m0, m0, 1")
                A("s_nop 1")
                A("v_writelane_b32 v47, s94, m0")
            rd = reads(0, buf ^ 1)
        for i, l in enumerate(rd):
            slots[i // 3].append(l)
        if kk == 1:
            slots[NM - 1] += [f"s_add_u32 s24, s24, {SS}", f"s_and_b32 s24, s24, {NSLOT*SS-1}"]
        if kk == 2:
            sc = setcur()
            slots[NM - 2] += sc[:3]; slots[NM - 1] += sc[3:]
        if kk == 3:
            slots[NM - 1] += ["s_add_u32 s20, s20, 1", f"s_cmp_lt_u32 s20, {NST}"]
        for m, sl in zip(ms, slots):
            A(m)
            for l in sl: A(l)
    A(f"s_cbranch_scc1 {tag}_loop")
    A("s_waitcnt lgkmcnt(0)")
    stamp(A, 3)

def fin(A):
    if os.environ.get("ITST"):
        srd(A, 72, PWS, 1 << 20, 0x4800000)
        A("s_lshl_b32 s76, s2, 2")
        A("s_add_u32 s76, s76, s25")
        A("s_lshl_b32 s76, s76, 8")
        A("v_and_b32 v1, 63, v0")
        A("v_lshlrev_b32 v1, 2, v1")
        A("v_mov_b32 v2, s80")
        A("v_sub_u32 v47, v47, v2")
        A("buffer_store_dword v47, v1, s[72:75], s76 offen")
    stamp(A, 4); stamp_flush(A, 5, PWS, 0, 25); tl_end(A, 0)
    A("s_endpgm")

def gen_k1(A):
    name = "k1_kernel"
    kernel_begin(A, name)
    A("s_cmp_ge_u32 s2, 256")
    A("s_cbranch_scc1 k1_done")
    stamp(A, 0); tl_start(A, 0)
    A("s_load_dwordx4 s[4:7], s[0:1], 0")
    A("s_load_dwordx4 s[48:51], s[0:1], 32")
    A("s_load_dwordx2 s[52:53], s[0:1], 16")
    A("s_load_dwordx2 s[54:55], s[0:1], 48")
    A("s_load_dwordx4 s[56:59], s[0:1], 72")
    A("v_lshrrev_b32 v1, 6, v0")
    A("s_and_b32 s32, s2, 7")
    A("v_readfirstlane_b32 s25, v1")
    A("v_and_b32 v1, 63, v0")
    A("s_lshr_b32 s33, s2, 3")
    A("s_lshr_b32 s34, s32, 2")
    A("s_and_b32 s35, s32, 3")
    A("s_mul_i32 s36, s35, 30")
    A("s_add_u32 s36, s36, s33")
    A("s_lshr_b32 s75, s36, 3")
    A("s_and_b32 s38, s36, 7")
    A("s_lshl_b32 s39, s34, 3")
    A("s_add_u32 s38, s38, s39")
    A("s_lshl_b32 s30, s38, 7")
    A("s_lshl_b32 s31, s75, 7")
    A("s_mov_b32 s45, 1.0")
    A("s_cmp_lt_u32 s75, 5")
    A(f"s_cselect_b32 s45, {f32hex(DH**-0.5 * math.log2(math.e))}, s45")
    A("s_cmp_ge_u32 s75, 10")
    A("s_cselect_b32 s28, 1, 0")
    A("s_cmp_ge_u32 s33, 30")
    A("s_cselect_b32 s28, 3, s28")
    A("s_cmp_lt_u32 s25, 6")
    A("s_cbranch_scc1 k1_other")
    A("s_cmp_eq_u32 s28, 3")
    A("s_cbranch_scc0 k1_ld")
    A("s_sub_u32 s25, s25, 6")
    A("s_waitcnt lgkmcnt(0)")
    A("s_branch k1_ld_pack")
    A("k1_ld:")
    loader(A)
    A("k1_other:")
    A("s_cmp_ge_u32 s25, 4")
    A("s_cbranch_scc1 k1_helper")
    A("s_cmp_eq_u32 s28, 1")
    A("s_cbranch_scc1 k1_v")
    A("s_cmp_eq_u32 s28, 3")
    A("s_cbranch_scc1 k1_done")
    gemm_core(A, "k1qk", True)
    A("s_lshl_b32 s32, s43, 9")
    A(f"s_add_u32 s32, s32, {EP}")
    A("v_lshl_add_u32 v12, v2, 3, s32")
    for t in range(2):
        A(f"ds_read_b64 {pr(4+2*t)}, v12 offset:{t*256}")
    A("s_lshl_b32 s32, s44, 8")
    A(f"s_add_u32 s32, s32, {CSL}")
    A("v_lshl_add_u32 v12, v3, 4, s32")
    for u in range(2):
        for j in range(4):
            A(f"ds_read_b128 {vr(48+16*u+4*j,4)}, v12 offset:{128*u+32*j}")
    A("s_cmp_ge_u32 s75, 5")
    A(f"s_cselect_b32 s36, {K_OFF - Q_OFF - 80*32768}, 0")
    srd(A, 16, PWS, K_OFF - Q_OFF + 80 * 32768, Q_OFF)
    A("s_lshl_b32 s38, s75, 4")
    A("s_lshl_b32 s32, s44, 3")
    A("s_add_u32 s38, s38, s32")
    A("s_lshl_b32 s38, s38, 15")
    A("s_add_u32 s38, s38, s36")
    A("s_lshl_b32 s32, s43, 6")
    A("s_add_u32 s32, s32, s30")
    A("s_lshl_b32 s32, s32, 4")
    A("s_add_u32 s38, s38, s32")
    for i in range(1, 4):
        A(f"s_add_u32 s{38+i}, s{37+i}, 65536")
    A("v_lshlrev_b32 v3, 15, v3")
    A("v_lshl_add_u32 v16, v2, 4, v3")
    A("s_waitcnt lgkmcnt(0)")
    for t in range(2):
        for u in range(2):
            a = ACC + (t * 2 + u) * 16
            T = 80
            for i in range(0, 16, 2):
                A(f"v_pk_mul_f32 {pr(T+i)}, {pr(48+16*u+i)}, {pr(4+2*t)} op_sel:[0,1] op_sel_hi:[1,1]")
            for i in range(0, 16, 2):
                A(f"v_pk_fma_f32 {pr(a+i)}, {pr(a+i)}, {pr(4+2*t)}, {pr(T+i)} op_sel_hi:[1,0,1] neg_lo:[0,0,1] neg_hi:[0,0,1]")
            p = 18 + ((t * 2 + u) % 3) * 8
            for i in range(8):
                A(f"v_cvt_pk_bf16_f32 v{p+i}, v{a+2*i}, v{a+2*i+1}")
            A("s_nop 0")
            for j in range(2):
                A(f"v_permlane32_swap_b32 v{p+4*j}, v{p+4*j+2}")
                A(f"v_permlane32_swap_b32 v{p+4*j+1}, v{p+4*j+3}")
            for j in range(2):
                A(f"buffer_store_dwordx4 v[{p+4*j}:{p+4*j+3}], v16, s[16:19], s{38+u*2+j} offen offset:{t*512}")
    fin(A)
    A("k1_v:")
    gemm_core(A, "k1v", False)
    A("s_lshl_b32 s32, s43, 8")
    A(f"s_add_u32 s32, s32, {EP+2048}")
    A("v_lshl_add_u32 v12, v3, 4, s32")
    A("s_lshl_b32 s32, s44, 8")
    A(f"s_add_u32 s32, s32, {CSL}")
    A("v_lshl_add_u32 v13, v2, 2, s32")
    for u in range(2):
        A(f"ds_read_b32 v{4+2*u}, v13 offset:{128*u}")
    for t in range(2):
        b = 48 + t * 32
        for j in range(4):
            A(f"ds_read_b128 {vr(b+4*j,4)}, v12 offset:{t*128+32*j}")
            A(f"ds_read_b128 {vr(b+16+4*j,4)}, v12 offset:{1024+t*128+32*j}")
    srd(A, 16, PWS, 32 * 64 * VREC, V_OFF)
    A("s_lshr_b32 s38, s30, 5")
    A("s_lshl_b32 s32, s43, 1")
    A("s_add_u32 s38, s38, s32")
    A(f"s_mul_i32 s38, s38, {VREC}")
    A(f"s_add_u32 s39, s38, {VREC}")
    A("s_sub_u32 s33, s31, 1280")
    A("s_lshl_b32 s32, s44, 6")
    A("s_add_u32 s33, s33, s32")
    A(f"v_mul_u32_u24 v3, {VSB}, v3")
    A(f"s_mov_b32 s34, {64*VREC}")
    for u in range(2):
        A("v_add_u32 v8, s33, v2")
        if u: A("v_add_u32 v8, 32, v8")
        A("v_mul_u32_u24 v9, 3277, v8")
        A("v_lshrrev_b32 v9, 16, v9")
        A("v_mul_u32_u24 v10, 20, v9")
        A("v_sub_u32 v10, v8, v10")
        A("v_lshl_add_u32 v10, v10, 4, v3")
        A("v_mul_lo_u32 v9, v9, s34")
        A(f"v_add_u32 v{16+u}, v9, v10")
    A("s_waitcnt lgkmcnt(0)")
    for t in range(2):
        b = 48 + t * 32
        for u in range(2):
            a = ACC + (t * 2 + u) * 16
            T = 112
            for i in range(0, 16, 2):
                A(f"v_pk_mul_f32 {pr(T+i)}, {pr(b+16+i)}, {pr(4+2*u)} op_sel_hi:[1,0]")
            for i in range(0, 16, 2):
                A(f"v_pk_fma_f32 {pr(a+i)}, {pr(a+i)}, {pr(b+i)}, {pr(T+i)} neg_lo:[0,0,1] neg_hi:[0,0,1]")
            p = 18 + ((t * 2 + u) % 3) * 8
            for i in range(8):
                A(f"v_cvt_pk_bf16_f32 v{p+i}, v{a+2*i}, v{a+2*i+1}")
            A(f"buffer_store_dwordx4 v[{p}:{p+3}], v{16+u}, s[16:19], s{38+t} offen")
            A(f"buffer_store_dwordx4 v[{p+4}:{p+7}], v{16+u}, s[16:19], s{38+t} offen offset:{2*VSB}")
    fin(A)
    helper(A)
    A("k1_done:")
    A("s_endpgm")
    return kernel_desc(name, 256), f"; @launch kernel=k1_kernel grid=(256,1,1) block=(512,1,1) lds={LDS_BYTES}"
```

```python
from asmlib import *
from layout import *
import math, os

QA1, QA2, QB1, QB2 = 16, 20, 22, 26
B2R = 28
VW = 36
SA, SB = 68, 84
PA, PB = 100, 108
OA, OB_ = 116, 132
KF = [(148, 152), (154, 158)]
VF = [(160, 164), (168, 172)]
MO, M5 = 176, 192
MF = 208
F5 = 240
VK1, VK2, VV = 4, 5, 6
VP = 8
VD = [12, 34, 35]
L16 = 47
KVSZ = (V_OFF - K_OFF) + 32 * 64 * VREC
SLOT = 24576
XCH = 0
WL = 2 * SLOT
FLAG = WL + 8 * 12288
LDS_BYTES = FLAG + 64
OOB = 0x40000

NT = os.environ.get("NT", "")
def NTF(c): return " nt" if c in NT else ""
def m16(d, a, b, c):
    return f"v_mfma_f32_32x32x16_bf16 {vr(d,16)}, {vr(a,4)}, {vr(b,4)}, {c}"
def m8(d, a, b, c):
    return f"v_mfma_f32_32x32x8_bf16 {vr(d,16)}, {vr(a,2)}, {vr(b,2)}, {c}"

def phase(out, s, p, mf, slots):
    E = lambda i: f"v_exp_f32 v{s+i}, v{s+i}"
    C = lambda i: f"v_cvt_pk_bf16_f32 v{p+i}, v{s+2*i}, v{s+2*i+1}"
    groups = [[E(0), E(1), E(2), E(3), C(0)],
              [E(4), E(5), C(1), E(6), E(7)],
              [C(2), E(8), E(9), C(3), E(10)],
              [E(11), C(4), E(12), E(13), C(5)],
              [E(14), E(15), C(6), C(7)]]
    X = os.environ.get("K2X", "")
    if "ord2" in X:
        groups = [[E(0), E(1), E(2), E(3), E(4)],
                  [E(5), C(0), E(6), E(7), C(1)],
                  [E(8), E(9), C(2), E(10), E(11)],
                  [C(3), E(12), E(13), C(4), E(14)],
                  [E(15), C(5), C(6), C(7)]]
    if "ord3" in X:
        groups = [[E(i) for i in range(0, 4)], [E(i) for i in range(4, 8)], [E(i) for i in range(8, 12)], [E(i) for i in range(12, 16)], [C(i) for i in range(8)]]
    for g in range(5):
        out += mf[g]
        out += slots[g]
        out += groups[g]

def rdK(buf, off):
    return [f"ds_read_b128 {vr(KF[buf][0],4)}, v{VK1} offset:{off}", "s_mov_b32 exec_hi, 0",
            f"ds_read_b64 {vr(KF[buf][1],2)}, v{VK2} offset:{off}", "s_mov_b32 exec_hi, -1"]
def rdV(buf, off):
    return [f"ds_read_b128 {vr(VF[buf][0],4)}, v{VV} offset:{off}", f"ds_read_b128 {vr(VF[buf][1],4)}, v{VV} offset:{off+2*VSB}"]
def toffK(i):
    i %= 8
    return (i // 4) * SLOT + (i % 4) * 1024
def toffV(i):
    i %= 8
    return (i // 4) * SLOT + (i % 4) * 2 * VREC

def rowmax(A, s, acc, first):
    if first:
        A(f"v_max3_f32 v{acc}, v{s}, v{s+1}, v{s+2}")
        A(f"v_max_f32 v{acc}, v{acc}, v{s+3}")
        st = 4
    else:
        st = 0
    for i in range(st, 16, 2):
        A(f"v_max3_f32 v{acc}, v{acc}, v{s+i}, v{s+i+1}")

def set_nc(A, acc, q2, tmp):
    A(f"v_mov_b32 v{tmp}, v{acc}")
    A("s_nop 1")
    A(f"v_permlane32_swap_b32 v{acc}, v{tmp}")
    A("s_nop 1")
    A(f"v_max_f32 v{acc}, v{acc}, v{tmp}")
    A(f"v_cvt_pk_bf16_f32 v{tmp}, -v{acc}, -v{acc}")
    A(f"v_lshlrev_b32 v{tmp}, 16, v{tmp}")
    A(f"v_sub_f32 v{tmp}, -v{acc}, v{tmp}")
    A("s_mov_b32 exec_lo, 0")
    A(f"v_cvt_pk_bf16_f32 v{q2}, -v{acc}, v{tmp}")
    A("s_mov_b64 exec, -1")

def dma_ops(slot):
    L = [f"s_add_u32 m0, s46, {slot*SLOT}", "s_nop 0"]
    for j in range(3):
        L.append(f"buffer_load_dwordx4 v{VD[j]}, s[20:23], s47 offen offset:{j*1024} lds" + NTF("k"))
    L.append("s_add_u32 s47, s47, s45")
    return L

def mlp_loads(st):
    p = st % 4; b = MF + (st % 4) * 8
    L = [(f"buffer_load_dwordx4 {vr(b,4)}, v{VP+p}, s[24:27], s48 offen" + NTF("h"), f"h{st}"),
         (f"buffer_load_dwordx4 {vr(b+4,4)}, v{VP+p}, s[28:31], s49 offen", f"w{st}")]
    if p == 0:
        L.append((f"buffer_load_dwordx4 {vr(F5 + ((st//4) % 2) * 4, 4)}, v{VP}, s[28:31], s50 offen", f"f{st}"))
    if p == 3:
        L += ["s_add_u32 s48, s48, 4096", "s_add_u32 s49, s49, 4096", "s_add_u32 s50, s50, 4096"]
    return L

def resolve_waits(body):
    isv = lambda x: (x[0] if isinstance(x, tuple) else x).startswith("buffer_")
    n = len(body)
    out = []
    for i, x in enumerate(body):
        if isinstance(x, tuple) and x[0] == "WAIT":
            cnt = 0; j = i
            while True:
                j = (j - 1) % n
                y = body[j]
                if isinstance(y, tuple) and y[0] != "WAIT" and y[1] == x[1]:
                    break
                if not (isinstance(y, tuple) and y[0] == "WAIT") and isv(y):
                    cnt += 1
                assert j != i
            out.append(f"s_waitcnt vmcnt({cnt})")
        else:
            out.append(x[0] if isinstance(x, tuple) else x)
    return out


def build_body():
    mm = []
    for st in range(12):
        b = MF + (st % 4) * 8
        mm.append(([("WAIT", f"w{st}"), m16(MO, b + 4, b, vr(MO, 16))], st if st % 4 else None))
        if st % 4 == 0:
            mm.append(([("WAIT", f"f{st}"), m16(M5, F5 + ((st // 4) % 2) * 4, b, vr(M5, 16))], st))
    body = []
    ph = 0
    for i in range(8):
        b = i & 1; nb = b ^ 1
        k = rdK(nb, toffK(i + 1)); v = rdV(nb, toffV(i + 1))
        last = (i % 4 == 3)
        for half in range(2):
            if ph < 15:
                x5, fin = mm[ph]
                post = mlp_loads((fin + 3) % 12) if fin is not None else []
                if fin == 9:
                    post = ["s_add_u32 s60, s58, 4096", "s_cmp_lt_u32 s39, 3"] + [f"s_cselect_b32 s{d}, s{d}, s{o}" for d, o in
                            ((24, 72), (25, 73), (26, 74), (28, 72), (29, 73), (30, 74), (48, 60), (49, 58))] + ["s_cselect_b32 s50, s50, 0x40000000"] + post
            else:
                x5, post = [], []
            if half == 0:
                pre = [("WAIT", f"d{i//4}"), "s_waitcnt lgkmcnt(0)", "s_barrier"] if last else []
                dm = dma_ops(i // 4) if last else []
                if dm:
                    dm[4] = (dm[4], f"d{(i//4)^1}")
                    dm = ["s_cmp_lt_u32 s39, 3", "s_cselect_b32 s22, s22, 0", "s_cselect_b32 s46, s46, 0x30000"] + dm
                phase(body, SA, PA,
                      [[m16(SB, KF[b][0], QB1, "0")], [m8(SB, KF[b][1], QB2, vr(SB, 16))],
                       [m16(OB_, VF[nb][0], PB, vr(OB_, 16))], [m16(OB_, VF[nb][1], PB + 4, vr(OB_, 16))], x5],
                      [pre + k, [], dm, [], post + ["s_waitcnt lgkmcnt(0)"]])
            else:
                tail = ["s_add_u32 s39, s39, 1", "s_cmp_lt_u32 s39, 4"] if i == 7 else []
                wl = []
                if i in (0, 2, 4):
                    wl = ["s_mov_b32 m0, s71", "s_add_u32 s71, s71, 1024",
                          f"buffer_load_dwordx4 v{L16}, s[72:75], s58 offen lds", "s_add_u32 s58, s58, 1024"]
                phase(body, SB, PB,
                      [[m16(SA, KF[nb][0], QA1, "0")], [m8(SA, KF[nb][1], QA2, vr(SA, 16))],
                       [m16(OA, VF[b][0], PA, vr(OA, 16))], [m16(OA, VF[b][1], PA + 4, vr(OA, 16))], x5],
                      [v, [], wl, [], post + tail])
            ph += 1
    return body

def prologue_vmem(body):
    i0 = next(i for i, x in enumerate(body) if isinstance(x, tuple) and x[1] == "h0" and x[0] != "WAIT")
    out = []
    for x in body[i0:]:
        if isinstance(x, tuple) and x[0] == "WAIT": continue
        t = x[0] if isinstance(x, tuple) else x
        if t.startswith("buffer_") or t.startswith("s_add_u32 m0") or t == "s_nop 0" or t.startswith("s_add_u32 s47") \
           or t.startswith("s_add_u32 s48") or t.startswith("s_add_u32 s49") or t.startswith("s_add_u32 s50"):
            out.append(t)
    return out


QP = 1040
RES = FLAG + 4
OS = 68
RW5 = [48, 52, 56, 60, 64]
ROWN = {12: MF + 4, 13: MF + 12, 14: MF + 20, 15: 248, 16: MF, 17: MF + 8, 18: MF + 16, 19: 252}
WB = 100
XO, X5R, BO, B5R = 28, 32, 36, 40
TIMEOUT = int(os.environ.get("K2TIMEOUT", "4000"))
pr = lambda r: f"v[{r}:{r+1}]"

def wof_loads():
    L = []
    for g in range(5):
        L.append(f"buffer_load_dwordx4 {vr(RW5[g], 4)}, v{VP}, s[72:75], s59 offen")
        if g < 4: L.append("s_add_u32 s59, s59, 4096")
    L.append(f"buffer_load_dwordx4 {vr(248, 4)}, v{VP+3}, s[72:75], s62 offen")
    L.append("s_add_u32 s62, s62, 4096")
    L.append(f"buffer_load_dwordx4 {vr(252, 4)}, v{VP+3}, s[72:75], s62 offen")
    L.append(f"buffer_load_dwordx4 {vr(XO,4)}, v13, s[8:11], 0 offen")
    L.append(f"buffer_load_dwordx2 {pr(X5R)}, v14, s[8:11], 0 offen")
    L.append(f"buffer_load_dwordx4 {vr(BO,4)}, v42, s[16:19], 0 offen")
    L.append(f"buffer_load_dwordx2 {pr(B5R)}, v43, s[16:19], 0 offen")
    return L

def gen_k2(A):
    name = "k2_kernel"
    kernel_begin(A, name)
    A("s_cmp_ge_u32 s2, 256")
    A("s_cbranch_scc1 k2_done")
    stamp(A, 0); tl_start(A, 1)
    A("s_load_dwordx2 s[6:7], s[0:1], 80")
    A("s_load_dwordx4 s[76:79], s[0:1], 56")
    A("s_load_dwordx2 s[4:5], s[0:1], 0")
    A("v_lshrrev_b32 v1, 6, v0")
    A("s_nop 0")
    A("v_readfirstlane_b32 s64, v1")
    A("s_and_b32 s32, s2, 7")
    A("s_lshr_b32 s33, s2, 3")
    A("s_lshl_b32 s34, s32, 2")
    A("s_lshr_b32 s53, s33, 3")
    A("s_add_u32 s34, s34, s53")
    A("s_and_b32 s35, s33, 7")
    A("s_lshl_b32 s52, s35, 3")
    A("s_add_u32 s52, s52, s32")
    A("s_and_b32 s65, s64, 3")
    A("s_lshr_b32 s66, s64, 2")
    A("k2_restart:")
    A("v_and_b32 v1, 63, v0")
    A(f"v_lshlrev_b32 v{L16}, 4, v1")
    A("s_mul_i32 s46, s64, 3072")
    A("s_mul_i32 s67, s34, 5")
    A("s_lshr_b32 s67, s67, 1")
    A("s_and_b32 s68, s34, 1")
    A(f"s_mul_i32 s45, s66, {8*VREC - 4096}")
    A("s_add_u32 s45, s45, 4096")
    A("s_mul_i32 s69, s65, 3")
    A(f"s_mul_i32 s70, s34, {64*VREC}")
    A(f"s_add_u32 s70, s70, {V_OFF - K_OFF}")
    for j in range(3):
        A(f"s_add_u32 s54, s69, {j}")
        A("s_lshr_b32 s55, s54, 2")
        A("s_add_u32 s55, s55, s67")
        A("s_lshl_b32 s55, s55, 15")
        A("s_and_b32 s56, s54, 3")
        A("s_lshl_b32 s56, s56, 10")
        A("s_add_u32 s55, s55, s56")
        A("s_lshl_b32 s56, s54, 10")
        A("s_add_u32 s56, s56, s70")
        if j == 2:
            A("s_cmp_eq_u32 s54, 11")
            A("s_cselect_b32 s56, 0x40000000, s56")
        A("s_cmp_eq_u32 s66, 0")
        A("s_cselect_b32 s55, s55, s56")
        if j: A(f"s_sub_u32 s55, s55, {j*1024}")
        A(f"v_add_u32 v{VD[j]}, s55, v{L16}")
    A(f"s_mov_b32 s51, {KVSZ}")
    A("s_mov_b32 s38, 0")
    A("s_lshl_b32 s36, s35, 3")
    A("s_lshl_b32 s37, s65, 1")
    A("s_add_u32 s36, s36, s37")
    A("s_add_u32 s36, s36, s66")
    A("s_lshl_b32 s37, s36, 9")
    A("s_lshl_b32 s54, s67, 15")
    A("s_add_u32 s37, s37, s54")
    A("s_xor_b32 s44, s37, 512")
    A("v_and_b32 v2, 31, v1")
    A("v_lshrrev_b32 v3, 5, v1")
    A("v_add_u32 v7, s68, v3")
    A("v_lshlrev_b32 v15, 4, v2")
    A(f"v_lshl_add_u32 v{VK1}, v7, 12, v15")
    A("v_lshl_add_u32 v40, v7, 15, v15")
    A("s_lshl_b32 s54, s68, 1")
    A("s_sub_u32 s54, 2, s54")
    A("s_lshl_b32 s55, s68, 3")
    A("s_lshl_b32 s56, s54, 12")
    A("s_add_u32 s56, s56, s55")
    A(f"v_add_u32 v{VK2}, s56, v15")
    A("s_lshl_b32 s56, s54, 15")
    A("s_add_u32 s56, s56, s55")
    A("v_add_u32 v41, s56, v15")
    for r in (QA2, QA2 + 1, QB2, QB2 + 1): A(f"v_mov_b32 v{r}, 0")
    for r in (KF[0][1], KF[0][1] + 1, KF[1][1], KF[1][1] + 1): A(f"v_mov_b32 v{r}, 0x3f803f80")
    for p in range(4):
        A(f"s_xor_b32 s54, s65, {p}")
        A("s_lshl_b32 s54, s54, 10")
        A(f"v_add_u32 v{VP+p}, s54, v{L16}")
    A("s_waitcnt lgkmcnt(0)")
    srd(A, 20, 6, KVSZ, K_OFF)
    srd(A, 8, 6, 80 * 32768, Q_OFF)
    A("s_mov_b32 s47, 0")
    for l in dma_ops(0): A(l)
    A(f"buffer_load_dwordx4 {vr(QA1,4)}, v40, s[8:11], s37 offen")
    A(f"buffer_load_dwordx4 {vr(QB1,4)}, v40, s[8:11], s44 offen")
    A("s_mov_b32 exec_hi, 0")
    A(f"buffer_load_dwordx2 {vr(QA2,2)}, v41, s[8:11], s37 offen")
    A(f"buffer_load_dwordx2 {vr(QB2,2)}, v41, s[8:11], s44 offen")
    A("s_mov_b64 exec, -1")
    srd(A, 12, 6, 64 * 32 * 2048, OB_OFF)
    A(f"s_load_dword s3, s[6:7], {hex(SYNC_OFF)}")
    A(f"v_mul_u32_u24 v15, {VSB}, v3")
    A(f"v_lshl_add_u32 v{VV}, v2, 4, v15")
    A(f"s_mul_i32 s57, s66, {VREC}")
    A("s_add_u32 s57, s57, 12288")
    A(f"v_add_u32 v{VV}, s57, v{VV}")
    A("v_cmp_lt_u32 vcc, 20, v2")
    A(f"v_mov_b32 v15, {OOB}")
    A("s_lshl_b32 s57, s66, 9")
    A(f"v_cndmask_b32 v{VV}, v{VV}, v15, vcc")
    A(f"v_mov_b32 v7, {FLAG}")
    A("v_mov_b32 v15, 0")
    A("ds_write_b32 v7, v15")
    A("s_branch k2_main2")
    A("k2_main:")
    A("s_mul_i32 s46, s64, 3072")
    A("s_mov_b32 s22, s51")
    A("s_mov_b32 s47, 0")
    for l in dma_ops(0): A(l)
    A("k2_main2:")
    srd(A, 24, 6, 64 * 96 * 1024, HB_OFF)
    srd(A, 28, 6, 20 * 96 * 1024, W2F_OFF)
    A("s_mul_i32 s54, s66, 48")
    A("s_mul_i32 s48, s52, 96")
    A("s_add_u32 s48, s48, s54")
    A("s_lshl_b32 s48, s48, 10")
    A("s_mul_i32 s49, s53, 5")
    A("s_add_u32 s50, s49, 4")
    A("s_add_u32 s49, s49, s65")
    for r in (49, 50):
        A(f"s_mul_i32 s{r}, s{r}, 96")
        A(f"s_add_u32 s{r}, s{r}, s54")
        A(f"s_lshl_b32 s{r}, s{r}, 10")
    srd(A, 72, 6, 20 * 40 * 1024, WOF_OFF)
    A("s_mul_i32 s54, s66, 20")
    A("s_mul_i32 s58, s53, 5")
    A("s_add_u32 s59, s58, 4")
    A("s_add_u32 s58, s58, s65")
    for r in (58, 59):
        A(f"s_mul_i32 s{r}, s{r}, 40")
        A(f"s_add_u32 s{r}, s{r}, s54")
        A(f"s_lshl_b32 s{r}, s{r}, 10")
    A("s_mul_i32 s71, s64, 12288")
    A(f"s_add_u32 s71, s71, {WL}")
    A("v_lshrrev_b32 v2, 4, v0")
    A("v_and_b32 v3, 15, v0")
    A("s_lshl_b32 s54, s52, 5")
    A("s_mul_i32 s55, s53, 320")
    A("v_lshl_add_u32 v42, v3, 4, s55")
    A("v_add_u32 v13, s54, v2")
    A("v_mul_u32_u24 v13, 1280, v13")
    A("v_add_u32 v13, v13, v42")
    A("v_lshrrev_b32 v2, 3, v0")
    A("v_and_b32 v3, 7, v0")
    A("s_add_u32 s55, s55, 256")
    A("v_lshl_add_u32 v43, v3, 3, s55")
    A("v_add_u32 v14, s54, v2")
    A("v_mul_u32_u24 v14, 1280, v14")
    A("v_add_u32 v14, v14, v43")
    A("v_cmp_gt_u32 vcc, 256, v0")
    A("v_mov_b32 v2, 0x7fffffff")
    A("s_nop 0")
    A("v_cndmask_b32 v14, v2, v14, vcc")
    srd(A, 8, 4, XSZ)
    srd(A, 16, 76, 1280)
    body = build_body()
    pv = prologue_vmem(body)
    for r in list(range(OA, OA + 32)) + list(range(PB, PB + 8)) + list(range(VF[1][0], VF[1][0] + 8)) + list(range(MO, MO + 32)):
        A(f"v_mov_b32 v{r}, 0")
    A("s_waitcnt vmcnt(0) lgkmcnt(0)")
    stamp(A, 1)
    A("s_barrier")
    A("s_cmp_lg_u32 s38, 0")
    A("s_cbranch_scc1 k2_havemax")
    for l in rdK(1, 0): A(l)
    for r in (VK1, VK2): A(f"v_add_u32 v{r}, s57, v{r}")
    for l in rdK(0, 0) + rdV(0, 0): A(l)
    for l in pv[:2]: A(l)
    A("s_waitcnt lgkmcnt(4)")
    A(m16(SA, KF[1][0], QA1, "0")); A(m8(SA, KF[1][1], QA2, vr(SA, 16)))
    A(m16(SB, KF[1][0], QB1, "0")); A(m8(SB, KF[1][1], QB2, vr(SB, 16)))
    for l in pv[2:5]: A(l)
    A("s_nop 6")
    rowmax(A, SA, 2, True)
    set_nc(A, 2, QA2, 7)
    A("s_waitcnt lgkmcnt(0)")
    A(m16(SA, KF[0][0], QA1, "0")); A(m8(SA, KF[0][1], QA2, vr(SA, 16)))
    for l in pv[5:11]: A(l)
    rowmax(A, SB, 3, True)
    set_nc(A, 3, QB2, 7)
    for l in pv[11:]: A(l)
    A("s_branch k2_go")
    A("k2_havemax:")
    for l in rdK(0, 0) + rdV(0, 0): A(l)
    for l in pv: A(l)
    A("s_waitcnt lgkmcnt(0)")
    A(m16(SA, KF[0][0], QA1, "0")); A(m8(SA, KF[0][1], QA2, vr(SA, 16)))
    A("s_nop 10")
    A("k2_go:")
    A("s_add_u32 s62, s58, 12288")
    A("s_add_u32 s61, s66, 1")
    A("s_mov_b32 s39, 0")
    stamp(A, 2)
    A(".p2align 3")
    A("k2_loop:")
    A("s_cmp_eq_u32 s39, s61")
    A("s_cbranch_scc1 k2_early")
    A("k2_early_ret:")
    for l in resolve_waits(body): A(l)
    A("s_cbranch_scc1 k2_loop")
    A("s_nop 1")
    A(m16(OB_, VF[1][0], PB, vr(OB_, 16))); A(m16(OB_, VF[1][1], PB + 4, vr(OB_, 16)))
    stamp(A, 3)
    A("s_mul_i32 s40, s64, 3072")
    A(f"s_add_u32 s40, s40, {XCH}")
    A(f"v_add_u32 v7, s40, v{L16}")
    A("s_xor_b32 s40, s64, 4")
    A("s_mul_i32 s40, s40, 3072")
    A(f"s_add_u32 s40, s40, {XCH}")
    A(f"v_add_u32 v15, s40, v{L16}")
    A("s_lshl_b32 s41, s36, 5")
    A("s_add_u32 s41, s41, s34")
    A("s_lshl_b32 s41, s41, 11")
    A("s_nop 7")
    for q, r in enumerate([OB_, OB_ + 4, OB_ + 8]):
        A(f"ds_write_b128 v7, {vr(r,4)} offset:{q*1024}")
    A(f"s_mov_b32 s40, {f32hex(2.0**64)}")
    A("s_waitcnt lgkmcnt(0)")
    stamp(A, 4)
    A("s_barrier")
    for q in range(3):
        A(f"ds_read_b128 {vr(SA+4*q,4)}, v15 offset:{q*1024}")
    A("v_mov_b32 v44, 0"); A("v_mov_b32 v45, 0"); A("v_mov_b32 v2, 0"); A("v_mov_b32 v3, 0")
    A("s_waitcnt lgkmcnt(0)")
    for e in (8, 10, 0, 2, 4, 6):
        A(f"v_pk_add_f32 {pr(OA+e)}, {pr(OA+e)}, {pr(SA+e)}")
        if e == 10:
            A(f"v_mov_b32 v7, v{OA+8}")
            A(f"v_mov_b32 v46, v{OA+8}")
    A(f"v_permlane32_swap_b32 v7, v46")
    for e in range(0, 12, 2):
        A(f"v_pk_fma_f32 v[2:3], {pr(OA+e)}, v[44:45], v[2:3]")
    A("v_cmp_nlt_f32 s[60:61], v46, s40")
    A("v_cmp_u_f32 s[62:63], v2, v3")
    A("v_rcp_f32 v46, v46")
    A("s_nop 2")
    A("s_or_b64 s[60:61], s[60:61], s[62:63]")
    A("s_cbranch_scc0 k2_noflag")
    A(f"v_mov_b32 v7, {FLAG}")
    A("v_mov_b32 v15, 1")
    A("ds_write_b32 v7, v15")
    A("s_cmp_eq_u32 s38, 0")
    A("s_cbranch_scc1 k2_nopub")
    A("k2_noflag:")
    for e in range(0, 12, 2):
        A(f"v_pk_mul_f32 {pr(OA+e)}, {pr(OA+e)}, v[46:47] op_sel_hi:[1,0]")
    for i, d in enumerate((168, 169, 170, 174, 172, 173)):
        A(f"v_cvt_pk_bf16_f32 v{d}, v{OA+2*i}, v{OA+2*i+1}")
    A("v_mov_b32 v171, s3"); A("v_mov_b32 v175, s3")
    A(f"buffer_store_dwordx4 {vr(168,4)}, v{L16}, s[12:15], s41 offen sc1")
    A(f"buffer_store_dwordx4 {vr(172,4)}, v{L16}, s[12:15], s41 offen offset:1024 sc1")
    A("k2_nopub:")
    A(f"v_mov_b32 v7, {RES}")
    A("v_mov_b32 v15, 0")
    A("ds_write_b32 v7, v15")
    A("s_waitcnt lgkmcnt(0)")
    stamp(A, 5)
    A("s_barrier")
    A(f"v_mov_b32 v7, {FLAG}")
    A("ds_read_b32 v15, v7")
    A("s_lshl_b32 s40, s52, 5")
    A("s_lshl_b32 s41, s64, 2")
    A("s_add_u32 s40, s40, s41")
    A("s_lshl_b32 s40, s40, 11")
    A(f"v_add_u32 v3, 4096, v{L16}")
    A("v_and_b32 v2, 3, v1")
    A("v_lshlrev_b32 v2, 11, v2")
    A("v_add_u32 v2, 2044, v2")
    A("s_waitcnt lgkmcnt(0)")
    A("v_readfirstlane_b32 s41, v15")
    A("s_nop 3")
    A("s_cmp_eq_u32 s41, 0")
    A("s_cbranch_scc1 k2_pub")
    A("s_cmp_eq_u32 s38, 0")
    A("s_cbranch_scc1 k2_fallback")
    A("k2_pub:")
    A("s_mov_b32 s41, 0")
    A("k2_poll:")
    if os.environ.get("FULLPOLL"):
        A("s_add_u32 s41, s41, 1")
        A("s_branch k2_full")
    A("s_mov_b64 exec, 15")
    A("buffer_load_dword v15, v2, s[12:15], s40 offen sc1")
    A("s_waitcnt vmcnt(0)")
    A("v_cmp_ne_u32 vcc, s3, v15")
    A("s_mov_b64 exec, -1")
    A("s_add_u32 s41, s41, 1")
    A("s_nop 2")
    A("s_cmp_eq_u32 vcc_lo, 0")
    A("s_cbranch_scc1 k2_full")
    A(f"s_cmp_lt_u32 s41, {TIMEOUT}")
    A("s_cbranch_scc1 k2_poll")
    A("s_branch k2_miss")
    A("k2_full:")
    for i in range(8):
        va = L16 if i < 4 else 3
        A(f"buffer_load_dwordx4 {vr(OS+4*i,4)}, v{va}, s[12:15], s40 offen offset:{(i%4)*1024} sc1")
    A("s_waitcnt vmcnt(0)")
    A("s_mov_b32 s42, 0")
    for hh in range(4):
        A(f"v_xor_b32 v15, s3, v{OS+8*hh+3}")
        A(f"v_xor_b32 v7, s3, v{OS+8*hh+7}")
        A("v_or_b32 v15, v15, v7")
        A("v_cmp_ne_u32 vcc, 0, v15")
        A("s_nop 3")
        A("s_cmp_lg_u64 vcc, 0")
        A(f"s_cselect_b32 s43, {1 << hh}, 0")
        A("s_or_b32 s42, s42, s43")
    A("s_cmp_eq_u32 s42, 0")
    A("s_cbranch_scc1 k2_oproj")
    A("s_mov_b32 vcc_lo, s42")
    A(f"s_cmp_lt_u32 s41, {TIMEOUT}")
    A("s_cbranch_scc1 k2_poll")
    A("k2_miss:")
    A("s_ff1_i32_b32 s42, vcc_lo")
    A("s_lshl_b32 s43, s64, 2")
    A("s_add_u32 s42, s42, s43")
    A("s_add_u32 s42, s42, 1")
    A(f"v_mov_b32 v7, {RES}")
    A("v_mov_b32 v15, s42")
    A("ds_write_b32 v7, v15")
    A("k2_oproj:")
    stamp(A, 6)
    A("s_lshl_b32 s41, s64, 12")
    A(f"v_add_u32 v2, s41, v{L16}")
    A("s_lshl_b32 s41, s64, 10")
    A("s_add_u32 s41, s41, 32768")
    A(f"v_add_u32 v3, s41, v{L16}")
    for hh in range(4):
        A(f"v_mov_b32 v{OS+8*hh+3}, v{OS+8*hh+6}")
        A(f"ds_write_b128 v2, {vr(OS+8*hh,4)} offset:{hh*1024}")
    A("s_mov_b32 exec_hi, 0")
    for hh in range(4):
        A(f"ds_write_b64 v3, {pr(OS+8*hh+4)} offset:{(hh>>1)*512 + (hh&1)*8}")
    A("s_mov_b64 exec, -1")
    A("s_mul_i32 s41, s66, 20480")
    A("s_mul_i32 s42, s64, 12288")
    A(f"s_add_u32 s42, s42, {WL}")
    for p in range(4):
        A(f"v_add_u32 v{20+p}, s42, v{VP+p}")
        A(f"v_add_u32 v{24+p}, s41, v{VP+p}")
    def wrd(s): return f"ds_read_b128 {vr(WB + (s % 8) * 4, 4)}, v{20 + s % 4} offset:{(s // 4) * 4096}"
    for s_ in range(6): A(wrd(s_))
    A("s_waitcnt lgkmcnt(0)")
    A("s_barrier")
    A(f"v_mov_b32 v7, {RES}")
    A("ds_read_b32 v15, v7")
    def ord_(s): return f"ds_read_b128 {vr(OS + (s % 8) * 4, 4)}, v{24 + s % 4} offset:{(s // 4) * 4096}"
    ops = []
    def issue(l, tag): A(l); ops.append(tag)
    for s_ in range(6): issue(ord_(s_), f"o{s_}")
    A("s_waitcnt lgkmcnt(6)")
    A("v_readfirstlane_b32 s43, v15")
    A("s_nop 3")
    A("s_cmp_eq_u32 s43, 0")
    A("s_cbranch_scc1 k2_mm")
    A("s_sub_u32 s34, s43, 1")
    A("s_waitcnt vmcnt(0) lgkmcnt(0)")
    A("s_barrier")
    A("s_branch k2_restart")
    A("k2_mm:")
    for s_ in range(20):
        need = [f"o{s_}"] + ([f"w{s_}"] if 6 <= s_ < 12 else [])
        last = max(ops.index(t) for t in need)
        A(f"s_waitcnt lgkmcnt({len(ops) - 1 - last})")
        wreg = WB + (s_ % 8) * 4 if s_ < 12 else ROWN[s_]
        A(m16(MO, wreg, OS + (s_ % 8) * 4, vr(MO, 16)))
        if s_ % 4 == 0:
            A(m16(M5, RW5[s_ // 4], OS + (s_ % 8) * 4, vr(M5, 16)))
        if s_ + 6 < 20: issue(ord_(s_ + 6), f"o{s_+6}")
        if s_ + 6 < 12: issue(wrd(s_ + 6), f"w{s_+6}")
    A(f"v_add_u32 v2, s42, v{L16}")
    A("v_lshrrev_b32 v7, 4, v0")
    A("v_bfe_u32 v15, v0, 2, 2")
    A("v_mul_u32_u24 v15, 12288, v15")
    A("v_lshl_add_u32 v7, v7, 4, v15")
    A("v_and_b32 v15, 3, v0")
    A(f"v_mul_u32_u24 v15, {QP}, v15")
    A("v_add_u32 v7, v7, v15")
    A(f"v_add_u32 v7, {WL}, v7")
    for q in range(4):
        A(f"ds_write_b128 v2, {vr(M5+4*q,4)} offset:{(4+q)*QP}")
    A("v_lshrrev_b32 v15, 3, v0")
    A("v_and_b32 v44, 1, v0")
    A("v_lshl_add_u32 v15, v44, 5, v15")
    A("v_bfe_u32 v44, v0, 1, 2")
    A(f"v_mul_u32_u24 v44, {QP}, v44")
    A("v_lshl_add_u32 v15, v15, 4, v44")
    A(f"v_add_u32 v15, {WL + 4*QP}, v15")
    A(f"v_add_u32 v44, {4*12288}, v15")
    for q in range(4):
        A(f"ds_write_b128 v2, {vr(MO+4*q,4)} offset:{q*QP}")
    srd(A, 16, 78, XSZ)
    A("s_waitcnt lgkmcnt(0)")
    A("s_barrier")
    R = 68
    for k in range(2):
        for h in range(2):
            A(f"ds_read_b128 {vr(R + (k*2+h)*4, 4)}, v7 offset:{k*4*12288 + h*512}")
    A("s_cmp_ge_u32 s64, 4")
    A("s_cbranch_scc1 k2_no5")
    for w in range(8):
        A(f"ds_read_b128 {vr(R + 16 + 4*w, 4)}, v{15 if w < 4 else 44} offset:{(w%4)*12288}")
    A("k2_no5:")
    T = 120
    for e in range(4):
        A(f"v_lshlrev_b32 v{T+2*e}, 16, v{XO+e}")
        A(f"v_and_b32 v{T+2*e+1}, 0xffff0000, v{XO+e}")
        A(f"v_lshlrev_b32 v{T+8+2*e}, 16, v{BO+e}")
        A(f"v_and_b32 v{T+8+2*e+1}, 0xffff0000, v{BO+e}")
    for e in range(0, 8, 2):
        A(f"v_pk_add_f32 {pr(T+e)}, {pr(T+e)}, {pr(T+8+e)}")
    for e in range(2):
        A(f"v_lshlrev_b32 v{T+16+2*e}, 16, v{X5R+e}")
        A(f"v_and_b32 v{T+16+2*e+1}, 0xffff0000, v{X5R+e}")
        A(f"v_lshlrev_b32 v{T+20+2*e}, 16, v{B5R+e}")
        A(f"v_and_b32 v{T+20+2*e+1}, 0xffff0000, v{B5R+e}")
    for e in range(0, 4, 2):
        A(f"v_pk_add_f32 {pr(T+16+e)}, {pr(T+16+e)}, {pr(T+20+e)}")
    A("s_waitcnt lgkmcnt(0)")
    for e in range(0, 8, 2):
        A(f"v_pk_add_f32 {pr(R+e)}, {pr(R+e)}, {pr(R+8+e)}")
        A(f"v_pk_add_f32 {pr(R+e)}, {pr(R+e)}, {pr(T+e)}")
    for e in range(4):
        A(f"v_cvt_pk_bf16_f32 v{R+8+e}, v{R+2*e}, v{R+2*e+1}")
    A(f"buffer_store_dwordx4 {vr(R+8,4)}, v13, s[16:19], 0 offen" + NTF("o"))
    A("s_cmp_ge_u32 s64, 4")
    A("s_cbranch_scc1 k2_fin")
    for w in range(8):
        for e in range(0, 4, 2):
            A(f"v_pk_add_f32 {pr(T+16+e)}, {pr(T+16+e)}, {pr(R+16+4*w+e)}")
    for e in range(2):
        A(f"v_cvt_pk_bf16_f32 v{T+e}, v{T+16+2*e}, v{T+16+2*e+1}")
    A(f"buffer_store_dwordx2 {pr(T)}, v14, s[16:19], 0 offen" + NTF("o"))
    A("k2_fin:")
    stamp_flush(A, 7, 6, 1, 64); tl_end(A, 1)
    A("k2_done:")
    A("s_endpgm")
    A("k2_early:")
    for l in wof_loads(): A(l)
    A("s_branch k2_early_ret")
    A("k2_fallback:")
    A("s_mul_i32 s46, s64, 3072")
    A("s_mov_b32 s38, 1")
    A("s_waitcnt vmcnt(0)")
    for r in (KF[0][1], KF[0][1] + 1, KF[1][1], KF[1][1] + 1): A(f"v_mov_b32 v{r}, 0x3f803f80")
    A(f"v_mov_b32 v2, {f32hex(-3.0e38)}")
    A(f"v_mov_b32 v3, {f32hex(-3.0e38)}")
    A("s_mov_b32 exec_lo, 0")
    A(f"v_mov_b32 v{QA2}, 0")
    A(f"v_mov_b32 v{QB2}, 0")
    A("s_mov_b64 exec, -1")
    for r in (VK1, VK2): A(f"v_subrev_u32 v{r}, s57, v{r}")
    A("s_mov_b32 s22, s51")
    A("s_mov_b32 s47, 0")
    A("s_mov_b32 s39, 0")
    A("k2_maxloop:")
    for l in dma_ops(0): A(l)
    A("s_waitcnt vmcnt(0)")
    A("s_barrier")
    A("s_mov_b32 s40, 0")
    A("k2_maxin:")
    for l in rdK(0, 0): A(l)
    A("s_waitcnt lgkmcnt(0)")
    A(m16(SA, KF[0][0], QA1, "0")); A(m8(SA, KF[0][1], QA2, vr(SA, 16)))
    A(m16(SB, KF[0][0], QB1, "0")); A(m8(SB, KF[0][1], QB2, vr(SB, 16)))
    for r in (VK1, VK2): A(f"v_add_u32 v{r}, 512, v{r}")
    A("s_nop 15")
    rowmax(A, SA, 2, False); rowmax(A, SB, 3, False)
    A("s_add_u32 s40, s40, 1")
    A("s_cmp_lt_u32 s40, 8")
    A("s_cbranch_scc1 k2_maxin")
    for r in (VK1, VK2): A(f"v_subrev_u32 v{r}, 4096, v{r}")
    A("s_barrier")
    A("s_add_u32 s39, s39, 1")
    A("s_cmp_lt_u32 s39, 8")
    A("s_cbranch_scc1 k2_maxloop")
    for r in (VK1, VK2): A(f"v_add_u32 v{r}, s57, v{r}")
    set_nc(A, 2, QA2, 7); set_nc(A, 3, QB2, 7)
    A("s_branch k2_main")
    return kernel_desc(name, 256), f"; @launch kernel=k2_kernel grid=(256,1,1) block=(512,1,1) lds={LDS_BYTES}"
```

```python
from asmlib import *
from layout import *
import math, os

QA1, QA2, QB1, QB2 = 16, 20, 22, 26
AB2 = 28
A3 = 48
SA, SB = 68, 84
PA, PB = 100, 108
OA, OB_ = 116, 132
KF = [(148, 152), (154, 158)]
VF = [(160, 164), (168, 172)]
A1, A2 = 176, 192
WBUF = [208 + 4 * i for i in range(10)]
ACT = [64, 248]
VK1, VK2, VV = 4, 5, 6
VP = 8
VD = [12, 34, 35]
VG0, VG1, VGS, VA0, VA1 = 36, 37, 38, 39, 40
L16 = 47
KVSZ = (V_OFF - K_OFF) + 32 * 64 * VREC
SLOT = 24576
XT = 2 * SLOT
PRM = XT + 40960
WLP = 8448
WL = PRM + 3328
FLAG = WL + 8 * WLP
RES = FLAG + 4
LDS_BYTES = FLAG + 64
OOB = 0x40000
QP = 1040
ST_OFF = XN_OFF; CS_OFF = XN_OFF + 0x10000
PB_OFF = 0x3000000
RW = WBUF + [48, 52, 56, 60, 64, 248, 252]
TIMEOUT = int(os.environ.get("K2TIMEOUT", "4000"))
pr = lambda r: f"v[{r}:{r+1}]"

def m16(d, a, b, c):
    return f"v_mfma_f32_32x32x16_bf16 {vr(d,16)}, {vr(a,4)}, {vr(b,4)}, {c}"
def m8(d, a, b, c):
    return f"v_mfma_f32_32x32x8_bf16 {vr(d,16)}, {vr(a,2)}, {vr(b,2)}, {c}"

def phase(out, s, p, att, extras):
    E = lambda i: (f"v_exp_f32 v{s+i}, v{s+i}", 8)
    C = lambda i: (f"v_cvt_pk_bf16_f32 v{p+i}, v{s+2*i}, v{s+2*i+1}", 4)
    V = [E(0), E(1), E(2), E(3), C(0), E(4), E(5), C(1), E(6), E(7), C(2), E(8), E(9), C(3), E(10), E(11), C(4),
         E(12), E(13), C(5), E(14), E(15), C(6), C(7)]
    order = {0: [0, 1, 2, 3], 1: [0, 1, 2, 3, 'x'], 2: [0, 1, 'x', 2, 3, 'x'], 3: [0, 'x', 1, 2, 'x', 3, 'x'],
             4: [0, 'x', 1, 'x', 2, 'x', 3, 'x']}[len(extras)]
    items = []; xi = 0
    for o in order:
        if o == 'x': items.append(extras[xi]); xi += 1
        else: items.append(att[o])
    n = len(items); t = 0; k = 0
    for (l, c) in V:
        while k < n and t >= k * 160.0 / n:
            out += items[k]; k += 1
        out.append(l); t += c
    while k < n:
        out += items[k]; k += 1

def rdK(buf, off):
    return [f"ds_read_b128 {vr(KF[buf][0],4)}, v{VK1} offset:{off}", "s_mov_b32 exec_hi, 0",
            (f"ds_read_b64 {vr(KF[buf][1],2)}, v{VK2} offset:{off}", f"k{buf}"), "s_mov_b32 exec_hi, -1"]
def rdV(buf, off):
    return [f"ds_read_b128 {vr(VF[buf][0],4)}, v{VV} offset:{off}", (f"ds_read_b128 {vr(VF[buf][1],4)}, v{VV} offset:{off+2*VSB}", f"v{buf}")]
plain = lambda L: [x[0] if isinstance(x, tuple) else x for x in L]

def rowmax(A, s, acc, first):
    if first:
        A(f"v_max3_f32 v{acc}, v{s}, v{s+1}, v{s+2}")
        A(f"v_max_f32 v{acc}, v{acc}, v{s+3}")
        st = 4
    else:
        st = 0
    for i in range(st, 16, 2):
        A(f"v_max3_f32 v{acc}, v{acc}, v{s+i}, v{s+i+1}")

def set_nc(A, acc, q2, tmp):
    A(f"v_mov_b32 v{tmp}, v{acc}")
    A("s_nop 1")
    A(f"v_permlane32_swap_b32 v{acc}, v{tmp}")
    A("s_nop 1")
    A(f"v_max_f32 v{acc}, v{acc}, v{tmp}")
    A(f"v_cvt_pk_bf16_f32 v{tmp}, -v{acc}, -v{acc}")
    A(f"v_lshlrev_b32 v{tmp}, 16, v{tmp}")
    A(f"v_sub_f32 v{tmp}, -v{acc}, v{tmp}")
    A("s_mov_b32 exec_lo, 0")
    A(f"v_cvt_pk_bf16_f32 v{q2}, -v{acc}, v{tmp}")
    A("s_mov_b64 exec, -1")

def dma_ops(base):
    L = [f"s_add_u32 m0, s46, {base}", "s_nop 0"]
    for j in range(3):
        L.append(f"buffer_load_dwordx4 v{VD[j]}, s[20:23], s47 offen offset:{j*1024} lds")
    L[-1] = (L[-1], "d")
    L.append("s_add_u32 s47, s47, s45")
    return L

def resolve(body, cyclic=True):
    n = len(body); out = []
    txt = lambda x: x[0] if isinstance(x, tuple) else x
    for i, x in enumerate(body):
        if isinstance(x, tuple) and x[0] in ("WV", "WL"):
            cnt = 0; j = i; found = False
            while True:
                j -= 1
                if j < 0:
                    if not cyclic: break
                    j += n
                if j == i: break
                y = body[j]
                if isinstance(y, tuple) and y[0] in ("WV", "WL"): continue
                if isinstance(y, tuple) and y[1] == x[1]:
                    found = True; break
                t = txt(y)
                if x[0] == "WV" and t.startswith("buffer_") and isinstance(y, tuple) and y[1].startswith("w"): cnt += 1
                if x[0] == "WL" and t.startswith("ds_"): cnt += 1
            assert found or not cyclic, x
            out.append(f"s_waitcnt vmcnt({cnt})" if x[0] == "WV" else f"s_waitcnt lgkmcnt({min(cnt, 15)})")
        else:
            out.append(txt(x))
    return out

def epoch(body, slots, tail):
    per = [[] for _ in range(8)]
    for k, sl in enumerate(slots):
        per[(k * 8) // len(slots)].append(sl)
    for i in range(4):
        b = i & 1; nb = b ^ 1
        last = i == 3
        k = rdK(nb, 0 if last else (i + 1) * 1024); v = rdV(nb, 0 if last else (i + 1) * 2 * VREC)
        pre = []; dm = []
        if last:
            pre = [("WV", "d"), "s_waitcnt lgkmcnt(0)", "s_barrier"] + [f"v_add_u32 v{r}, s63, v{r}" for r in (VK1, VK2, VV)]
            dm = ["s_cmp_lt_u32 s61, 6", "s_cselect_b32 s22, s22, 0", "s_cselect_b32 s46, s46, 0x30000"] + dma_ops("s62") + \
                 ["s_add_u32 s62, s62, s63", "s_sub_u32 s63, 0, s63", "s_add_u32 s61, s61, 1"]
        phase(body, SA, PA,
              [[m16(SB, KF[b][0], QB1, "0")] + pre + k, [m8(SB, KF[b][1], QB2, vr(SB, 16))],
               [m16(OB_, VF[nb][0], PB, vr(OB_, 16))] + dm, [m16(OB_, VF[nb][1], PB + 4, vr(OB_, 16))]], per[2 * i])
        phase(body, SB, PB,
              [[("WL", f"k{nb}"), m16(SA, KF[nb][0], QA1, "0")] + v, [m8(SA, KF[nb][1], QA2, vr(SA, 16))],
               [m16(OA, VF[b][0], PA, vr(OA, 16))], [m16(OA, VF[b][1], PA + 4, vr(OA, 16))]], per[2 * i + 1])
    body += tail

def mlp_slots(npairs, pattern, dist, adv, lastcmp):
    seq = []
    for g in range(npairs):
        for (p, acc, vo, so) in pattern:
            seq.append((g, p, acc, vo, so))
    n = len(seq)
    def load(k):
        g, p, acc, vo, so = seq[k % n]
        L = [(f"buffer_load_dwordx4 {vr(WBUF[k % 10],4)}, v{vo}, s[28:31], s{so} offen", f"w{k % n}")]
        if (k % len(pattern)) == len(pattern) - 1:
            L += [f"s_add_u32 s{s_}, s{s_}, 2048" for s_ in sorted(set(x[3] for x in pattern))]
        return L
    def aread(step):
        g, p = step // 2, step % 2
        L = []
        if step == 2 * npairs:
            L = [f"v_add_u32 v{VA0}, {adv}, v{VA0}", f"v_add_u32 v{VA1}, {adv}, v{VA1}"]; g = 0
        return L + [(f"ds_read_b128 {vr(ACT[p],4)}, v{VA0+p} offset:{g*2048}", f"a{p}")]
    slots = []; seen = set()
    for k, (g, p, acc, vo, so) in enumerate(seq):
        sl = [("WV", f"w{k}")]
        first = (g, p) not in seen
        if first: sl.append(("WL", f"a{p}"))
        sl.append(m16(acc, WBUF[k % 10], ACT[p], vr(acc, 16)))
        if first:
            seen.add((g, p)); sl += aread(2 * g + p + 1)
        if k + dist == n:
            sl += [f"s_cmp_lt_u32 s61, {lastcmp}", "s_cselect_b32 s30, s30, 0"]
        sl += load(k + dist)
        slots.append(sl)
    pro = []
    for k in range(dist): pro += load(k)
    return slots, plain(pro), plain(aread(0))

def gelu(A, a, n, cs, bias, T):
    ab = pr(AB2)
    R = range(0, n, 2)
    for i in R: A(f"v_pk_fma_f32 {pr(T+i)}, {pr(cs+i)}, {ab}, {pr(bias+i)} op_sel:[0,1,0] op_sel_hi:[1,1,1] neg_lo:[1,0,0] neg_hi:[1,0,0]")
    for i in R: A(f"v_pk_fma_f32 {pr(a+i)}, {pr(a+i)}, {ab}, {pr(T+i)} op_sel_hi:[1,0,1]")
    for i in R: A(f"v_pk_mul_f32 {pr(T+i)}, {pr(a+i)}, {pr(a+i)}")
    for i in R: A(f"v_pk_fma_f32 {pr(T+i)}, {pr(T+i)}, v[2:3], v[2:3] op_sel:[0,1,0] op_sel_hi:[1,1,0]")
    for i in R: A(f"v_pk_mul_f32 {pr(T+i)}, {pr(T+i)}, {pr(a+i)}")
    for i in range(n): A(f"v_exp_f32 v{T+i}, v{T+i}")
    for i in R: A(f"v_pk_add_f32 {pr(T+i)}, {pr(T+i)}, v[44:45] op_sel_hi:[1,0]")
    for i in range(n): A(f"v_rcp_f32 v{T+i}, v{T+i}")
    for i in R: A(f"v_pk_mul_f32 {pr(T+i)}, {pr(T+i)}, {pr(a+i)}")

STB = bool(os.environ.get("STB"))
def sA(A, i):
    if not STB: stamp(A, i)
def sB(A, i):
    if STB: stamp(A, i)
def gen_k2(A):
    name = "k2_kernel"
    kernel_begin(A, name)
    A("s_cmp_ge_u32 s2, 256")
    A("s_cbranch_scc1 k2_done")
    stamp(A, 0); tl_start(A, 1)
    A("s_load_dwordx2 s[6:7], s[0:1], 80")
    A("s_load_dwordx4 s[76:79], s[0:1], 56")
    A("s_load_dwordx2 s[4:5], s[0:1], 0")
    A("s_load_dwordx2 s[72:73], s[0:1], 40")
    A("v_lshrrev_b32 v1, 6, v0")
    A("s_nop 0")
    A("v_readfirstlane_b32 s64, v1")
    A("s_and_b32 s32, s2, 7")
    A("s_lshr_b32 s33, s2, 3")
    A("s_lshl_b32 s34, s32, 2")
    A("s_lshr_b32 s53, s33, 3")
    A("s_add_u32 s34, s34, s53")
    A("s_and_b32 s35, s33, 7")
    A("s_lshl_b32 s52, s35, 3")
    A("s_add_u32 s52, s52, s32")
    A("s_and_b32 s65, s64, 3")
    A("s_lshr_b32 s66, s64, 2")
    A("k2_restart:")
    A("s_lshr_b32 s74, s34, 2")
    A("s_lshl_b32 s75, s35, 3")
    A("s_add_u32 s74, s74, s75")
    A("s_and_b32 s75, s34, 3")
    A("v_and_b32 v1, 63, v0")
    A(f"v_lshlrev_b32 v{L16}, 4, v1")
    A("s_mul_i32 s46, s64, 3072")
    A("s_mul_i32 s67, s34, 5")
    A("s_lshr_b32 s67, s67, 1")
    A("s_and_b32 s68, s34, 1")
    A(f"s_mul_i32 s45, s66, {8*VREC - 4096}")
    A("s_add_u32 s45, s45, 4096")
    A("s_mul_i32 s69, s65, 3")
    A(f"s_mul_i32 s70, s34, {64*VREC}")
    A(f"s_add_u32 s70, s70, {V_OFF - K_OFF}")
    for j in range(3):
        A(f"s_add_u32 s54, s69, {j}")
        A("s_lshr_b32 s55, s54, 2")
        A("s_add_u32 s55, s55, s67")
        A("s_lshl_b32 s55, s55, 15")
        A("s_and_b32 s56, s54, 3")
        A("s_lshl_b32 s56, s56, 10")
        A("s_add_u32 s55, s55, s56")
        A("s_lshl_b32 s56, s54, 10")
        A("s_add_u32 s56, s56, s70")
        if j == 2:
            A("s_cmp_eq_u32 s54, 11")
            A("s_cselect_b32 s56, 0x40000000, s56")
        A("s_cmp_eq_u32 s66, 0")
        A("s_cselect_b32 s55, s55, s56")
        if j: A(f"s_sub_u32 s55, s55, {j*1024}")
        A(f"v_add_u32 v{VD[j]}, s55, v{L16}")
    A(f"s_mov_b32 s51, {KVSZ}")
    A("s_mov_b32 s38, 0")
    A("s_lshl_b32 s36, s35, 3")
    A("s_lshl_b32 s37, s65, 1")
    A("s_add_u32 s36, s36, s37")
    A("s_add_u32 s36, s36, s66")
    A("s_lshl_b32 s37, s36, 9")
    A("s_lshl_b32 s54, s67, 15")
    A("s_add_u32 s37, s37, s54")
    A("s_xor_b32 s44, s37, 512")
    A("v_and_b32 v2, 31, v1")
    A("v_lshrrev_b32 v3, 5, v1")
    A("v_add_u32 v7, s68, v3")
    A("v_lshlrev_b32 v15, 4, v2")
    A(f"v_lshl_add_u32 v{VK1}, v7, 12, v15")
    A("v_lshl_add_u32 v41, v7, 15, v15")
    A("s_lshl_b32 s54, s68, 1")
    A("s_sub_u32 s54, 2, s54")
    A("s_lshl_b32 s55, s68, 3")
    A("s_lshl_b32 s56, s54, 12")
    A("s_add_u32 s56, s56, s55")
    A(f"v_add_u32 v{VK2}, s56, v15")
    A("s_lshl_b32 s56, s54, 15")
    A("s_add_u32 s56, s56, s55")
    A("v_add_u32 v42, s56, v15")
    for r in (QA2, QA2 + 1, QB2, QB2 + 1): A(f"v_mov_b32 v{r}, 0")
    for r in (KF[0][1], KF[0][1] + 1, KF[1][1], KF[1][1] + 1): A(f"v_mov_b32 v{r}, 0x3f803f80")
    for p in range(4):
        A(f"s_xor_b32 s54, s65, {p}")
        A("s_lshl_b32 s54, s54, 10")
        A(f"v_add_u32 v{VP+p}, s54, v{L16}")
    A("s_lshl_b32 s54, s66, 10")
    A("s_xor_b32 s55, s54, 1024")
    A(f"v_add_u32 v{VG0}, s54, v{L16}")
    A(f"v_add_u32 v{VG1}, s55, v{L16}")
    A("s_lshl_b32 s55, s66, 8")
    A(f"v_xor_b32 v{VGS}, s55, v{VG0}")
    A("s_lshl_b32 s54, s74, 5")
    A("v_add_u32 v7, s54, v2")
    A("v_mul_u32_u24 v43, 1280, v7")
    A("v_lshl_add_u32 v43, v3, 4, v43")
    A("v_lshlrev_b32 v44, 4, v7")
    A("v_add_u32 v44, 0x8000, v44")
    A("s_mul_i32 s54, s75, 384")
    A("v_add_u32 v45, s54, v0")
    A("v_lshlrev_b32 v46, 1, v45")
    A("v_add_u32 v45, 1920, v45")
    A("v_lshlrev_b32 v45, 3, v45")
    A(f"v_add_u32 v45, {CS_OFF - ST_OFF}, v45")
    A("s_waitcnt lgkmcnt(0)")
    srd(A, 20, 6, KVSZ, K_OFF)
    srd(A, 8, 6, 80 * 32768, Q_OFF)
    A("s_mov_b32 s47, 0")
    for l in plain(dma_ops(0)): A(l)
    A(f"buffer_load_dwordx4 {vr(QA1,4)}, v41, s[8:11], s37 offen")
    A(f"buffer_load_dwordx4 {vr(QB1,4)}, v41, s[8:11], s44 offen")
    A("s_mov_b32 exec_hi, 0")
    A(f"buffer_load_dwordx2 {vr(QA2,2)}, v42, s[8:11], s37 offen")
    A(f"buffer_load_dwordx2 {vr(QB2,2)}, v42, s[8:11], s44 offen")
    A("s_mov_b64 exec, -1")
    srd(A, 24, 6, 0x30000, ST_OFF)
    A(f"buffer_load_dwordx2 {pr(AB2)}, v44, s[24:27], 0 offen")
    A("s_mov_b32 s54, 0")
    for q in range(4):
        A(f"buffer_load_dword v{SB+q}, v45, s[24:27], s54 offen")
        if q < 3: A("s_add_u32 s54, s54, 0x8000")
    srd(A, 24, 72, 1536 * 2)
    A(f"buffer_load_ushort v{SB+4}, v46, s[24:27], 0 offen")
    srd(A, 12, 6, 64 * 40 * 1024, OB_OFF)
    srd(A, 28, 6, 0x800000, W2F_OFF)
    A(f"v_mul_u32_u24 v15, {VSB}, v3")
    A(f"v_lshl_add_u32 v{VV}, v2, 4, v15")
    A(f"s_mul_i32 s57, s66, {VREC}")
    A("s_add_u32 s57, s57, 12288")
    A(f"v_add_u32 v{VV}, s57, v{VV}")
    A("v_cmp_lt_u32 vcc, 20, v2")
    A(f"v_mov_b32 v15, {OOB}")
    A("s_lshl_b32 s57, s66, 9")
    A(f"v_cndmask_b32 v{VV}, v{VV}, v15, vcc")
    A(f"v_mov_b32 v7, {FLAG}")
    A("v_mov_b32 v15, 0")
    A("ds_write_b32 v7, v15")
    A("s_branch k2_main2")
    A("k2_main:")
    A("s_mul_i32 s46, s64, 3072")
    A("s_mov_b32 s22, s51")
    A("s_mov_b32 s47, 0")
    for l in plain(dma_ops(0)): A(l)
    A("k2_main2:")
    srd(A, 8, 6, 64 * 40 * 1024, XF_OFF)
    A("s_mul_i32 s55, s64, 5120")
    A("s_mul_i32 s54, s74, 40960")
    A("s_add_u32 s54, s54, s55")
    A(f"s_add_u32 m0, s55, {XT}")
    A("s_nop 0")
    for i in range(4):
        A(f"buffer_load_dwordx4 v{L16}, s[8:11], s54 offen offset:{i*1024} lds")
    A("s_add_u32 s54, s54, 4096"); A("s_add_u32 m0, m0, 4096")
    A("s_nop 0")
    A(f"buffer_load_dwordx4 v{L16}, s[8:11], s54 offen lds")
    srd(A, 8, 4, XSZ)
    A("s_mov_b32 s30, 0x800000")
    A("s_mul_i32 s48, s75, 12")
    A("s_add_u32 s49, s48, 8")
    A("s_add_u32 s49, s49, s65")
    A("s_add_u32 s48, s48, s64")
    for r in (48, 49):
        A(f"s_mul_i32 s{r}, s{r}, {40*1024}")
        A(f"s_add_u32 s{r}, s{r}, {W1F_OFF - W2F_OFF}")
    A(f"v_add_u32 v{VA0}, {XT}, v{VG0}")
    A(f"v_add_u32 v{VA1}, {XT}, v{VG1}")
    A("s_mov_b32 s61, 0"); A("s_mov_b32 s62, 0"); A(f"s_mov_b32 s63, {SLOT}")
    for r in list(range(OA, OA + 32)) + list(range(PB, PB + 8)) + list(range(VF[1][0], VF[1][0] + 8)) + list(range(A1, A1 + 32)):
        A(f"v_mov_b32 v{r}, 0")
    A("s_waitcnt vmcnt(0) lgkmcnt(0)")
    A("s_cmp_lg_u32 s38, 0")
    A("s_cbranch_scc1 k2_noprm")
    A(f"v_add_f32 v{SB}, v{SB}, v{SB+1}")
    A(f"v_add_f32 v{SB+2}, v{SB+2}, v{SB+3}")
    A(f"v_add_f32 v{SB}, v{SB}, v{SB+2}")
    A(f"v_lshlrev_b32 v{SB+4}, 16, v{SB+4}")
    A("v_lshlrev_b32 v7, 2, v0")
    A(f"v_add_u32 v7, {PRM}, v7")
    A("s_cmp_ge_u32 s64, 6")
    A("s_cbranch_scc1 k2_noprm")
    A(f"ds_write_b32 v7, v{SB}")
    A(f"ds_write_b32 v7, v{SB+4} offset:1536")
    A("s_waitcnt lgkmcnt(0)")
    A("k2_noprm:")
    sA(A, 1)
    A("s_barrier")
    sl1, pro1, ar1 = mlp_slots(10, [(0, A1, VG0, 48), (0, A2, VGS, 49), (1, A1, VG1, 48)], 8, 20480, 3)
    sl2, pro2, ar2 = mlp_slots(4, [(0, A1, VG0, 48), (0, A3, VG0, 50), (0, A2, VGS, 49), (1, A1, VG1, 48), (1, A3, VG1, 50)], 8, 8192, 6)
    pv = plain(dma_ops(SLOT)) + pro1
    A("s_cmp_lg_u32 s38, 0")
    A("s_cbranch_scc1 k2_havemax")
    for l in plain(rdK(1, 0)): A(l)
    for r in (VK1, VK2): A(f"v_add_u32 v{r}, s57, v{r}")
    for l in plain(rdK(0, 0) + rdV(0, 0)) + ar1: A(l)
    for l in pv[:6]: A(l)
    A("s_waitcnt lgkmcnt(5)")
    A(m16(SA, KF[1][0], QA1, "0")); A(m8(SA, KF[1][1], QA2, vr(SA, 16)))
    A(m16(SB, KF[1][0], QB1, "0")); A(m8(SB, KF[1][1], QB2, vr(SB, 16)))
    for l in pv[6:9]: A(l)
    A("s_nop 6")
    rowmax(A, SA, 2, True)
    set_nc(A, 2, QA2, 7)
    A("s_waitcnt lgkmcnt(0)")
    A(m16(SA, KF[0][0], QA1, "0")); A(m8(SA, KF[0][1], QA2, vr(SA, 16)))
    for l in pv[9:14]: A(l)
    rowmax(A, SB, 3, True)
    set_nc(A, 3, QB2, 7)
    for l in pv[14:]: A(l)
    A("s_branch k2_go")
    A("k2_havemax:")
    for l in plain(rdK(0, 0) + rdV(0, 0)) + ar1: A(l)
    for l in pv: A(l)
    A("s_waitcnt lgkmcnt(0)")
    A(m16(SA, KF[0][0], QA1, "0")); A(m8(SA, KF[0][1], QA2, vr(SA, 16)))
    A("s_nop 10")
    A("k2_go:")
    sA(A, 2); sB(A, 1)
    body = []
    epoch(body, sl1[:15], [])
    epoch(body, sl1[15:], ["s_cmp_lt_u32 s61, 4"])
    A(".p2align 3")
    A("k2_loop1:")
    for l in resolve(body): A(l)
    A("s_cbranch_scc1 k2_loop1")
    sB(A, 2)
    A("s_mul_i32 s40, s64, 2048")
    A(f"s_add_u32 s40, s40, {WL}")
    A(f"v_add_u32 v7, s40, v{L16}")
    A("s_xor_b32 s40, s64, 4")
    A("s_mul_i32 s40, s40, 2048")
    A(f"s_add_u32 s40, s40, {WL}")
    A(f"v_add_u32 v15, s40, v{L16}")
    A("v_lshrrev_b32 v3, 5, v1")
    A("s_lshl_b32 s40, s64, 7")
    A(f"s_add_u32 s40, s40, {PRM}")
    A("v_lshl_add_u32 v41, v3, 4, s40")
    A("s_add_u32 s40, s65, 8")
    A("s_lshl_b32 s40, s40, 7")
    A("s_lshl_b32 s41, s66, 6")
    A("s_add_u32 s40, s40, s41")
    A(f"s_add_u32 s40, s40, {PRM}")
    A("v_lshl_add_u32 v42, v3, 4, s40")
    A("s_waitcnt vmcnt(0)")
    for q in range(2):
        A(f"ds_write_b128 v7, {vr(A2+8+4*q,4)} offset:{q*1024}")
    CSR, BSR = 208, 224
    for j in range(4):
        A(f"ds_read_b128 {vr(CSR+4*j,4)}, v41 offset:{32*j}")
        A(f"ds_read_b128 {vr(BSR+4*j,4)}, v41 offset:{1536+32*j}")
    c0 = -2.0 * math.sqrt(2.0 / math.pi) * math.log2(math.e)
    A(f"v_mov_b32 v2, {f32hex(c0)}"); A(f"v_mov_b32 v3, {f32hex(c0*0.044715)}")
    A("v_mov_b32 v44, 1.0")
    A("s_waitcnt lgkmcnt(0)")
    A("s_barrier")
    for q in range(2):
        A(f"ds_read_b128 {vr(240+4*q,4)}, v15 offset:{q*1024}")
    gelu(A, A1, 16, CSR, BSR, A3)
    for i in range(8): A(f"v_cvt_pk_bf16_f32 v{A1+i}, v{A3+2*i}, v{A3+2*i+1}")
    A("s_lshl_b32 s40, s64, 11")
    A(f"s_add_u32 s40, s40, {XT}")
    A(f"v_add_u32 v7, s40, v{L16}")
    for j in range(2):
        A(f"ds_read_b128 {vr(CSR+4*j,4)}, v42 offset:{32*j}")
        A(f"ds_read_b128 {vr(BSR+4*j,4)}, v42 offset:{1536+32*j}")
    for q in range(2):
        A(f"ds_write_b128 v7, {vr(A1+4*q,4)} offset:{q*1024}")
    A("s_add_u32 s40, s65, 8")
    A("s_lshl_b32 s40, s40, 1")
    A("s_add_u32 s40, s40, s66")
    A("s_lshl_b32 s40, s40, 10")
    A(f"s_add_u32 s40, s40, {XT}")
    A(f"v_add_u32 v7, s40, v{L16}")
    A("s_waitcnt lgkmcnt(2)")
    for e in range(0, 8, 2):
        A(f"v_pk_add_f32 {pr(A2+e)}, {pr(A2+e)}, {pr(240+e)}")
    gelu(A, A2, 8, CSR, BSR, A3)
    for i in range(4): A(f"v_cvt_pk_bf16_f32 v{A2+i}, v{A3+2*i}, v{A3+2*i+1}")
    A(f"ds_write_b128 v7, {vr(A2,4)}")
    A("s_lshl_b32 s48, s64, 1")
    A("s_add_u32 s50, s48, 1")
    A("s_add_u32 s49, s65, 16")
    A("s_mul_i32 s54, s75, 24")
    for r in (48, 49, 50):
        A(f"s_mul_i32 s{r}, s{r}, 96")
        A(f"s_add_u32 s{r}, s{r}, s54")
        A(f"s_lshl_b32 s{r}, s{r}, 10")
    A("s_mov_b32 s30, 0x800000")
    for l in pro2: A(l)
    A(f"v_add_u32 v{VA0}, {XT}, v{VG0}")
    A(f"v_add_u32 v{VA1}, {XT}, v{VG1}")
    A("s_waitcnt lgkmcnt(0)")
    for r in list(range(A1, A1 + 32)) + list(range(A3, A3 + 16)): A(f"v_mov_b32 v{r}, 0")
    A("s_barrier")
    for l in ar2: A(l)
    A("s_waitcnt lgkmcnt(0)")
    sB(A, 3)
    body = []
    epoch(body, sl2, ["s_cmp_lt_u32 s61, 7"])
    A(".p2align 3")
    A("k2_loop2:")
    for l in resolve(body): A(l)
    A("s_cbranch_scc1 k2_loop2")
    sB(A, 4)
    A("s_mul_i32 s40, s64, 2048")
    A(f"s_add_u32 s40, s40, {WL}")
    A(f"v_add_u32 v7, s40, v{L16}")
    srd(A, 24, 6, 4 * XSZ, PB_OFF)
    A("s_lshl_b32 s54, s74, 2")
    A("s_add_u32 s54, s54, s75")
    A("s_mul_i32 s54, s54, 40960")
    A("s_lshl_b32 s55, s64, 12")
    A("s_add_u32 s55, s55, s54")
    A("s_add_u32 s56, s65, 16")
    A("s_lshl_b32 s56, s56, 1")
    A("s_add_u32 s56, s56, s66")
    A("s_lshl_b32 s56, s56, 10")
    A("s_add_u32 s56, s56, s54")
    A("s_mov_b32 s30, 0x800000")
    A("s_waitcnt vmcnt(0)")
    for q in range(2):
        A(f"ds_write_b128 v7, {vr(A2+8+4*q,4)} offset:{q*1024}")
    for t, a in enumerate((A1, A3)):
        p = 208 + 8 * t
        for i in range(8): A(f"v_cvt_pk_bf16_f32 v{p+i}, v{a+2*i}, v{a+2*i+1}")
        for j in range(2):
            A(f"buffer_store_dwordx4 {vr(p+4*j,4)}, v{L16}, s[24:27], s55 offen offset:{2048*t+1024*j} sc1")
    A("s_waitcnt lgkmcnt(0)")
    A("s_barrier")
    for q in range(2):
        A(f"ds_read_b128 {vr(240+4*q,4)}, v15 offset:{q*1024}")
    A("s_mul_i32 s54, s66, 20")
    A("s_mul_i32 s58, s53, 5")
    A("s_add_u32 s59, s58, 4")
    A("s_add_u32 s58, s58, s65")
    for r in (58, 59):
        A(f"s_mul_i32 s{r}, s{r}, 40")
        A(f"s_add_u32 s{r}, s{r}, s54")
        A(f"s_lshl_b32 s{r}, s{r}, 10")
        A(f"s_add_u32 s{r}, s{r}, {WOF_OFF - W2F_OFF}")
    A(f"s_mul_i32 s71, s64, {WLP}")
    A(f"s_add_u32 s71, s71, {WL}")
    A("s_waitcnt lgkmcnt(0)")
    for e in range(0, 8, 2):
        A(f"v_pk_add_f32 {pr(A2+e)}, {pr(A2+e)}, {pr(240+e)}")
    for i in range(4): A(f"v_cvt_pk_bf16_f32 v{A1+i}, v{A2+2*i}, v{A2+2*i+1}")
    A(f"buffer_store_dwordx4 {vr(A1,4)}, v{L16}, s[24:27], s56 offen sc1")
    A("s_barrier")
    sB(A, 5)
    sl3 = []
    for k in range(8):
        sl3.append(["s_mov_b32 m0, s71", "s_add_u32 s71, s71, 1024",
                    f"buffer_load_dwordx4 v{L16}, s[28:31], s58 offen lds", "s_add_u32 s58, s58, 1024"])
    for k in range(12):
        sl3.append([f"buffer_load_dwordx4 {vr(RW[k],4)}, v{VP + k % 4}, s[28:31], s58 offen"] + (["s_add_u32 s58, s58, 4096"] if k % 4 == 3 else []))
    for g in range(5):
        sl3.append([f"buffer_load_dwordx4 {vr(RW[12+g],4)}, v{VP}, s[28:31], s59 offen", "s_add_u32 s59, s59, 4096"])
    body = []
    epoch(body, sl3, [])
    for l in resolve(body, cyclic=False):
        if l.startswith("s_waitcnt vmcnt"): continue
        A(l)
    A("s_nop 1")
    A(m16(OB_, VF[1][0], PB, vr(OB_, 16))); A(m16(OB_, VF[1][1], PB + 4, vr(OB_, 16)))
    sA(A, 3); sB(A, 6)
    A("s_mul_i32 s40, s64, 3072")
    A(f"v_add_u32 v7, s40, v{L16}")
    A("s_xor_b32 s40, s64, 4")
    A("s_mul_i32 s40, s40, 3072")
    A(f"v_add_u32 v15, s40, v{L16}")
    A("s_mul_i32 s40, s36, 40")
    A("s_add_u32 s41, s40, s34")
    A("s_lshl_b32 s41, s41, 10")
    A("s_lshr_b32 s42, s34, 2")
    A("s_add_u32 s42, s42, s40")
    A("s_add_u32 s42, s42, 32")
    A("s_lshl_b32 s42, s42, 10")
    A("s_bfe_u32 s43, s34, 0x10001")
    A("s_lshl_b32 s43, s43, 9")
    for q, r in enumerate([OB_, OB_ + 4, OB_ + 8]):
        A(f"ds_write_b128 v7, {vr(r,4)} offset:{q*1024}")
    A("s_add_u32 s42, s42, s43")
    A("s_and_b32 s43, s34, 1")
    A("s_lshl_b32 s43, s43, 3")
    A("s_add_u32 s42, s42, s43")
    A(f"s_mov_b32 s40, {f32hex(2.0**64)}")
    A("v_lshrrev_b32 v2, 4, v0")
    A("v_and_b32 v3, 15, v0")
    A("s_lshl_b32 s54, s52, 5")
    A("s_mul_i32 s55, s53, 320")
    A("v_lshl_add_u32 v41, v3, 4, s55")
    A("v_add_u32 v13, s54, v2")
    A("v_mul_u32_u24 v13, 1280, v13")
    A("v_add_u32 v13, v13, v41")
    A("v_lshrrev_b32 v2, 3, v0")
    A("v_and_b32 v3, 7, v0")
    A("s_add_u32 s55, s55, 256")
    A("v_lshl_add_u32 v42, v3, 3, s55")
    A("v_add_u32 v14, s54, v2")
    A("v_mul_u32_u24 v14, 1280, v14")
    A("v_add_u32 v14, v14, v42")
    A("v_cmp_gt_u32 vcc, 256, v0")
    A("v_mov_b32 v2, 0x7fffffff")
    A("s_waitcnt lgkmcnt(0)")
    A("v_cndmask_b32 v14, v2, v14, vcc")
    sA(A, 4)
    A("s_barrier")
    for q in range(3):
        A(f"ds_read_b128 {vr(SA+4*q,4)}, v15 offset:{q*1024}")
    A("v_mov_b32 v44, 0"); A("v_mov_b32 v45, 0"); A("v_mov_b32 v2, 0"); A("v_mov_b32 v3, 0")
    A("s_waitcnt lgkmcnt(0)")
    for e in (8, 10, 0, 2, 4, 6):
        A(f"v_pk_add_f32 {pr(OA+e)}, {pr(OA+e)}, {pr(SA+e)}")
        if e == 10:
            A(f"v_mov_b32 v7, v{OA+8}")
            A(f"v_mov_b32 v46, v{OA+8}")
    A(f"v_permlane32_swap_b32 v7, v46")
    for e in range(0, 12, 2):
        A(f"v_pk_fma_f32 v[2:3], {pr(OA+e)}, v[44:45], v[2:3]")
    A("v_cmp_nlt_f32 s[54:55], v46, s40")
    A("v_cmp_u_f32 s[58:59], v2, v3")
    A("v_rcp_f32 v46, v46")
    A("s_nop 2")
    A("s_or_b64 s[54:55], s[54:55], s[58:59]")
    A("s_cbranch_scc0 k2_noflag")
    A(f"v_mov_b32 v7, {FLAG}")
    A("v_mov_b32 v15, 1")
    A("ds_write_b32 v7, v15")
    A("k2_noflag:")
    for e in range(0, 12, 2):
        A(f"v_pk_mul_f32 {pr(OA+e)}, {pr(OA+e)}, v[46:47] op_sel_hi:[1,0]")
    for i in range(6):
        A(f"v_cvt_pk_bf16_f32 v{168+i}, v{OA+2*i}, v{OA+2*i+1}")
    A(f"buffer_store_dwordx4 {vr(168,4)}, v{L16}, s[12:15], s41 offen sc1")
    A("s_mov_b32 exec_hi, 0")
    A(f"buffer_store_dwordx2 {vr(172,2)}, v{L16}, s[12:15], s42 offen sc1")
    A("s_mov_b64 exec, -1")
    A("s_waitcnt vmcnt(0) lgkmcnt(0)")
    sA(A, 5)
    A("s_barrier")
    A(f"v_mov_b32 v7, {FLAG}")
    A("ds_read_b32 v15, v7")
    A("s_waitcnt lgkmcnt(0)")
    A("v_readfirstlane_b32 s41, v15")
    A("s_nop 3")
    A("s_cmp_eq_u32 s41, 0")
    A("s_cbranch_scc1 k2_pub")
    A("s_cmp_eq_u32 s38, 0")
    A("s_cbranch_scc1 k2_fallback")
    A("k2_pub:")
    XO, X5R, BO, B5R = 132, 136, 140, 144
    def xb():
        srd(A, 28, 76, 1280)
        A(f"buffer_load_dwordx4 {vr(XO,4)}, v13, s[8:11], 0 offen")
        A(f"buffer_load_dwordx2 {pr(X5R)}, v14, s[8:11], 0 offen")
        A(f"buffer_load_dwordx4 {vr(BO,4)}, v41, s[28:31], 0 offen")
        A(f"buffer_load_dwordx2 {pr(B5R)}, v42, s[28:31], 0 offen")
    A("s_cmp_eq_u32 s64, 0")
    A("s_cbranch_scc1 k2_w0")
    xb()
    A("s_branch k2_bp")
    A("k2_w0:")
    srd(A, 16, 6, 8 * 4096, SYNC_OFF)
    A("s_lshl_b32 s40, s35, 12")
    A("s_lshl_b32 s41, s34, 2")
    A("v_mov_b32 v2, s41")
    A("v_mov_b32 v3, 1")
    A("s_mov_b64 exec, 1")
    A("buffer_store_dword v3, v2, s[16:19], s40 offen sc1")
    A("s_mov_b64 exec, -1")
    xb()
    A("v_and_b32 v2, 31, v1")
    A("v_lshlrev_b32 v2, 2, v2")
    A("s_mov_b32 s41, 0")
    A("k2_poll:")
    A("buffer_load_dword v3, v2, s[16:19], s40 offen sc1")
    A("s_waitcnt vmcnt(0)")
    A("v_cmp_ne_u32 vcc, 1, v3")
    A("s_mov_b32 s42, 1")
    A("s_nop 3")
    A("s_cmp_eq_u32 vcc_lo, 0")
    A("s_cbranch_scc1 k2_pres")
    A("s_add_u32 s41, s41, 1")
    A(f"s_cmp_lt_u32 s41, {TIMEOUT}")
    A("s_cbranch_scc1 k2_poll")
    A("s_ff1_i32_b32 s42, vcc_lo")
    A("s_add_u32 s42, s42, 2")
    A("k2_pres:")
    A(f"v_mov_b32 v7, {RES}")
    A("v_mov_b32 v15, s42")
    A("ds_write_b32 v7, v15")
    A("s_waitcnt lgkmcnt(0)")
    A("k2_bp:")
    A("s_barrier")
    A(f"v_mov_b32 v7, {RES}")
    A("ds_read_b32 v15, v7")
    A("s_mul_i32 s40, s52, 40")
    A("s_mul_i32 s41, s64, 5")
    A("s_add_u32 s40, s40, s41")
    A("s_lshl_b32 s40, s40, 10")
    A("s_lshl_b32 s41, s41, 10")
    A(f"v_add_u32 v2, s41, v{L16}")
    A(f"v_add_u32 v3, 4096, v{L16}")
    A("s_waitcnt lgkmcnt(0)")
    A("v_readfirstlane_b32 s42, v15")
    A("s_nop 3")
    A("s_cmp_eq_u32 s42, 1")
    A("s_cbranch_scc1 k2_oproj")
    A("s_sub_u32 s34, s42, 2")
    A("s_waitcnt vmcnt(0)")
    A("s_barrier")
    A("s_branch k2_restart")
    A("k2_oproj:")
    sA(A, 6)
    OS, WB, PR = 68, 100, 148
    for i in range(5):
        va = L16 if i < 4 else 3
        A(f"buffer_load_dwordx4 {vr(OS+4*i,4)}, v{va}, s[12:15], s40 offen offset:{(i%4)*1024} sc1")
    A("s_lshl_b32 s43, s52, 2")
    A("s_lshl_b32 s54, s66, 1")
    A("s_add_u32 s54, s54, s43")
    A("s_mul_i32 s54, s54, 40960")
    A("s_mul_i32 s55, s53, 5")
    A("s_add_u32 s56, s55, s65")
    A("s_lshl_b32 s56, s56, 11")
    A("s_add_u32 s54, s54, s56")
    A("s_add_u32 s56, s54, 40960")
    A("s_add_u32 s43, s43, s65")
    A("s_mul_i32 s43, s43, 40960")
    A("s_add_u32 s55, s55, 4")
    A("s_lshl_b32 s55, s55, 11")
    A("s_add_u32 s43, s43, s55")
    A("s_cmp_eq_u32 s66, 0")
    A("s_cselect_b32 s43, s43, 0x40000000")
    for q, so in enumerate((54, 56, 43)):
        for j in range(2):
            A(f"buffer_load_dwordx4 {vr(PR+8*q+4*j,4)}, v{L16}, s[24:27], s{so} offen offset:{1024*j} sc1")
    A("s_mul_i32 s41, s66, 20480")
    A(f"s_mul_i32 s42, s64, {WLP}")
    A(f"s_add_u32 s42, s42, {WL}")
    for p in range(4):
        A(f"v_add_u32 v{16+p}, s42, v{VP+p}")
        A(f"v_add_u32 v{VP+p}, s41, v{VP+p}")
    for s_ in range(8):
        A(f"ds_read_b128 {vr(WB + s_ * 4, 4)}, v{16 + s_ % 4} offset:{(s_ // 4) * 4096}")
    for i in range(5):
        A(f"s_waitcnt vmcnt({6+4-i})")
        A(f"ds_write_b128 v2, {vr(OS+4*i,4)} offset:{i*1024}")
    A("s_waitcnt vmcnt(0)")
    for e in range(8):
        A(f"v_lshlrev_b32 v{A1+2*e}, 16, v{PR+e}")
        A(f"v_and_b32 v{A1+2*e+1}, 0xffff0000, v{PR+e}")
        A(f"v_lshlrev_b32 v{A2+2*e}, 16, v{PR+8+e}")
        A(f"v_and_b32 v{A2+2*e+1}, 0xffff0000, v{PR+8+e}")
    for e in range(0, 16, 2):
        A(f"v_pk_add_f32 {pr(A1+e)}, {pr(A1+e)}, {pr(A2+e)}")
    for e in range(8):
        A(f"v_lshlrev_b32 v{A2+2*e}, 16, v{PR+16+e}")
        A(f"v_and_b32 v{A2+2*e+1}, 0xffff0000, v{PR+16+e}")
    A("s_waitcnt lgkmcnt(0)")
    A("s_barrier")
    def ord_(s): return f"ds_read_b128 {vr(OS + (s % 8) * 4, 4)}, v{VP + s % 4} offset:{(s // 4) * 4096}"
    for s_ in range(6): A(ord_(s_))
    for s_ in range(20):
        A(f"s_waitcnt lgkmcnt({min(5, 19 - s_)})")
        wreg = WB + s_ * 4 if s_ < 8 else RW[s_ - 8]
        A(m16(A1, wreg, OS + (s_ % 8) * 4, vr(A1, 16)))
        if s_ % 4 == 0:
            A(m16(A2, RW[12 + s_ // 4], OS + (s_ % 8) * 4, vr(A2, 16)))
        if s_ + 6 < 20: A(ord_(s_ + 6))
    A(f"v_add_u32 v2, s42, v{L16}")
    A("v_lshrrev_b32 v7, 4, v0")
    A("v_bfe_u32 v15, v0, 2, 2")
    A(f"v_mul_u32_u24 v15, {WLP}, v15")
    A("v_lshl_add_u32 v7, v7, 4, v15")
    A("v_and_b32 v15, 3, v0")
    A(f"v_mul_u32_u24 v15, {QP}, v15")
    A("v_add_u32 v7, v7, v15")
    A(f"v_add_u32 v7, {WL}, v7")
    for q in range(4):
        A(f"ds_write_b128 v2, {vr(A2+4*q,4)} offset:{(4+q)*QP}")
    A("v_lshrrev_b32 v15, 3, v0")
    A("v_and_b32 v44, 1, v0")
    A("v_lshl_add_u32 v15, v44, 5, v15")
    A("v_bfe_u32 v44, v0, 1, 2")
    A(f"v_mul_u32_u24 v44, {QP}, v44")
    A("v_lshl_add_u32 v15, v15, 4, v44")
    A(f"v_add_u32 v15, {WL + 4*QP}, v15")
    for q in range(4):
        A(f"ds_write_b128 v2, {vr(A1+4*q,4)} offset:{q*QP}")
    srd(A, 16, 78, XSZ)
    T = 208; U = 224
    A("s_waitcnt vmcnt(0)")
    def unpack(dst, src, n):
        for e in range(n):
            A(f"v_lshlrev_b32 v{dst+2*e}, 16, v{src+e}")
            A(f"v_and_b32 v{dst+2*e+1}, 0xffff0000, v{src+e}")
    unpack(T, XO, 4); unpack(T + 8, X5R, 2)
    for (s4, s2) in [(BO, B5R)]:
        unpack(U, s4, 4); unpack(U + 8, s2, 2)
        for e in range(0, 12, 2):
            A(f"v_pk_add_f32 {pr(T+e)}, {pr(T+e)}, {pr(U+e)}")
    A("s_waitcnt lgkmcnt(0)")
    A("s_barrier")
    R = 68
    for k in range(2):
        for h in range(2):
            A(f"ds_read_b128 {vr(R + (k*2+h)*4, 4)}, v7 offset:{k*4*WLP + h*512}")
    A("s_cmp_ge_u32 s64, 4")
    A("s_cbranch_scc1 k2_no5")
    for w in range(8):
        A(f"ds_read_b128 {vr(R + 16 + 4*w, 4)}, v15 offset:{w*WLP}")
    A("k2_no5:")
    A("s_waitcnt lgkmcnt(0)")
    for e in range(0, 8, 2):
        A(f"v_pk_add_f32 {pr(R+e)}, {pr(R+e)}, {pr(R+8+e)}")
        A(f"v_pk_add_f32 {pr(R+e)}, {pr(R+e)}, {pr(T+e)}")
    for e in range(4):
        A(f"v_cvt_pk_bf16_f32 v{R+8+e}, v{R+2*e}, v{R+2*e+1}")
    A(f"buffer_store_dwordx4 {vr(R+8,4)}, v13, s[16:19], 0 offen")
    A("s_cmp_ge_u32 s64, 4")
    A("s_cbranch_scc1 k2_fin")
    for w in range(8):
        for e in range(0, 4, 2):
            A(f"v_pk_add_f32 {pr(T+8+e)}, {pr(T+8+e)}, {pr(R+16+4*w+e)}")
    for e in range(2):
        A(f"v_cvt_pk_bf16_f32 v{T+e}, v{T+8+2*e}, v{T+8+2*e+1}")
    A(f"buffer_store_dwordx2 {pr(T)}, v14, s[16:19], 0 offen")
    A("k2_fin:")
    stamp_flush(A, 7, 6, 1, 64); tl_end(A, 1)
    A("k2_done:")
    A("s_endpgm")
    A("k2_fallback:")
    A("s_mul_i32 s46, s64, 3072")
    A("s_mov_b32 s38, 1")
    for r in (KF[0][1], KF[0][1] + 1, KF[1][1], KF[1][1] + 1): A(f"v_mov_b32 v{r}, 0x3f803f80")
    A(f"v_mov_b32 v2, {f32hex(-3.0e38)}")
    A(f"v_mov_b32 v3, {f32hex(-3.0e38)}")
    A("s_mov_b32 exec_lo, 0")
    A(f"v_mov_b32 v{QA2}, 0")
    A(f"v_mov_b32 v{QB2}, 0")
    A("s_mov_b64 exec, -1")
    for r in (VK1, VK2): A(f"v_subrev_u32 v{r}, s57, v{r}")
    A("s_mov_b32 s22, s51")
    A("s_mov_b32 s47, 0")
    A("s_mov_b32 s39, 0")
    A("k2_maxloop:")
    for l in plain(dma_ops(0)): A(l)
    A("s_waitcnt vmcnt(0)")
    A("s_barrier")
    A("s_mov_b32 s40, 0")
    A("k2_maxin:")
    for l in plain(rdK(0, 0)): A(l)
    A("s_waitcnt lgkmcnt(0)")
    A(m16(SA, KF[0][0], QA1, "0")); A(m8(SA, KF[0][1], QA2, vr(SA, 16)))
    A(m16(SB, KF[0][0], QB1, "0")); A(m8(SB, KF[0][1], QB2, vr(SB, 16)))
    for r in (VK1, VK2): A(f"v_add_u32 v{r}, 512, v{r}")
    A("s_nop 15")
    rowmax(A, SA, 2, False); rowmax(A, SB, 3, False)
    A("s_add_u32 s40, s40, 1")
    A("s_cmp_lt_u32 s40, 8")
    A("s_cbranch_scc1 k2_maxin")
    for r in (VK1, VK2): A(f"v_subrev_u32 v{r}, 4096, v{r}")
    A("s_barrier")
    A("s_add_u32 s39, s39, 1")
    A("s_cmp_lt_u32 s39, 8")
    A("s_cbranch_scc1 k2_maxloop")
    for r in (VK1, VK2): A(f"v_add_u32 v{r}, s57, v{r}")
    set_nc(A, 2, QA2, 7); set_nc(A, 3, QB2, 7)
    A("s_branch k2_main")
    return kernel_desc(name, 256), f"; @launch kernel=k2_kernel grid=(256,1,1) block=(512,1,1) lds={LDS_BYTES}"
```

```python
S = 2048; D = 640; F = 1536; H = 32; DH = 20
XN_OFF = 0x0000000
Y_OFF  = 0x0300000
Q_OFF  = 0x0600000
K_OFF  = 0x0900000
V_OFF  = 0x0C00000
VREC = 1344
VSB = 336
HB_OFF = 0x1000000
OB_OFF = 0x1800000
BM_OFF = 0x1C00000
W2F_OFF = 0x2000000
WOF_OFF = 0x2400000
XSZ = S * D * 2
SYNC_OFF = 0x0100000
W1F_OFF = 0x2600000
NSYNC = 72
XF_OFF = 0x1000000
```

```python
import sys, os
from asmlib import *
HEADER = open("parallel_sum__softmax_full_mha__mixer_channel_mlp__prompt.s.ref").read().split("; Override launch")[0]
def build(parts, out):
    A = Asm()
    descs = []; launches = []
    for p in parts:
        d, l = p(A)
        descs.append(d); launches.append(l)
    s = HEADER + "\n".join(launches) + "\n" + '.amdgcn_target "amdgcn-amd-amdhsa--gfx950"\n' + A.text() + "".join(descs)
    open(out, "w").write(s)
if __name__ == "__main__":
    import k1g as k1f, k2, k3
    parts = [k1f.gen_k1, k2.gen_k2, k3.gen_k3]
    if not os.environ.get("NO23"):
        import k23
        parts = [k1f.gen_k1, k23.gen_k2]
    if os.environ.get("K1J"):
        import k1j
        parts[0] = k1j.gen_k1
    if os.environ.get("K1H"):
        import k1h
        parts = [k1h.gen_k1]
        if os.environ.get("K1H") == "2":
            import k2m
            parts.append(k2m.gen_k2)
    if os.environ.get("OLD01"):
        import k0, k1
        parts = [k0.gen_k0, k1.gen_k1, k2.gen_k2, k3.gen_k3]
    if os.environ.get("TOUCH"):
        import ktouch
        parts = [ktouch.gen_touch] + parts
    out = sys.argv[1] if len(sys.argv) > 1 else "parallel_sum__softmax_full_mha__mixer_channel_mlp__prompt.s"
    build(parts, out)
```

```python
from asmlib import *
from layout import *
import math, os

NST = 10
ACC = 128
XF = 48
WF = 80
DV = 16
XAB, WAB, XAC, WAC = 28, 32, 36, 40
PX, PWQ, PW1, PB1, PWO, PW2, PDBG, PWS = 4, 6, 48, 50, 52, 54, 56, 58
EP = 147456
CSL = EP + 4096
BIASL = CSL + 768
PKS = EP + 6144
LDS_BYTES = PKS + 8192
ST_OFF = XN_OFF
CS_OFF = XN_OFF + 0x10000
PRIV_OFF = 0x8000000
NONL = EP + 6136
TIMEOUT = int(os.environ.get("K1TIMEOUT", "3000"))
SLOW = os.environ.get("K1SLOW", "")
NT = os.environ.get("NT", "rsp")
def NTF(c): return " nt" if c in NT else ""
pr = lambda r: f"v[{r}:{r+1}]"

def bf16r(A, v):
    A(f"v_cvt_pk_bf16_f32 v{v}, v{v}, v{v}")
    A(f"v_and_b32 v{v}, 0xffff0000, v{v}")

RX, UX, RW = 16, 56, 136
def h_rows_issue(A):
    A("v_lshrrev_b32 v2, 3, v1")
    A("s_lshl_b32 s32, s70, 3")
    A("v_add_u32 v2, s32, v2")
    A("v_mul_u32_u24 v3, 1280, v2")
    A("v_and_b32 v4, 7, v1")
    A("v_lshl_add_u32 v3, v4, 4, v3")
    for j in range(10):
        A(f"buffer_load_dwordx4 {vr(RX+4*j,4)}, v3, s[8:11], 0 offen offset:{128*j}" + NTF("r"))
def red8(A, v):
    for mod in ("quad_perm:[1,0,3,2]", "quad_perm:[2,3,0,1]", "row_half_mirror"):
        A("s_nop 1")
        A(f"v_add_f32_dpp v{v}, v{v}, v{v} {mod} row_mask:0xf bank_mask:0xf")
def h_rows_p1a(A):
    for i in range(20):
        A(f"v_lshlrev_b32 v{UX+2*i}, 16, v{RX+i}")
        A(f"v_and_b32 v{UX+2*i+1}, 0xffff0000, v{RX+i}")
    A(f"v_add_f32 v5, v{UX}, v{UX+1}")
    A(f"v_add_f32 v6, v{UX+2}, v{UX+3}")
    for i in range(4, 40, 2):
        A(f"v_add_f32 v5, v5, v{UX+i}")
        A(f"v_add_f32 v6, v6, v{UX+i+1}")
def h_rows_p1b(A):
    for i in range(20, 40):
        A(f"v_lshlrev_b32 v{UX+2*i}, 16, v{RX+i}")
        A(f"v_and_b32 v{UX+2*i+1}, 0xffff0000, v{RX+i}")
    for i in range(40, 80, 2):
        A(f"v_add_f32 v5, v5, v{UX+i}")
        A(f"v_add_f32 v6, v6, v{UX+i+1}")
    A("v_add_f32 v5, v5, v6")
    red8(A, 5)
    A(f"v_mul_f32 v7, {f32hex(1.0/640)}, v5")
def h_rows_p1(A):
    h_rows_p1a(A); h_rows_p1b(A)
def h_rows_p2a(A):
    A("v_mov_b32 v5, 0"); A("v_mov_b32 v6, 0")
    for i in range(0, 52, 2):
        A(f"v_sub_f32 v13, v{UX+i}, v7")
        A(f"v_sub_f32 v14, v{UX+i+1}, v7")
        A("v_fmac_f32 v5, v13, v13")
        A("v_fmac_f32 v6, v14, v14")
def h_rows_p2(A):
    h_rows_p2a(A); h_rows_p2b(A)
def h_rows_p2b(A):
    s, mean, var, m, r, t2, r2 = 5, 7, 8, 9, 10, 11, 12
    for i in range(52, 80, 2):
        A(f"v_sub_f32 v13, v{UX+i}, v7")
        A(f"v_sub_f32 v14, v{UX+i+1}, v7")
        A("v_fmac_f32 v5, v13, v13")
        A("v_fmac_f32 v6, v14, v14")
    A("v_add_f32 v5, v5, v6")
    red8(A, 5)
    A(f"v_mul_f32 v{var}, {f32hex(1.0/640)}, v{s}")
    A(f"v_mov_b32 v{m}, v{mean}"); bf16r(A, m)
    A(f"v_mov_b32 v{s}, v{var}"); bf16r(A, s)
    A(f"v_add_f32 v{s}, {f32hex(1e-5)}, v{s}"); bf16r(A, s)
    A(f"v_sqrt_f32 v{s}, v{s}"); A("s_nop 0"); bf16r(A, s)
    A(f"v_rcp_f32 v{r}, v{s}")
    A(f"v_sub_f32 v{t2}, v{mean}, v{m}")
    A(f"v_mul_f32 v{t2}, v{t2}, v{r}"); bf16r(A, t2)
    A(f"v_mul_f32 v{s}, v{var}, v{r}")
    A(f"v_mul_f32 v{s}, v{s}, v{r}"); bf16r(A, s)
    A(f"v_add_f32 v{s}, {f32hex(1e-5)}, v{s}"); bf16r(A, s)
    A(f"v_sqrt_f32 v{s}, v{s}"); A("s_nop 0"); bf16r(A, s)
    A(f"v_rcp_f32 v{r2}, v{s}")
    O = RX
    A(f"v_mov_b32 v{O}, v{r}")
    A(f"v_mul_f32 v{O+1}, v{m}, v{r}")
    A(f"v_mul_f32 v{O+4}, v{r}, v{r2}")
    A(f"v_add_f32 v{O+5}, v{O+1}, v{t2}")
    A(f"v_mul_f32 v{O+5}, v{O+5}, v{r2}")
def h_rows_store(A):
    O = RX
    for i in (2, 3, 6, 7): A(f"v_mov_b32 v{O+i}, s76")
    A("v_lshlrev_b32 v3, 4, v2")
    A("v_add_u32 v4, 0x8000, v3")
    A("s_mov_b32 exec_lo, 0x01010101"); A("s_mov_b32 exec_hi, 0x01010101")
    A(f"buffer_store_dwordx4 {vr(O,4)}, v3, s[60:63], 0 offen sc1")
    A(f"buffer_store_dwordx4 {vr(O+4,4)}, v4, s[60:63], 0 offen sc1")
    A("s_mov_b64 exec, -1")
def h_strip_issue(A):
    A("s_lshr_b32 s35, s71, 2")
    A("s_cmp_lt_u32 s35, 30")
    A(f"s_cselect_b32 s12, s{PWQ}, s{PW1}")
    A(f"s_cselect_b32 s13, s{PWQ+1}, s{PW1+1}")
    A("s_cselect_b32 s33, 768, 0")
    A("s_cselect_b32 s34, 0, 30")
    A("s_add_u32 s33, s33, 3072")
    A("s_mul_i32 s14, s33, 640")
    A("s_mov_b32 s15, 0x00020000")
    A("s_cmp_lt_u32 s71, 216")
    A("s_cselect_b32 s14, s14, 0")
    A("s_sub_u32 s34, s35, s34")
    A("s_lshl_b32 s34, s34, 7")
    A("v_lshrrev_b32 v13, 3, v1")
    A("v_mul_lo_u32 v13, v13, s33")
    A("v_and_b32 v14, 7, v1")
    A("v_lshl_add_u32 v13, v14, 4, v13")
    A("v_add_u32 v13, s34, v13")
    A("s_and_b32 s34, s71, 3")
    A("s_mul_i32 s34, s34, 160")
    A("s_mul_i32 s34, s34, s33")
    A("s_lshl_b32 s33, s33, 3")
    for i in range(20):
        A(f"buffer_load_dwordx4 {vr(RW+4*i,4)}, v13, s[12:15], s34 offen" + NTF("s"))
        if i < 19: A("s_add_u32 s34, s34, s33")
def h_strip_p(A, lo, hi):
    C = 216
    for i in range(lo, hi):
        for e in range(4):
            w = RW + 4 * i + e
            if i == 0:
                A(f"v_lshlrev_b32 v{C+2*e}, 16, v{w}")
                A(f"v_and_b32 v{C+2*e+1}, 0xffff0000, v{w}")
            else:
                A(f"v_lshlrev_b32 v13, 16, v{w}")
                A(f"v_and_b32 v14, 0xffff0000, v{w}")
                A(f"v_add_f32 v{C+2*e}, v{C+2*e}, v13")
                A(f"v_add_f32 v{C+2*e+1}, v{C+2*e+1}, v14")
def h_strip_fin(A):
    C = 216; T = 224
    for mod in ("row_ror:8",):
        A("s_nop 1")
        for e in range(8):
            A(f"v_add_f32_dpp v{C+e}, v{C+e}, v{C+e} {mod} row_mask:0xf bank_mask:0xf")
    for op in ("v_permlane16_swap_b32", "v_permlane32_swap_b32"):
        for e in range(8): A(f"v_mov_b32 v{T+e}, v{C+e}")
        A("s_nop 1")
        for e in range(8): A(f"{op} v{C+e}, v{T+e}")
        A("s_nop 1")
        for e in range(8): A(f"v_add_f32 v{C+e}, v{C+e}, v{T+e}")
def h_strip_store(A):
    C = 216; T = 224
    A("v_lshrrev_b32 v13, 3, v1")
    A(f"v_mov_b32 v{T}, v{C}")
    for e in range(1, 8):
        A(f"v_cmp_eq_u32 vcc, {e}, v13")
        A("s_nop 1")
        A(f"v_cndmask_b32 v{T}, v{T}, v{C+e}, vcc")
    A(f"v_mov_b32 v{T+1}, s76")
    A("v_and_b32 v14, 7, v1")
    A("v_lshl_add_u32 v13, v14, 3, v13")
    A("s_lshr_b32 s33, s71, 2")
    A("s_lshl_b32 s33, s33, 9")
    A("s_and_b32 s34, s71, 3")
    A("s_lshl_b32 s34, s34, 15")
    A("s_add_u32 s33, s33, s34")
    A(f"s_add_u32 s33, s33, {CS_OFF - ST_OFF}")
    A("v_lshl_add_u32 v13, v13, 3, s33")
    A("s_cmp_lt_u32 s71, 216")
    A("s_cselect_b32 s33, 0, 0x40000000")
    A(f"buffer_store_dwordx2 {pr(T)}, v13, s[60:63], s33 offen sc1")

def h_pack_issue(A, f, base):
    lab = A.label("pk")
    d = 84 + (f % 8)
    A("s_mul_i32 s41, s2, 11")
    A(f"s_add_u32 s41, s41, {f}")
    A("s_cmp_ge_u32 s41, 1920")
    A(f"s_cbranch_scc1 {lab}_wo")
    A("s_mul_i32 s33, s41, 3277")
    A("s_lshr_b32 s33, s33, 16")
    A("s_mul_i32 s32, s33, 20")
    A("s_sub_u32 s32, s41, s32")
    A("s_mul_i32 s41, s32, 96")
    A("s_add_u32 s41, s41, s33")
    A("s_lshl_b32 s34, s33, 4")
    A("s_mov_b32 s35, 4")
    A(f"s_mov_b32 s36, {8*1280}")
    A(f"s_lshl_b32 s{d}, s41, 10")
    A(f"s_mov_b32 s16, s{PW2}"); A(f"s_mov_b32 s17, s{PW2+1}"); A(f"s_mov_b32 s18, {1536*1280}")
    A(f"s_branch {lab}_go")
    A(f"{lab}_wo:")
    A("s_sub_u32 s37, s41, 1920")
    A("s_mul_i32 s33, s37, 3277")
    A("s_lshr_b32 s33, s33, 16")
    A("s_mul_i32 s32, s33, 20")
    A("s_sub_u32 s32, s37, s32")
    A("s_mul_i32 s37, s32, 40")
    A("s_add_u32 s37, s37, s33")
    A(f"s_lshl_b32 s{d}, s37, 10")
    A(f"s_add_u32 s{d}, s{d}, {WOF_OFF - W2F_OFF}")
    A("s_mul_i32 s34, s33, 20")
    A("s_mov_b32 s35, 4")
    A(f"s_mov_b32 s36, {8*1280}")
    A(f"s_mov_b32 s16, s{PWO}"); A(f"s_mov_b32 s17, s{PWO+1}"); A(f"s_mov_b32 s18, {640*1280}")
    A("s_cmp_lt_u32 s41, 2720")
    A("s_cselect_b32 s18, s18, 0")
    A(f"s_cselect_b32 s{d}, s{d}, 0x40000000")
    A("s_cmp_lt_u32 s33, 32")
    A(f"s_cbranch_scc1 {lab}_go")
    A("s_sub_u32 s33, s33, 32")
    A("s_mul_i32 s34, s33, 80")
    A("s_add_u32 s34, s34, 16")
    A("s_mov_b32 s35, 40")
    A(f"s_mov_b32 s36, {20*1280}")
    A(f"{lab}_go:")
    A("s_mov_b32 s19, 0x00020000")
    A("v_mul_u32_u24 v12, s35, v246")
    A("v_add_u32 v12, s34, v12")
    A("v_add_u32 v12, v12, v245")
    A("v_mul_u32_u24 v12, 1280, v12")
    A("v_mul_lo_u32 v248, v249, s36")
    A("v_add_u32 v12, v12, v248")
    A("s_lshl_b32 s32, s32, 6")
    A("v_add_u32 v12, s32, v12")
    A("v_add_u32 v12, v12, v250")
    A(f"s_add_u32 m0, s77, {base*1024}")
    A("s_nop 0")
    A("buffer_load_dwordx4 v12, s[16:19], 0 offen lds" + NTF("p"))
def h_pack_read(A, base, reg):
    A(f"ds_read_b64_tr_b16 {pr(reg)}, v251 offset:{base*1024}")
    A(f"ds_read_b64_tr_b16 {pr(reg+2)}, v251 offset:{base*1024+256}")
def h_pack_store(A, f, reg):
    A(f"buffer_store_dwordx4 {vr(reg,4)}, v247, s[64:67], s{84 + (f % 8)} offen")

def helper(A):
    A("k1_helper:")
    A("s_waitcnt lgkmcnt(0)")
    srd(A, 8, PX, XSZ)
    srd(A, 60, PWS, 0x30000, ST_OFF)
    srd(A, 20, PDBG, 256)
    srd(A, 64, PWS, 0x500000, W2F_OFF)
    if not os.environ.get("NOXLOC"):
        A("s_and_b32 s32, s2, 7")
        A("s_lshr_b32 s33, s2, 3")
        A("s_lshl_b32 s70, s32, 5")
        A("s_add_u32 s70, s70, s33")
        A("s_and_b32 s34, s32, 3")
        A("s_lshr_b32 s35, s32, 2")
        A("s_mul_i32 s35, s35, 27")
        A("s_add_u32 s35, s35, s33")
        A("s_mul_i32 s36, s34, 30")
        A("s_add_u32 s36, s36, s35")
        A("s_mul_i32 s37, s34, 24")
        A("s_add_u32 s37, s37, s35")
        A("s_add_u32 s37, s37, 90")
        A("s_cmp_lt_u32 s35, 30")
        A("s_cselect_b32 s71, s36, s37")
        A("s_cmp_lt_u32 s33, 27")
        A("s_cselect_b32 s71, s71, 255")
    else:
        A("s_mov_b32 s70, s2")
        A("s_mov_b32 s71, s2")
    A("v_mov_b32 v240, 0")
    A(f"v_mov_b32 v241, {NONL}")
    A("v_bfe_u32 v245, v1, 2, 2")
    A("v_lshrrev_b32 v246, 5, v1")
    A("v_lshlrev_b32 v247, 4, v1")
    A("v_bfe_u32 v249, v1, 4, 1")
    A("v_and_b32 v250, 3, v1")
    A("v_lshlrev_b32 v250, 4, v250")
    A("s_sub_u32 s77, s25, 4")
    A("s_lshl_b32 s77, s77, 12")
    A(f"s_add_u32 s77, s77, {PKS}")
    A("v_lshl_add_u32 v251, v246, 3, v245")
    A("v_lshlrev_b32 v251, 6, v251")
    A("v_lshl_add_u32 v251, v249, 5, v251")
    A("v_and_b32 v252, 3, v1")
    A("v_lshl_add_u32 v251, v252, 3, v251")
    A("v_add_u32 v251, s77, v251")
    A("s_cmp_eq_u32 s25, 5")
    A("s_cbranch_scc1 k1_hB")
    h_rows_issue(A)
    A("s_cmp_lg_u32 s2, 0")
    A("s_cbranch_scc1 k1_hA1")
    A("s_memrealtime s[32:33]")
    A("s_waitcnt lgkmcnt(0)")
    A("s_or_b32 s32, s32, 1")
    A("v_mov_b32 v13, s32")
    A("s_mov_b64 exec, 1")
    A("buffer_store_dword v13, v240, s[20:23], 0 offen sc1")
    A("s_mov_b64 exec, -1")
    A("k1_hA1:")
    srd(A, 16, PB1, 1536 * 2)
    A("s_cmp_eq_u32 s28, 2")
    A("s_cselect_b32 s18, s18, 0")
    A("v_add_u32 v15, s31, v1")
    A("v_lshlrev_b32 v15, 1, v15")
    for i in range(3):
        A(f"buffer_load_ushort v{232+i}, v15, s[16:19], 0 offen offset:{128*i}")
    A("s_barrier")
    A("s_waitcnt vmcnt(3)")
    h_rows_p1a(A)
    A("s_barrier")
    A("buffer_load_dword v242, v240, s[20:23], 0 offen")
    h_rows_p1b(A)
    A("s_barrier")
    h_rows_p2a(A)
    A("s_barrier")
    h_rows_p2b(A)
    A("s_mov_b32 s34, 0")
    A("k1_hn:")
    A("s_waitcnt vmcnt(0)")
    A("v_readfirstlane_b32 s76, v242")
    A("s_nop 3")
    A("s_cmp_lg_u32 s76, 0")
    A("s_cbranch_scc1 k1_hn_ok")
    A("buffer_load_dword v242, v240, s[20:23], 0 offen sc1")
    A("s_add_u32 s34, s34, 1")
    A("s_sleep 1")
    A("s_cmp_lt_u32 s34, 400")
    A("s_cbranch_scc1 k1_hn")
    A("k1_hn_ok:")
    A("v_mov_b32 v242, s76")
    A("ds_write_b32 v241, v242")
    h_rows_store(A)
    A("s_waitcnt lgkmcnt(0)")
    A("s_barrier")
    for f in range(4): h_pack_issue(A, f, f)
    A("s_barrier")
    A("s_barrier")
    A("s_waitcnt vmcnt(0)")
    for f in range(4): h_pack_read(A, f, 64 + 4 * f)
    A("s_waitcnt lgkmcnt(0)")
    for f in range(4): h_pack_store(A, f, 64 + 4 * f)
    A("s_barrier")
    A("s_cmp_eq_u32 s28, 3")
    A("s_cbranch_scc1 k1_done")
    A("v_add_u32 v243, s30, v1")
    A("v_lshlrev_b32 v243, 4, v243")
    A("s_cmp_eq_u32 s28, 2")
    A("s_cselect_b32 s32, 0x8000, 0")
    A("v_add_u32 v243, s32, v243")
    A("v_add_u32 v244, s29, v1")
    A("v_lshlrev_b32 v244, 3, v244")
    A(f"v_add_u32 v244, {CS_OFF - ST_OFF}, v244")
    A("s_mov_b32 s68, 0"); A("s_mov_b32 s69, 0x8000"); A("s_mov_b32 s74, 0x10000"); A("s_mov_b32 s75, 0x18000")
    def gl():
        for i in range(4):
            A(f"buffer_load_dwordx4 {vr(16+4*i,4)}, v243, s[60:63], 0 offen offset:{1024*i} sc1")
        for q in range(4):
            for i in range(3):
                A(f"buffer_load_dwordx2 {pr(32+6*q+2*i)}, v244, s[60:63], s{68+q if q < 2 else 72+q} offen offset:{512*i} sc1")
    gl()
    A("s_barrier")
    A("s_barrier")
    A("s_mov_b32 s34, 0")
    A("s_mov_b32 s38, 1")
    A("k1_hpoll:")
    A("s_waitcnt vmcnt(0)")
    A("v_xor_b32 v60, s76, v18")
    A("v_xor_b32 v61, s76, v22")
    A("v_or_b32 v60, v60, v61")
    for q in range(4):
        for i in range(2):
            A(f"v_xor_b32 v61, s76, v{33+6*q+2*i}")
            A("v_or_b32 v60, v60, v61")
    A("v_xor_b32 v62, s76, v26")
    A("v_xor_b32 v61, s76, v30")
    A("v_or_b32 v62, v62, v61")
    A("v_xor_b32 v63, s76, v37")
    for q in range(1, 4):
        A(f"v_xor_b32 v61, s76, v{37+6*q}")
        A("v_or_b32 v63, v63, v61")
    A("v_cmp_ne_u32 s[40:41], 0, v60")
    A("v_cmp_ne_u32 s[42:43], 0, v62")
    A("v_cmp_ne_u32 s[46:47], 0, v63")
    A("s_nop 3")
    A("s_cmp_eq_u32 s28, 2")
    A("s_cselect_b64 s[42:43], s[46:47], s[42:43]")
    A("s_or_b64 s[40:41], s[40:41], s[42:43]")
    A("s_cselect_b32 s32, 1, 0")
    A("s_cmp_eq_u32 s76, 0")
    A("s_cselect_b32 s32, 1, s32")
    A(f"s_cmp_eq_u32 s32, {0 if SLOW != '2' else 5}")
    A("s_cbranch_scc1 k1_hok")
    A("s_cmp_eq_u32 s38, 0")
    A("s_cbranch_scc0 k1_hp2")
    A("s_mov_b32 s38, 1")
    A("s_barrier")
    A("k1_hp2:")
    A("s_sleep 2")
    gl()
    A("s_add_u32 s34, s34, 1")
    A("s_cmp_eq_u32 s76, 0")
    A("s_cbranch_scc1 k1_hself")
    A(f"s_cmp_lt_u32 s34, {TIMEOUT}")
    A("s_cbranch_scc1 k1_hpoll")
    A("k1_hself:")
    A("s_lshl_b32 s32, s2, 18")
    A(f"s_add_u32 s32, s32, {PRIV_OFF}")
    A(f"s_add_u32 s60, s{PWS}, s32")
    A(f"s_addc_u32 s61, s{PWS+1}, 0")
    A("s_lshr_b32 s70, s30, 3")
    A("s_lshr_b32 s39, s27, 3")
    A("s_add_u32 s39, s39, s70")
    A("k1_hs1:")
    h_rows_issue(A)
    A("s_waitcnt vmcnt(0)")
    h_rows_p1(A); h_rows_p2(A); h_rows_store(A)
    A("s_add_u32 s70, s70, 1")
    A("s_cmp_lt_u32 s70, s39")
    A("s_cbranch_scc1 k1_hs1")
    A("s_lshr_b32 s71, s29, 4")
    A("s_lshr_b32 s39, s26, 4")
    A("s_add_u32 s39, s39, s71")
    A("k1_hs2:")
    h_strip_issue(A)
    A("s_waitcnt vmcnt(0)")
    h_strip_p(A, 0, 20); h_strip_fin(A); h_strip_store(A)
    A("s_add_u32 s71, s71, 1")
    A("s_cmp_lt_u32 s71, s39")
    A("s_cbranch_scc1 k1_hs2")
    A("s_waitcnt vmcnt(0)")
    gl()
    A("s_waitcnt vmcnt(0)")
    A("k1_hok:")
    A("v_lshlrev_b32 v12, 3, v1")
    A(f"v_add_u32 v12, {EP}, v12")
    A("v_lshlrev_b32 v13, 2, v1")
    A(f"v_add_u32 v13, {EP}, v13")
    for i in range(4):
        A(f"v_mul_f32 v{16+4*i}, s45, v{16+4*i}")
        A(f"v_mul_f32 v{17+4*i}, s45, v{17+4*i}")
        A(f"ds_write_b64 v12, {pr(16+4*i)} offset:{512*i}")
        A(f"ds_write_b32 v13, v{16+4*i} offset:{2048+256*i}")
        A(f"ds_write_b32 v13, v{17+4*i} offset:{3072+256*i}")
    for i in range(3):
        A(f"v_lshlrev_b32 v{232+i}, 16, v{232+i}")
        for q in range(1, 4):
            A(f"v_add_f32 v{32+2*i}, v{32+2*i}, v{32+6*q+2*i}")
        A(f"ds_write_b32 v13, v{32+2*i} offset:{CSL-EP+256*i}")
        A(f"ds_write_b32 v13, v{232+i} offset:{BIASL-EP+256*i}")
    A("s_waitcnt lgkmcnt(0)")
    A("s_cmp_eq_u32 s38, 0")
    A("s_cbranch_scc0 k1_hw")
    A("s_barrier")
    A("k1_hw:")
    A("s_barrier")
    A("s_endpgm")
    A("k1_hB:")
    PB = lambda i: 16 + 8 * i
    if os.environ.get("LATEB"):
        A("s_barrier")
        h_strip_issue(A)
        A("s_barrier")
        A("s_barrier")
        A("s_waitcnt vmcnt(5)")
        h_strip_p(A, 0, 10)
    else:
        h_strip_issue(A)
        A("s_barrier")
        A("s_waitcnt vmcnt(15)")
        h_strip_p(A, 0, 5)
        A("s_barrier")
        A("s_waitcnt vmcnt(10)")
        h_strip_p(A, 5, 10)
        A("s_barrier")
    A("s_waitcnt vmcnt(0)")
    h_strip_p(A, 10, 15)
    A("s_barrier")
    h_strip_p(A, 15, 20)
    h_strip_fin(A)
    A("s_barrier")
    A("ds_read_b32 v242, v241")
    A("s_waitcnt lgkmcnt(0)")
    A("v_readfirstlane_b32 s76, v242")
    A("s_nop 1")
    h_strip_store(A)
    for i in range(4): h_pack_issue(A, 4 + i, i)
    A("s_barrier")
    A("s_barrier")
    A("s_waitcnt vmcnt(0)")
    for i in range(4): h_pack_read(A, i, 16 + 4 * i)
    A("s_waitcnt lgkmcnt(0)")
    for i in range(4): h_pack_store(A, 4 + i, 16 + 4 * i)
    for i in range(3): h_pack_issue(A, 8 + i, i)
    A("s_barrier")
    srd(A, 16, PWS, 32 * 64 * VREC, V_OFF)
    A("s_cmp_lt_u32 s2, 128")
    A("s_cselect_b32 s18, s18, 0")
    A("s_lshl_b32 s32, s2, 6")
    A("v_add_u32 v12, s32, v1")
    A("v_lshrrev_b32 v13, 2, v12")
    A("v_and_b32 v12, 3, v12")
    A(f"v_mul_u32_u24 v13, {VREC}, v13")
    A(f"v_mul_u32_u24 v12, {VSB}, v12")
    A("v_add_u32 v12, v12, v13")
    for i in range(4): A(f"v_mov_b32 v{124+i}, 0x3f803f80")
    A("buffer_store_dwordx4 v[124:127], v12, s[16:19], 0 offen offset:320")
    srd(A, 16, PWS, 8 * 4096, SYNC_OFF)
    A("s_lshl_b32 s32, s2, 12")
    A("v_lshlrev_b32 v12, 2, v1")
    A("buffer_store_dword v240, v12, s[16:19], s32 offen")
    A("s_cmp_eq_u32 s28, 3")
    A("s_cbranch_scc1 k1_hB2")
    A("s_barrier")
    A("k1_hB2:")
    A("s_waitcnt vmcnt(2)")
    for i in range(3): h_pack_read(A, i, 32 + 4 * i)
    A("s_waitcnt lgkmcnt(0)")
    for i in range(3): h_pack_store(A, 8 + i, 32 + 4 * i)
    A("s_endpgm")

def loader(A, tag, TM, TN, ldw, isH):
    BM, BN = 2 * TM * 32, 2 * TN * 32
    AB = BM * 128; pitch = BN * 2; BB = 64 * pitch; SS = AB + BB
    nA = BM // 16; nB = BB // 2048; ND = nA + nB
    CPR = BN // 8
    A(f"{tag}:")
    for q in range(8, nA):
        A(f"v_add_u32 v{DV+q}, {q*8*1280 - (q&3)*1024}, v{5 + (q&1)}")
    A(f"s_mul_i32 s27, s25, {nB*1024}")
    A(f"s_add_u32 s27, s27, {AB}")
    def dmaA(q0=0):
        for q in range(q0, nA):
            if q % 4 == 0:
                A("s_add_u32 m0, s23, s26" if q == 0 else "s_add_u32 m0, m0, 4096")
                A("s_nop 0")
            A(f"buffer_load_dwordx4 v{DV+q}, s[8:11], s21 offen offset:{(q&3)*1024} lds" + NTF("a"))
    def dmaB():
        for q in range(nB):
            if q % 4 == 0:
                A("s_add_u32 m0, s23, s27" if q == 0 else "s_add_u32 m0, m0, 4096")
                A("s_nop 0")
            A(f"buffer_load_dwordx4 v{DV+nA+q}, s[12:15], s22 offen offset:{(q&3)*1024} lds" + NTF("b"))
    def adv():
        A("s_add_u32 s21, s21, 128")
        A(f"s_add_u32 s22, s22, {64*ldw}")
        A(f"s_add_u32 s23, s23, {SS}")
        A(f"s_cmp_eq_u32 s23, {3*SS}")
        A("s_cselect_b32 s23, 0, s23")
    dmaA(8)
    A(f"s_mul_i32 s41, s25, {nB*64}")
    A(f"s_lshl_b32 s42, s31, 1")
    for q in range(nB):
        A(f"v_add_u32 v7, s41, v1")
        if q: A(f"v_add_u32 v7, {q*64}, v7")
        if CPR == 16:
            A("v_lshrrev_b32 v8, 4, v7")
            A("v_and_b32 v9, 15, v7")
            A("v_and_b32 v10, 3, v8")
        else:
            A("v_mul_u32_u24 v8, 2731, v7")
            A("v_lshrrev_b32 v8, 16, v8")
            A("v_mul_u32_u24 v9, 24, v8")
            A("v_sub_u32 v9, v7, v9")
            A("v_bfe_u32 v10, v8, 1, 1")
        A("v_lshlrev_b32 v10, 2, v10")
        A("v_xor_b32 v9, v9, v10")
        A(f"v_mul_u32_u24 v8, {ldw}, v8")
        A("v_lshl_add_u32 v8, v9, 4, v8")
        A(f"v_add_u32 v8, s42, v8")
        if q & 3:
            A(f"v_subrev_u32 v{DV+nA+q}, {(q&3)*1024}, v8")
        else:
            A(f"v_mov_b32 v{DV+nA+q}, v8")
    srd(A, 12, PW1 if isH else PWQ, 640 * ldw)
    dmaB(); adv()
    if not os.environ.get("LDOLD"):
        dmaB()
        A(f"s_waitcnt vmcnt({nB})")
        A("s_barrier")
        dmaA(); adv()
        A("s_mov_b32 s20, 1")
    A(f"{tag}_loop:")
    dmaA(); dmaB(); adv()
    A(f"s_waitcnt vmcnt({ND})")
    A("s_barrier")
    A("s_add_u32 s20, s20, 1")
    A(f"s_cmp_lt_u32 s20, {NST-1}")
    A(f"s_cbranch_scc1 {tag}_loop")
    A("s_waitcnt vmcnt(0)")
    A("s_barrier")
    A("s_endpgm")

def gemm_core(A, tag, TM, TN, transposed, ldw, isH):
    BM, BN = 2 * TM * 32, 2 * TN * 32
    AB = BM * 128; pitch = BN * 2; BB = 64 * pitch; SS = AB + BB
    CPR = BN // 8
    A("s_and_b32 s43, s25, 1")
    A("s_lshr_b32 s44, s25, 1")
    A("v_and_b32 v2, 31, v1")
    A("v_lshrrev_b32 v3, 5, v1")
    A("v_bfe_u32 v4, v2, 1, 3")
    A(f"s_mul_i32 s45, s43, {TM*32*128}")
    A("v_lshlrev_b32 v5, 7, v2")
    A("v_add_u32 v5, s45, v5")
    for kk in range(4):
        A(f"v_add_u32 v6, {2*kk}, v3")
        A("v_xor_b32 v6, v6, v4")
        A(f"v_lshl_add_u32 v{XAB+kk}, v6, 4, v5")
    A("v_bfe_u32 v6, v1, 2, 2")
    A("v_lshl_add_u32 v7, v3, 3, v6")
    A(f"v_mul_u32_u24 v7, {pitch}, v7")
    A("v_bfe_u32 v8, v1, 4, 1")
    A("v_lshl_add_u32 v7, v8, 5, v7")
    A("v_and_b32 v8, 3, v1")
    A("v_lshl_add_u32 v7, v8, 3, v7")
    A(f"v_add_u32 v7, {AB}, v7")
    if CPR != 16:
        A("v_lshrrev_b32 v6, 1, v6")
    A(f"s_mul_i32 s46, s44, {TN}")
    for u in range(TN):
        A(f"s_add_u32 s47, s46, {u}")
        A("v_xor_b32 v8, s47, v6")
        A(f"v_lshl_add_u32 v{WAB+u}, v8, 6, v7")
    for i in range(TM * TN * 16):
        A(f"v_mov_b32 v{ACC+i}, 0")
    def reads(kk, buf):
        L = []
        for t in range(TM):
            L.append(f"ds_read_b128 {vr(XF + (buf*4+t)*4, 4)}, v{XAC+kk} offset:{t*4096}")
        for u in range(TN):
            for i in range(2):
                L.append(f"ds_read_b64_tr_b16 {vr(WF + (buf*3+u)*4 + 2*i, 2)}, v{WAC+u} offset:{(16*kk+4*i)*pitch}")
        return L
    def mfmas(buf):
        L = []
        for t in range(TM):
            for u in range(TN):
                a = ACC + (t * TN + u) * 16
                x = vr(XF + (buf*4+t)*4, 4); w = vr(WF + (buf*3+u)*4, 4)
                o = (w, x) if transposed else (x, w)
                L.append(f"v_mfma_f32_32x32x16_bf16 {vr(a,16)}, {o[0]}, {o[1]}, {vr(a,16)}")
        return L
    def setcur():
        L = []
        for kk in range(4): L.append(f"v_add_u32 v{XAC+kk}, s24, v{XAB+kk}")
        for u in range(TN): L.append(f"v_add_u32 v{WAC+u}, s24, v{WAB+u}")
        return L
    A("s_mov_b32 s24, 0"); A("s_mov_b32 s20, 0")
    for l in setcur(): A(l)
    A("s_setprio 2")
    stamp(A, 1)
    A("s_waitcnt lgkmcnt(0)")
    A("s_barrier")
    stamp(A, 2)
    for l in reads(0, 0): A(l)
    A(f"{tag}_loop:")
    NM = TM * TN
    for kk in range(4):
        buf = kk & 1
        ms = mfmas(buf)
        slots = [[] for _ in ms]
        if kk < 3:
            A("s_waitcnt lgkmcnt(0)")
            rd = reads(kk + 1, buf ^ 1)
        else:
            if os.environ.get("ITST"):
                A("s_memtime s[90:91]")
            A("s_waitcnt lgkmcnt(0)")
            if os.environ.get("ITST"):
                A("s_memtime s[92:93]")
            A("s_barrier")
            if os.environ.get("ITST"):
                A("s_memtime s[94:95]")
                A("s_waitcnt lgkmcnt(0)")
                A("s_mul_i32 m0, s20, 3")
                A("s_nop 1")
                A("v_writelane_b32 v47, s90, m0")
                A("s_add_u32 m0, m0, 1")
                A("s_nop 1")
                A("v_writelane_b32 v47, s92, m0")
                A("s_add_u32 m0, m0, 1")
                A("s_nop 1")
                A("v_writelane_b32 v47, s94, m0")
            rd = reads(0, buf ^ 1)
        for i, l in enumerate(rd):
            slots[i // 2].append(l)
        if kk == 1:
            slots[NM - 1] += [f"s_add_u32 s24, s24, {SS}", f"s_cmp_eq_u32 s24, {3*SS}", "s_cselect_b32 s24, 0, s24"]
        if kk == 2:
            sc = setcur()
            slots[NM - 2] += sc[:4]; slots[NM - 1] += sc[4:]
        if kk == 3:
            slots[NM - 1] += ["s_add_u32 s20, s20, 1", f"s_cmp_lt_u32 s20, {NST}"]
        for m, sl in zip(ms, slots):
            A(m)
            for l in sl: A(l)
    A(f"s_cbranch_scc1 {tag}_loop")
    A("s_waitcnt lgkmcnt(0)")
    stamp(A, 3)
    return SS

def fin(A):
    if os.environ.get("ITST"):
        srd(A, 72, PWS, 1 << 20, 0x4800000)
        A("s_lshl_b32 s76, s2, 2")
        A("s_add_u32 s76, s76, s25")
        A("s_lshl_b32 s76, s76, 8")
        A("v_and_b32 v1, 63, v0")
        A("v_lshlrev_b32 v1, 2, v1")
        A("v_mov_b32 v2, s80")
        A("v_sub_u32 v47, v47, v2")
        A("buffer_store_dword v47, v1, s[72:75], s76 offen")
    stamp(A, 4); stamp_flush(A, 5, PWS, 0, 25); tl_end(A, 0)
    A("s_endpgm")

def gen_k1(A):
    name = "k1_kernel"
    kernel_begin(A, name)
    A("s_cmp_ge_u32 s2, 256")
    A("s_cbranch_scc1 k1_done")
    stamp(A, 0); tl_start(A, 0)
    A("s_load_dwordx4 s[4:7], s[0:1], 0")
    A("s_load_dwordx4 s[48:51], s[0:1], 32")
    A("s_load_dwordx2 s[52:53], s[0:1], 16")
    A("s_load_dwordx2 s[54:55], s[0:1], 48")
    A("s_load_dwordx4 s[56:59], s[0:1], 72")
    A("v_lshrrev_b32 v1, 6, v0")
    A("s_and_b32 s32, s2, 7")
    A("v_readfirstlane_b32 s25, v1")
    A("v_and_b32 v1, 63, v0")
    A("s_lshr_b32 s33, s2, 3")
    A("s_lshr_b32 s34, s32, 2")
    A("s_and_b32 s35, s32, 3")
    A("s_mov_b32 s45, 1.0")
    A("s_cmp_ge_u32 s33, 15")
    A("s_cbranch_scc1 k1_dh")
    A("s_mul_i32 s36, s35, 15")
    A("s_add_u32 s36, s36, s33")
    A("s_lshr_b32 s75, s36, 2")
    A("s_and_b32 s38, s36, 3")
    A("s_lshl_b32 s39, s34, 2")
    A("s_add_u32 s38, s38, s39")
    A("s_lshl_b32 s30, s38, 8")
    A("s_lshl_b32 s31, s75, 7")
    A("s_mov_b32 s29, s31")
    A("s_movk_i32 s27, 256"); A("s_movk_i32 s26, 128")
    A("s_cmp_lt_u32 s75, 5")
    A(f"s_cselect_b32 s45, {f32hex(DH**-0.5 * math.log2(math.e))}, s45")
    A("s_cmp_ge_u32 s75, 10")
    A("s_cselect_b32 s28, 1, 0")
    A("s_branch k1_dd")
    A("k1_dh:")
    A("s_sub_u32 s36, s33, 15")
    A("s_lshr_b32 s37, s36, 3")
    A("s_lshl_b32 s38, s35, 1")
    A("s_add_u32 s37, s37, s38")
    A("s_and_b32 s38, s36, 7")
    A("s_lshl_b32 s39, s34, 3")
    A("s_add_u32 s38, s38, s39")
    A("s_lshl_b32 s30, s38, 7")
    A("s_mul_i32 s31, s37, 192")
    A("s_add_u32 s29, s31, 1920")
    A("s_movk_i32 s27, 128"); A("s_movk_i32 s26, 192")
    A("s_cmp_ge_u32 s33, 31")
    A("s_cselect_b32 s28, 3, 2")
    A("k1_dd:")
    A("s_cmp_lt_u32 s25, 6")
    A("s_cbranch_scc1 k1_other")
    A("s_cmp_eq_u32 s28, 3")
    A("s_cbranch_scc1 k1_done")
    A("s_sub_u32 s25, s25, 6")
    A("v_lshrrev_b32 v2, 3, v1")
    A("v_and_b32 v3, 7, v1")
    A("v_lshrrev_b32 v4, 4, v1")
    A("s_lshr_b32 s40, s27, 1")
    A("s_mul_i32 s40, s40, s25")
    A("s_lshl_b32 s26, s40, 7")
    A("s_add_u32 s40, s40, s30")
    A("v_add_u32 v2, s40, v2")
    A("v_mul_u32_u24 v2, 1280, v2")
    A("v_xor_b32 v5, v3, v4")
    A("v_xor_b32 v6, 4, v5")
    A("v_lshl_add_u32 v5, v5, 4, v2")
    A("v_lshl_add_u32 v6, v6, 4, v2")
    for q in range(8):
        A(f"v_add_u32 v{DV+q}, {q*8*1280 - (q&3)*1024}, v{5 + (q&1)}")
    A("s_mov_b32 s21, 0"); A("s_mov_b32 s22, 0"); A("s_mov_b32 s23, 0")
    A("s_mov_b32 s20, 0")
    A("s_mov_b32 m0, s26")
    A("s_waitcnt lgkmcnt(0)")
    srd(A, 8, PX, XSZ)
    for q in range(8):
        if q == 4:
            A("s_add_u32 m0, m0, 4096"); A("s_nop 0")
        A(f"buffer_load_dwordx4 v{DV+q}, s[8:11], s21 offen offset:{(q&3)*1024} lds" + NTF("a"))
    A("s_cmp_eq_u32 s28, 2")
    A("s_cbranch_scc1 k1_ldh")
    loader(A, "k1_ldq", 4, 2, 3840, False)
    loader(A, "k1_ldh", 2, 3, 3072, True)
    A("k1_other:")
    A("s_cmp_ge_u32 s25, 4")
    A("s_cbranch_scc1 k1_helper")
    A("s_cmp_eq_u32 s28, 1")
    A("s_cbranch_scc1 k1_v")
    A("s_cmp_eq_u32 s28, 2")
    A("s_cbranch_scc1 k1_h")
    A("s_cmp_eq_u32 s28, 3")
    A("s_cbranch_scc1 k1_done")
    SS1 = gemm_core(A, "k1qk", 4, 2, True, 3840, False)
    A("v_and_b32 v2, 31, v1")
    A("v_lshrrev_b32 v3, 5, v1")
    A("s_lshl_b32 s32, s43, 10")
    A(f"s_add_u32 s32, s32, {EP}")
    A("v_lshl_add_u32 v12, v2, 3, s32")
    for t in range(4):
        A(f"ds_read_b64 {pr(4+2*t)}, v12 offset:{t*256}")
    A("s_lshl_b32 s32, s44, 8")
    A(f"s_add_u32 s32, s32, {CSL}")
    A("v_lshl_add_u32 v12, v3, 4, s32")
    for u in range(2):
        for j in range(4):
            A(f"ds_read_b128 {vr(48+16*u+4*j,4)}, v12 offset:{128*u+32*j}")
    A("s_cmp_ge_u32 s75, 5")
    A(f"s_cselect_b32 s36, {K_OFF - Q_OFF - 80*32768}, 0")
    srd(A, 16, PWS, K_OFF - Q_OFF + 80 * 32768, Q_OFF)
    A("s_lshl_b32 s38, s75, 4")
    A("s_lshl_b32 s32, s44, 3")
    A("s_add_u32 s38, s38, s32")
    A("s_lshl_b32 s38, s38, 15")
    A("s_add_u32 s38, s38, s36")
    A("s_lshl_b32 s32, s43, 7")
    A("s_add_u32 s32, s32, s30")
    A("s_lshl_b32 s32, s32, 4")
    A("s_add_u32 s38, s38, s32")
    for i in range(1, 4):
        A(f"s_add_u32 s{38+i}, s{37+i}, 65536")
    A("v_lshlrev_b32 v3, 15, v3")
    A("v_lshl_add_u32 v16, v2, 4, v3")
    A("s_waitcnt lgkmcnt(0)")
    for t in range(4):
        for u in range(2):
            a = ACC + (t * 2 + u) * 16
            T = 80
            for i in range(0, 16, 2):
                A(f"v_pk_mul_f32 {pr(T+i)}, {pr(48+16*u+i)}, {pr(4+2*t)} op_sel:[0,1] op_sel_hi:[1,1]")
            for i in range(0, 16, 2):
                A(f"v_pk_fma_f32 {pr(a+i)}, {pr(a+i)}, {pr(4+2*t)}, {pr(T+i)} op_sel_hi:[1,0,1] neg_lo:[0,0,1] neg_hi:[0,0,1]")
            p = 18 + ((t * 2 + u) % 3) * 8
            for i in range(8):
                A(f"v_cvt_pk_bf16_f32 v{p+i}, v{a+2*i}, v{a+2*i+1}")
            A("s_nop 0")
            for j in range(2):
                A(f"v_permlane32_swap_b32 v{p+4*j}, v{p+4*j+2}")
                A(f"v_permlane32_swap_b32 v{p+4*j+1}, v{p+4*j+3}")
            for j in range(2):
                A(f"buffer_store_dwordx4 v[{p+4*j}:{p+4*j+3}], v16, s[16:19], s{38+u*2+j} offen offset:{t*512}")
    fin(A)
    A("k1_v:")
    gemm_core(A, "k1v", 4, 2, False, 3840, False)
    A("v_and_b32 v2, 31, v1")
    A("v_lshrrev_b32 v3, 5, v1")
    A("s_lshl_b32 s32, s43, 9")
    A(f"s_add_u32 s32, s32, {EP+2048}")
    A("v_lshl_add_u32 v12, v3, 4, s32")
    A("s_lshl_b32 s32, s44, 8")
    A(f"s_add_u32 s32, s32, {CSL}")
    A("v_lshl_add_u32 v13, v2, 2, s32")
    for u in range(2):
        A(f"ds_read_b32 v{4+2*u}, v13 offset:{128*u}")
    def vrd(t):
        b = 48 + (t & 1) * 32
        for j in range(4):
            A(f"ds_read_b128 {vr(b+4*j,4)}, v12 offset:{t*128+32*j}")
            A(f"ds_read_b128 {vr(b+16+4*j,4)}, v12 offset:{1024+t*128+32*j}")
    vrd(0)
    srd(A, 16, PWS, 32 * 64 * VREC, V_OFF)
    A("s_lshr_b32 s38, s30, 5")
    A("s_lshl_b32 s32, s43, 2")
    A("s_add_u32 s38, s38, s32")
    A(f"s_mul_i32 s38, s38, {VREC}")
    for t in range(1, 4):
        A(f"s_add_u32 s{38+t}, s{37+t}, {VREC}")
    A("s_sub_u32 s33, s31, 1280")
    A("s_lshl_b32 s32, s44, 6")
    A("s_add_u32 s33, s33, s32")
    A(f"v_mul_u32_u24 v3, {VSB}, v3")
    A(f"s_mov_b32 s34, {64*VREC}")
    for u in range(2):
        A("v_add_u32 v8, s33, v2")
        if u: A("v_add_u32 v8, 32, v8")
        A("v_mul_u32_u24 v9, 3277, v8")
        A("v_lshrrev_b32 v9, 16, v9")
        A("v_mul_u32_u24 v10, 20, v9")
        A("v_sub_u32 v10, v8, v10")
        A("v_lshl_add_u32 v10, v10, 4, v3")
        A("v_mul_lo_u32 v9, v9, s34")
        A(f"v_add_u32 v{16+u}, v9, v10")
    for t in range(4):
        A("s_waitcnt lgkmcnt(0)")
        if t < 3: vrd(t + 1)
        b = 48 + (t & 1) * 32
        for u in range(2):
            a = ACC + (t * 2 + u) * 16
            T = 112
            for i in range(0, 16, 2):
                A(f"v_pk_mul_f32 {pr(T+i)}, {pr(b+16+i)}, {pr(4+2*u)} op_sel_hi:[1,0]")
            for i in range(0, 16, 2):
                A(f"v_pk_fma_f32 {pr(a+i)}, {pr(a+i)}, {pr(b+i)}, {pr(T+i)} neg_lo:[0,0,1] neg_hi:[0,0,1]")
            p = 18 + ((t * 2 + u) % 3) * 8
            for i in range(8):
                A(f"v_cvt_pk_bf16_f32 v{p+i}, v{a+2*i}, v{a+2*i+1}")
            A(f"buffer_store_dwordx4 v[{p}:{p+3}], v{16+u}, s[16:19], s{38+t} offen")
            A(f"buffer_store_dwordx4 v[{p+4}:{p+7}], v{16+u}, s[16:19], s{38+t} offen offset:{2*VSB}")
    fin(A)
    A("k1_h:")
    SS2 = gemm_core(A, "k1h", 2, 3, True, 3072, True)
    A("v_and_b32 v2, 31, v1")
    A("v_lshrrev_b32 v3, 5, v1")
    A("s_lshl_b32 s32, s43, 9")
    A(f"s_add_u32 s32, s32, {EP}")
    A("v_lshl_add_u32 v12, v2, 3, s32")
    for t in range(2):
        A(f"ds_read_b64 {pr(8+2*t)}, v12 offset:{t*256}")
    A("s_mul_i32 s32, s44, 384")
    A(f"s_add_u32 s32, s32, {CSL}")
    A("v_lshl_add_u32 v12, v3, 4, s32")
    def hrd(u):
        b = 48 + (u & 1) * 32
        for j in range(4):
            A(f"ds_read_b128 {vr(b+4*j,4)}, v12 offset:{128*u+32*j}")
            A(f"ds_read_b128 {vr(b+16+4*j,4)}, v12 offset:{768+128*u+32*j}")
    hrd(0)
    srd(A, 16, PWS, 64 * 96 * 1024, HB_OFF)
    A("s_lshr_b32 s33, s30, 5")
    A("s_lshl_b32 s32, s43, 1")
    A("s_add_u32 s33, s33, s32")
    A("s_mul_i32 s33, s33, 96")
    A("s_lshr_b32 s32, s31, 4")
    A("s_add_u32 s33, s33, s32")
    A("s_mul_i32 s32, s44, 6")
    A("s_add_u32 s33, s33, s32")
    A("s_lshl_b32 s36, s33, 10")
    A(f"s_add_u32 s37, s36, {96*1024}")
    A("v_lshlrev_b32 v16, 4, v1")
    A("v_add_u32 v17, 4096, v16")
    c0 = -2.0 * math.sqrt(2.0 / math.pi) * math.log2(math.e)
    c1 = c0 * 0.044715
    A(f"v_mov_b32 v4, {f32hex(c0)}"); A(f"v_mov_b32 v5, {f32hex(c1)}")
    A("v_mov_b32 v6, 1.0")
    T = 112
    for u in range(3):
        A("s_waitcnt lgkmcnt(0)")
        if u < 2: hrd(u + 1)
        b = 48 + (u & 1) * 32
        for t in range(2):
            a = ACC + (t * 3 + u) * 16
            p = 18 + ((u * 2 + t) % 3) * 8
            ab = pr(8 + 2 * t)
            for i in range(0, 16, 2): A(f"v_pk_fma_f32 {pr(T+i)}, {pr(b+i)}, {ab}, {pr(b+16+i)} op_sel:[0,1,0] op_sel_hi:[1,1,1] neg_lo:[1,0,0] neg_hi:[1,0,0]")
            for i in range(0, 16, 2): A(f"v_pk_fma_f32 {pr(a+i)}, {pr(a+i)}, {ab}, {pr(T+i)} op_sel_hi:[1,0,1]")
            for i in range(0, 16, 2): A(f"v_pk_mul_f32 {pr(T+i)}, {pr(a+i)}, {pr(a+i)}")
            for i in range(0, 16, 2): A(f"v_pk_fma_f32 {pr(T+i)}, {pr(T+i)}, v[4:5], v[4:5] op_sel:[0,1,0] op_sel_hi:[1,1,0]")
            for i in range(0, 16, 2): A(f"v_pk_mul_f32 {pr(T+i)}, {pr(T+i)}, {pr(a+i)}")
            for i in range(16): A(f"v_exp_f32 v{T+i}, v{T+i}")
            for i in range(0, 16, 2): A(f"v_pk_add_f32 {pr(T+i)}, {pr(T+i)}, v[6:7] op_sel_hi:[1,0]")
            for i in range(16): A(f"v_rcp_f32 v{T+i}, v{T+i}")
            for i in range(0, 16, 2): A(f"v_pk_mul_f32 {pr(T+i)}, {pr(T+i)}, {pr(a+i)}")
            for i in range(8): A(f"v_cvt_pk_bf16_f32 v{p+i}, v{T+2*i}, v{T+2*i+1}")
            va = 16 if u < 2 else 17
            off = (2 * u * 1024) % 4096
            A(f"buffer_store_dwordx4 v[{p}:{p+3}], v{va}, s[16:19], s{36+t} offen offset:{off}")
            A(f"buffer_store_dwordx4 v[{p+4}:{p+7}], v{va}, s[16:19], s{36+t} offen offset:{off+1024}")
    fin(A)
    helper(A)
    A("k1_done:")
    A("s_endpgm")
    assert 3 * max(SS1, SS2) <= EP
    return kernel_desc(name, 256), f"; @launch kernel=k1_kernel grid=(256,1,1) block=(512,1,1) lds={LDS_BYTES}"
```

```python
from asmlib import *
from layout import *
import math, os

QA1, QA2, QB1, QB2 = 16, 20, 22, 26
B2R = 28
VW = 36
SA, SB = 68, 84
PA, PB = 100, 108
OA, OB_ = 116, 132
KF = [(148, 152), (154, 158)]
VF = [(160, 164), (168, 172)]
MO, M5 = 176, 192
MF = 208
F5 = 240
VK1, VK2, VV = 4, 5, 6
VP = 8
VD = [12, 34, 35]
L16 = 47
KVSZ = (V_OFF - K_OFF) + 32 * 64 * VREC
SLOT = 24576
XCH = 0
WL = 2 * SLOT
FLAG = WL + 8 * 12288
LDS_BYTES = FLAG + 64
OOB = 0x40000

NT = os.environ.get("NT", "")
def NTF(c): return " nt" if c in NT else ""
def m16(d, a, b, c):
    return f"v_mfma_f32_32x32x16_bf16 {vr(d,16)}, {vr(a,4)}, {vr(b,4)}, {c}"
def m8(d, a, b, c):
    return f"v_mfma_f32_32x32x8_bf16 {vr(d,16)}, {vr(a,2)}, {vr(b,2)}, {c}"

def phase(out, s, p, mf, slots):
    E = lambda i: f"v_exp_f32 v{s+i}, v{s+i}"
    C = lambda i: f"v_cvt_pk_bf16_f32 v{p+i}, v{s+2*i}, v{s+2*i+1}"
    groups = [[E(0), E(1), E(2), E(3), C(0)],
              [E(4), E(5), C(1), E(6), E(7)],
              [C(2), E(8), E(9), C(3), E(10)],
              [E(11), C(4), E(12), E(13), C(5)],
              [E(14), E(15), C(6), C(7)]]
    X = os.environ.get("K2X", "")
    if "ord2" in X:
        groups = [[E(0), E(1), E(2), E(3), E(4)],
                  [E(5), C(0), E(6), E(7), C(1)],
                  [E(8), E(9), C(2), E(10), E(11)],
                  [C(3), E(12), E(13), C(4), E(14)],
                  [E(15), C(5), C(6), C(7)]]
    if "ord3" in X:
        groups = [[E(i) for i in range(0, 4)], [E(i) for i in range(4, 8)], [E(i) for i in range(8, 12)], [E(i) for i in range(12, 16)], [C(i) for i in range(8)]]
    for g in range(5):
        out += mf[g]
        out += slots[g]
        out += groups[g]

def rdK(buf, off):
    return [f"ds_read_b128 {vr(KF[buf][0],4)}, v{VK1} offset:{off}", "s_mov_b32 exec_hi, 0",
            f"ds_read_b64 {vr(KF[buf][1],2)}, v{VK2} offset:{off}", "s_mov_b32 exec_hi, -1"]
def rdV(buf, off):
    return [f"ds_read_b128 {vr(VF[buf][0],4)}, v{VV} offset:{off}", f"ds_read_b128 {vr(VF[buf][1],4)}, v{VV} offset:{off+2*VSB}"]
def toffK(i):
    i %= 8
    return (i // 4) * SLOT + (i % 4) * 1024
def toffV(i):
    i %= 8
    return (i // 4) * SLOT + (i % 4) * 2 * VREC

def rowmax(A, s, acc, first):
    if first:
        A(f"v_max3_f32 v{acc}, v{s}, v{s+1}, v{s+2}")
        A(f"v_max_f32 v{acc}, v{acc}, v{s+3}")
        st = 4
    else:
        st = 0
    for i in range(st, 16, 2):
        A(f"v_max3_f32 v{acc}, v{acc}, v{s+i}, v{s+i+1}")

def set_nc(A, acc, q2, tmp):
    A(f"v_mov_b32 v{tmp}, v{acc}")
    A("s_nop 1")
    A(f"v_permlane32_swap_b32 v{acc}, v{tmp}")
    A("s_nop 1")
    A(f"v_max_f32 v{acc}, v{acc}, v{tmp}")
    A(f"v_cvt_pk_bf16_f32 v{tmp}, -v{acc}, -v{acc}")
    A(f"v_lshlrev_b32 v{tmp}, 16, v{tmp}")
    A(f"v_sub_f32 v{tmp}, -v{acc}, v{tmp}")
    A("s_mov_b32 exec_lo, 0")
    A(f"v_cvt_pk_bf16_f32 v{q2}, -v{acc}, v{tmp}")
    A("s_mov_b64 exec, -1")

def dma_ops(slot):
    L = [f"s_add_u32 m0, s46, {slot*SLOT}", "s_nop 0"]
    for j in range(3):
        L.append(f"buffer_load_dwordx4 v{VD[j]}, s[20:23], s47 offen offset:{j*1024} lds" + NTF("k"))
    L.append("s_add_u32 s47, s47, s45")
    return L

def mlp_loads(st):
    p = st % 4; b = MF + (st % 4) * 8
    L = [(f"buffer_load_dwordx4 {vr(b,4)}, v{VP+p}, s[24:27], s48 offen" + NTF("h"), f"h{st}"),
         (f"buffer_load_dwordx4 {vr(b+4,4)}, v{VP+p}, s[28:31], s49 offen", f"w{st}")]
    if p == 0:
        L.append((f"buffer_load_dwordx4 {vr(F5 + ((st//4) % 2) * 4, 4)}, v{VP}, s[28:31], s50 offen", f"f{st}"))
    if p == 3:
        L += ["s_add_u32 s48, s48, 4096", "s_add_u32 s49, s49, 4096", "s_add_u32 s50, s50, 4096"]
    return L

def resolve_waits(body):
    isv = lambda x: (x[0] if isinstance(x, tuple) else x).startswith("buffer_")
    n = len(body)
    out = []
    for i, x in enumerate(body):
        if isinstance(x, tuple) and x[0] == "WAIT":
            cnt = 0; j = i
            while True:
                j = (j - 1) % n
                y = body[j]
                if isinstance(y, tuple) and y[0] != "WAIT" and y[1] == x[1]:
                    break
                if not (isinstance(y, tuple) and y[0] == "WAIT") and isv(y):
                    cnt += 1
                assert j != i
            out.append(f"s_waitcnt vmcnt({cnt})")
        else:
            out.append(x[0] if isinstance(x, tuple) else x)
    return out


def build_body():
    mm = []
    for st in range(12):
        b = MF + (st % 4) * 8
        mm.append(([("WAIT", f"w{st}"), m16(MO, b + 4, b, vr(MO, 16))], st if st % 4 else None))
        if st % 4 == 0:
            mm.append(([("WAIT", f"f{st}"), m16(M5, F5 + ((st // 4) % 2) * 4, b, vr(M5, 16))], st))
    body = []
    ph = 0
    for i in range(8):
        b = i & 1; nb = b ^ 1
        k = rdK(nb, toffK(i + 1)); v = rdV(nb, toffV(i + 1))
        last = (i % 4 == 3)
        for half in range(2):
            if ph < 15:
                x5, fin = mm[ph]
                post = mlp_loads((fin + 3) % 12) if fin is not None else []
                if fin == 9:
                    post = ["s_cmp_lt_u32 s39, 3", "s_cselect_b32 s26, s26, 0", "s_cselect_b32 s30, s30, 0"] + post
            else:
                x5, post = [], []
            if half == 0:
                pre = [("WAIT", f"d{i//4}"), "s_waitcnt lgkmcnt(0)", "s_barrier"] if last else []
                dm = dma_ops(i // 4) if last else []
                if dm:
                    dm[4] = (dm[4], f"d{(i//4)^1}")
                    dm = ["s_cmp_lt_u32 s39, 3", "s_cselect_b32 s22, s22, 0", "s_cselect_b32 s46, s46, 0x30000"] + dm
                phase(body, SA, PA,
                      [[m16(SB, KF[b][0], QB1, "0")], [m8(SB, KF[b][1], QB2, vr(SB, 16))],
                       [m16(OB_, VF[nb][0], PB, vr(OB_, 16))], [m16(OB_, VF[nb][1], PB + 4, vr(OB_, 16))], x5],
                      [pre + k, [], dm, [], post + ["s_waitcnt lgkmcnt(0)"]])
            else:
                tail = ["s_add_u32 s39, s39, 1", "s_cmp_lt_u32 s39, 4"] if i == 7 else []
                wl = []
                if i in (0, 2, 4):
                    wl = ["s_mov_b32 m0, s71", "s_add_u32 s71, s71, 1024",
                          f"buffer_load_dwordx4 v{L16}, s[72:75], s58 offen lds", "s_add_u32 s58, s58, 1024"]
                phase(body, SB, PB,
                      [[m16(SA, KF[nb][0], QA1, "0")], [m8(SA, KF[nb][1], QA2, vr(SA, 16))],
                       [m16(OA, VF[b][0], PA, vr(OA, 16))], [m16(OA, VF[b][1], PA + 4, vr(OA, 16))], x5],
                      [v, [], wl, [], post + tail])
            ph += 1
    return body

def prologue_vmem(body):
    i0 = next(i for i, x in enumerate(body) if isinstance(x, tuple) and x[1] == "h0" and x[0] != "WAIT")
    out = []
    for x in body[i0:]:
        if isinstance(x, tuple) and x[0] == "WAIT": continue
        t = x[0] if isinstance(x, tuple) else x
        if t.startswith("buffer_") or t.startswith("s_add_u32 m0") or t == "s_nop 0" or t.startswith("s_add_u32 s47") \
           or t.startswith("s_add_u32 s48") or t.startswith("s_add_u32 s49") or t.startswith("s_add_u32 s50"):
            out.append(t)
    return out


QP = 1040
RES = FLAG + 4
W0, W5, OS = 68, 148, 208
WB = 100
XO, X5R, BO, B5R = 28, 32, 36, 40
TIMEOUT = int(os.environ.get("K2TIMEOUT", "4000"))
pr = lambda r: f"v[{r}:{r+1}]"

def wof_loads(A):
    for g in range(5):
        A(f"buffer_load_dwordx4 {vr(W5 + 4*g, 4)}, v{VP}, s[72:75], s59 offen")
        if g < 4: A("s_add_u32 s59, s59, 4096")
    for g in range(2):
        for p in range(4):
            A(f"buffer_load_dwordx4 {vr(W0 + (4*g+p)*4, 4)}, v{VP+p}, s[72:75], s58 offen")
        if g < 1: A("s_add_u32 s58, s58, 4096")
    A(f"buffer_load_dwordx4 {vr(XO,4)}, v13, s[8:11], 0 offen" + NTF("x"))
    A(f"buffer_load_dwordx2 {pr(X5R)}, v14, s[8:11], 0 offen" + NTF("x"))
    A(f"buffer_load_dwordx4 {vr(BO,4)}, v42, s[24:27], 0 offen")
    A(f"buffer_load_dwordx2 {pr(B5R)}, v43, s[24:27], 0 offen")

def gen_k2(A):
    name = "k2_kernel"
    kernel_begin(A, name)
    A("s_cmp_ge_u32 s2, 256")
    A("s_cbranch_scc1 k2_done")
    stamp(A, 0); tl_start(A, 1)
    A("s_load_dwordx2 s[6:7], s[0:1], 80")
    A("s_load_dwordx4 s[76:79], s[0:1], 56")
    A("s_load_dwordx2 s[4:5], s[0:1], 0")
    A("v_lshrrev_b32 v1, 6, v0")
    A("s_nop 0")
    A("v_readfirstlane_b32 s64, v1")
    A("s_and_b32 s32, s2, 7")
    A("s_lshr_b32 s33, s2, 3")
    A("s_lshl_b32 s34, s32, 2")
    A("s_lshr_b32 s53, s33, 3")
    A("s_add_u32 s34, s34, s53")
    A("s_and_b32 s35, s33, 7")
    A("s_lshl_b32 s52, s35, 3")
    A("s_add_u32 s52, s52, s32")
    A("s_and_b32 s65, s64, 3")
    A("s_lshr_b32 s66, s64, 2")
    A("k2_restart:")
    A("v_and_b32 v1, 63, v0")
    A(f"v_lshlrev_b32 v{L16}, 4, v1")
    A("s_mul_i32 s46, s64, 3072")
    A("s_mul_i32 s67, s34, 5")
    A("s_lshr_b32 s67, s67, 1")
    A("s_and_b32 s68, s34, 1")
    A(f"s_mul_i32 s45, s66, {8*VREC - 4096}")
    A("s_add_u32 s45, s45, 4096")
    A("s_mul_i32 s69, s65, 3")
    A(f"s_mul_i32 s70, s34, {64*VREC}")
    A(f"s_add_u32 s70, s70, {V_OFF - K_OFF}")
    for j in range(3):
        A(f"s_add_u32 s54, s69, {j}")
        A("s_lshr_b32 s55, s54, 2")
        A("s_add_u32 s55, s55, s67")
        A("s_lshl_b32 s55, s55, 15")
        A("s_and_b32 s56, s54, 3")
        A("s_lshl_b32 s56, s56, 10")
        A("s_add_u32 s55, s55, s56")
        A("s_lshl_b32 s56, s54, 10")
        A("s_add_u32 s56, s56, s70")
        if j == 2:
            A("s_cmp_eq_u32 s54, 11")
            A("s_cselect_b32 s56, 0x40000000, s56")
        A("s_cmp_eq_u32 s66, 0")
        A("s_cselect_b32 s55, s55, s56")
        if j: A(f"s_sub_u32 s55, s55, {j*1024}")
        A(f"v_add_u32 v{VD[j]}, s55, v{L16}")
    A(f"s_mov_b32 s51, {KVSZ}")
    A("s_mov_b32 s38, 0")
    A("s_lshl_b32 s36, s35, 3")
    A("s_lshl_b32 s37, s65, 1")
    A("s_add_u32 s36, s36, s37")
    A("s_add_u32 s36, s36, s66")
    A("s_lshl_b32 s37, s36, 9")
    A("s_lshl_b32 s54, s67, 15")
    A("s_add_u32 s37, s37, s54")
    A("s_xor_b32 s44, s37, 512")
    A("v_and_b32 v2, 31, v1")
    A("v_lshrrev_b32 v3, 5, v1")
    A("v_add_u32 v7, s68, v3")
    A("v_lshlrev_b32 v15, 4, v2")
    A(f"v_lshl_add_u32 v{VK1}, v7, 12, v15")
    A("v_lshl_add_u32 v40, v7, 15, v15")
    A("s_lshl_b32 s54, s68, 1")
    A("s_sub_u32 s54, 2, s54")
    A("s_lshl_b32 s55, s68, 3")
    A("s_lshl_b32 s56, s54, 12")
    A("s_add_u32 s56, s56, s55")
    A(f"v_add_u32 v{VK2}, s56, v15")
    A("s_lshl_b32 s56, s54, 15")
    A("s_add_u32 s56, s56, s55")
    A("v_add_u32 v41, s56, v15")
    for r in (QA2, QA2 + 1, QB2, QB2 + 1): A(f"v_mov_b32 v{r}, 0")
    for r in (KF[0][1], KF[0][1] + 1, KF[1][1], KF[1][1] + 1): A(f"v_mov_b32 v{r}, 0x3f803f80")
    for p in range(4):
        A(f"s_xor_b32 s54, s65, {p}")
        A("s_lshl_b32 s54, s54, 10")
        A(f"v_add_u32 v{VP+p}, s54, v{L16}")
    A("s_waitcnt lgkmcnt(0)")
    srd(A, 20, 6, KVSZ, K_OFF)
    srd(A, 8, 6, 80 * 32768, Q_OFF)
    A("s_mov_b32 s47, 0")
    for l in dma_ops(0): A(l)
    A(f"buffer_load_dwordx4 {vr(QA1,4)}, v40, s[8:11], s37 offen")
    A(f"buffer_load_dwordx4 {vr(QB1,4)}, v40, s[8:11], s44 offen")
    A("s_mov_b32 exec_hi, 0")
    A(f"buffer_load_dwordx2 {vr(QA2,2)}, v41, s[8:11], s37 offen")
    A(f"buffer_load_dwordx2 {vr(QB2,2)}, v41, s[8:11], s44 offen")
    A("s_mov_b64 exec, -1")
    srd(A, 12, 6, 64 * 40 * 1024, OB_OFF)
    A(f"v_mul_u32_u24 v15, {VSB}, v3")
    A(f"v_lshl_add_u32 v{VV}, v2, 4, v15")
    A(f"s_mul_i32 s57, s66, {VREC}")
    A("s_add_u32 s57, s57, 12288")
    A(f"v_add_u32 v{VV}, s57, v{VV}")
    A("v_cmp_lt_u32 vcc, 20, v2")
    A(f"v_mov_b32 v15, {OOB}")
    A("s_lshl_b32 s57, s66, 9")
    A(f"v_cndmask_b32 v{VV}, v{VV}, v15, vcc")
    A(f"v_mov_b32 v7, {FLAG}")
    A("v_mov_b32 v15, 0")
    A("ds_write_b32 v7, v15")
    A("s_branch k2_main2")
    A("k2_main:")
    A("s_mul_i32 s46, s64, 3072")
    A("s_mov_b32 s22, s51")
    A("s_mov_b32 s47, 0")
    for l in dma_ops(0): A(l)
    A("k2_main2:")
    srd(A, 24, 6, 64 * 96 * 1024, HB_OFF)
    srd(A, 28, 6, 20 * 96 * 1024, W2F_OFF)
    A("s_mul_i32 s54, s66, 48")
    A("s_mul_i32 s48, s52, 96")
    A("s_add_u32 s48, s48, s54")
    A("s_lshl_b32 s48, s48, 10")
    A("s_mul_i32 s49, s53, 5")
    A("s_add_u32 s50, s49, 4")
    A("s_add_u32 s49, s49, s65")
    for r in (49, 50):
        A(f"s_mul_i32 s{r}, s{r}, 96")
        A(f"s_add_u32 s{r}, s{r}, s54")
        A(f"s_lshl_b32 s{r}, s{r}, 10")
    srd(A, 72, 6, 20 * 40 * 1024, WOF_OFF)
    A("s_mul_i32 s54, s66, 20")
    A("s_mul_i32 s58, s53, 5")
    A("s_add_u32 s59, s58, 4")
    A("s_add_u32 s58, s58, s65")
    for r in (58, 59):
        A(f"s_mul_i32 s{r}, s{r}, 40")
        A(f"s_add_u32 s{r}, s{r}, s54")
        A(f"s_lshl_b32 s{r}, s{r}, 10")
    A("s_mul_i32 s71, s64, 12288")
    A(f"s_add_u32 s71, s71, {WL}")
    body = build_body()
    pv = prologue_vmem(body)
    for r in list(range(OA, OA + 32)) + list(range(PB, PB + 8)) + list(range(VF[1][0], VF[1][0] + 8)) + list(range(MO, MO + 32)):
        A(f"v_mov_b32 v{r}, 0")
    A("s_waitcnt vmcnt(0) lgkmcnt(0)")
    stamp(A, 1)
    A("s_barrier")
    A("s_cmp_lg_u32 s38, 0")
    A("s_cbranch_scc1 k2_havemax")
    for l in rdK(1, 0): A(l)
    for r in (VK1, VK2): A(f"v_add_u32 v{r}, s57, v{r}")
    for l in rdK(0, 0) + rdV(0, 0): A(l)
    for l in pv[:2]: A(l)
    A("s_waitcnt lgkmcnt(4)")
    A(m16(SA, KF[1][0], QA1, "0")); A(m8(SA, KF[1][1], QA2, vr(SA, 16)))
    A(m16(SB, KF[1][0], QB1, "0")); A(m8(SB, KF[1][1], QB2, vr(SB, 16)))
    for l in pv[2:5]: A(l)
    A("s_nop 6")
    rowmax(A, SA, 2, True)
    set_nc(A, 2, QA2, 7)
    A("s_waitcnt lgkmcnt(0)")
    A(m16(SA, KF[0][0], QA1, "0")); A(m8(SA, KF[0][1], QA2, vr(SA, 16)))
    for l in pv[5:11]: A(l)
    rowmax(A, SB, 3, True)
    set_nc(A, 3, QB2, 7)
    for l in pv[11:]: A(l)
    A("s_branch k2_go")
    A("k2_havemax:")
    for l in rdK(0, 0) + rdV(0, 0): A(l)
    for l in pv: A(l)
    A("s_waitcnt lgkmcnt(0)")
    A(m16(SA, KF[0][0], QA1, "0")); A(m8(SA, KF[0][1], QA2, vr(SA, 16)))
    A("s_nop 10")
    A("k2_go:")
    A("s_mov_b32 s39, 0")
    stamp(A, 2)
    A(".p2align 3")
    A("k2_loop:")
    for l in resolve_waits(body): A(l)
    A("s_cbranch_scc1 k2_loop")
    A("s_nop 1")
    A(m16(OB_, VF[1][0], PB, vr(OB_, 16))); A(m16(OB_, VF[1][1], PB + 4, vr(OB_, 16)))
    stamp(A, 3)
    A("s_mul_i32 s40, s64, 3072")
    A(f"s_add_u32 s40, s40, {XCH}")
    A(f"v_add_u32 v7, s40, v{L16}")
    A("s_xor_b32 s40, s64, 4")
    A("s_mul_i32 s40, s40, 3072")
    A(f"s_add_u32 s40, s40, {XCH}")
    A(f"v_add_u32 v15, s40, v{L16}")
    A("s_mul_i32 s40, s36, 40")
    A("s_add_u32 s41, s40, s34")
    A("s_lshl_b32 s41, s41, 10")
    A("s_lshr_b32 s42, s34, 2")
    A("s_add_u32 s42, s42, s40")
    A("s_add_u32 s42, s42, 32")
    A("s_lshl_b32 s42, s42, 10")
    for q, r in enumerate([OB_, OB_ + 4, OB_ + 8]):
        A(f"ds_write_b128 v7, {vr(r,4)} offset:{q*1024}")
    A("s_bfe_u32 s43, s34, 0x10001")
    A("s_lshl_b32 s43, s43, 9")
    A("s_add_u32 s42, s42, s43")
    A("s_and_b32 s43, s34, 1")
    A("s_lshl_b32 s43, s43, 3")
    A("s_add_u32 s42, s42, s43")
    A(f"s_mov_b32 s40, {f32hex(2.0**64)}")
    A("v_lshrrev_b32 v2, 4, v0")
    A("v_and_b32 v3, 15, v0")
    A("s_lshl_b32 s54, s52, 5")
    A("s_mul_i32 s55, s53, 320")
    A("v_lshl_add_u32 v42, v3, 4, s55")
    A("v_add_u32 v13, s54, v2")
    A("v_mul_u32_u24 v13, 1280, v13")
    A("v_add_u32 v13, v13, v42")
    A("v_lshrrev_b32 v2, 3, v0")
    A("v_and_b32 v3, 7, v0")
    A("s_add_u32 s55, s55, 256")
    A("v_lshl_add_u32 v43, v3, 3, s55")
    A("v_add_u32 v14, s54, v2")
    A("v_mul_u32_u24 v14, 1280, v14")
    A("v_add_u32 v14, v14, v43")
    A("v_cmp_gt_u32 vcc, 256, v0")
    A("v_mov_b32 v2, 0x7fffffff")
    A("s_waitcnt lgkmcnt(0)")
    A("v_cndmask_b32 v14, v2, v14, vcc")
    stamp(A, 4)
    A("s_barrier")
    for q in range(3):
        A(f"ds_read_b128 {vr(SA+4*q,4)}, v15 offset:{q*1024}")
    A("v_mov_b32 v44, 0"); A("v_mov_b32 v45, 0"); A("v_mov_b32 v2, 0"); A("v_mov_b32 v3, 0")
    srd(A, 8, 4, XSZ)
    srd(A, 24, 76, 1280)
    A("s_waitcnt lgkmcnt(0)")
    for e in (8, 10, 0, 2, 4, 6):
        A(f"v_pk_add_f32 {pr(OA+e)}, {pr(OA+e)}, {pr(SA+e)}")
        if e == 10:
            A(f"v_mov_b32 v7, v{OA+8}")
            A(f"v_mov_b32 v46, v{OA+8}")
    A(f"v_permlane32_swap_b32 v7, v46")
    for e in range(0, 12, 2):
        A(f"v_pk_fma_f32 v[2:3], {pr(OA+e)}, v[44:45], v[2:3]")
    A("v_cmp_nlt_f32 s[60:61], v46, s40")
    A("v_cmp_u_f32 s[62:63], v2, v3")
    A("v_rcp_f32 v46, v46")
    A("s_nop 2")
    A("s_or_b64 s[60:61], s[60:61], s[62:63]")
    A("s_cbranch_scc0 k2_noflag")
    A(f"v_mov_b32 v7, {FLAG}")
    A("v_mov_b32 v15, 1")
    A("ds_write_b32 v7, v15")
    A("k2_noflag:")
    for e in range(0, 12, 2):
        A(f"v_pk_mul_f32 {pr(OA+e)}, {pr(OA+e)}, v[46:47] op_sel_hi:[1,0]")
    for i in range(6):
        A(f"v_cvt_pk_bf16_f32 v{168+i}, v{OA+2*i}, v{OA+2*i+1}")
    A(f"buffer_store_dwordx4 {vr(168,4)}, v{L16}, s[12:15], s41 offen sc1")
    A("s_mov_b32 exec_hi, 0")
    A(f"buffer_store_dwordx2 {vr(172,2)}, v{L16}, s[12:15], s42 offen sc1")
    A("s_mov_b64 exec, -1")
    A("s_waitcnt vmcnt(0) lgkmcnt(0)")
    stamp(A, 5)
    A("s_barrier")
    A(f"v_mov_b32 v7, {FLAG}")
    A("ds_read_b32 v15, v7")
    A("s_waitcnt lgkmcnt(0)")
    A("v_readfirstlane_b32 s41, v15")
    A("s_nop 3")
    A("s_cmp_eq_u32 s41, 0")
    A("s_cbranch_scc1 k2_pub")
    A("s_cmp_eq_u32 s38, 0")
    A("s_cbranch_scc1 k2_fallback")
    A("k2_pub:")
    A("s_cmp_eq_u32 s64, 0")
    A("s_cbranch_scc1 k2_w0")
    wof_loads(A)
    A("s_branch k2_bp")
    A("k2_w0:")
    srd(A, 16, 6, 8 * 4096, SYNC_OFF)
    A("s_lshl_b32 s40, s35, 12")
    A("s_lshl_b32 s41, s34, 2")
    A("v_mov_b32 v2, s41")
    A("v_mov_b32 v3, 1")
    A("s_mov_b64 exec, 1")
    A("buffer_store_dword v3, v2, s[16:19], s40 offen sc1")
    A("s_mov_b64 exec, -1")
    wof_loads(A)
    A("v_and_b32 v2, 31, v1")
    A("v_lshlrev_b32 v2, 2, v2")
    A("s_mov_b32 s41, 0")
    A("k2_poll:")
    A("buffer_load_dword v3, v2, s[16:19], s40 offen sc1")
    A("s_waitcnt vmcnt(0)")
    A("v_cmp_ne_u32 vcc, 1, v3")
    A("s_mov_b32 s42, 1")
    A("s_nop 3")
    A("s_cmp_eq_u32 vcc_lo, 0")
    A("s_cbranch_scc1 k2_pres")
    A("s_add_u32 s41, s41, 1")
    A(f"s_cmp_lt_u32 s41, {TIMEOUT}")
    A("s_cbranch_scc1 k2_poll")
    A("s_ff1_i32_b32 s42, vcc_lo")
    A("s_add_u32 s42, s42, 2")
    A("k2_pres:")
    A(f"v_mov_b32 v7, {RES}")
    A("v_mov_b32 v15, s42")
    A("ds_write_b32 v7, v15")
    A("s_waitcnt lgkmcnt(0)")
    A("k2_bp:")
    A("s_barrier")
    A(f"v_mov_b32 v7, {RES}")
    A("ds_read_b32 v15, v7")
    A("s_mul_i32 s40, s52, 40")
    A("s_mul_i32 s41, s64, 5")
    A("s_add_u32 s40, s40, s41")
    A("s_lshl_b32 s40, s40, 10")
    A("s_lshl_b32 s41, s41, 10")
    A(f"v_add_u32 v2, s41, v{L16}")
    A(f"v_add_u32 v3, 4096, v{L16}")
    A("s_waitcnt lgkmcnt(0)")
    A("v_readfirstlane_b32 s42, v15")
    A("s_nop 3")
    A("s_cmp_eq_u32 s42, 1")
    A("s_cbranch_scc1 k2_oproj")
    A("s_sub_u32 s34, s42, 2")
    A("s_waitcnt vmcnt(0)")
    A("s_barrier")
    A("s_branch k2_restart")
    A("k2_oproj:")
    stamp(A, 6)
    for i in range(5):
        va = L16 if i < 4 else 3
        A(f"buffer_load_dwordx4 {vr(OS+4*i,4)}, v{va}, s[12:15], s40 offen offset:{(i%4)*1024} sc1")
    A("s_mul_i32 s41, s66, 20480")
    A("s_mul_i32 s42, s64, 12288")
    A(f"s_add_u32 s42, s42, {WL}")
    for p in range(4):
        A(f"v_add_u32 v{16+p}, s42, v{VP+p}")
        A(f"v_add_u32 v{VP+p}, s41, v{VP+p}")
    def wrd(s): return f"ds_read_b128 {vr(WB + (s % 8) * 4, 4)}, v{16 + s % 4} offset:{(s // 4) * 4096}"
    for s_ in range(6): A(wrd(s_))
    for i in range(5):
        A(f"s_waitcnt vmcnt({4-i})")
        A(f"ds_write_b128 v2, {vr(OS+4*i,4)} offset:{i*1024}")
    A("s_waitcnt lgkmcnt(0)")
    A("s_barrier")
    def ord_(s): return f"ds_read_b128 {vr(OS + (s % 8) * 4, 4)}, v{VP + s % 4} offset:{(s // 4) * 4096}"
    ops = []
    def issue(l, tag): A(l); ops.append(tag)
    for s_ in range(6): issue(ord_(s_), f"o{s_}")
    for s_ in range(20):
        need = [f"o{s_}"] + ([f"w{s_}"] if 6 <= s_ < 12 else [])
        last = max(ops.index(t) for t in need)
        A(f"s_waitcnt lgkmcnt({len(ops) - 1 - last})")
        wreg = WB + (s_ % 8) * 4 if s_ < 12 else W0 + 4 * (s_ - 12)
        A(m16(MO, wreg, OS + (s_ % 8) * 4, vr(MO, 16)))
        if s_ % 4 == 0:
            A(m16(M5, W5 + s_, OS + (s_ % 8) * 4, vr(M5, 16)))
        if s_ + 6 < 20: issue(ord_(s_ + 6), f"o{s_+6}")
        if s_ + 6 < 12: issue(wrd(s_ + 6), f"w{s_+6}")
    A(f"v_add_u32 v2, s42, v{L16}")
    A("v_lshrrev_b32 v7, 4, v0")
    A("v_bfe_u32 v15, v0, 2, 2")
    A("v_mul_u32_u24 v15, 12288, v15")
    A("v_lshl_add_u32 v7, v7, 4, v15")
    A("v_and_b32 v15, 3, v0")
    A(f"v_mul_u32_u24 v15, {QP}, v15")
    A("v_add_u32 v7, v7, v15")
    A(f"v_add_u32 v7, {WL}, v7")
    for q in range(4):
        A(f"ds_write_b128 v2, {vr(M5+4*q,4)} offset:{(4+q)*QP}")
    A("v_lshrrev_b32 v15, 3, v0")
    A("v_and_b32 v44, 1, v0")
    A("v_lshl_add_u32 v15, v44, 5, v15")
    A("v_bfe_u32 v44, v0, 1, 2")
    A(f"v_mul_u32_u24 v44, {QP}, v44")
    A("v_lshl_add_u32 v15, v15, 4, v44")
    A(f"v_add_u32 v15, {WL + 4*QP}, v15")
    A(f"v_add_u32 v44, {4*12288}, v15")
    for q in range(4):
        A(f"ds_write_b128 v2, {vr(MO+4*q,4)} offset:{q*QP}")
    srd(A, 16, 78, XSZ)
    A("s_waitcnt lgkmcnt(0)")
    A("s_barrier")
    R = 68
    for k in range(2):
        for h in range(2):
            A(f"ds_read_b128 {vr(R + (k*2+h)*4, 4)}, v7 offset:{k*4*12288 + h*512}")
    A("s_cmp_ge_u32 s64, 4")
    A("s_cbranch_scc1 k2_no5")
    for w in range(8):
        A(f"ds_read_b128 {vr(R + 16 + 4*w, 4)}, v{15 if w < 4 else 44} offset:{(w%4)*12288}")
    A("k2_no5:")
    T = 120
    for e in range(4):
        A(f"v_lshlrev_b32 v{T+2*e}, 16, v{XO+e}")
        A(f"v_and_b32 v{T+2*e+1}, 0xffff0000, v{XO+e}")
        A(f"v_lshlrev_b32 v{T+8+2*e}, 16, v{BO+e}")
        A(f"v_and_b32 v{T+8+2*e+1}, 0xffff0000, v{BO+e}")
    for e in range(0, 8, 2):
        A(f"v_pk_add_f32 {pr(T+e)}, {pr(T+e)}, {pr(T+8+e)}")
    for e in range(2):
        A(f"v_lshlrev_b32 v{T+16+2*e}, 16, v{X5R+e}")
        A(f"v_and_b32 v{T+16+2*e+1}, 0xffff0000, v{X5R+e}")
        A(f"v_lshlrev_b32 v{T+20+2*e}, 16, v{B5R+e}")
        A(f"v_and_b32 v{T+20+2*e+1}, 0xffff0000, v{B5R+e}")
    for e in range(0, 4, 2):
        A(f"v_pk_add_f32 {pr(T+16+e)}, {pr(T+16+e)}, {pr(T+20+e)}")
    A("s_waitcnt lgkmcnt(0)")
    for e in range(0, 8, 2):
        A(f"v_pk_add_f32 {pr(R+e)}, {pr(R+e)}, {pr(R+8+e)}")
        A(f"v_pk_add_f32 {pr(R+e)}, {pr(R+e)}, {pr(T+e)}")
    for e in range(4):
        A(f"v_cvt_pk_bf16_f32 v{R+8+e}, v{R+2*e}, v{R+2*e+1}")
    A(f"buffer_store_dwordx4 {vr(R+8,4)}, v13, s[16:19], 0 offen" + NTF("o"))
    A("s_cmp_ge_u32 s64, 4")
    A("s_cbranch_scc1 k2_fin")
    for w in range(8):
        for e in range(0, 4, 2):
            A(f"v_pk_add_f32 {pr(T+16+e)}, {pr(T+16+e)}, {pr(R+16+4*w+e)}")
    for e in range(2):
        A(f"v_cvt_pk_bf16_f32 v{T+e}, v{T+16+2*e}, v{T+16+2*e+1}")
    A(f"buffer_store_dwordx2 {pr(T)}, v14, s[16:19], 0 offen" + NTF("o"))
    A("k2_fin:")
    stamp_flush(A, 7, 6, 1, 64); tl_end(A, 1)
    A("k2_done:")
    A("s_endpgm")
    A("k2_fallback:")
    A("s_mul_i32 s46, s64, 3072")
    A("s_mov_b32 s38, 1")
    A("s_waitcnt vmcnt(0)")
    for r in (KF[0][1], KF[0][1] + 1, KF[1][1], KF[1][1] + 1): A(f"v_mov_b32 v{r}, 0x3f803f80")
    A(f"v_mov_b32 v2, {f32hex(-3.0e38)}")
    A(f"v_mov_b32 v3, {f32hex(-3.0e38)}")
    A("s_mov_b32 exec_lo, 0")
    A(f"v_mov_b32 v{QA2}, 0")
    A(f"v_mov_b32 v{QB2}, 0")
    A("s_mov_b64 exec, -1")
    for r in (VK1, VK2): A(f"v_subrev_u32 v{r}, s57, v{r}")
    A("s_mov_b32 s22, s51")
    A("s_mov_b32 s47, 0")
    A("s_mov_b32 s39, 0")
    A("k2_maxloop:")
    for l in dma_ops(0): A(l)
    A("s_waitcnt vmcnt(0)")
    A("s_barrier")
    A("s_mov_b32 s40, 0")
    A("k2_maxin:")
    for l in rdK(0, 0): A(l)
    A("s_waitcnt lgkmcnt(0)")
    A(m16(SA, KF[0][0], QA1, "0")); A(m8(SA, KF[0][1], QA2, vr(SA, 16)))
    A(m16(SB, KF[0][0], QB1, "0")); A(m8(SB, KF[0][1], QB2, vr(SB, 16)))
    for r in (VK1, VK2): A(f"v_add_u32 v{r}, 512, v{r}")
    A("s_nop 15")
    rowmax(A, SA, 2, False); rowmax(A, SB, 3, False)
    A("s_add_u32 s40, s40, 1")
    A("s_cmp_lt_u32 s40, 8")
    A("s_cbranch_scc1 k2_maxin")
    for r in (VK1, VK2): A(f"v_subrev_u32 v{r}, 4096, v{r}")
    A("s_barrier")
    A("s_add_u32 s39, s39, 1")
    A("s_cmp_lt_u32 s39, 8")
    A("s_cbranch_scc1 k2_maxloop")
    for r in (VK1, VK2): A(f"v_add_u32 v{r}, s57, v{r}")
    set_nc(A, 2, QA2, 7); set_nc(A, 3, QB2, 7)
    A("s_branch k2_main")
    return kernel_desc(name, 256), f"; @launch kernel=k2_kernel grid=(256,1,1) block=(512,1,1) lds={LDS_BYTES}"
```

```python
from asmlib import *
from layout import *
import math, os

NST = 10
ACC = 128
XF = 48
WF = 80
DV = 16
XAB, WAB, XAC, WAC = 28, 32, 36, 40
PX, PWQ, PW1, PB1, PWO, PW2, PDBG, PWS = 4, 6, 48, 50, 52, 54, 56, 58
EP = 147456
CSL = EP + 4096
BIASL = CSL + 768
LDS_BYTES = EP + 6144
ST_OFF = XN_OFF
CS_OFF = XN_OFF + 0x10000
PRIV_OFF = 0x8000000
NONL = EP + 6136
TIMEOUT = int(os.environ.get("K1TIMEOUT", "3000"))
SLOW = os.environ.get("K1SLOW", "")
NT = os.environ.get("NT", "rsp")
def NTF(c): return " nt" if c in NT else ""
STF = os.environ.get("STF", "")
STH = os.environ.get("STH", "")
STP = os.environ.get("STP", "")
pr = lambda r: f"v[{r}:{r+1}]"

def bf16r(A, v):
    A(f"v_cvt_pk_bf16_f32 v{v}, v{v}, v{v}")
    A(f"v_and_b32 v{v}, 0xffff0000, v{v}")

RX, UX, RW = 16, 56, 136
def h_rows_issue(A):
    A("v_lshrrev_b32 v2, 3, v1")
    A("s_lshl_b32 s32, s70, 3")
    A("v_add_u32 v2, s32, v2")
    A("v_mul_u32_u24 v3, 1280, v2")
    A("v_and_b32 v4, 7, v1")
    A("v_lshl_add_u32 v3, v4, 4, v3")
    for j in range(10):
        A(f"buffer_load_dwordx4 {vr(RX+4*j,4)}, v3, s[8:11], 0 offen offset:{128*j}" + NTF("r"))
def red8(A, v):
    for mod in ("quad_perm:[1,0,3,2]", "quad_perm:[2,3,0,1]", "row_half_mirror"):
        A("s_nop 1")
        A(f"v_add_f32_dpp v{v}, v{v}, v{v} {mod} row_mask:0xf bank_mask:0xf")
def h_rows_p1a(A):
    for i in range(20):
        A(f"v_lshlrev_b32 v{UX+2*i}, 16, v{RX+i}")
        A(f"v_and_b32 v{UX+2*i+1}, 0xffff0000, v{RX+i}")
    A(f"v_add_f32 v5, v{UX}, v{UX+1}")
    A(f"v_add_f32 v6, v{UX+2}, v{UX+3}")
    for i in range(4, 40, 2):
        A(f"v_add_f32 v5, v5, v{UX+i}")
        A(f"v_add_f32 v6, v6, v{UX+i+1}")
def h_rows_p1b(A):
    for i in range(20, 40):
        A(f"v_lshlrev_b32 v{UX+2*i}, 16, v{RX+i}")
        A(f"v_and_b32 v{UX+2*i+1}, 0xffff0000, v{RX+i}")
    for i in range(40, 80, 2):
        A(f"v_add_f32 v5, v5, v{UX+i}")
        A(f"v_add_f32 v6, v6, v{UX+i+1}")
    A("v_add_f32 v5, v5, v6")
    red8(A, 5)
    A(f"v_mul_f32 v7, {f32hex(1.0/640)}, v5")
def h_rows_p1(A):
    h_rows_p1a(A); h_rows_p1b(A)
def h_rows_p2a(A):
    A("v_mov_b32 v5, 0"); A("v_mov_b32 v6, 0")
    for i in range(0, 52, 2):
        A(f"v_sub_f32 v13, v{UX+i}, v7")
        A(f"v_sub_f32 v14, v{UX+i+1}, v7")
        A("v_fmac_f32 v5, v13, v13")
        A("v_fmac_f32 v6, v14, v14")
def h_rows_p2(A):
    h_rows_p2a(A); h_rows_p2b(A)
def h_rows_p2b(A):
    s, mean, var, m, r, t2, r2 = 5, 7, 8, 9, 10, 11, 12
    for i in range(52, 80, 2):
        A(f"v_sub_f32 v13, v{UX+i}, v7")
        A(f"v_sub_f32 v14, v{UX+i+1}, v7")
        A("v_fmac_f32 v5, v13, v13")
        A("v_fmac_f32 v6, v14, v14")
    A("v_add_f32 v5, v5, v6")
    red8(A, 5)
    A(f"v_mul_f32 v{var}, {f32hex(1.0/640)}, v{s}")
    A(f"v_mov_b32 v{m}, v{mean}"); bf16r(A, m)
    A(f"v_mov_b32 v{s}, v{var}"); bf16r(A, s)
    A(f"v_add_f32 v{s}, {f32hex(1e-5)}, v{s}"); bf16r(A, s)
    A(f"v_sqrt_f32 v{s}, v{s}"); A("s_nop 0"); bf16r(A, s)
    A(f"v_rcp_f32 v{r}, v{s}")
    A(f"v_sub_f32 v{t2}, v{mean}, v{m}")
    A(f"v_mul_f32 v{t2}, v{t2}, v{r}"); bf16r(A, t2)
    A(f"v_mul_f32 v{s}, v{var}, v{r}")
    A(f"v_mul_f32 v{s}, v{s}, v{r}"); bf16r(A, s)
    A(f"v_add_f32 v{s}, {f32hex(1e-5)}, v{s}"); bf16r(A, s)
    A(f"v_sqrt_f32 v{s}, v{s}"); A("s_nop 0"); bf16r(A, s)
    A(f"v_rcp_f32 v{r2}, v{s}")
    O = RX
    A(f"v_mov_b32 v{O}, v{r}")
    A(f"v_mul_f32 v{O+1}, v{m}, v{r}")
    A(f"v_mul_f32 v{O+4}, v{r}, v{r2}")
    A(f"v_add_f32 v{O+5}, v{O+1}, v{t2}")
    A(f"v_mul_f32 v{O+5}, v{O+5}, v{r2}")
def h_rows_store(A):
    O = RX
    for i in (2, 3, 6, 7): A(f"v_mov_b32 v{O+i}, s76")
    A("v_lshlrev_b32 v3, 4, v2")
    A("v_add_u32 v4, 0x8000, v3")
    A("s_mov_b32 exec_lo, 0x01010101"); A("s_mov_b32 exec_hi, 0x01010101")
    A(f"buffer_store_dwordx4 {vr(O,4)}, v3, s[60:63], 0 offen sc1")
    A(f"buffer_store_dwordx4 {vr(O+4,4)}, v4, s[60:63], 0 offen sc1")
    A("s_mov_b64 exec, -1")
def h_strip_issue(A):
    A("s_lshr_b32 s35, s71, 2")
    A("s_cmp_lt_u32 s35, 30")
    A(f"s_cselect_b32 s12, s{PWQ}, s{PW1}")
    A(f"s_cselect_b32 s13, s{PWQ+1}, s{PW1+1}")
    A("s_cselect_b32 s33, 768, 0")
    A("s_cselect_b32 s34, 0, 30")
    A("s_add_u32 s33, s33, 3072")
    A("s_mul_i32 s14, s33, 640")
    A("s_mov_b32 s15, 0x00020000")
    A("s_cmp_lt_u32 s71, 216")
    A("s_cselect_b32 s14, s14, 0")
    A("s_sub_u32 s34, s35, s34")
    A("s_lshl_b32 s34, s34, 7")
    A("v_lshrrev_b32 v13, 3, v1")
    A("v_mul_lo_u32 v13, v13, s33")
    A("v_and_b32 v14, 7, v1")
    A("v_lshl_add_u32 v13, v14, 4, v13")
    A("v_add_u32 v13, s34, v13")
    A("s_and_b32 s34, s71, 3")
    A("s_mul_i32 s34, s34, 160")
    A("s_mul_i32 s34, s34, s33")
    A("s_lshl_b32 s33, s33, 3")
    for i in range(20):
        A(f"buffer_load_dwordx4 {vr(RW+4*i,4)}, v13, s[12:15], s34 offen" + NTF("s"))
        if i < 19: A("s_add_u32 s34, s34, s33")
def h_strip_p(A, lo, hi):
    C = 216
    for i in range(lo, hi):
        for e in range(4):
            w = RW + 4 * i + e
            if i == 0:
                A(f"v_lshlrev_b32 v{C+2*e}, 16, v{w}")
                A(f"v_and_b32 v{C+2*e+1}, 0xffff0000, v{w}")
            else:
                A(f"v_lshlrev_b32 v13, 16, v{w}")
                A(f"v_and_b32 v14, 0xffff0000, v{w}")
                A(f"v_add_f32 v{C+2*e}, v{C+2*e}, v13")
                A(f"v_add_f32 v{C+2*e+1}, v{C+2*e+1}, v14")
def h_strip_fin(A):
    C = 216; T = 224
    for mod in ("row_ror:8",):
        A("s_nop 1")
        for e in range(8):
            A(f"v_add_f32_dpp v{C+e}, v{C+e}, v{C+e} {mod} row_mask:0xf bank_mask:0xf")
    for op in ("v_permlane16_swap_b32", "v_permlane32_swap_b32"):
        for e in range(8): A(f"v_mov_b32 v{T+e}, v{C+e}")
        A("s_nop 1")
        for e in range(8): A(f"{op} v{C+e}, v{T+e}")
        A("s_nop 1")
        for e in range(8): A(f"v_add_f32 v{C+e}, v{C+e}, v{T+e}")
def h_strip_store(A):
    C = 216; T = 224
    A("v_lshrrev_b32 v13, 3, v1")
    A(f"v_mov_b32 v{T}, v{C}")
    for e in range(1, 8):
        A(f"v_cmp_eq_u32 vcc, {e}, v13")
        A("s_nop 1")
        A(f"v_cndmask_b32 v{T}, v{T}, v{C+e}, vcc")
    A(f"v_mov_b32 v{T+1}, s76")
    A("v_and_b32 v14, 7, v1")
    A("v_lshl_add_u32 v13, v14, 3, v13")
    A("s_lshr_b32 s33, s71, 2")
    A("s_lshl_b32 s33, s33, 9")
    A("s_and_b32 s34, s71, 3")
    A("s_lshl_b32 s34, s34, 15")
    A("s_add_u32 s33, s33, s34")
    A(f"s_add_u32 s33, s33, {CS_OFF - ST_OFF}")
    A("v_lshl_add_u32 v13, v13, 3, s33")
    A("s_cmp_lt_u32 s71, 216")
    A("s_cselect_b32 s33, 0, 0x40000000")
    A(f"buffer_store_dwordx2 {pr(T)}, v13, s[60:63], s33 offen sc1")

def h_pack_setup(A):
    A("s_cmp_ge_u32 s2, 96")
    A("s_cbranch_scc1 pk_n1")
    A("s_lshl_b32 s34, s2, 4"); A("s_mov_b32 s35, 4"); A("s_mov_b32 s36, 8"); A("s_movk_i32 s37, 1280")
    A(f"s_mov_b32 s16, s{PW2}"); A(f"s_mov_b32 s17, s{PW2+1}"); A(f"s_mov_b32 s18, {1536*1280}")
    A("s_lshl_b32 s84, s2, 10"); A(f"s_mov_b32 s85, {96*1024}"); A("s_mov_b32 s86, 10"); A("s_mov_b32 s32, 0")
    A("s_branch pk_go")
    A("pk_n1:")
    A("s_cmp_ge_u32 s2, 136")
    A("s_cbranch_scc1 pk_n2")
    A("s_sub_u32 s33, s2, 96")
    A("s_mul_i32 s34, s33, 20"); A("s_mov_b32 s35, 4"); A("s_mov_b32 s36, 8"); A("s_movk_i32 s37, 1280")
    A(f"s_mov_b32 s16, s{PWO}"); A(f"s_mov_b32 s17, s{PWO+1}"); A(f"s_mov_b32 s18, {640*1280}")
    A("s_lshl_b32 s84, s33, 10"); A(f"s_add_u32 s84, s84, {WOF_OFF - W2F_OFF}")
    A(f"s_mov_b32 s85, {40*1024}"); A("s_mov_b32 s86, 10"); A("s_mov_b32 s32, 0")
    A("s_cmp_lt_u32 s33, 32")
    A("s_cbranch_scc1 pk_go")
    A("s_sub_u32 s33, s33, 32")
    A("s_mul_i32 s34, s33, 80"); A("s_add_u32 s34, s34, 16"); A("s_mov_b32 s35, 40"); A("s_mov_b32 s36, 20")
    A("s_branch pk_go")
    A("pk_n2:")
    A("s_mov_b32 s34, 0"); A("s_mov_b32 s35, 0"); A("s_mov_b32 s36, 0"); A("s_mov_b32 s37, 0"); A("s_mov_b32 s32, 0")
    A(f"s_mov_b32 s16, s{PW1}"); A(f"s_mov_b32 s17, s{PW1+1}"); A("s_mov_b32 s18, 0")
    A("s_mov_b32 s84, 0x40000000"); A("s_mov_b32 s85, 0"); A("s_mov_b32 s86, 10")
    A("pk_go:")
    A("s_mov_b32 s19, 0x00020000")
    A("s_mul_i32 s38, s86, s78")
    A("s_add_u32 s32, s32, s38")
    A("s_mul_i32 s38, s32, s85")
    A("s_add_u32 s84, s84, s38")
    A("v_mul_u32_u24 v12, s35, v246")
    A("v_add_u32 v12, s34, v12")
    A("v_add_u32 v12, v12, v245")
    A("v_mul_u32_u24 v248, s36, v249")
    A("v_add_u32 v12, v12, v248")
    A("v_mul_lo_u32 v12, v12, s37")
    A("s_lshl_b32 s32, s32, 6")
    A("v_add_u32 v12, s32, v12")
    A("v_add_u32 v253, v12, v250")
    A("s_mov_b32 s88, s16"); A("s_mov_b32 s89, s17"); A("s_mov_b32 s90, s18"); A("s_mov_b32 s91, s19")
def h_pack_issue(A):
    A("s_mov_b32 s32, 0")
    A("s_mov_b32 m0, s77")
    for j in range(10):
        if j == 8:
            A("s_cmp_eq_u32 s86, 8")
            A("s_cselect_b32 s90, 0, s90")
        A("buffer_load_dwordx4 v253, s[88:91], s32 offen lds" + NTF("p"))
        A("s_add_u32 m0, m0, 1024")
        A("s_add_u32 s32, s32, 64")
def h_pack_finish(A):
    lab = A.label("pf")
    for j in range(10):
        A(f"ds_read_b64_tr_b16 {pr(64+4*j)}, v251 offset:{j*1024}")
        A(f"ds_read_b64_tr_b16 {pr(66+4*j)}, v251 offset:{j*1024+256}")
    A("s_waitcnt lgkmcnt(0)")
    for j in range(10):
        if j == 8:
            A("s_cmp_eq_u32 s86, 8")
            A(f"s_cbranch_scc1 {lab}")
        A(f"buffer_store_dwordx4 {vr(64+4*j,4)}, v247, s[64:67], s84 offen {STP}")
        A("s_add_u32 s84, s84, s85")
    A(f"{lab}:")

def h_pack_lanes(A):
    A("v_bfe_u32 v245, v1, 2, 2")
    A("v_lshrrev_b32 v246, 5, v1")
    A("v_lshlrev_b32 v247, 4, v1")
    A("v_bfe_u32 v249, v1, 4, 1")
    A("v_and_b32 v250, 3, v1")
    A("v_lshlrev_b32 v250, 4, v250")
    A("s_mov_b32 s78, s25")
    A("s_mul_i32 s77, s78, 10240")
    A("s_add_u32 s77, s77, 49152")
    A("v_lshl_add_u32 v251, v246, 3, v245")
    A("v_lshlrev_b32 v251, 6, v251")
    A("v_lshl_add_u32 v251, v249, 5, v251")
    A("v_and_b32 v252, 3, v1")
    A("v_lshl_add_u32 v251, v252, 3, v251")
    A("v_add_u32 v251, s77, v251")

def helper(A):
    A("k1_helper:")
    A("s_waitcnt lgkmcnt(0)")
    srd(A, 8, PX, XSZ)
    srd(A, 60, PWS, 0x30000, ST_OFF)
    srd(A, 20, PDBG, 256)
    srd(A, 64, PWS, 0x500000, W2F_OFF)
    if not os.environ.get("NOXLOC"):
        A("s_and_b32 s32, s2, 7")
        A("s_lshr_b32 s33, s2, 3")
        A("s_lshl_b32 s70, s32, 5")
        A("s_add_u32 s70, s70, s33")
        A("s_and_b32 s34, s32, 3")
        A("s_lshr_b32 s35, s32, 2")
        A("s_mul_i32 s35, s35, 27")
        A("s_add_u32 s35, s35, s33")
        A("s_mul_i32 s36, s34, 30")
        A("s_add_u32 s36, s36, s35")
        A("s_mul_i32 s37, s34, 24")
        A("s_add_u32 s37, s37, s35")
        A("s_add_u32 s37, s37, 90")
        A("s_cmp_lt_u32 s35, 30")
        A("s_cselect_b32 s71, s36, s37")
        A("s_cmp_lt_u32 s33, 27")
        A("s_cselect_b32 s71, s71, 255")
    else:
        A("s_mov_b32 s70, s2")
        A("s_mov_b32 s71, s2")
    A("v_mov_b32 v240, 0")
    A(f"v_mov_b32 v241, {NONL}")
    A("s_cmp_eq_u32 s25, 5")
    A("s_cbranch_scc1 k1_hB")
    h_rows_issue(A)
    A("s_cmp_lg_u32 s2, 0")
    A("s_cbranch_scc1 k1_hA1")
    A("s_memrealtime s[32:33]")
    A("s_waitcnt lgkmcnt(0)")
    A("s_or_b32 s32, s32, 1")
    A("v_mov_b32 v13, s32")
    A("s_mov_b64 exec, 1")
    A("buffer_store_dword v13, v240, s[20:23], 0 offen sc1")
    srd(A, 16, PWS, 64, SYNC_OFF)
    A("buffer_store_dword v13, v240, s[16:19], 0 offen")
    A("s_mov_b64 exec, -1")
    A("k1_hA1:")
    srd(A, 16, PB1, 1536 * 2)
    A("s_cmp_eq_u32 s28, 2")
    A("s_cselect_b32 s18, s18, 0")
    A("v_add_u32 v15, s31, v1")
    A("v_lshlrev_b32 v15, 1, v15")
    for i in range(3):
        A(f"buffer_load_ushort v{232+i}, v15, s[16:19], 0 offen offset:{128*i}")
    A("s_barrier")
    A("s_waitcnt vmcnt(3)")
    h_rows_p1a(A)
    A("s_barrier")
    A("buffer_load_dword v242, v240, s[20:23], 0 offen")
    h_rows_p1b(A)
    A("s_barrier")
    h_rows_p2a(A)
    A("s_barrier")
    h_rows_p2b(A)
    A("s_mov_b32 s34, 0")
    A("k1_hn:")
    A("s_waitcnt vmcnt(0)")
    A("v_readfirstlane_b32 s76, v242")
    A("s_nop 3")
    A("s_cmp_lg_u32 s76, 0")
    A("s_cbranch_scc1 k1_hn_ok")
    A("buffer_load_dword v242, v240, s[20:23], 0 offen sc1")
    A("s_add_u32 s34, s34, 1")
    A("s_sleep 1")
    A("s_cmp_lt_u32 s34, 400")
    A("s_cbranch_scc1 k1_hn")
    A("k1_hn_ok:")
    A("v_mov_b32 v242, s76")
    A("ds_write_b32 v241, v242")
    h_rows_store(A)
    A("s_waitcnt lgkmcnt(0)")
    A("s_barrier")
    A("s_cmp_eq_u32 s28, 3")
    A("s_cbranch_scc1 k1_done")
    A("s_barrier")
    A("s_barrier")
    A("s_barrier")
    A("v_add_u32 v243, s30, v1")
    A("v_lshlrev_b32 v243, 4, v243")
    A("s_cmp_eq_u32 s28, 2")
    A("s_cselect_b32 s32, 0x8000, 0")
    A("v_add_u32 v243, s32, v243")
    A("v_add_u32 v244, s29, v1")
    A("v_lshlrev_b32 v244, 3, v244")
    A(f"v_add_u32 v244, {CS_OFF - ST_OFF}, v244")
    A("s_mov_b32 s68, 0"); A("s_mov_b32 s69, 0x8000"); A("s_mov_b32 s74, 0x10000"); A("s_mov_b32 s75, 0x18000")
    def gl():
        for i in range(4):
            A(f"buffer_load_dwordx4 {vr(16+4*i,4)}, v243, s[60:63], 0 offen offset:{1024*i} sc1")
        for q in range(4):
            for i in range(3):
                A(f"buffer_load_dwordx2 {pr(32+6*q+2*i)}, v244, s[60:63], s{68+q if q < 2 else 72+q} offen offset:{512*i} sc1")
    gl()
    A("s_barrier")
    A("s_barrier")
    A("s_mov_b32 s34, 0")
    A("s_mov_b32 s38, 1")
    A("k1_hpoll:")
    A("s_waitcnt vmcnt(0)")
    A("v_xor_b32 v60, s76, v18")
    A("v_xor_b32 v61, s76, v22")
    A("v_or_b32 v60, v60, v61")
    for q in range(4):
        for i in range(2):
            A(f"v_xor_b32 v61, s76, v{33+6*q+2*i}")
            A("v_or_b32 v60, v60, v61")
    A("v_xor_b32 v62, s76, v26")
    A("v_xor_b32 v61, s76, v30")
    A("v_or_b32 v62, v62, v61")
    A("v_xor_b32 v63, s76, v37")
    for q in range(1, 4):
        A(f"v_xor_b32 v61, s76, v{37+6*q}")
        A("v_or_b32 v63, v63, v61")
    A("v_cmp_ne_u32 s[40:41], 0, v60")
    A("v_cmp_ne_u32 s[42:43], 0, v62")
    A("v_cmp_ne_u32 s[46:47], 0, v63")
    A("s_nop 3")
    A("s_cmp_eq_u32 s28, 2")
    A("s_cselect_b64 s[42:43], s[46:47], s[42:43]")
    A("s_or_b64 s[40:41], s[40:41], s[42:43]")
    A("s_cselect_b32 s32, 1, 0")
    A("s_cmp_eq_u32 s76, 0")
    A("s_cselect_b32 s32, 1, s32")
    A(f"s_cmp_eq_u32 s32, {0 if SLOW != '2' else 5}")
    A("s_cbranch_scc1 k1_hok")
    A("s_cmp_eq_u32 s38, 0")
    A("s_cbranch_scc0 k1_hp2")
    A("s_mov_b32 s38, 1")
    A("s_barrier")
    A("k1_hp2:")
    A("s_sleep 2")
    gl()
    A("s_add_u32 s34, s34, 1")
    A("s_cmp_eq_u32 s76, 0")
    A("s_cbranch_scc1 k1_hself")
    A(f"s_cmp_lt_u32 s34, {TIMEOUT}")
    A("s_cbranch_scc1 k1_hpoll")
    A("k1_hself:")
    A("s_lshl_b32 s32, s2, 18")
    A(f"s_add_u32 s32, s32, {PRIV_OFF}")
    A(f"s_add_u32 s60, s{PWS}, s32")
    A(f"s_addc_u32 s61, s{PWS+1}, 0")
    A("s_lshr_b32 s70, s30, 3")
    A("s_lshr_b32 s39, s27, 3")
    A("s_add_u32 s39, s39, s70")
    A("k1_hs1:")
    h_rows_issue(A)
    A("s_waitcnt vmcnt(0)")
    h_rows_p1(A); h_rows_p2(A); h_rows_store(A)
    A("s_add_u32 s70, s70, 1")
    A("s_cmp_lt_u32 s70, s39")
    A("s_cbranch_scc1 k1_hs1")
    A("s_lshr_b32 s71, s29, 4")
    A("s_lshr_b32 s39, s26, 4")
    A("s_add_u32 s39, s39, s71")
    A("k1_hs2:")
    h_strip_issue(A)
    A("s_waitcnt vmcnt(0)")
    h_strip_p(A, 0, 20); h_strip_fin(A); h_strip_store(A)
    A("s_add_u32 s71, s71, 1")
    A("s_cmp_lt_u32 s71, s39")
    A("s_cbranch_scc1 k1_hs2")
    A("s_waitcnt vmcnt(0)")
    gl()
    A("s_waitcnt vmcnt(0)")
    A("k1_hok:")
    A("v_lshlrev_b32 v12, 3, v1")
    A(f"v_add_u32 v12, {EP}, v12")
    A("v_lshlrev_b32 v13, 2, v1")
    A(f"v_add_u32 v13, {EP}, v13")
    for i in range(4):
        A(f"v_mul_f32 v{16+4*i}, s45, v{16+4*i}")
        A(f"v_mul_f32 v{17+4*i}, s45, v{17+4*i}")
        A(f"ds_write_b64 v12, {pr(16+4*i)} offset:{512*i}")
        A(f"ds_write_b32 v13, v{16+4*i} offset:{2048+256*i}")
        A(f"ds_write_b32 v13, v{17+4*i} offset:{3072+256*i}")
    for i in range(3):
        A(f"v_lshlrev_b32 v{232+i}, 16, v{232+i}")
        for q in range(1, 4):
            A(f"v_add_f32 v{32+2*i}, v{32+2*i}, v{32+6*q+2*i}")
        A(f"ds_write_b32 v13, v{32+2*i} offset:{CSL-EP+256*i}")
        A(f"ds_write_b32 v13, v{232+i} offset:{BIASL-EP+256*i}")
    A("s_waitcnt lgkmcnt(0)")
    A("s_cmp_eq_u32 s38, 0")
    A("s_cbranch_scc0 k1_hw")
    A("s_barrier")
    A("k1_hw:")
    A("s_barrier")
    A("s_endpgm")
    A("k1_hB:")
    PB = lambda i: 16 + 8 * i
    if os.environ.get("LATEB"):
        A("s_barrier")
        h_strip_issue(A)
        A("s_barrier")
        A("s_barrier")
        A("s_waitcnt vmcnt(5)")
        h_strip_p(A, 0, 10)
    else:
        h_strip_issue(A)
        A("s_barrier")
        A("s_waitcnt vmcnt(15)")
        h_strip_p(A, 0, 5)
        A("s_barrier")
        A("s_waitcnt vmcnt(10)")
        h_strip_p(A, 5, 10)
        A("s_barrier")
    A("s_waitcnt vmcnt(0)")
    h_strip_p(A, 10, 15)
    A("s_barrier")
    h_strip_p(A, 15, 20)
    h_strip_fin(A)
    A("s_barrier")
    A("ds_read_b32 v242, v241")
    A("s_waitcnt lgkmcnt(0)")
    A("v_readfirstlane_b32 s76, v242")
    A("s_nop 1")
    h_strip_store(A)
    srd(A, 16, PWS, 32 * 64 * VREC, V_OFF)
    A("s_cmp_lt_u32 s2, 128")
    A("s_cselect_b32 s18, s18, 0")
    A("s_lshl_b32 s32, s2, 6")
    A("v_add_u32 v12, s32, v1")
    A("v_lshrrev_b32 v13, 2, v12")
    A("v_and_b32 v12, 3, v12")
    A(f"v_mul_u32_u24 v13, {VREC}, v13")
    A(f"v_mul_u32_u24 v12, {VSB}, v12")
    A("v_add_u32 v12, v12, v13")
    for i in range(4): A(f"v_mov_b32 v{124+i}, 0x3f803f80")
    A("buffer_store_dwordx4 v[124:127], v12, s[16:19], 0 offen offset:320")
    A("s_cmp_eq_u32 s28, 3")
    A("s_cbranch_scc1 k1_done")
    A("s_barrier")
    A("s_barrier")
    A("s_endpgm")

def loader(A, tag, TM, TN, ldw, isH):
    BM, BN = 2 * TM * 32, 2 * TN * 32
    AB = BM * 128; pitch = BN * 2; BB = 64 * pitch; SS = AB + BB
    nA = BM // 16; nB = BB // 2048; ND = nA + nB
    CPR = BN // 8
    A(f"{tag}:")
    for q in range(8, nA):
        A(f"v_add_u32 v{DV+q}, {q*8*1280 - (q&3)*1024}, v{5 + (q&1)}")
    A(f"s_mul_i32 s27, s25, {nB*1024}")
    A(f"s_add_u32 s27, s27, {AB}")
    def dmaA(q0=0):
        for q in range(q0, nA):
            if q % 4 == 0:
                A("s_add_u32 m0, s23, s26" if q == 0 else "s_add_u32 m0, m0, 4096")
                A("s_nop 0")
            A(f"buffer_load_dwordx4 v{DV+q}, s[8:11], s21 offen offset:{(q&3)*1024} lds" + NTF("a"))
    def dmaB():
        for q in range(nB):
            if q % 4 == 0:
                A("s_add_u32 m0, s23, s27" if q == 0 else "s_add_u32 m0, m0, 4096")
                A("s_nop 0")
            A(f"buffer_load_dwordx4 v{DV+nA+q}, s[12:15], s22 offen offset:{(q&3)*1024} lds" + NTF("b"))
    def adv():
        A("s_add_u32 s21, s21, 128")
        A(f"s_add_u32 s22, s22, {64*ldw}")
        if os.environ.get("KROT"):
            A("s_cmp_eq_u32 s21, 1280")
            A("s_cselect_b32 s21, 0, s21")
            A("s_cselect_b32 s22, 0, s22")
        A(f"s_add_u32 s23, s23, {SS}")
        A(f"s_cmp_eq_u32 s23, {3*SS}")
        A("s_cselect_b32 s23, 0, s23")
    dmaA(8)
    A(f"s_mul_i32 s41, s25, {nB*64}")
    A(f"s_lshl_b32 s42, s31, 1")
    for q in range(nB):
        A(f"v_add_u32 v7, s41, v1")
        if q: A(f"v_add_u32 v7, {q*64}, v7")
        if CPR == 16:
            A("v_lshrrev_b32 v8, 4, v7")
            A("v_and_b32 v9, 15, v7")
            A("v_and_b32 v10, 3, v8")
        else:
            A("v_mul_u32_u24 v8, 2731, v7")
            A("v_lshrrev_b32 v8, 16, v8")
            A("v_mul_u32_u24 v9, 24, v8")
            A("v_sub_u32 v9, v7, v9")
            A("v_bfe_u32 v10, v8, 1, 1")
        A("v_lshlrev_b32 v10, 2, v10")
        A("v_xor_b32 v9, v9, v10")
        A(f"v_mul_u32_u24 v8, {ldw}, v8")
        A("v_lshl_add_u32 v8, v9, 4, v8")
        A(f"v_add_u32 v8, s42, v8")
        if q & 3:
            A(f"v_subrev_u32 v{DV+nA+q}, {(q&3)*1024}, v8")
        else:
            A(f"v_mov_b32 v{DV+nA+q}, v8")
    srd(A, 12, PW1 if isH else PWQ, 640 * ldw)
    if os.environ.get("KROT"):
        A(f"s_mul_i32 s22, s21, {64*ldw//128}")
    dmaB(); adv()
    if not os.environ.get("LDOLD"):
        dmaB()
        A(f"s_waitcnt vmcnt({nB})")
        A("s_barrier")
        dmaA(); adv()
        A("s_mov_b32 s20, 1")
    A(f"{tag}_loop:")
    dmaA(); dmaB(); adv()
    A(f"s_waitcnt vmcnt({ND})")
    A("s_barrier")
    A("s_add_u32 s20, s20, 1")
    A(f"s_cmp_lt_u32 s20, {NST-1}")
    A(f"s_cbranch_scc1 {tag}_loop")
    A("s_branch k1_ld_pack")

def loader_tail(A):
    A("k1_ld_pack:")
    h_pack_lanes(A)
    h_pack_setup(A)
    srd(A, 64, PWS, 0x800000, W2F_OFF)
    h_pack_issue(A)
    A("s_cmp_eq_u32 s28, 3")
    A("s_cbranch_scc1 k1_ld_fin")
    A("s_waitcnt vmcnt(10)")
    A("s_barrier")
    A("s_barrier")
    A("k1_ld_fin:")
    A("s_waitcnt vmcnt(0)")
    h_pack_finish(A)
    A("s_endpgm")

def gemm_core(A, tag, TM, TN, transposed, ldw, isH):
    BM, BN = 2 * TM * 32, 2 * TN * 32
    AB = BM * 128; pitch = BN * 2; BB = 64 * pitch; SS = AB + BB
    CPR = BN // 8
    A("s_and_b32 s43, s25, 1")
    A("s_lshr_b32 s44, s25, 1")
    A("v_and_b32 v2, 31, v1")
    A("v_lshrrev_b32 v3, 5, v1")
    A("v_bfe_u32 v4, v2, 1, 3")
    A(f"s_mul_i32 s45, s43, {TM*32*128}")
    A("v_lshlrev_b32 v5, 7, v2")
    A("v_add_u32 v5, s45, v5")
    for kk in range(4):
        A(f"v_add_u32 v6, {2*kk}, v3")
        A("v_xor_b32 v6, v6, v4")
        A(f"v_lshl_add_u32 v{XAB+kk}, v6, 4, v5")
    A("v_bfe_u32 v6, v1, 2, 2")
    A("v_lshl_add_u32 v7, v3, 3, v6")
    A(f"v_mul_u32_u24 v7, {pitch}, v7")
    A("v_bfe_u32 v8, v1, 4, 1")
    A("v_lshl_add_u32 v7, v8, 5, v7")
    A("v_and_b32 v8, 3, v1")
    A("v_lshl_add_u32 v7, v8, 3, v7")
    A(f"v_add_u32 v7, {AB}, v7")
    if CPR != 16:
        A("v_lshrrev_b32 v6, 1, v6")
    A(f"s_mul_i32 s46, s44, {TN}")
    for u in range(TN):
        A(f"s_add_u32 s47, s46, {u}")
        A("v_xor_b32 v8, s47, v6")
        A(f"v_lshl_add_u32 v{WAB+u}, v8, 6, v7")
    for i in range(TM * TN * 16):
        A(f"v_mov_b32 v{ACC+i}, 0")
    def reads(kk, buf):
        L = []
        for t in range(TM):
            L.append(f"ds_read_b128 {vr(XF + (buf*4+t)*4, 4)}, v{XAC+kk} offset:{t*4096}")
        for u in range(TN):
            for i in range(2):
                L.append(f"ds_read_b64_tr_b16 {vr(WF + (buf*3+u)*4 + 2*i, 2)}, v{WAC+u} offset:{(16*kk+4*i)*pitch}")
        return L
    def mfmas(buf):
        L = []
        for t in range(TM):
            for u in range(TN):
                a = ACC + (t * TN + u) * 16
                x = vr(XF + (buf*4+t)*4, 4); w = vr(WF + (buf*3+u)*4, 4)
                o = (w, x) if transposed else (x, w)
                L.append(f"v_mfma_f32_32x32x16_bf16 {vr(a,16)}, {o[0]}, {o[1]}, {vr(a,16)}")
        return L
    def setcur():
        L = []
        for kk in range(4): L.append(f"v_add_u32 v{XAC+kk}, s24, v{XAB+kk}")
        for u in range(TN): L.append(f"v_add_u32 v{WAC+u}, s24, v{WAB+u}")
        return L
    A("s_mov_b32 s24, 0"); A("s_mov_b32 s20, 0")
    for l in setcur(): A(l)
    A("s_setprio 2")
    stamp(A, 1)
    A("s_waitcnt lgkmcnt(0)")
    A("s_barrier")
    stamp(A, 2)
    for l in reads(0, 0): A(l)
    A(f"{tag}_loop:")
    NM = TM * TN
    for kk in range(4):
        buf = kk & 1
        ms = mfmas(buf)
        slots = [[] for _ in ms]
        if kk < 3:
            A("s_waitcnt lgkmcnt(0)")
            rd = reads(kk + 1, buf ^ 1)
        else:
            if os.environ.get("ITST"):
                A("s_memtime s[90:91]")
            A("s_waitcnt lgkmcnt(0)")
            if os.environ.get("ITST"):
                A("s_memtime s[92:93]")
            A("s_barrier")
            if os.environ.get("ITST"):
                A("s_memtime s[94:95]")
                A("s_waitcnt lgkmcnt(0)")
                A("s_mul_i32 m0, s20, 3")
                A("s_nop 1")
                A("v_writelane_b32 v47, s90, m0")
                A("s_add_u32 m0, m0, 1")
                A("s_nop 1")
                A("v_writelane_b32 v47, s92, m0")
                A("s_add_u32 m0, m0, 1")
                A("s_nop 1")
                A("v_writelane_b32 v47, s94, m0")
            rd = reads(0, buf ^ 1)
        for i, l in enumerate(rd):
            slots[i // 2].append(l)
        if kk == 1:
            slots[NM - 1] += [f"s_add_u32 s24, s24, {SS}", f"s_cmp_eq_u32 s24, {3*SS}", "s_cselect_b32 s24, 0, s24"]
        if kk == 2:
            sc = setcur()
            slots[NM - 2] += sc[:4]; slots[NM - 1] += sc[4:]
        if kk == 3:
            slots[NM - 1] += ["s_add_u32 s20, s20, 1", f"s_cmp_lt_u32 s20, {NST}"]
        for m, sl in zip(ms, slots):
            A(m)
            for l in sl: A(l)
    A(f"s_cbranch_scc1 {tag}_loop")
    A("s_waitcnt lgkmcnt(0)")
    stamp(A, 3)
    return SS

def fin(A):
    if os.environ.get("ITST"):
        srd(A, 72, PWS, 1 << 20, 0x4800000)
        A("s_lshl_b32 s76, s2, 2")
        A("s_add_u32 s76, s76, s25")
        A("s_lshl_b32 s76, s76, 8")
        A("v_and_b32 v1, 63, v0")
        A("v_lshlrev_b32 v1, 2, v1")
        A("v_mov_b32 v2, s80")
        A("v_sub_u32 v47, v47, v2")
        A("buffer_store_dword v47, v1, s[72:75], s76 offen")
    stamp(A, 4); stamp_flush(A, 5, PWS, 0, 25); tl_end(A, 0)
    A("s_endpgm")

def gen_k1(A):
    name = "k1_kernel"
    kernel_begin(A, name)
    A("s_cmp_ge_u32 s2, 256")
    A("s_cbranch_scc1 k1_done")
    stamp(A, 0); tl_start(A, 0)
    A("s_load_dwordx4 s[4:7], s[0:1], 0")
    A("s_load_dwordx4 s[48:51], s[0:1], 32")
    A("s_load_dwordx2 s[52:53], s[0:1], 16")
    A("s_load_dwordx2 s[54:55], s[0:1], 48")
    A("s_load_dwordx4 s[56:59], s[0:1], 72")
    A("v_lshrrev_b32 v1, 6, v0")
    A("s_and_b32 s32, s2, 7")
    A("v_readfirstlane_b32 s25, v1")
    A("v_and_b32 v1, 63, v0")
    A("s_lshr_b32 s33, s2, 3")
    A("s_lshr_b32 s34, s32, 2")
    A("s_and_b32 s35, s32, 3")
    A("s_mov_b32 s45, 1.0")
    A("s_cmp_ge_u32 s33, 15")
    A("s_cbranch_scc1 k1_dh")
    A("s_mul_i32 s36, s35, 15")
    A("s_add_u32 s36, s36, s33")
    A("s_lshr_b32 s75, s36, 2")
    A("s_and_b32 s38, s36, 3")
    A("s_lshl_b32 s39, s34, 2")
    A("s_add_u32 s38, s38, s39")
    A("s_lshl_b32 s30, s38, 8")
    A("s_lshl_b32 s31, s75, 7")
    A("s_mov_b32 s29, s31")
    A("s_movk_i32 s27, 256"); A("s_movk_i32 s26, 128")
    A("s_cmp_lt_u32 s75, 5")
    A(f"s_cselect_b32 s45, {f32hex(DH**-0.5 * math.log2(math.e))}, s45")
    A("s_cmp_ge_u32 s75, 10")
    A("s_cselect_b32 s28, 1, 0")
    A("s_branch k1_dd")
    A("k1_dh:")
    A("s_sub_u32 s36, s33, 15")
    A("s_lshr_b32 s37, s36, 3")
    A("s_lshl_b32 s38, s35, 1")
    A("s_add_u32 s37, s37, s38")
    A("s_and_b32 s38, s36, 7")
    A("s_lshl_b32 s39, s34, 3")
    A("s_add_u32 s38, s38, s39")
    A("s_lshl_b32 s30, s38, 7")
    A("s_mul_i32 s31, s37, 192")
    A("s_add_u32 s29, s31, 1920")
    A("s_movk_i32 s27, 128"); A("s_movk_i32 s26, 192")
    A("s_cmp_ge_u32 s33, 31")
    A("s_cselect_b32 s28, 3, 2")
    A("k1_dd:")
    A("s_cmp_lt_u32 s25, 6")
    A("s_cbranch_scc1 k1_other")
    A("s_sub_u32 s25, s25, 6")
    A("s_cmp_eq_u32 s28, 3")
    A("s_cbranch_scc0 k1_ld0")
    A("s_waitcnt lgkmcnt(0)")
    A("s_branch k1_ld_pack")
    A("k1_ld0:")
    A("v_lshrrev_b32 v2, 3, v1")
    A("v_and_b32 v3, 7, v1")
    A("v_lshrrev_b32 v4, 4, v1")
    A("s_lshr_b32 s40, s27, 1")
    A("s_mul_i32 s40, s40, s25")
    A("s_lshl_b32 s26, s40, 7")
    A("s_add_u32 s40, s40, s30")
    A("v_add_u32 v2, s40, v2")
    A("v_mul_u32_u24 v2, 1280, v2")
    A("v_xor_b32 v5, v3, v4")
    A("v_xor_b32 v6, 4, v5")
    A("v_lshl_add_u32 v5, v5, 4, v2")
    A("v_lshl_add_u32 v6, v6, 4, v2")
    for q in range(8):
        A(f"v_add_u32 v{DV+q}, {q*8*1280 - (q&3)*1024}, v{5 + (q&1)}")
    A("s_mov_b32 s21, 0"); A("s_mov_b32 s22, 0"); A("s_mov_b32 s23, 0")
    if os.environ.get("KROT"):
        A("s_and_b32 s21, s2, 7")
        if os.environ["KROT"] == "2":
            A("s_and_b32 s21, s21, 3"); A("s_mul_i32 s21, s21, 5"); A("s_lshr_b32 s21, s21, 1")
        A("s_lshl_b32 s21, s21, 7")
    A("s_mov_b32 s20, 0")
    A("s_mov_b32 m0, s26")
    A("s_waitcnt lgkmcnt(0)")
    srd(A, 8, PX, XSZ)
    for q in range(8):
        if q == 4:
            A("s_add_u32 m0, m0, 4096"); A("s_nop 0")
        A(f"buffer_load_dwordx4 v{DV+q}, s[8:11], s21 offen offset:{(q&3)*1024} lds" + NTF("a"))
    A("s_cmp_eq_u32 s28, 2")
    A("s_cbranch_scc1 k1_ldh")
    loader(A, "k1_ldq", 4, 2, 3840, False)
    loader(A, "k1_ldh", 2, 3, 3072, True)
    loader_tail(A)
    A("k1_other:")
    A("s_cmp_ge_u32 s25, 4")
    A("s_cbranch_scc1 k1_helper")
    A("s_cmp_eq_u32 s28, 1")
    A("s_cbranch_scc1 k1_v")
    A("s_cmp_eq_u32 s28, 2")
    A("s_cbranch_scc1 k1_h")
    A("s_cmp_eq_u32 s28, 3")
    A("s_cbranch_scc1 k1_done")
    SS1 = gemm_core(A, "k1qk", 4, 2, True, 3840, False)
    A("v_and_b32 v2, 31, v1")
    A("v_lshrrev_b32 v3, 5, v1")
    A("s_lshl_b32 s32, s43, 10")
    A(f"s_add_u32 s32, s32, {EP}")
    A("v_lshl_add_u32 v12, v2, 3, s32")
    for t in range(4):
        A(f"ds_read_b64 {pr(4+2*t)}, v12 offset:{t*256}")
    A("s_lshl_b32 s32, s44, 8")
    A(f"s_add_u32 s32, s32, {CSL}")
    A("v_lshl_add_u32 v12, v3, 4, s32")
    for u in range(2):
        for j in range(4):
            A(f"ds_read_b128 {vr(48+16*u+4*j,4)}, v12 offset:{128*u+32*j}")
    A("s_cmp_ge_u32 s75, 5")
    A(f"s_cselect_b32 s36, {K_OFF - Q_OFF - 80*32768}, 0")
    srd(A, 16, PWS, K_OFF - Q_OFF + 80 * 32768, Q_OFF)
    A("s_lshl_b32 s38, s75, 4")
    A("s_lshl_b32 s32, s44, 3")
    A("s_add_u32 s38, s38, s32")
    A("s_lshl_b32 s38, s38, 15")
    A("s_add_u32 s38, s38, s36")
    A("s_lshl_b32 s32, s43, 7")
    A("s_add_u32 s32, s32, s30")
    A("s_lshl_b32 s32, s32, 4")
    A("s_add_u32 s38, s38, s32")
    for i in range(1, 4):
        A(f"s_add_u32 s{38+i}, s{37+i}, 65536")
    A("v_lshlrev_b32 v3, 15, v3")
    A("v_lshl_add_u32 v16, v2, 4, v3")
    A("s_waitcnt lgkmcnt(0)")
    for t in range(4):
        for u in range(2):
            a = ACC + (t * 2 + u) * 16
            T = 80
            for i in range(0, 16, 2):
                A(f"v_pk_mul_f32 {pr(T+i)}, {pr(48+16*u+i)}, {pr(4+2*t)} op_sel:[0,1] op_sel_hi:[1,1]")
            for i in range(0, 16, 2):
                A(f"v_pk_fma_f32 {pr(a+i)}, {pr(a+i)}, {pr(4+2*t)}, {pr(T+i)} op_sel_hi:[1,0,1] neg_lo:[0,0,1] neg_hi:[0,0,1]")
            p = 18 + ((t * 2 + u) % 3) * 8
            for i in range(8):
                A(f"v_cvt_pk_bf16_f32 v{p+i}, v{a+2*i}, v{a+2*i+1}")
            A("s_nop 0")
            for j in range(2):
                A(f"v_permlane32_swap_b32 v{p+4*j}, v{p+4*j+2}")
                A(f"v_permlane32_swap_b32 v{p+4*j+1}, v{p+4*j+3}")
            for j in range(2):
                A(f"buffer_store_dwordx4 v[{p+4*j}:{p+4*j+3}], v16, s[16:19], s{38+u*2+j} offen offset:{t*512} {STF}")
    fin(A)
    A("k1_v:")
    gemm_core(A, "k1v", 4, 2, False, 3840, False)
    A("v_and_b32 v2, 31, v1")
    A("v_lshrrev_b32 v3, 5, v1")
    A("s_lshl_b32 s32, s43, 9")
    A(f"s_add_u32 s32, s32, {EP+2048}")
    A("v_lshl_add_u32 v12, v3, 4, s32")
    A("s_lshl_b32 s32, s44, 8")
    A(f"s_add_u32 s32, s32, {CSL}")
    A("v_lshl_add_u32 v13, v2, 2, s32")
    for u in range(2):
        A(f"ds_read_b32 v{4+2*u}, v13 offset:{128*u}")
    def vrd(t):
        b = 48 + (t & 1) * 32
        for j in range(4):
            A(f"ds_read_b128 {vr(b+4*j,4)}, v12 offset:{t*128+32*j}")
            A(f"ds_read_b128 {vr(b+16+4*j,4)}, v12 offset:{1024+t*128+32*j}")
    vrd(0)
    srd(A, 16, PWS, 32 * 64 * VREC, V_OFF)
    A("s_lshr_b32 s38, s30, 5")
    A("s_lshl_b32 s32, s43, 2")
    A("s_add_u32 s38, s38, s32")
    A(f"s_mul_i32 s38, s38, {VREC}")
    for t in range(1, 4):
        A(f"s_add_u32 s{38+t}, s{37+t}, {VREC}")
    A("s_sub_u32 s33, s31, 1280")
    A("s_lshl_b32 s32, s44, 6")
    A("s_add_u32 s33, s33, s32")
    A(f"v_mul_u32_u24 v3, {VSB}, v3")
    A(f"s_mov_b32 s34, {64*VREC}")
    for u in range(2):
        A("v_add_u32 v8, s33, v2")
        if u: A("v_add_u32 v8, 32, v8")
        A("v_mul_u32_u24 v9, 3277, v8")
        A("v_lshrrev_b32 v9, 16, v9")
        A("v_mul_u32_u24 v10, 20, v9")
        A("v_sub_u32 v10, v8, v10")
        A("v_lshl_add_u32 v10, v10, 4, v3")
        A("v_mul_lo_u32 v9, v9, s34")
        A(f"v_add_u32 v{16+u}, v9, v10")
    for t in range(4):
        A("s_waitcnt lgkmcnt(0)")
        if t < 3: vrd(t + 1)
        b = 48 + (t & 1) * 32
        for u in range(2):
            a = ACC + (t * 2 + u) * 16
            T = 112
            for i in range(0, 16, 2):
                A(f"v_pk_mul_f32 {pr(T+i)}, {pr(b+16+i)}, {pr(4+2*u)} op_sel_hi:[1,0]")
            for i in range(0, 16, 2):
                A(f"v_pk_fma_f32 {pr(a+i)}, {pr(a+i)}, {pr(b+i)}, {pr(T+i)} neg_lo:[0,0,1] neg_hi:[0,0,1]")
            p = 18 + ((t * 2 + u) % 3) * 8
            for i in range(8):
                A(f"v_cvt_pk_bf16_f32 v{p+i}, v{a+2*i}, v{a+2*i+1}")
            A(f"buffer_store_dwordx4 v[{p}:{p+3}], v{16+u}, s[16:19], s{38+t} offen {STF}")
            A(f"buffer_store_dwordx4 v[{p+4}:{p+7}], v{16+u}, s[16:19], s{38+t} offen offset:{2*VSB} {STF}")
    fin(A)
    A("k1_h:")
    SS2 = gemm_core(A, "k1h", 2, 3, True, 3072, True)
    A("v_and_b32 v2, 31, v1")
    A("v_lshrrev_b32 v3, 5, v1")
    A("s_lshl_b32 s32, s43, 9")
    A(f"s_add_u32 s32, s32, {EP}")
    A("v_lshl_add_u32 v12, v2, 3, s32")
    for t in range(2):
        A(f"ds_read_b64 {pr(8+2*t)}, v12 offset:{t*256}")
    A("s_mul_i32 s32, s44, 384")
    A(f"s_add_u32 s32, s32, {CSL}")
    A("v_lshl_add_u32 v12, v3, 4, s32")
    def hrd(u):
        b = 48 + (u & 1) * 32
        for j in range(4):
            A(f"ds_read_b128 {vr(b+4*j,4)}, v12 offset:{128*u+32*j}")
            A(f"ds_read_b128 {vr(b+16+4*j,4)}, v12 offset:{768+128*u+32*j}")
    hrd(0)
    srd(A, 16, PWS, 64 * 96 * 1024, HB_OFF)
    A("s_lshr_b32 s33, s30, 5")
    A("s_lshl_b32 s32, s43, 1")
    A("s_add_u32 s33, s33, s32")
    A("s_mul_i32 s33, s33, 96")
    A("s_lshr_b32 s32, s31, 4")
    A("s_add_u32 s33, s33, s32")
    A("s_mul_i32 s32, s44, 6")
    A("s_add_u32 s33, s33, s32")
    A("s_lshl_b32 s36, s33, 10")
    A(f"s_add_u32 s37, s36, {96*1024}")
    A("v_lshlrev_b32 v16, 4, v1")
    A("v_add_u32 v17, 4096, v16")
    c0 = -2.0 * math.sqrt(2.0 / math.pi) * math.log2(math.e)
    c1 = c0 * 0.044715
    A(f"v_mov_b32 v4, {f32hex(c0)}"); A(f"v_mov_b32 v5, {f32hex(c1)}")
    A("v_mov_b32 v6, 1.0")
    T = 112
    for u in range(3):
        A("s_waitcnt lgkmcnt(0)")
        if u < 2: hrd(u + 1)
        b = 48 + (u & 1) * 32
        for t in range(2):
            a = ACC + (t * 3 + u) * 16
            p = 18 + ((u * 2 + t) % 3) * 8
            ab = pr(8 + 2 * t)
            for i in range(0, 16, 2): A(f"v_pk_fma_f32 {pr(T+i)}, {pr(b+i)}, {ab}, {pr(b+16+i)} op_sel:[0,1,0] op_sel_hi:[1,1,1] neg_lo:[1,0,0] neg_hi:[1,0,0]")
            for i in range(0, 16, 2): A(f"v_pk_fma_f32 {pr(a+i)}, {pr(a+i)}, {ab}, {pr(T+i)} op_sel_hi:[1,0,1]")
            for i in range(0, 16, 2): A(f"v_pk_mul_f32 {pr(T+i)}, {pr(a+i)}, {pr(a+i)}")
            for i in range(0, 16, 2): A(f"v_pk_fma_f32 {pr(T+i)}, {pr(T+i)}, v[4:5], v[4:5] op_sel:[0,1,0] op_sel_hi:[1,1,0]")
            for i in range(0, 16, 2): A(f"v_pk_mul_f32 {pr(T+i)}, {pr(T+i)}, {pr(a+i)}")
            for i in range(16): A(f"v_exp_f32 v{T+i}, v{T+i}")
            for i in range(0, 16, 2): A(f"v_pk_add_f32 {pr(T+i)}, {pr(T+i)}, v[6:7] op_sel_hi:[1,0]")
            for i in range(16): A(f"v_rcp_f32 v{T+i}, v{T+i}")
            for i in range(0, 16, 2): A(f"v_pk_mul_f32 {pr(T+i)}, {pr(T+i)}, {pr(a+i)}")
            for i in range(8): A(f"v_cvt_pk_bf16_f32 v{p+i}, v{T+2*i}, v{T+2*i+1}")
            va = 16 if u < 2 else 17
            off = (2 * u * 1024) % 4096
            A(f"buffer_store_dwordx4 v[{p}:{p+3}], v{va}, s[16:19], s{36+t} offen offset:{off} {STH}")
            A(f"buffer_store_dwordx4 v[{p+4}:{p+7}], v{va}, s[16:19], s{36+t} offen offset:{off+1024} {STH}")
    fin(A)
    helper(A)
    A("k1_done:")
    A("s_endpgm")
    assert 3 * max(SS1, SS2) <= EP
    return kernel_desc(name, 256), f"; @launch kernel=k1_kernel grid=(256,1,1) block=(512,1,1) lds={LDS_BYTES}"
```

```python
from asmlib import *
from layout import *
import math, os

QA1, QA2, QB1, QB2 = 16, 20, 22, 26
B2R = 28
VW = 36
SA, SB = 68, 84
PA, PB = 100, 108
OA, OB_ = 116, 132
KF = [(148, 152), (154, 158)]
VF = [(160, 164), (168, 172)]
MO, M5 = 176, 192
MF = 208
F5 = 240
VK1, VK2, VV = 4, 5, 6
VP = 8
VD = [12, 34, 35]
L16 = 47
KVSZ = (V_OFF - K_OFF) + 32 * 64 * VREC
SLOT = 24576
XCH = 0
WL = 2 * SLOT
FLAG = WL + 8 * 12288
LDS_BYTES = FLAG + 64
OOB = 0x40000

NT = os.environ.get("NT", "")
def NTF(c): return " nt" if c in NT else ""
def m16(d, a, b, c):
    return f"v_mfma_f32_32x32x16_bf16 {vr(d,16)}, {vr(a,4)}, {vr(b,4)}, {c}"
def m8(d, a, b, c):
    return f"v_mfma_f32_32x32x8_bf16 {vr(d,16)}, {vr(a,2)}, {vr(b,2)}, {c}"

def phase(out, s, p, mf, slots):
    E = lambda i: f"v_exp_f32 v{s+i}, v{s+i}"
    C = lambda i: f"v_cvt_pk_bf16_f32 v{p+i}, v{s+2*i}, v{s+2*i+1}"
    groups = [[E(0), E(1), E(2), E(3), C(0)],
              [E(4), E(5), C(1), E(6), E(7)],
              [C(2), E(8), E(9), C(3), E(10)],
              [E(11), C(4), E(12), E(13), C(5)],
              [E(14), E(15), C(6), C(7)]]
    X = os.environ.get("K2X", "")
    if "ord2" in X:
        groups = [[E(0), E(1), E(2), E(3), E(4)],
                  [E(5), C(0), E(6), E(7), C(1)],
                  [E(8), E(9), C(2), E(10), E(11)],
                  [C(3), E(12), E(13), C(4), E(14)],
                  [E(15), C(5), C(6), C(7)]]
    if "ord3" in X:
        groups = [[E(i) for i in range(0, 4)], [E(i) for i in range(4, 8)], [E(i) for i in range(8, 12)], [E(i) for i in range(12, 16)], [C(i) for i in range(8)]]
    for g in range(5):
        out += mf[g]
        out += slots[g]
        out += groups[g]

def rdK(buf, off):
    return [f"ds_read_b128 {vr(KF[buf][0],4)}, v{VK1} offset:{off}", "s_mov_b32 exec_hi, 0",
            f"ds_read_b64 {vr(KF[buf][1],2)}, v{VK2} offset:{off}", "s_mov_b32 exec_hi, -1"]
def rdV(buf, off):
    return [f"ds_read_b128 {vr(VF[buf][0],4)}, v{VV} offset:{off}", f"ds_read_b128 {vr(VF[buf][1],4)}, v{VV} offset:{off+2*VSB}"]
def toffK(i):
    i %= 8
    return (i // 4) * SLOT + (i % 4) * 1024
def toffV(i):
    i %= 8
    return (i // 4) * SLOT + (i % 4) * 2 * VREC

def rowmax(A, s, acc, first):
    if first:
        A(f"v_max3_f32 v{acc}, v{s}, v{s+1}, v{s+2}")
        A(f"v_max_f32 v{acc}, v{acc}, v{s+3}")
        st = 4
    else:
        st = 0
    for i in range(st, 16, 2):
        A(f"v_max3_f32 v{acc}, v{acc}, v{s+i}, v{s+i+1}")

def set_nc(A, acc, q2, tmp):
    A(f"v_mov_b32 v{tmp}, v{acc}")
    A("s_nop 1")
    A(f"v_permlane32_swap_b32 v{acc}, v{tmp}")
    A("s_nop 1")
    A(f"v_max_f32 v{acc}, v{acc}, v{tmp}")
    A(f"v_cvt_pk_bf16_f32 v{tmp}, -v{acc}, -v{acc}")
    A(f"v_lshlrev_b32 v{tmp}, 16, v{tmp}")
    A(f"v_sub_f32 v{tmp}, -v{acc}, v{tmp}")
    A("s_mov_b32 exec_lo, 0")
    A(f"v_cvt_pk_bf16_f32 v{q2}, -v{acc}, v{tmp}")
    A("s_mov_b64 exec, -1")

def dma_ops(slot):
    L = [f"s_add_u32 m0, s46, {slot*SLOT}", "s_nop 0"]
    for j in range(3):
        L.append(f"buffer_load_dwordx4 v{VD[j]}, s[20:23], s47 offen offset:{j*1024} lds" + NTF("k"))
    L.append("s_add_u32 s47, s47, s45")
    return L

def mlp_loads(st):
    p = st % 4; b = MF + (st % 4) * 8
    L = [(f"buffer_load_dwordx4 {vr(b,4)}, v{VP+p}, s[24:27], s48 offen" + NTF("h"), f"h{st}"),
         (f"buffer_load_dwordx4 {vr(b+4,4)}, v{VP+p}, s[28:31], s49 offen", f"w{st}")]
    if p == 0:
        L.append((f"buffer_load_dwordx4 {vr(F5 + ((st//4) % 2) * 4, 4)}, v{VP}, s[28:31], s50 offen", f"f{st}"))
    if p == 3:
        L += ["s_add_u32 s48, s48, 4096", "s_add_u32 s49, s49, 4096", "s_add_u32 s50, s50, 4096"]
    return L

def resolve_waits(body):
    isv = lambda x: (x[0] if isinstance(x, tuple) else x).startswith("buffer_")
    n = len(body)
    out = []
    for i, x in enumerate(body):
        if isinstance(x, tuple) and x[0] == "WAIT":
            cnt = 0; j = i
            while True:
                j = (j - 1) % n
                y = body[j]
                if isinstance(y, tuple) and y[0] != "WAIT" and y[1] == x[1]:
                    break
                if not (isinstance(y, tuple) and y[0] == "WAIT") and isv(y):
                    cnt += 1
                assert j != i
            out.append(f"s_waitcnt vmcnt({cnt})")
        else:
            out.append(x[0] if isinstance(x, tuple) else x)
    return out


def build_body():
    mm = []
    for st in range(12):
        b = MF + (st % 4) * 8
        mm.append(([("WAIT", f"w{st}"), m16(MO, b + 4, b, vr(MO, 16))], st if st % 4 else None))
        if st % 4 == 0:
            mm.append(([("WAIT", f"f{st}"), m16(M5, F5 + ((st // 4) % 2) * 4, b, vr(M5, 16))], st))
    body = []
    ph = 0
    for i in range(8):
        b = i & 1; nb = b ^ 1
        k = rdK(nb, toffK(i + 1)); v = rdV(nb, toffV(i + 1))
        last = (i % 4 == 3)
        for half in range(2):
            if ph < 15:
                x5, fin = mm[ph]
                post = mlp_loads((fin + 3) % 12) if fin is not None else []
                if fin == 9:
                    post = ["s_add_u32 s60, s58, 4096", "s_cmp_lt_u32 s39, 3"] + [f"s_cselect_b32 s{d}, s{d}, s{o}" for d, o in
                            ((24, 72), (25, 73), (26, 74), (28, 72), (29, 73), (30, 74), (48, 60), (49, 58))] + ["s_cselect_b32 s50, s50, 0x40000000"] + post
            else:
                x5, post = [], []
            if half == 0:
                pre = [("WAIT", f"d{i//4}"), "s_waitcnt lgkmcnt(0)", "s_barrier"] if last else []
                dm = dma_ops(i // 4) if last else []
                if dm:
                    dm[4] = (dm[4], f"d{(i//4)^1}")
                    dm = ["s_cmp_lt_u32 s39, 3", "s_cselect_b32 s22, s22, 0", "s_cselect_b32 s46, s46, 0x30000"] + dm
                phase(body, SA, PA,
                      [[m16(SB, KF[b][0], QB1, "0")], [m8(SB, KF[b][1], QB2, vr(SB, 16))],
                       [m16(OB_, VF[nb][0], PB, vr(OB_, 16))], [m16(OB_, VF[nb][1], PB + 4, vr(OB_, 16))], x5],
                      [pre + k, [], dm, [], post + ["s_waitcnt lgkmcnt(0)"]])
            else:
                tail = ["s_add_u32 s39, s39, 1", "s_cmp_lt_u32 s39, 4"] if i == 7 else []
                wl = []
                if i in (0, 2, 4):
                    wl = ["s_mov_b32 m0, s71", "s_add_u32 s71, s71, 1024",
                          f"buffer_load_dwordx4 v{L16}, s[72:75], s58 offen lds", "s_add_u32 s58, s58, 1024"]
                phase(body, SB, PB,
                      [[m16(SA, KF[nb][0], QA1, "0")], [m8(SA, KF[nb][1], QA2, vr(SA, 16))],
                       [m16(OA, VF[b][0], PA, vr(OA, 16))], [m16(OA, VF[b][1], PA + 4, vr(OA, 16))], x5],
                      [v, [], wl, [], post + tail])
            ph += 1
    return body

def prologue_vmem(body):
    i0 = next(i for i, x in enumerate(body) if isinstance(x, tuple) and x[1] == "h0" and x[0] != "WAIT")
    out = []
    for x in body[i0:]:
        if isinstance(x, tuple) and x[0] == "WAIT": continue
        t = x[0] if isinstance(x, tuple) else x
        if t.startswith("buffer_") or t.startswith("s_add_u32 m0") or t == "s_nop 0" or t.startswith("s_add_u32 s47") \
           or t.startswith("s_add_u32 s48") or t.startswith("s_add_u32 s49") or t.startswith("s_add_u32 s50"):
            out.append(t)
    return out


QP = 1040
RES = FLAG + 4
OS = 68
RW5 = [48, 52, 56, 60, 64]
ROWN = {12: MF + 4, 13: MF + 12, 14: MF + 20, 15: 248, 16: MF, 17: MF + 8, 18: MF + 16, 19: 252}
WB = 100
XO, X5R, BO, B5R = 28, 32, 36, 40
TIMEOUT = int(os.environ.get("K2TIMEOUT", "4000"))
pr = lambda r: f"v[{r}:{r+1}]"

def wof_loads():
    L = []
    for g in range(5):
        L.append(f"buffer_load_dwordx4 {vr(RW5[g], 4)}, v{VP}, s[72:75], s59 offen")
        if g < 4: L.append("s_add_u32 s59, s59, 4096")
    L.append(f"buffer_load_dwordx4 {vr(248, 4)}, v{VP+3}, s[72:75], s62 offen")
    L.append("s_add_u32 s62, s62, 4096")
    L.append(f"buffer_load_dwordx4 {vr(252, 4)}, v{VP+3}, s[72:75], s62 offen")
    L.append(f"buffer_load_dwordx4 {vr(XO,4)}, v13, s[8:11], 0 offen")
    L.append(f"buffer_load_dwordx2 {pr(X5R)}, v14, s[8:11], 0 offen")
    L.append(f"buffer_load_dwordx4 {vr(BO,4)}, v42, s[16:19], 0 offen")
    L.append(f"buffer_load_dwordx2 {pr(B5R)}, v43, s[16:19], 0 offen")
    return L

def gen_k2(A):
    name = "k2_kernel"
    kernel_begin(A, name)
    A("s_cmp_ge_u32 s2, 256")
    A("s_cbranch_scc1 k2_done")
    stamp(A, 0); tl_start(A, 1)
    A("s_load_dwordx2 s[6:7], s[0:1], 80")
    A("s_load_dwordx4 s[76:79], s[0:1], 56")
    A("s_load_dwordx2 s[4:5], s[0:1], 0")
    A("v_lshrrev_b32 v1, 6, v0")
    A("s_nop 0")
    A("v_readfirstlane_b32 s64, v1")
    A("s_and_b32 s32, s2, 7")
    A("s_lshr_b32 s33, s2, 3")
    A("s_lshl_b32 s34, s32, 2")
    A("s_lshr_b32 s53, s33, 3")
    A("s_add_u32 s34, s34, s53")
    A("s_and_b32 s35, s33, 7")
    A("s_lshl_b32 s52, s35, 3")
    A("s_add_u32 s52, s52, s32")
    A("s_and_b32 s65, s64, 3")
    A("s_lshr_b32 s66, s64, 2")
    A("k2_restart:")
    A("v_and_b32 v1, 63, v0")
    A(f"v_lshlrev_b32 v{L16}, 4, v1")
    A("s_mul_i32 s46, s64, 3072")
    A("s_mul_i32 s67, s34, 5")
    A("s_lshr_b32 s67, s67, 1")
    A("s_and_b32 s68, s34, 1")
    A(f"s_mul_i32 s45, s66, {8*VREC - 4096}")
    A("s_add_u32 s45, s45, 4096")
    A("s_mul_i32 s69, s65, 3")
    A(f"s_mul_i32 s70, s34, {64*VREC}")
    A(f"s_add_u32 s70, s70, {V_OFF - K_OFF}")
    for j in range(3):
        A(f"s_add_u32 s54, s69, {j}")
        A("s_lshr_b32 s55, s54, 2")
        A("s_add_u32 s55, s55, s67")
        A("s_lshl_b32 s55, s55, 15")
        A("s_and_b32 s56, s54, 3")
        A("s_lshl_b32 s56, s56, 10")
        A("s_add_u32 s55, s55, s56")
        A("s_lshl_b32 s56, s54, 10")
        A("s_add_u32 s56, s56, s70")
        if j == 2:
            A("s_cmp_eq_u32 s54, 11")
            A("s_cselect_b32 s56, 0x40000000, s56")
        A("s_cmp_eq_u32 s66, 0")
        A("s_cselect_b32 s55, s55, s56")
        if j: A(f"s_sub_u32 s55, s55, {j*1024}")
        A(f"v_add_u32 v{VD[j]}, s55, v{L16}")
    A(f"s_mov_b32 s51, {KVSZ}")
    A("s_mov_b32 s38, 0")
    A("s_lshl_b32 s36, s35, 3")
    A("s_lshl_b32 s37, s65, 1")
    A("s_add_u32 s36, s36, s37")
    A("s_add_u32 s36, s36, s66")
    A("s_lshl_b32 s37, s36, 9")
    A("s_lshl_b32 s54, s67, 15")
    A("s_add_u32 s37, s37, s54")
    A("s_xor_b32 s44, s37, 512")
    A("v_and_b32 v2, 31, v1")
    A("v_lshrrev_b32 v3, 5, v1")
    A("v_add_u32 v7, s68, v3")
    A("v_lshlrev_b32 v15, 4, v2")
    A(f"v_lshl_add_u32 v{VK1}, v7, 12, v15")
    A("v_lshl_add_u32 v40, v7, 15, v15")
    A("s_lshl_b32 s54, s68, 1")
    A("s_sub_u32 s54, 2, s54")
    A("s_lshl_b32 s55, s68, 3")
    A("s_lshl_b32 s56, s54, 12")
    A("s_add_u32 s56, s56, s55")
    A(f"v_add_u32 v{VK2}, s56, v15")
    A("s_lshl_b32 s56, s54, 15")
    A("s_add_u32 s56, s56, s55")
    A("v_add_u32 v41, s56, v15")
    for r in (QA2, QA2 + 1, QB2, QB2 + 1): A(f"v_mov_b32 v{r}, 0")
    for r in (KF[0][1], KF[0][1] + 1, KF[1][1], KF[1][1] + 1): A(f"v_mov_b32 v{r}, 0x3f803f80")
    for p in range(4):
        A(f"s_xor_b32 s54, s65, {p}")
        A("s_lshl_b32 s54, s54, 10")
        A(f"v_add_u32 v{VP+p}, s54, v{L16}")
    A("s_waitcnt lgkmcnt(0)")
    srd(A, 20, 6, KVSZ, K_OFF)
    srd(A, 8, 6, 80 * 32768, Q_OFF)
    A("s_mov_b32 s47, 0")
    for l in dma_ops(0): A(l)
    A(f"buffer_load_dwordx4 {vr(QA1,4)}, v40, s[8:11], s37 offen")
    A(f"buffer_load_dwordx4 {vr(QB1,4)}, v40, s[8:11], s44 offen")
    A("s_mov_b32 exec_hi, 0")
    A(f"buffer_load_dwordx2 {vr(QA2,2)}, v41, s[8:11], s37 offen")
    A(f"buffer_load_dwordx2 {vr(QB2,2)}, v41, s[8:11], s44 offen")
    A("s_mov_b64 exec, -1")
    srd(A, 12, 6, 64 * 32 * 2048, OB_OFF)
    A(f"s_load_dword s3, s[6:7], {hex(SYNC_OFF)}")
    A(f"v_mul_u32_u24 v15, {VSB}, v3")
    A(f"v_lshl_add_u32 v{VV}, v2, 4, v15")
    A(f"s_mul_i32 s57, s66, {VREC}")
    A("s_add_u32 s57, s57, 12288")
    A(f"v_add_u32 v{VV}, s57, v{VV}")
    A("v_cmp_lt_u32 vcc, 20, v2")
    A(f"v_mov_b32 v15, {OOB}")
    A("s_lshl_b32 s57, s66, 9")
    A(f"v_cndmask_b32 v{VV}, v{VV}, v15, vcc")
    A(f"v_mov_b32 v7, {FLAG}")
    A("v_mov_b32 v15, 0")
    A("ds_write_b32 v7, v15")
    A("s_branch k2_main2")
    A("k2_main:")
    A("s_mul_i32 s46, s64, 3072")
    A("s_mov_b32 s22, s51")
    A("s_mov_b32 s47, 0")
    for l in dma_ops(0): A(l)
    A("k2_main2:")
    srd(A, 24, 6, 64 * 96 * 1024, HB_OFF)
    srd(A, 28, 6, 20 * 96 * 1024, W2F_OFF)
    A("s_mul_i32 s54, s66, 48")
    A("s_mul_i32 s48, s52, 96")
    A("s_add_u32 s48, s48, s54")
    A("s_lshl_b32 s48, s48, 10")
    A("s_mul_i32 s49, s53, 5")
    A("s_add_u32 s50, s49, 4")
    A("s_add_u32 s49, s49, s65")
    for r in (49, 50):
        A(f"s_mul_i32 s{r}, s{r}, 96")
        A(f"s_add_u32 s{r}, s{r}, s54")
        A(f"s_lshl_b32 s{r}, s{r}, 10")
    srd(A, 72, 6, 20 * 40 * 1024, WOF_OFF)
    A("s_mul_i32 s54, s66, 20")
    A("s_mul_i32 s58, s53, 5")
    A("s_add_u32 s59, s58, 4")
    A("s_add_u32 s58, s58, s65")
    for r in (58, 59):
        A(f"s_mul_i32 s{r}, s{r}, 40")
        A(f"s_add_u32 s{r}, s{r}, s54")
        A(f"s_lshl_b32 s{r}, s{r}, 10")
    A("s_mul_i32 s71, s64, 12288")
    A(f"s_add_u32 s71, s71, {WL}")
    A("v_lshrrev_b32 v2, 4, v0")
    A("v_and_b32 v3, 15, v0")
    A("s_lshl_b32 s54, s52, 5")
    A("s_mul_i32 s55, s53, 320")
    A("v_lshl_add_u32 v42, v3, 4, s55")
    A("v_add_u32 v13, s54, v2")
    A("v_mul_u32_u24 v13, 1280, v13")
    A("v_add_u32 v13, v13, v42")
    A("v_lshrrev_b32 v2, 3, v0")
    A("v_and_b32 v3, 7, v0")
    A("s_add_u32 s55, s55, 256")
    A("v_lshl_add_u32 v43, v3, 3, s55")
    A("v_add_u32 v14, s54, v2")
    A("v_mul_u32_u24 v14, 1280, v14")
    A("v_add_u32 v14, v14, v43")
    A("v_cmp_gt_u32 vcc, 256, v0")
    A("v_mov_b32 v2, 0x7fffffff")
    A("s_nop 0")
    A("v_cndmask_b32 v14, v2, v14, vcc")
    srd(A, 8, 4, XSZ)
    srd(A, 16, 76, 1280)
    body = build_body()
    pv = prologue_vmem(body)
    for r in list(range(OA, OA + 32)) + list(range(PB, PB + 8)) + list(range(VF[1][0], VF[1][0] + 8)) + list(range(MO, MO + 32)):
        A(f"v_mov_b32 v{r}, 0")
    A("s_waitcnt vmcnt(0) lgkmcnt(0)")
    stamp(A, 1)
    A("s_barrier")
    A("s_cmp_lg_u32 s38, 0")
    A("s_cbranch_scc1 k2_havemax")
    for l in rdK(1, 0): A(l)
    for r in (VK1, VK2): A(f"v_add_u32 v{r}, s57, v{r}")
    for l in rdK(0, 0) + rdV(0, 0): A(l)
    for l in pv[:2]: A(l)
    A("s_waitcnt lgkmcnt(4)")
    A(m16(SA, KF[1][0], QA1, "0")); A(m8(SA, KF[1][1], QA2, vr(SA, 16)))
    A(m16(SB, KF[1][0], QB1, "0")); A(m8(SB, KF[1][1], QB2, vr(SB, 16)))
    for l in pv[2:5]: A(l)
    A("s_nop 6")
    rowmax(A, SA, 2, True)
    set_nc(A, 2, QA2, 7)
    A("s_waitcnt lgkmcnt(0)")
    A(m16(SA, KF[0][0], QA1, "0")); A(m8(SA, KF[0][1], QA2, vr(SA, 16)))
    for l in pv[5:11]: A(l)
    rowmax(A, SB, 3, True)
    set_nc(A, 3, QB2, 7)
    for l in pv[11:]: A(l)
    A("s_branch k2_go")
    A("k2_havemax:")
    for l in rdK(0, 0) + rdV(0, 0): A(l)
    for l in pv: A(l)
    A("s_waitcnt lgkmcnt(0)")
    A(m16(SA, KF[0][0], QA1, "0")); A(m8(SA, KF[0][1], QA2, vr(SA, 16)))
    A("s_nop 10")
    A("k2_go:")
    A("s_add_u32 s62, s58, 12288")
    A("s_add_u32 s61, s66, 1")
    A("s_mov_b32 s39, 0")
    stamp(A, 2)
    A(".p2align 3")
    A("k2_loop:")
    A("s_cmp_eq_u32 s39, s61")
    A("s_cbranch_scc1 k2_early")
    A("k2_early_ret:")
    for l in resolve_waits(body): A(l)
    A("s_cbranch_scc1 k2_loop")
    A("s_nop 1")
    A(m16(OB_, VF[1][0], PB, vr(OB_, 16))); A(m16(OB_, VF[1][1], PB + 4, vr(OB_, 16)))
    stamp(A, 3)
    A("s_mul_i32 s40, s64, 3072")
    A(f"s_add_u32 s40, s40, {XCH}")
    A(f"v_add_u32 v7, s40, v{L16}")
    A("s_xor_b32 s40, s64, 4")
    A("s_mul_i32 s40, s40, 3072")
    A(f"s_add_u32 s40, s40, {XCH}")
    A(f"v_add_u32 v15, s40, v{L16}")
    A("s_lshl_b32 s41, s36, 5")
    A("s_add_u32 s41, s41, s34")
    A("s_lshl_b32 s41, s41, 11")
    A("s_nop 7")
    for q, r in enumerate([OB_, OB_ + 4, OB_ + 8]):
        A(f"ds_write_b128 v7, {vr(r,4)} offset:{q*1024}")
    A(f"s_mov_b32 s40, {f32hex(2.0**64)}")
    A("s_waitcnt lgkmcnt(0)")
    stamp(A, 4)
    A("s_barrier")
    for q in range(3):
        A(f"ds_read_b128 {vr(SA+4*q,4)}, v15 offset:{q*1024}")
    A("v_mov_b32 v44, 0"); A("v_mov_b32 v45, 0"); A("v_mov_b32 v2, 0"); A("v_mov_b32 v3, 0")
    A("s_waitcnt lgkmcnt(0)")
    for e in (8, 10, 0, 2, 4, 6):
        A(f"v_pk_add_f32 {pr(OA+e)}, {pr(OA+e)}, {pr(SA+e)}")
        if e == 10:
            A(f"v_mov_b32 v7, v{OA+8}")
            A(f"v_mov_b32 v46, v{OA+8}")
    A(f"v_permlane32_swap_b32 v7, v46")
    for e in range(0, 12, 2):
        A(f"v_pk_fma_f32 v[2:3], {pr(OA+e)}, v[44:45], v[2:3]")
    A("v_cmp_nlt_f32 s[60:61], v46, s40")
    A("v_cmp_u_f32 s[62:63], v2, v3")
    A("v_rcp_f32 v46, v46")
    A("s_nop 2")
    A("s_or_b64 s[60:61], s[60:61], s[62:63]")
    A("s_cbranch_scc0 k2_noflag")
    A(f"v_mov_b32 v7, {FLAG}")
    A("v_mov_b32 v15, 1")
    A("ds_write_b32 v7, v15")
    A("s_cmp_eq_u32 s38, 0")
    A("s_cbranch_scc1 k2_nopub")
    A("k2_noflag:")
    for e in range(0, 12, 2):
        A(f"v_pk_mul_f32 {pr(OA+e)}, {pr(OA+e)}, v[46:47] op_sel_hi:[1,0]")
    for i, d in enumerate((168, 169, 170, 174, 172, 173)):
        A(f"v_cvt_pk_bf16_f32 v{d}, v{OA+2*i}, v{OA+2*i+1}")
    A("v_mov_b32 v171, s3"); A("v_mov_b32 v175, s3")
    A(f"buffer_store_dwordx4 {vr(168,4)}, v{L16}, s[12:15], s41 offen sc1")
    A(f"buffer_store_dwordx4 {vr(172,4)}, v{L16}, s[12:15], s41 offen offset:1024 sc1")
    A("k2_nopub:")
    A(f"v_mov_b32 v7, {RES}")
    A("v_mov_b32 v15, 0")
    A("ds_write_b32 v7, v15")
    A("s_waitcnt lgkmcnt(0)")
    stamp(A, 5)
    A("s_barrier")
    A(f"v_mov_b32 v7, {FLAG}")
    A("ds_read_b32 v15, v7")
    A("s_lshl_b32 s40, s52, 5")
    A("s_lshl_b32 s41, s64, 2")
    A("s_add_u32 s40, s40, s41")
    A("s_lshl_b32 s40, s40, 11")
    A(f"v_add_u32 v3, 4096, v{L16}")
    A("v_and_b32 v2, 3, v1")
    A("v_lshlrev_b32 v2, 11, v2")
    A("v_add_u32 v2, 2044, v2")
    A("s_waitcnt lgkmcnt(0)")
    A("v_readfirstlane_b32 s41, v15")
    A("s_nop 3")
    A("s_cmp_eq_u32 s41, 0")
    A("s_cbranch_scc1 k2_pub")
    A("s_cmp_eq_u32 s38, 0")
    A("s_cbranch_scc1 k2_fallback")
    A("k2_pub:")
    A("s_mov_b32 s41, 0")
    A("k2_poll:")
    if not os.environ.get("PREPOLL"):
        A("s_add_u32 s41, s41, 1")
        A("s_branch k2_full")
    A("s_mov_b64 exec, 15")
    A("buffer_load_dword v15, v2, s[12:15], s40 offen sc1")
    A("s_waitcnt vmcnt(0)")
    A("v_cmp_ne_u32 vcc, s3, v15")
    A("s_mov_b64 exec, -1")
    A("s_add_u32 s41, s41, 1")
    A("s_nop 2")
    A("s_cmp_eq_u32 vcc_lo, 0")
    A("s_cbranch_scc1 k2_full")
    A(f"s_cmp_lt_u32 s41, {TIMEOUT}")
    A("s_cbranch_scc1 k2_poll")
    A("s_branch k2_miss")
    A("k2_full:")
    for i in range(8):
        va = L16 if i < 4 else 3
        A(f"buffer_load_dwordx4 {vr(OS+4*i,4)}, v{va}, s[12:15], s40 offen offset:{(i%4)*1024} sc1")
    A("s_waitcnt vmcnt(0)")
    A("s_mov_b32 s42, 0")
    for hh in range(4):
        A(f"v_xor_b32 v15, s3, v{OS+8*hh+3}")
        A(f"v_xor_b32 v7, s3, v{OS+8*hh+7}")
        A("v_or_b32 v15, v15, v7")
        A("v_cmp_ne_u32 vcc, 0, v15")
        A("s_nop 3")
        A("s_cmp_lg_u64 vcc, 0")
        A(f"s_cselect_b32 s43, {1 << hh}, 0")
        A("s_or_b32 s42, s42, s43")
    A("s_cmp_eq_u32 s42, 0")
    A("s_cbranch_scc1 k2_oproj")
    A("s_mov_b32 vcc_lo, s42")
    A(f"s_cmp_lt_u32 s41, {TIMEOUT}")
    A("s_cbranch_scc1 k2_poll")
    A("k2_miss:")
    A("s_ff1_i32_b32 s42, vcc_lo")
    A("s_lshl_b32 s43, s64, 2")
    A("s_add_u32 s42, s42, s43")
    A("s_add_u32 s42, s42, 1")
    A(f"v_mov_b32 v7, {RES}")
    A("v_mov_b32 v15, s42")
    A("ds_write_b32 v7, v15")
    A("k2_oproj:")
    stamp(A, 6)
    A("s_lshl_b32 s41, s64, 12")
    A(f"v_add_u32 v2, s41, v{L16}")
    A("s_lshl_b32 s41, s64, 10")
    A("s_add_u32 s41, s41, 32768")
    A(f"v_add_u32 v3, s41, v{L16}")
    for hh in range(4):
        A(f"v_mov_b32 v{OS+8*hh+3}, v{OS+8*hh+6}")
        A(f"ds_write_b128 v2, {vr(OS+8*hh,4)} offset:{hh*1024}")
    A("s_mov_b32 exec_hi, 0")
    for hh in range(4):
        A(f"ds_write_b64 v3, {pr(OS+8*hh+4)} offset:{(hh>>1)*512 + (hh&1)*8}")
    A("s_mov_b64 exec, -1")
    A("s_mul_i32 s41, s66, 20480")
    A("s_mul_i32 s42, s64, 12288")
    A(f"s_add_u32 s42, s42, {WL}")
    for p in range(4):
        A(f"v_add_u32 v{20+p}, s42, v{VP+p}")
        A(f"v_add_u32 v{24+p}, s41, v{VP+p}")
    def wrd(s): return f"ds_read_b128 {vr(WB + (s % 8) * 4, 4)}, v{20 + s % 4} offset:{(s // 4) * 4096}"
    for s_ in range(6): A(wrd(s_))
    A("s_waitcnt lgkmcnt(0)")
    A("s_barrier")
    A(f"v_mov_b32 v7, {RES}")
    A("ds_read_b32 v15, v7")
    def ord_(s): return f"ds_read_b128 {vr(OS + (s % 8) * 4, 4)}, v{24 + s % 4} offset:{(s // 4) * 4096}"
    ops = []
    def issue(l, tag): A(l); ops.append(tag)
    for s_ in range(6): issue(ord_(s_), f"o{s_}")
    A("s_waitcnt lgkmcnt(6)")
    A("v_readfirstlane_b32 s43, v15")
    A("s_nop 3")
    A("s_cmp_eq_u32 s43, 0")
    A("s_cbranch_scc1 k2_mm")
    A("s_sub_u32 s34, s43, 1")
    A("s_waitcnt vmcnt(0) lgkmcnt(0)")
    A("s_barrier")
    A("s_branch k2_restart")
    A("k2_mm:")
    for s_ in range(20):
        need = [f"o{s_}"] + ([f"w{s_}"] if 6 <= s_ < 12 else [])
        last = max(ops.index(t) for t in need)
        A(f"s_waitcnt lgkmcnt({len(ops) - 1 - last})")
        wreg = WB + (s_ % 8) * 4 if s_ < 12 else ROWN[s_]
        A(m16(MO, wreg, OS + (s_ % 8) * 4, vr(MO, 16)))
        if s_ % 4 == 0:
            A(m16(M5, RW5[s_ // 4], OS + (s_ % 8) * 4, vr(M5, 16)))
        if s_ + 6 < 20: issue(ord_(s_ + 6), f"o{s_+6}")
        if s_ + 6 < 12: issue(wrd(s_ + 6), f"w{s_+6}")
    A(f"v_add_u32 v2, s42, v{L16}")
    A("v_lshrrev_b32 v7, 4, v0")
    A("v_bfe_u32 v15, v0, 2, 2")
    A("v_mul_u32_u24 v15, 12288, v15")
    A("v_lshl_add_u32 v7, v7, 4, v15")
    A("v_and_b32 v15, 3, v0")
    A(f"v_mul_u32_u24 v15, {QP}, v15")
    A("v_add_u32 v7, v7, v15")
    A(f"v_add_u32 v7, {WL}, v7")
    for q in range(4):
        A(f"ds_write_b128 v2, {vr(M5+4*q,4)} offset:{(4+q)*QP}")
    A("v_lshrrev_b32 v15, 3, v0")
    A("v_and_b32 v44, 1, v0")
    A("v_lshl_add_u32 v15, v44, 5, v15")
    A("v_bfe_u32 v44, v0, 1, 2")
    A(f"v_mul_u32_u24 v44, {QP}, v44")
    A("v_lshl_add_u32 v15, v15, 4, v44")
    A(f"v_add_u32 v15, {WL + 4*QP}, v15")
    A(f"v_add_u32 v44, {4*12288}, v15")
    for q in range(4):
        A(f"ds_write_b128 v2, {vr(MO+4*q,4)} offset:{q*QP}")
    srd(A, 16, 78, XSZ)
    A("s_waitcnt lgkmcnt(0)")
    A("s_barrier")
    R = 68
    for k in range(2):
        for h in range(2):
            A(f"ds_read_b128 {vr(R + (k*2+h)*4, 4)}, v7 offset:{k*4*12288 + h*512}")
    A("s_cmp_ge_u32 s64, 4")
    A("s_cbranch_scc1 k2_no5")
    for w in range(8):
        A(f"ds_read_b128 {vr(R + 16 + 4*w, 4)}, v{15 if w < 4 else 44} offset:{(w%4)*12288}")
    A("k2_no5:")
    T = 120
    for e in range(4):
        A(f"v_lshlrev_b32 v{T+2*e}, 16, v{XO+e}")
        A(f"v_and_b32 v{T+2*e+1}, 0xffff0000, v{XO+e}")
        A(f"v_lshlrev_b32 v{T+8+2*e}, 16, v{BO+e}")
        A(f"v_and_b32 v{T+8+2*e+1}, 0xffff0000, v{BO+e}")
    for e in range(0, 8, 2):
        A(f"v_pk_add_f32 {pr(T+e)}, {pr(T+e)}, {pr(T+8+e)}")
    for e in range(2):
        A(f"v_lshlrev_b32 v{T+16+2*e}, 16, v{X5R+e}")
        A(f"v_and_b32 v{T+16+2*e+1}, 0xffff0000, v{X5R+e}")
        A(f"v_lshlrev_b32 v{T+20+2*e}, 16, v{B5R+e}")
        A(f"v_and_b32 v{T+20+2*e+1}, 0xffff0000, v{B5R+e}")
    for e in range(0, 4, 2):
        A(f"v_pk_add_f32 {pr(T+16+e)}, {pr(T+16+e)}, {pr(T+20+e)}")
    A("s_waitcnt lgkmcnt(0)")
    for e in range(0, 8, 2):
        A(f"v_pk_add_f32 {pr(R+e)}, {pr(R+e)}, {pr(R+8+e)}")
        A(f"v_pk_add_f32 {pr(R+e)}, {pr(R+e)}, {pr(T+e)}")
    for e in range(4):
        A(f"v_cvt_pk_bf16_f32 v{R+8+e}, v{R+2*e}, v{R+2*e+1}")
    A(f"buffer_store_dwordx4 {vr(R+8,4)}, v13, s[16:19], 0 offen" + NTF("o"))
    A("s_cmp_ge_u32 s64, 4")
    A("s_cbranch_scc1 k2_fin")
    for w in range(8):
        for e in range(0, 4, 2):
            A(f"v_pk_add_f32 {pr(T+16+e)}, {pr(T+16+e)}, {pr(R+16+4*w+e)}")
    for e in range(2):
        A(f"v_cvt_pk_bf16_f32 v{T+e}, v{T+16+2*e}, v{T+16+2*e+1}")
    A(f"buffer_store_dwordx2 {pr(T)}, v14, s[16:19], 0 offen" + NTF("o"))
    A("k2_fin:")
    stamp_flush(A, 7, 6, 1, 64); tl_end(A, 1)
    A("k2_done:")
    A("s_endpgm")
    A("k2_early:")
    for l in wof_loads(): A(l)
    A("s_branch k2_early_ret")
    A("k2_fallback:")
    A("s_mul_i32 s46, s64, 3072")
    A("s_mov_b32 s38, 1")
    A("s_waitcnt vmcnt(0)")
    for r in (KF[0][1], KF[0][1] + 1, KF[1][1], KF[1][1] + 1): A(f"v_mov_b32 v{r}, 0x3f803f80")
    A(f"v_mov_b32 v2, {f32hex(-3.0e38)}")
    A(f"v_mov_b32 v3, {f32hex(-3.0e38)}")
    A("s_mov_b32 exec_lo, 0")
    A(f"v_mov_b32 v{QA2}, 0")
    A(f"v_mov_b32 v{QB2}, 0")
    A("s_mov_b64 exec, -1")
    for r in (VK1, VK2): A(f"v_subrev_u32 v{r}, s57, v{r}")
    A("s_mov_b32 s22, s51")
    A("s_mov_b32 s47, 0")
    A("s_mov_b32 s39, 0")
    A("k2_maxloop:")
    for l in dma_ops(0): A(l)
    A("s_waitcnt vmcnt(0)")
    A("s_barrier")
    A("s_mov_b32 s40, 0")
    A("k2_maxin:")
    for l in rdK(0, 0): A(l)
    A("s_waitcnt lgkmcnt(0)")
    A(m16(SA, KF[0][0], QA1, "0")); A(m8(SA, KF[0][1], QA2, vr(SA, 16)))
    A(m16(SB, KF[0][0], QB1, "0")); A(m8(SB, KF[0][1], QB2, vr(SB, 16)))
    for r in (VK1, VK2): A(f"v_add_u32 v{r}, 512, v{r}")
    A("s_nop 15")
    rowmax(A, SA, 2, False); rowmax(A, SB, 3, False)
    A("s_add_u32 s40, s40, 1")
    A("s_cmp_lt_u32 s40, 8")
    A("s_cbranch_scc1 k2_maxin")
    for r in (VK1, VK2): A(f"v_subrev_u32 v{r}, 4096, v{r}")
    A("s_barrier")
    A("s_add_u32 s39, s39, 1")
    A("s_cmp_lt_u32 s39, 8")
    A("s_cbranch_scc1 k2_maxloop")
    for r in (VK1, VK2): A(f"v_add_u32 v{r}, s57, v{r}")
    set_nc(A, 2, QA2, 7); set_nc(A, 3, QB2, 7)
    A("s_branch k2_main")
    return kernel_desc(name, 256), f"; @launch kernel=k2_kernel grid=(256,1,1) block=(512,1,1) lds={LDS_BYTES}"
```

```python
from asmlib import *
from layout import *
import math, os

NST = 10
ACC = 128
XF = 48
WF = 80
DV = 16
XAB, WAB, XAC, WAC = 28, 32, 36, 40
PX, PWQ, PW1, PB1, PWO, PW2, PDBG, PWS = 4, 6, 48, 50, 52, 54, 56, 58
EP = 147456
CSL = EP + 4096
BIASL = CSL + 768
LDS_BYTES = EP + 6144
ST_OFF = XN_OFF
CS_OFF = XN_OFF + 0x10000
PRIV_OFF = 0x8000000
NONL = EP + 6136
TIMEOUT = int(os.environ.get("K1TIMEOUT", "3000"))
SLOW = os.environ.get("K1SLOW", "")
NT = os.environ.get("NT", "rsp")
def NTF(c): return " nt" if c in NT else ""
STF = os.environ.get("STF", "")
STH = os.environ.get("STH", "")
STP = os.environ.get("STP", "")
KROT = os.environ.get("KROT", "1")
pr = lambda r: f"v[{r}:{r+1}]"

def bf16r(A, v):
    A(f"v_cvt_pk_bf16_f32 v{v}, v{v}, v{v}")
    A(f"v_and_b32 v{v}, 0xffff0000, v{v}")

RX, UX, RW = 16, 56, 136
def h_rows_issue(A):
    A("v_lshrrev_b32 v2, 3, v1")
    A("s_lshl_b32 s32, s70, 3")
    A("v_add_u32 v2, s32, v2")
    A("v_mul_u32_u24 v3, 1280, v2")
    A("v_and_b32 v4, 7, v1")
    A("v_lshl_add_u32 v3, v4, 4, v3")
    for j in range(10):
        A(f"buffer_load_dwordx4 {vr(RX+4*j,4)}, v3, s[8:11], 0 offen offset:{128*j}" + NTF("r"))
def red8(A, v):
    for mod in ("quad_perm:[1,0,3,2]", "quad_perm:[2,3,0,1]", "row_half_mirror"):
        A("s_nop 1")
        A(f"v_add_f32_dpp v{v}, v{v}, v{v} {mod} row_mask:0xf bank_mask:0xf")
def h_rows_p1a(A):
    for i in range(20):
        A(f"v_lshlrev_b32 v{UX+2*i}, 16, v{RX+i}")
        A(f"v_and_b32 v{UX+2*i+1}, 0xffff0000, v{RX+i}")
    A(f"v_add_f32 v5, v{UX}, v{UX+1}")
    A(f"v_add_f32 v6, v{UX+2}, v{UX+3}")
    for i in range(4, 40, 2):
        A(f"v_add_f32 v5, v5, v{UX+i}")
        A(f"v_add_f32 v6, v6, v{UX+i+1}")
def h_rows_p1b(A):
    for i in range(20, 40):
        A(f"v_lshlrev_b32 v{UX+2*i}, 16, v{RX+i}")
        A(f"v_and_b32 v{UX+2*i+1}, 0xffff0000, v{RX+i}")
    for i in range(40, 80, 2):
        A(f"v_add_f32 v5, v5, v{UX+i}")
        A(f"v_add_f32 v6, v6, v{UX+i+1}")
    A("v_add_f32 v5, v5, v6")
    red8(A, 5)
    A(f"v_mul_f32 v7, {f32hex(1.0/640)}, v5")
def h_rows_p1(A):
    h_rows_p1a(A); h_rows_p1b(A)
def h_rows_p2a(A):
    A("v_mov_b32 v5, 0"); A("v_mov_b32 v6, 0")
    for i in range(0, 52, 2):
        A(f"v_sub_f32 v13, v{UX+i}, v7")
        A(f"v_sub_f32 v14, v{UX+i+1}, v7")
        A("v_fmac_f32 v5, v13, v13")
        A("v_fmac_f32 v6, v14, v14")
def h_rows_p2(A):
    h_rows_p2a(A); h_rows_p2b(A)
def h_rows_p2b(A):
    s, mean, var, m, r, t2, r2 = 5, 7, 8, 9, 10, 11, 12
    for i in range(52, 80, 2):
        A(f"v_sub_f32 v13, v{UX+i}, v7")
        A(f"v_sub_f32 v14, v{UX+i+1}, v7")
        A("v_fmac_f32 v5, v13, v13")
        A("v_fmac_f32 v6, v14, v14")
    A("v_add_f32 v5, v5, v6")
    red8(A, 5)
    A(f"v_mul_f32 v{var}, {f32hex(1.0/640)}, v{s}")
    A(f"v_mov_b32 v{m}, v{mean}"); bf16r(A, m)
    A(f"v_mov_b32 v{s}, v{var}"); bf16r(A, s)
    A(f"v_add_f32 v{s}, {f32hex(1e-5)}, v{s}"); bf16r(A, s)
    A(f"v_sqrt_f32 v{s}, v{s}"); A("s_nop 0"); bf16r(A, s)
    A(f"v_rcp_f32 v{r}, v{s}")
    A(f"v_sub_f32 v{t2}, v{mean}, v{m}")
    A(f"v_mul_f32 v{t2}, v{t2}, v{r}"); bf16r(A, t2)
    A(f"v_mul_f32 v{s}, v{var}, v{r}")
    A(f"v_mul_f32 v{s}, v{s}, v{r}"); bf16r(A, s)
    A(f"v_add_f32 v{s}, {f32hex(1e-5)}, v{s}"); bf16r(A, s)
    A(f"v_sqrt_f32 v{s}, v{s}"); A("s_nop 0"); bf16r(A, s)
    A(f"v_rcp_f32 v{r2}, v{s}")
    O = RX
    A(f"v_mov_b32 v{O}, v{r}")
    A(f"v_mul_f32 v{O+1}, v{m}, v{r}")
    A(f"v_mul_f32 v{O+4}, v{r}, v{r2}")
    A(f"v_add_f32 v{O+5}, v{O+1}, v{t2}")
    A(f"v_mul_f32 v{O+5}, v{O+5}, v{r2}")
def h_rows_store(A):
    O = RX
    for i in (2, 3, 6, 7): A(f"v_mov_b32 v{O+i}, s76")
    A("v_lshlrev_b32 v3, 4, v2")
    A("v_add_u32 v4, 0x8000, v3")
    A("s_mov_b32 exec_lo, 0x01010101"); A("s_mov_b32 exec_hi, 0x01010101")
    A(f"buffer_store_dwordx4 {vr(O,4)}, v3, s[60:63], 0 offen sc1")
    A(f"buffer_store_dwordx4 {vr(O+4,4)}, v4, s[60:63], 0 offen sc1")
    A("s_mov_b64 exec, -1")
def h_strip_issue(A):
    A("s_lshr_b32 s35, s71, 2")
    A("s_cmp_lt_u32 s35, 30")
    A(f"s_cselect_b32 s12, s{PWQ}, s{PW1}")
    A(f"s_cselect_b32 s13, s{PWQ+1}, s{PW1+1}")
    A("s_cselect_b32 s33, 768, 0")
    A("s_cselect_b32 s34, 0, 30")
    A("s_add_u32 s33, s33, 3072")
    A("s_mul_i32 s14, s33, 640")
    A("s_mov_b32 s15, 0x00020000")
    A("s_cmp_lt_u32 s71, 216")
    A("s_cselect_b32 s14, s14, 0")
    A("s_sub_u32 s34, s35, s34")
    A("s_lshl_b32 s34, s34, 7")
    A("v_lshrrev_b32 v13, 3, v1")
    A("v_mul_lo_u32 v13, v13, s33")
    A("v_and_b32 v14, 7, v1")
    A("v_lshl_add_u32 v13, v14, 4, v13")
    A("v_add_u32 v13, s34, v13")
    A("s_and_b32 s34, s71, 3")
    A("s_mul_i32 s34, s34, 160")
    A("s_mul_i32 s34, s34, s33")
    A("s_lshl_b32 s33, s33, 3")
    for i in range(20):
        A(f"buffer_load_dwordx4 {vr(RW+4*i,4)}, v13, s[12:15], s34 offen" + NTF("s"))
        if i < 19: A("s_add_u32 s34, s34, s33")
def h_strip_p(A, lo, hi):
    C = 216
    for i in range(lo, hi):
        for e in range(4):
            w = RW + 4 * i + e
            if i == 0:
                A(f"v_lshlrev_b32 v{C+2*e}, 16, v{w}")
                A(f"v_and_b32 v{C+2*e+1}, 0xffff0000, v{w}")
            else:
                A(f"v_lshlrev_b32 v13, 16, v{w}")
                A(f"v_and_b32 v14, 0xffff0000, v{w}")
                A(f"v_add_f32 v{C+2*e}, v{C+2*e}, v13")
                A(f"v_add_f32 v{C+2*e+1}, v{C+2*e+1}, v14")
def h_strip_fin(A):
    C = 216; T = 224
    for mod in ("row_ror:8",):
        A("s_nop 1")
        for e in range(8):
            A(f"v_add_f32_dpp v{C+e}, v{C+e}, v{C+e} {mod} row_mask:0xf bank_mask:0xf")
    for op in ("v_permlane16_swap_b32", "v_permlane32_swap_b32"):
        for e in range(8): A(f"v_mov_b32 v{T+e}, v{C+e}")
        A("s_nop 1")
        for e in range(8): A(f"{op} v{C+e}, v{T+e}")
        A("s_nop 1")
        for e in range(8): A(f"v_add_f32 v{C+e}, v{C+e}, v{T+e}")
def h_strip_store(A):
    C = 216; T = 224
    A("v_lshrrev_b32 v13, 3, v1")
    A(f"v_mov_b32 v{T}, v{C}")
    for e in range(1, 8):
        A(f"v_cmp_eq_u32 vcc, {e}, v13")
        A("s_nop 1")
        A(f"v_cndmask_b32 v{T}, v{T}, v{C+e}, vcc")
    A(f"v_mov_b32 v{T+1}, s76")
    A("v_and_b32 v14, 7, v1")
    A("v_lshl_add_u32 v13, v14, 3, v13")
    A("s_lshr_b32 s33, s71, 2")
    A("s_lshl_b32 s33, s33, 9")
    A("s_and_b32 s34, s71, 3")
    A("s_lshl_b32 s34, s34, 15")
    A("s_add_u32 s33, s33, s34")
    A(f"s_add_u32 s33, s33, {CS_OFF - ST_OFF}")
    A("v_lshl_add_u32 v13, v13, 3, s33")
    A("s_cmp_lt_u32 s71, 216")
    A("s_cselect_b32 s33, 0, 0x40000000")
    A(f"buffer_store_dwordx2 {pr(T)}, v13, s[60:63], s33 offen sc1")

def h_pack_setup(A):
    A("s_cmp_ge_u32 s2, 96")
    A("s_cbranch_scc1 pk_n1")
    A("s_lshl_b32 s34, s2, 4"); A("s_mov_b32 s35, 4"); A("s_mov_b32 s36, 8"); A("s_movk_i32 s37, 1280")
    A(f"s_mov_b32 s16, s{PW2}"); A(f"s_mov_b32 s17, s{PW2+1}"); A(f"s_mov_b32 s18, {1536*1280}")
    A("s_lshl_b32 s84, s2, 10"); A(f"s_mov_b32 s85, {96*1024}"); A("s_mov_b32 s86, 10"); A("s_mov_b32 s32, 0")
    A("s_branch pk_go")
    A("pk_n1:")
    A("s_cmp_ge_u32 s2, 136")
    A("s_cbranch_scc1 pk_n2")
    A("s_sub_u32 s33, s2, 96")
    A("s_mul_i32 s34, s33, 20"); A("s_mov_b32 s35, 4"); A("s_mov_b32 s36, 8"); A("s_movk_i32 s37, 1280")
    A(f"s_mov_b32 s16, s{PWO}"); A(f"s_mov_b32 s17, s{PWO+1}"); A(f"s_mov_b32 s18, {640*1280}")
    A("s_lshl_b32 s84, s33, 10"); A(f"s_add_u32 s84, s84, {WOF_OFF - W2F_OFF}")
    A(f"s_mov_b32 s85, {40*1024}"); A("s_mov_b32 s86, 10"); A("s_mov_b32 s32, 0")
    A("s_cmp_lt_u32 s33, 32")
    A("s_cbranch_scc1 pk_go")
    A("s_sub_u32 s33, s33, 32")
    A("s_mul_i32 s34, s33, 80"); A("s_add_u32 s34, s34, 16"); A("s_mov_b32 s35, 40"); A("s_mov_b32 s36, 20")
    A("s_branch pk_go")
    A("pk_n2:")
    A("s_mov_b32 s34, 0"); A("s_mov_b32 s35, 0"); A("s_mov_b32 s36, 0"); A("s_mov_b32 s37, 0"); A("s_mov_b32 s32, 0")
    A(f"s_mov_b32 s16, s{PW1}"); A(f"s_mov_b32 s17, s{PW1+1}"); A("s_mov_b32 s18, 0")
    A("s_mov_b32 s84, 0x40000000"); A("s_mov_b32 s85, 0"); A("s_mov_b32 s86, 10")
    A("pk_go:")
    A("s_mov_b32 s19, 0x00020000")
    A("s_mul_i32 s38, s86, s78")
    A("s_add_u32 s32, s32, s38")
    A("s_mul_i32 s38, s32, s85")
    A("s_add_u32 s84, s84, s38")
    A("v_mul_u32_u24 v12, s35, v246")
    A("v_add_u32 v12, s34, v12")
    A("v_add_u32 v12, v12, v245")
    A("v_mul_u32_u24 v248, s36, v249")
    A("v_add_u32 v12, v12, v248")
    A("v_mul_lo_u32 v12, v12, s37")
    A("s_lshl_b32 s32, s32, 6")
    A("v_add_u32 v12, s32, v12")
    A("v_add_u32 v253, v12, v250")
    A("s_mov_b32 s88, s16"); A("s_mov_b32 s89, s17"); A("s_mov_b32 s90, s18"); A("s_mov_b32 s91, s19")
def h_pack_issue(A):
    A("s_mov_b32 s32, 0")
    A("s_mov_b32 m0, s77")
    for j in range(10):
        if j == 8:
            A("s_cmp_eq_u32 s86, 8")
            A("s_cselect_b32 s90, 0, s90")
        A("buffer_load_dwordx4 v253, s[88:91], s32 offen lds" + NTF("p"))
        A("s_add_u32 m0, m0, 1024")
        A("s_add_u32 s32, s32, 64")
def h_pack_finish(A):
    lab = A.label("pf")
    for j in range(10):
        A(f"ds_read_b64_tr_b16 {pr(64+4*j)}, v251 offset:{j*1024}")
        A(f"ds_read_b64_tr_b16 {pr(66+4*j)}, v251 offset:{j*1024+256}")
    A("s_waitcnt lgkmcnt(0)")
    for j in range(10):
        if j == 8:
            A("s_cmp_eq_u32 s86, 8")
            A(f"s_cbranch_scc1 {lab}")
        A(f"buffer_store_dwordx4 {vr(64+4*j,4)}, v247, s[64:67], s84 offen {STP}")
        A("s_add_u32 s84, s84, s85")
    A(f"{lab}:")

def h_pack_lanes(A):
    A("v_bfe_u32 v245, v1, 2, 2")
    A("v_lshrrev_b32 v246, 5, v1")
    A("v_lshlrev_b32 v247, 4, v1")
    A("v_bfe_u32 v249, v1, 4, 1")
    A("v_and_b32 v250, 3, v1")
    A("v_lshlrev_b32 v250, 4, v250")
    A("s_mov_b32 s78, s25")
    A("s_mul_i32 s77, s78, 10240")
    A("s_add_u32 s77, s77, 49152")
    A("v_lshl_add_u32 v251, v246, 3, v245")
    A("v_lshlrev_b32 v251, 6, v251")
    A("v_lshl_add_u32 v251, v249, 5, v251")
    A("v_and_b32 v252, 3, v1")
    A("v_lshl_add_u32 v251, v252, 3, v251")
    A("v_add_u32 v251, s77, v251")

def helper(A):
    A("k1_helper:")
    A("s_waitcnt lgkmcnt(0)")
    srd(A, 8, PX, XSZ)
    srd(A, 60, PWS, 0x30000, ST_OFF)
    srd(A, 20, PDBG, 256)
    srd(A, 64, PWS, 0x500000, W2F_OFF)
    if not os.environ.get("NOXLOC"):
        A("s_and_b32 s32, s2, 7")
        A("s_lshr_b32 s33, s2, 3")
        A("s_lshl_b32 s70, s32, 5")
        A("s_add_u32 s70, s70, s33")
        A("s_and_b32 s34, s32, 3")
        A("s_lshr_b32 s35, s32, 2")
        A("s_mul_i32 s35, s35, 27")
        A("s_add_u32 s35, s35, s33")
        A("s_mul_i32 s36, s34, 30")
        A("s_add_u32 s36, s36, s35")
        A("s_mul_i32 s37, s34, 24")
        A("s_add_u32 s37, s37, s35")
        A("s_add_u32 s37, s37, 90")
        A("s_cmp_lt_u32 s35, 30")
        A("s_cselect_b32 s71, s36, s37")
        A("s_cmp_lt_u32 s33, 27")
        A("s_cselect_b32 s71, s71, 255")
    else:
        A("s_mov_b32 s70, s2")
        A("s_mov_b32 s71, s2")
    A("v_mov_b32 v240, 0")
    A(f"v_mov_b32 v241, {NONL}")
    A("s_cmp_eq_u32 s25, 5")
    A("s_cbranch_scc1 k1_hB")
    h_rows_issue(A)
    A("s_cmp_lg_u32 s2, 0")
    A("s_cbranch_scc1 k1_hA1")
    A("s_memrealtime s[32:33]")
    A("s_waitcnt lgkmcnt(0)")
    A("s_or_b32 s32, s32, 1")
    A("v_mov_b32 v13, s32")
    A("s_mov_b64 exec, 1")
    A("buffer_store_dword v13, v240, s[20:23], 0 offen sc1")
    srd(A, 16, PWS, 64, SYNC_OFF)
    A("buffer_store_dword v13, v240, s[16:19], 0 offen")
    A("s_mov_b64 exec, -1")
    A("k1_hA1:")
    srd(A, 16, PB1, 1536 * 2)
    A("s_cmp_eq_u32 s28, 2")
    A("s_cselect_b32 s18, s18, 0")
    A("v_add_u32 v15, s31, v1")
    A("v_lshlrev_b32 v15, 1, v15")
    for i in range(3):
        A(f"buffer_load_ushort v{232+i}, v15, s[16:19], 0 offen offset:{128*i}")
    A("s_barrier")
    A("s_waitcnt vmcnt(3)")
    h_rows_p1a(A)
    A("s_barrier")
    A("buffer_load_dword v242, v240, s[20:23], 0 offen")
    h_rows_p1b(A)
    A("s_barrier")
    h_rows_p2a(A)
    A("s_barrier")
    h_rows_p2b(A)
    A("s_mov_b32 s34, 0")
    A("k1_hn:")
    A("s_waitcnt vmcnt(0)")
    A("v_readfirstlane_b32 s76, v242")
    A("s_nop 3")
    A("s_cmp_lg_u32 s76, 0")
    A("s_cbranch_scc1 k1_hn_ok")
    A("buffer_load_dword v242, v240, s[20:23], 0 offen sc1")
    A("s_add_u32 s34, s34, 1")
    A("s_sleep 1")
    A("s_cmp_lt_u32 s34, 400")
    A("s_cbranch_scc1 k1_hn")
    A("k1_hn_ok:")
    A("v_mov_b32 v242, s76")
    A("ds_write_b32 v241, v242")
    h_rows_store(A)
    A("s_waitcnt lgkmcnt(0)")
    A("s_barrier")
    A("s_cmp_eq_u32 s28, 3")
    A("s_cbranch_scc1 k1_done")
    A("s_barrier")
    A("s_barrier")
    A("s_barrier")
    A("v_add_u32 v243, s30, v1")
    A("v_lshlrev_b32 v243, 4, v243")
    A("s_cmp_eq_u32 s28, 2")
    A("s_cselect_b32 s32, 0x8000, 0")
    A("v_add_u32 v243, s32, v243")
    A("v_add_u32 v244, s29, v1")
    A("v_lshlrev_b32 v244, 3, v244")
    A(f"v_add_u32 v244, {CS_OFF - ST_OFF}, v244")
    A("s_mov_b32 s68, 0"); A("s_mov_b32 s69, 0x8000"); A("s_mov_b32 s74, 0x10000"); A("s_mov_b32 s75, 0x18000")
    def gl():
        for i in range(4):
            A(f"buffer_load_dwordx4 {vr(16+4*i,4)}, v243, s[60:63], 0 offen offset:{1024*i} sc1")
        for q in range(4):
            for i in range(3):
                A(f"buffer_load_dwordx2 {pr(32+6*q+2*i)}, v244, s[60:63], s{68+q if q < 2 else 72+q} offen offset:{512*i} sc1")
    gl()
    A("s_barrier")
    A("s_barrier")
    A("s_mov_b32 s34, 0")
    A("s_mov_b32 s38, 1")
    A("k1_hpoll:")
    A("s_waitcnt vmcnt(0)")
    A("v_xor_b32 v60, s76, v18")
    A("v_xor_b32 v61, s76, v22")
    A("v_or_b32 v60, v60, v61")
    for q in range(4):
        for i in range(2):
            A(f"v_xor_b32 v61, s76, v{33+6*q+2*i}")
            A("v_or_b32 v60, v60, v61")
    A("v_xor_b32 v62, s76, v26")
    A("v_xor_b32 v61, s76, v30")
    A("v_or_b32 v62, v62, v61")
    A("v_xor_b32 v63, s76, v37")
    for q in range(1, 4):
        A(f"v_xor_b32 v61, s76, v{37+6*q}")
        A("v_or_b32 v63, v63, v61")
    A("v_cmp_ne_u32 s[40:41], 0, v60")
    A("v_cmp_ne_u32 s[42:43], 0, v62")
    A("v_cmp_ne_u32 s[46:47], 0, v63")
    A("s_nop 3")
    A("s_cmp_eq_u32 s28, 2")
    A("s_cselect_b64 s[42:43], s[46:47], s[42:43]")
    A("s_or_b64 s[40:41], s[40:41], s[42:43]")
    A("s_cselect_b32 s32, 1, 0")
    A("s_cmp_eq_u32 s76, 0")
    A("s_cselect_b32 s32, 1, s32")
    A(f"s_cmp_eq_u32 s32, {0 if SLOW != '2' else 5}")
    A("s_cbranch_scc1 k1_hok")
    A("s_cmp_eq_u32 s38, 0")
    A("s_cbranch_scc0 k1_hp2")
    A("s_mov_b32 s38, 1")
    A("s_barrier")
    A("k1_hp2:")
    A("s_sleep 2")
    gl()
    A("s_add_u32 s34, s34, 1")
    A("s_cmp_eq_u32 s76, 0")
    A("s_cbranch_scc1 k1_hself")
    A(f"s_cmp_lt_u32 s34, {TIMEOUT}")
    A("s_cbranch_scc1 k1_hpoll")
    A("k1_hself:")
    A("s_lshl_b32 s32, s2, 18")
    A(f"s_add_u32 s32, s32, {PRIV_OFF}")
    A(f"s_add_u32 s60, s{PWS}, s32")
    A(f"s_addc_u32 s61, s{PWS+1}, 0")
    A("s_lshr_b32 s70, s30, 3")
    A("s_lshr_b32 s39, s27, 3")
    A("s_add_u32 s39, s39, s70")
    A("k1_hs1:")
    h_rows_issue(A)
    A("s_waitcnt vmcnt(0)")
    h_rows_p1(A); h_rows_p2(A); h_rows_store(A)
    A("s_add_u32 s70, s70, 1")
    A("s_cmp_lt_u32 s70, s39")
    A("s_cbranch_scc1 k1_hs1")
    A("s_lshr_b32 s71, s29, 4")
    A("s_lshr_b32 s39, s26, 4")
    A("s_add_u32 s39, s39, s71")
    A("k1_hs2:")
    h_strip_issue(A)
    A("s_waitcnt vmcnt(0)")
    h_strip_p(A, 0, 20); h_strip_fin(A); h_strip_store(A)
    A("s_add_u32 s71, s71, 1")
    A("s_cmp_lt_u32 s71, s39")
    A("s_cbranch_scc1 k1_hs2")
    A("s_waitcnt vmcnt(0)")
    gl()
    A("s_waitcnt vmcnt(0)")
    A("k1_hok:")
    A("v_lshlrev_b32 v12, 3, v1")
    A(f"v_add_u32 v12, {EP}, v12")
    A("v_lshlrev_b32 v13, 2, v1")
    A(f"v_add_u32 v13, {EP}, v13")
    for i in range(4):
        A(f"v_mul_f32 v{16+4*i}, s45, v{16+4*i}")
        A(f"v_mul_f32 v{17+4*i}, s45, v{17+4*i}")
        A(f"ds_write_b64 v12, {pr(16+4*i)} offset:{512*i}")
        A(f"ds_write_b32 v13, v{16+4*i} offset:{2048+256*i}")
        A(f"ds_write_b32 v13, v{17+4*i} offset:{3072+256*i}")
    for i in range(3):
        A(f"v_lshlrev_b32 v{232+i}, 16, v{232+i}")
        for q in range(1, 4):
            A(f"v_add_f32 v{32+2*i}, v{32+2*i}, v{32+6*q+2*i}")
        A(f"ds_write_b32 v13, v{32+2*i} offset:{CSL-EP+256*i}")
        A(f"ds_write_b32 v13, v{232+i} offset:{BIASL-EP+256*i}")
    A("s_waitcnt lgkmcnt(0)")
    A("s_cmp_eq_u32 s38, 0")
    A("s_cbranch_scc0 k1_hw")
    A("s_barrier")
    A("k1_hw:")
    A("s_barrier")
    A("s_endpgm")
    A("k1_hB:")
    PB = lambda i: 16 + 8 * i
    if os.environ.get("LATEB"):
        A("s_barrier")
        h_strip_issue(A)
        A("s_barrier")
        A("s_barrier")
        A("s_waitcnt vmcnt(5)")
        h_strip_p(A, 0, 10)
    else:
        h_strip_issue(A)
        A("s_barrier")
        A("s_waitcnt vmcnt(15)")
        h_strip_p(A, 0, 5)
        A("s_barrier")
        A("s_waitcnt vmcnt(10)")
        h_strip_p(A, 5, 10)
        A("s_barrier")
    A("s_waitcnt vmcnt(0)")
    h_strip_p(A, 10, 15)
    A("s_barrier")
    h_strip_p(A, 15, 20)
    h_strip_fin(A)
    A("s_barrier")
    A("ds_read_b32 v242, v241")
    A("s_waitcnt lgkmcnt(0)")
    A("v_readfirstlane_b32 s76, v242")
    A("s_nop 1")
    h_strip_store(A)
    srd(A, 16, PWS, 32 * 64 * VREC, V_OFF)
    A("s_cmp_lt_u32 s2, 128")
    A("s_cselect_b32 s18, s18, 0")
    A("s_lshl_b32 s32, s2, 6")
    A("v_add_u32 v12, s32, v1")
    A("v_lshrrev_b32 v13, 2, v12")
    A("v_and_b32 v12, 3, v12")
    A(f"v_mul_u32_u24 v13, {VREC}, v13")
    A(f"v_mul_u32_u24 v12, {VSB}, v12")
    A("v_add_u32 v12, v12, v13")
    for i in range(4): A(f"v_mov_b32 v{124+i}, 0x3f803f80")
    A("buffer_store_dwordx4 v[124:127], v12, s[16:19], 0 offen offset:320")
    A("s_cmp_eq_u32 s28, 3")
    A("s_cbranch_scc1 k1_done")
    A("s_barrier")
    A("s_barrier")
    A("s_endpgm")

def loader(A, tag, TM, TN, ldw, isH):
    BM, BN = 2 * TM * 32, 2 * TN * 32
    AB = BM * 128; pitch = BN * 2; BB = 64 * pitch; SS = AB + BB
    nA = BM // 16; nB = BB // 2048; ND = nA + nB
    CPR = BN // 8
    A(f"{tag}:")
    for q in range(8, nA):
        A(f"v_add_u32 v{DV+q}, {q*8*1280 - (q&3)*1024}, v{5 + (q&1)}")
    A(f"s_mul_i32 s27, s25, {nB*1024}")
    A(f"s_add_u32 s27, s27, {AB}")
    def dmaA(q0=0):
        for q in range(q0, nA):
            if q % 4 == 0:
                A("s_add_u32 m0, s23, s26" if q == 0 else "s_add_u32 m0, m0, 4096")
                A("s_nop 0")
            A(f"buffer_load_dwordx4 v{DV+q}, s[8:11], s21 offen offset:{(q&3)*1024} lds" + NTF("a"))
    def dmaB():
        for q in range(nB):
            if q % 4 == 0:
                A("s_add_u32 m0, s23, s27" if q == 0 else "s_add_u32 m0, m0, 4096")
                A("s_nop 0")
            A(f"buffer_load_dwordx4 v{DV+nA+q}, s[12:15], s22 offen offset:{(q&3)*1024} lds" + NTF("b"))
    def adv():
        A("s_add_u32 s21, s21, 128")
        A(f"s_add_u32 s22, s22, {64*ldw}")
        if KROT:
            A("s_cmp_eq_u32 s21, 1280")
            A("s_cselect_b32 s21, 0, s21")
            A("s_cselect_b32 s22, 0, s22")
        A(f"s_add_u32 s23, s23, {SS}")
        A(f"s_cmp_eq_u32 s23, {3*SS}")
        A("s_cselect_b32 s23, 0, s23")
    dmaA(8)
    A(f"s_mul_i32 s41, s25, {nB*64}")
    A(f"s_lshl_b32 s42, s31, 1")
    for q in range(nB):
        A(f"v_add_u32 v7, s41, v1")
        if q: A(f"v_add_u32 v7, {q*64}, v7")
        if CPR == 16:
            A("v_lshrrev_b32 v8, 4, v7")
            A("v_and_b32 v9, 15, v7")
            A("v_and_b32 v10, 3, v8")
        else:
            A("v_mul_u32_u24 v8, 2731, v7")
            A("v_lshrrev_b32 v8, 16, v8")
            A("v_mul_u32_u24 v9, 24, v8")
            A("v_sub_u32 v9, v7, v9")
            A("v_bfe_u32 v10, v8, 1, 1")
        A("v_lshlrev_b32 v10, 2, v10")
        A("v_xor_b32 v9, v9, v10")
        A(f"v_mul_u32_u24 v8, {ldw}, v8")
        A("v_lshl_add_u32 v8, v9, 4, v8")
        A(f"v_add_u32 v8, s42, v8")
        if q & 3:
            A(f"v_subrev_u32 v{DV+nA+q}, {(q&3)*1024}, v8")
        else:
            A(f"v_mov_b32 v{DV+nA+q}, v8")
    srd(A, 12, PW1 if isH else PWQ, 640 * ldw)
    if KROT:
        A(f"s_mul_i32 s22, s21, {64*ldw//128}")
    dmaB(); adv()
    if not os.environ.get("LDOLD"):
        dmaB()
        A(f"s_waitcnt vmcnt({nB})")
        A("s_barrier")
        dmaA(); adv()
        A("s_mov_b32 s20, 1")
    A(f"{tag}_loop:")
    dmaA(); dmaB(); adv()
    A(f"s_waitcnt vmcnt({ND})")
    A("s_barrier")
    A("s_add_u32 s20, s20, 1")
    A(f"s_cmp_lt_u32 s20, {NST-1}")
    A(f"s_cbranch_scc1 {tag}_loop")
    A("s_branch k1_ld_pack")

def loader_tail(A):
    A("k1_ld_pack:")
    h_pack_lanes(A)
    h_pack_setup(A)
    srd(A, 64, PWS, 0x800000, W2F_OFF)
    h_pack_issue(A)
    A("s_cmp_eq_u32 s28, 3")
    A("s_cbranch_scc1 k1_ld_fin")
    A("s_waitcnt vmcnt(10)")
    A("s_barrier")
    A("s_barrier")
    A("k1_ld_fin:")
    A("s_waitcnt vmcnt(0)")
    h_pack_finish(A)
    A("s_endpgm")

def gemm_core(A, tag, TM, TN, transposed, ldw, isH):
    BM, BN = 2 * TM * 32, 2 * TN * 32
    AB = BM * 128; pitch = BN * 2; BB = 64 * pitch; SS = AB + BB
    CPR = BN // 8
    A("s_and_b32 s43, s25, 1")
    A("s_lshr_b32 s44, s25, 1")
    A("v_and_b32 v2, 31, v1")
    A("v_lshrrev_b32 v3, 5, v1")
    A("v_bfe_u32 v4, v2, 1, 3")
    A(f"s_mul_i32 s45, s43, {TM*32*128}")
    A("v_lshlrev_b32 v5, 7, v2")
    A("v_add_u32 v5, s45, v5")
    for kk in range(4):
        A(f"v_add_u32 v6, {2*kk}, v3")
        A("v_xor_b32 v6, v6, v4")
        A(f"v_lshl_add_u32 v{XAB+kk}, v6, 4, v5")
    A("v_bfe_u32 v6, v1, 2, 2")
    A("v_lshl_add_u32 v7, v3, 3, v6")
    A(f"v_mul_u32_u24 v7, {pitch}, v7")
    A("v_bfe_u32 v8, v1, 4, 1")
    A("v_lshl_add_u32 v7, v8, 5, v7")
    A("v_and_b32 v8, 3, v1")
    A("v_lshl_add_u32 v7, v8, 3, v7")
    A(f"v_add_u32 v7, {AB}, v7")
    if CPR != 16:
        A("v_lshrrev_b32 v6, 1, v6")
    A(f"s_mul_i32 s46, s44, {TN}")
    for u in range(TN):
        A(f"s_add_u32 s47, s46, {u}")
        A("v_xor_b32 v8, s47, v6")
        A(f"v_lshl_add_u32 v{WAB+u}, v8, 6, v7")
    for i in range(TM * TN * 16):
        A(f"v_mov_b32 v{ACC+i}, 0")
    def reads(kk, buf):
        L = []
        for t in range(TM):
            L.append(f"ds_read_b128 {vr(XF + (buf*4+t)*4, 4)}, v{XAC+kk} offset:{t*4096}")
        for u in range(TN):
            for i in range(2):
                L.append(f"ds_read_b64_tr_b16 {vr(WF + (buf*3+u)*4 + 2*i, 2)}, v{WAC+u} offset:{(16*kk+4*i)*pitch}")
        return L
    def mfmas(buf):
        L = []
        for t in range(TM):
            for u in range(TN):
                a = ACC + (t * TN + u) * 16
                x = vr(XF + (buf*4+t)*4, 4); w = vr(WF + (buf*3+u)*4, 4)
                o = (w, x) if transposed else (x, w)
                L.append(f"v_mfma_f32_32x32x16_bf16 {vr(a,16)}, {o[0]}, {o[1]}, {vr(a,16)}")
        return L
    def setcur():
        L = []
        for kk in range(4): L.append(f"v_add_u32 v{XAC+kk}, s24, v{XAB+kk}")
        for u in range(TN): L.append(f"v_add_u32 v{WAC+u}, s24, v{WAB+u}")
        return L
    A("s_mov_b32 s24, 0"); A("s_mov_b32 s20, 0")
    for l in setcur(): A(l)
    A("s_setprio 2")
    stamp(A, 1)
    A("s_waitcnt lgkmcnt(0)")
    A("s_barrier")
    stamp(A, 2)
    for l in reads(0, 0): A(l)
    A(f"{tag}_loop:")
    NM = TM * TN
    for kk in range(4):
        buf = kk & 1
        ms = mfmas(buf)
        slots = [[] for _ in ms]
        if kk < 3:
            A("s_waitcnt lgkmcnt(0)")
            rd = reads(kk + 1, buf ^ 1)
        else:
            if os.environ.get("ITST"):
                A("s_memtime s[90:91]")
            A("s_waitcnt lgkmcnt(0)")
            if os.environ.get("ITST"):
                A("s_memtime s[92:93]")
            A("s_barrier")
            if os.environ.get("ITST"):
                A("s_memtime s[94:95]")
                A("s_waitcnt lgkmcnt(0)")
                A("s_mul_i32 m0, s20, 3")
                A("s_nop 1")
                A("v_writelane_b32 v47, s90, m0")
                A("s_add_u32 m0, m0, 1")
                A("s_nop 1")
                A("v_writelane_b32 v47, s92, m0")
                A("s_add_u32 m0, m0, 1")
                A("s_nop 1")
                A("v_writelane_b32 v47, s94, m0")
            rd = reads(0, buf ^ 1)
        for i, l in enumerate(rd):
            slots[i // 2].append(l)
        if kk == 1:
            slots[NM - 1] += [f"s_add_u32 s24, s24, {SS}", f"s_cmp_eq_u32 s24, {3*SS}", "s_cselect_b32 s24, 0, s24"]
        if kk == 2:
            sc = setcur()
            slots[NM - 2] += sc[:4]; slots[NM - 1] += sc[4:]
        if kk == 3:
            slots[NM - 1] += ["s_add_u32 s20, s20, 1", f"s_cmp_lt_u32 s20, {NST}"]
        for m, sl in zip(ms, slots):
            A(m)
            for l in sl: A(l)
    A(f"s_cbranch_scc1 {tag}_loop")
    A("s_waitcnt lgkmcnt(0)")
    stamp(A, 3)
    return SS

def fin(A):
    if os.environ.get("ITST"):
        srd(A, 72, PWS, 1 << 20, 0x4800000)
        A("s_lshl_b32 s76, s2, 2")
        A("s_add_u32 s76, s76, s25")
        A("s_lshl_b32 s76, s76, 8")
        A("v_and_b32 v1, 63, v0")
        A("v_lshlrev_b32 v1, 2, v1")
        A("v_mov_b32 v2, s80")
        A("v_sub_u32 v47, v47, v2")
        A("buffer_store_dword v47, v1, s[72:75], s76 offen")
    stamp(A, 4); stamp_flush(A, 5, PWS, 0, 25); tl_end(A, 0)
    A("s_endpgm")

def gen_k1(A):
    name = "k1_kernel"
    kernel_begin(A, name)
    A("s_cmp_ge_u32 s2, 256")
    A("s_cbranch_scc1 k1_done")
    stamp(A, 0); tl_start(A, 0)
    A("s_load_dwordx4 s[4:7], s[0:1], 0")
    A("s_load_dwordx4 s[48:51], s[0:1], 32")
    A("s_load_dwordx2 s[52:53], s[0:1], 16")
    A("s_load_dwordx2 s[54:55], s[0:1], 48")
    A("s_load_dwordx4 s[56:59], s[0:1], 72")
    A("v_lshrrev_b32 v1, 6, v0")
    A("s_and_b32 s32, s2, 7")
    A("v_readfirstlane_b32 s25, v1")
    A("v_and_b32 v1, 63, v0")
    A("s_lshr_b32 s33, s2, 3")
    A("s_lshr_b32 s34, s32, 2")
    A("s_and_b32 s35, s32, 3")
    A("s_mov_b32 s45, 1.0")
    A("s_cmp_ge_u32 s33, 15")
    A("s_cbranch_scc1 k1_dh")
    A("s_mul_i32 s36, s35, 15")
    A("s_add_u32 s36, s36, s33")
    A("s_lshr_b32 s75, s36, 2")
    A("s_and_b32 s38, s36, 3")
    A("s_lshl_b32 s39, s34, 2")
    A("s_add_u32 s38, s38, s39")
    A("s_lshl_b32 s30, s38, 8")
    A("s_lshl_b32 s31, s75, 7")
    A("s_mov_b32 s29, s31")
    A("s_movk_i32 s27, 256"); A("s_movk_i32 s26, 128")
    A("s_cmp_lt_u32 s75, 5")
    A(f"s_cselect_b32 s45, {f32hex(DH**-0.5 * math.log2(math.e))}, s45")
    A("s_cmp_ge_u32 s75, 10")
    A("s_cselect_b32 s28, 1, 0")
    A("s_branch k1_dd")
    A("k1_dh:")
    A("s_sub_u32 s36, s33, 15")
    A("s_lshr_b32 s37, s36, 3")
    A("s_lshl_b32 s38, s35, 1")
    A("s_add_u32 s37, s37, s38")
    A("s_and_b32 s38, s36, 7")
    A("s_lshl_b32 s39, s34, 3")
    A("s_add_u32 s38, s38, s39")
    A("s_lshl_b32 s30, s38, 7")
    A("s_mul_i32 s31, s37, 192")
    A("s_add_u32 s29, s31, 1920")
    A("s_movk_i32 s27, 128"); A("s_movk_i32 s26, 192")
    A("s_cmp_ge_u32 s33, 31")
    A("s_cselect_b32 s28, 3, 2")
    A("k1_dd:")
    A("s_cmp_lt_u32 s25, 6")
    A("s_cbranch_scc1 k1_other")
    A("s_sub_u32 s25, s25, 6")
    A("s_cmp_eq_u32 s28, 3")
    A("s_cbranch_scc0 k1_ld0")
    A("s_waitcnt lgkmcnt(0)")
    A("s_branch k1_ld_pack")
    A("k1_ld0:")
    A("v_lshrrev_b32 v2, 3, v1")
    A("v_and_b32 v3, 7, v1")
    A("v_lshrrev_b32 v4, 4, v1")
    A("s_lshr_b32 s40, s27, 1")
    A("s_mul_i32 s40, s40, s25")
    A("s_lshl_b32 s26, s40, 7")
    A("s_add_u32 s40, s40, s30")
    A("v_add_u32 v2, s40, v2")
    A("v_mul_u32_u24 v2, 1280, v2")
    A("v_xor_b32 v5, v3, v4")
    A("v_xor_b32 v6, 4, v5")
    A("v_lshl_add_u32 v5, v5, 4, v2")
    A("v_lshl_add_u32 v6, v6, 4, v2")
    for q in range(8):
        A(f"v_add_u32 v{DV+q}, {q*8*1280 - (q&3)*1024}, v{5 + (q&1)}")
    A("s_mov_b32 s21, 0"); A("s_mov_b32 s22, 0"); A("s_mov_b32 s23, 0")
    if KROT:
        A("s_and_b32 s21, s2, 7")
        if KROT == "2":
            A("s_and_b32 s21, s21, 3"); A("s_mul_i32 s21, s21, 5"); A("s_lshr_b32 s21, s21, 1")
        A("s_lshl_b32 s21, s21, 7")
    A("s_mov_b32 s20, 0")
    A("s_mov_b32 m0, s26")
    A("s_waitcnt lgkmcnt(0)")
    srd(A, 8, PX, XSZ)
    for q in range(8):
        if q == 4:
            A("s_add_u32 m0, m0, 4096"); A("s_nop 0")
        A(f"buffer_load_dwordx4 v{DV+q}, s[8:11], s21 offen offset:{(q&3)*1024} lds" + NTF("a"))
    A("s_cmp_eq_u32 s28, 2")
    A("s_cbranch_scc1 k1_ldh")
    loader(A, "k1_ldq", 4, 2, 3840, False)
    loader(A, "k1_ldh", 2, 3, 3072, True)
    loader_tail(A)
    A("k1_other:")
    A("s_cmp_ge_u32 s25, 4")
    A("s_cbranch_scc1 k1_helper")
    A("s_cmp_eq_u32 s28, 1")
    A("s_cbranch_scc1 k1_v")
    A("s_cmp_eq_u32 s28, 2")
    A("s_cbranch_scc1 k1_h")
    A("s_cmp_eq_u32 s28, 3")
    A("s_cbranch_scc1 k1_done")
    SS1 = gemm_core(A, "k1qk", 4, 2, True, 3840, False)
    A("v_and_b32 v2, 31, v1")
    A("v_lshrrev_b32 v3, 5, v1")
    A("s_lshl_b32 s32, s43, 10")
    A(f"s_add_u32 s32, s32, {EP}")
    A("v_lshl_add_u32 v12, v2, 3, s32")
    for t in range(4):
        A(f"ds_read_b64 {pr(4+2*t)}, v12 offset:{t*256}")
    A("s_lshl_b32 s32, s44, 8")
    A(f"s_add_u32 s32, s32, {CSL}")
    A("v_lshl_add_u32 v12, v3, 4, s32")
    for u in range(2):
        for j in range(4):
            A(f"ds_read_b128 {vr(48+16*u+4*j,4)}, v12 offset:{128*u+32*j}")
    A("s_cmp_ge_u32 s75, 5")
    A(f"s_cselect_b32 s36, {K_OFF - Q_OFF - 80*32768}, 0")
    srd(A, 16, PWS, K_OFF - Q_OFF + 80 * 32768, Q_OFF)
    A("s_lshl_b32 s38, s75, 4")
    A("s_lshl_b32 s32, s44, 3")
    A("s_add_u32 s38, s38, s32")
    A("s_lshl_b32 s38, s38, 15")
    A("s_add_u32 s38, s38, s36")
    A("s_lshl_b32 s32, s43, 7")
    A("s_add_u32 s32, s32, s30")
    A("s_lshl_b32 s32, s32, 4")
    A("s_add_u32 s38, s38, s32")
    for i in range(1, 4):
        A(f"s_add_u32 s{38+i}, s{37+i}, 65536")
    A("v_lshlrev_b32 v3, 15, v3")
    A("v_lshl_add_u32 v16, v2, 4, v3")
    A("s_waitcnt lgkmcnt(0)")
    for t in range(4):
        for u in range(2):
            a = ACC + (t * 2 + u) * 16
            T = 80
            for i in range(0, 16, 2):
                A(f"v_pk_mul_f32 {pr(T+i)}, {pr(48+16*u+i)}, {pr(4+2*t)} op_sel:[0,1] op_sel_hi:[1,1]")
            for i in range(0, 16, 2):
                A(f"v_pk_fma_f32 {pr(a+i)}, {pr(a+i)}, {pr(4+2*t)}, {pr(T+i)} op_sel_hi:[1,0,1] neg_lo:[0,0,1] neg_hi:[0,0,1]")
            p = 18 + ((t * 2 + u) % 3) * 8
            for i in range(8):
                A(f"v_cvt_pk_bf16_f32 v{p+i}, v{a+2*i}, v{a+2*i+1}")
            A("s_nop 0")
            for j in range(2):
                A(f"v_permlane32_swap_b32 v{p+4*j}, v{p+4*j+2}")
                A(f"v_permlane32_swap_b32 v{p+4*j+1}, v{p+4*j+3}")
            for j in range(2):
                A(f"buffer_store_dwordx4 v[{p+4*j}:{p+4*j+3}], v16, s[16:19], s{38+u*2+j} offen offset:{t*512} {STF}")
    fin(A)
    A("k1_v:")
    gemm_core(A, "k1v", 4, 2, False, 3840, False)
    A("v_and_b32 v2, 31, v1")
    A("v_lshrrev_b32 v3, 5, v1")
    A("s_lshl_b32 s32, s43, 9")
    A(f"s_add_u32 s32, s32, {EP+2048}")
    A("v_lshl_add_u32 v12, v3, 4, s32")
    A("s_lshl_b32 s32, s44, 8")
    A(f"s_add_u32 s32, s32, {CSL}")
    A("v_lshl_add_u32 v13, v2, 2, s32")
    for u in range(2):
        A(f"ds_read_b32 v{4+2*u}, v13 offset:{128*u}")
    def vrd(t):
        b = 48 + (t & 1) * 32
        for j in range(4):
            A(f"ds_read_b128 {vr(b+4*j,4)}, v12 offset:{t*128+32*j}")
            A(f"ds_read_b128 {vr(b+16+4*j,4)}, v12 offset:{1024+t*128+32*j}")
    vrd(0)
    srd(A, 16, PWS, 32 * 64 * VREC, V_OFF)
    A("s_lshr_b32 s38, s30, 5")
    A("s_lshl_b32 s32, s43, 2")
    A("s_add_u32 s38, s38, s32")
    A(f"s_mul_i32 s38, s38, {VREC}")
    for t in range(1, 4):
        A(f"s_add_u32 s{38+t}, s{37+t}, {VREC}")
    A("s_sub_u32 s33, s31, 1280")
    A("s_lshl_b32 s32, s44, 6")
    A("s_add_u32 s33, s33, s32")
    A(f"v_mul_u32_u24 v3, {VSB}, v3")
    A(f"s_mov_b32 s34, {64*VREC}")
    for u in range(2):
        A("v_add_u32 v8, s33, v2")
        if u: A("v_add_u32 v8, 32, v8")
        A("v_mul_u32_u24 v9, 3277, v8")
        A("v_lshrrev_b32 v9, 16, v9")
        A("v_mul_u32_u24 v10, 20, v9")
        A("v_sub_u32 v10, v8, v10")
        A("v_lshl_add_u32 v10, v10, 4, v3")
        A("v_mul_lo_u32 v9, v9, s34")
        A(f"v_add_u32 v{16+u}, v9, v10")
    for t in range(4):
        A("s_waitcnt lgkmcnt(0)")
        if t < 3: vrd(t + 1)
        b = 48 + (t & 1) * 32
        for u in range(2):
            a = ACC + (t * 2 + u) * 16
            T = 112
            for i in range(0, 16, 2):
                A(f"v_pk_mul_f32 {pr(T+i)}, {pr(b+16+i)}, {pr(4+2*u)} op_sel_hi:[1,0]")
            for i in range(0, 16, 2):
                A(f"v_pk_fma_f32 {pr(a+i)}, {pr(a+i)}, {pr(b+i)}, {pr(T+i)} neg_lo:[0,0,1] neg_hi:[0,0,1]")
            p = 18 + ((t * 2 + u) % 3) * 8
            for i in range(8):
                A(f"v_cvt_pk_bf16_f32 v{p+i}, v{a+2*i}, v{a+2*i+1}")
            A(f"buffer_store_dwordx4 v[{p}:{p+3}], v{16+u}, s[16:19], s{38+t} offen {STF}")
            A(f"buffer_store_dwordx4 v[{p+4}:{p+7}], v{16+u}, s[16:19], s{38+t} offen offset:{2*VSB} {STF}")
    fin(A)
    A("k1_h:")
    SS2 = gemm_core(A, "k1h", 2, 3, True, 3072, True)
    A("v_and_b32 v2, 31, v1")
    A("v_lshrrev_b32 v3, 5, v1")
    A("s_lshl_b32 s32, s43, 9")
    A(f"s_add_u32 s32, s32, {EP}")
    A("v_lshl_add_u32 v12, v2, 3, s32")
    for t in range(2):
        A(f"ds_read_b64 {pr(8+2*t)}, v12 offset:{t*256}")
    A("s_mul_i32 s32, s44, 384")
    A(f"s_add_u32 s32, s32, {CSL}")
    A("v_lshl_add_u32 v12, v3, 4, s32")
    def hrd(u):
        b = 48 + (u & 1) * 32
        for j in range(4):
            A(f"ds_read_b128 {vr(b+4*j,4)}, v12 offset:{128*u+32*j}")
            A(f"ds_read_b128 {vr(b+16+4*j,4)}, v12 offset:{768+128*u+32*j}")
    hrd(0)
    srd(A, 16, PWS, 64 * 96 * 1024, HB_OFF)
    A("s_lshr_b32 s33, s30, 5")
    A("s_lshl_b32 s32, s43, 1")
    A("s_add_u32 s33, s33, s32")
    A("s_mul_i32 s33, s33, 96")
    A("s_lshr_b32 s32, s31, 4")
    A("s_add_u32 s33, s33, s32")
    A("s_mul_i32 s32, s44, 6")
    A("s_add_u32 s33, s33, s32")
    A("s_lshl_b32 s36, s33, 10")
    A(f"s_add_u32 s37, s36, {96*1024}")
    A("v_lshlrev_b32 v16, 4, v1")
    A("v_add_u32 v17, 4096, v16")
    c0 = -2.0 * math.sqrt(2.0 / math.pi) * math.log2(math.e)
    c1 = c0 * 0.044715
    A(f"v_mov_b32 v4, {f32hex(c0)}"); A(f"v_mov_b32 v5, {f32hex(c1)}")
    A("v_mov_b32 v6, 1.0")
    T = 112
    for u in range(3):
        A("s_waitcnt lgkmcnt(0)")
        if u < 2: hrd(u + 1)
        b = 48 + (u & 1) * 32
        for t in range(2):
            a = ACC + (t * 3 + u) * 16
            p = 18 + ((u * 2 + t) % 3) * 8
            ab = pr(8 + 2 * t)
            for i in range(0, 16, 2): A(f"v_pk_fma_f32 {pr(T+i)}, {pr(b+i)}, {ab}, {pr(b+16+i)} op_sel:[0,1,0] op_sel_hi:[1,1,1] neg_lo:[1,0,0] neg_hi:[1,0,0]")
            for i in range(0, 16, 2): A(f"v_pk_fma_f32 {pr(a+i)}, {pr(a+i)}, {ab}, {pr(T+i)} op_sel_hi:[1,0,1]")
            for i in range(0, 16, 2): A(f"v_pk_mul_f32 {pr(T+i)}, {pr(a+i)}, {pr(a+i)}")
            for i in range(0, 16, 2): A(f"v_pk_fma_f32 {pr(T+i)}, {pr(T+i)}, v[4:5], v[4:5] op_sel:[0,1,0] op_sel_hi:[1,1,0]")
            for i in range(0, 16, 2): A(f"v_pk_mul_f32 {pr(T+i)}, {pr(T+i)}, {pr(a+i)}")
            for i in range(16): A(f"v_exp_f32 v{T+i}, v{T+i}")
            for i in range(0, 16, 2): A(f"v_pk_add_f32 {pr(T+i)}, {pr(T+i)}, v[6:7] op_sel_hi:[1,0]")
            for i in range(16): A(f"v_rcp_f32 v{T+i}, v{T+i}")
            for i in range(0, 16, 2): A(f"v_pk_mul_f32 {pr(T+i)}, {pr(T+i)}, {pr(a+i)}")
            for i in range(8): A(f"v_cvt_pk_bf16_f32 v{p+i}, v{T+2*i}, v{T+2*i+1}")
            va = 16 if u < 2 else 17
            off = (2 * u * 1024) % 4096
            A(f"buffer_store_dwordx4 v[{p}:{p+3}], v{va}, s[16:19], s{36+t} offen offset:{off} {STH}")
            A(f"buffer_store_dwordx4 v[{p+4}:{p+7}], v{va}, s[16:19], s{36+t} offen offset:{off+1024} {STH}")
    fin(A)
    helper(A)
    A("k1_done:")
    A("s_endpgm")
    assert 3 * max(SS1, SS2) <= EP
    return kernel_desc(name, 256), f"; @launch kernel=k1_kernel grid=(256,1,1) block=(512,1,1) lds={LDS_BYTES}"
```

```python
from asmlib import *
from layout import *
import math, os

QA1, QA2, QB1, QB2 = 16, 20, 22, 26
B2R = 28
VW = 36
SA, SB = 68, 84
PA, PB = 100, 108
OA, OB_ = 116, 132
KF = [(148, 152), (154, 158)]
VF = [(160, 164), (168, 172)]
MO, M5 = 176, 192
MF = 208
F5 = 240
VK1, VK2, VV = 4, 5, 6
VP = 8
VD = [12, 34, 35]
L16 = 47
KVSZ = (V_OFF - K_OFF) + 32 * 64 * VREC
SLOT = 24576
XCH = 0
WL = 2 * SLOT
FLAG = WL + 8 * 12288
LDS_BYTES = FLAG + 64
OOB = 0x40000

NT = os.environ.get("NT", "")
def NTF(c): return " nt" if c in NT else ""
def m16(d, a, b, c):
    return f"v_mfma_f32_32x32x16_bf16 {vr(d,16)}, {vr(a,4)}, {vr(b,4)}, {c}"
def m8(d, a, b, c):
    return f"v_mfma_f32_32x32x8_bf16 {vr(d,16)}, {vr(a,2)}, {vr(b,2)}, {c}"

def phase(out, s, p, mf, slots):
    E = lambda i: f"v_exp_f32 v{s+i}, v{s+i}"
    C = lambda i: f"v_cvt_pk_bf16_f32 v{p+i}, v{s+2*i}, v{s+2*i+1}"
    groups = [[E(0), E(1), E(2), E(3), C(0)],
              [E(4), E(5), C(1), E(6), E(7)],
              [C(2), E(8), E(9), C(3), E(10)],
              [E(11), C(4), E(12), E(13), C(5)],
              [E(14), E(15), C(6), C(7)]]
    X = os.environ.get("K2X", "")
    if "ord2" in X:
        groups = [[E(0), E(1), E(2), E(3), E(4)],
                  [E(5), C(0), E(6), E(7), C(1)],
                  [E(8), E(9), C(2), E(10), E(11)],
                  [C(3), E(12), E(13), C(4), E(14)],
                  [E(15), C(5), C(6), C(7)]]
    if "ord3" in X:
        groups = [[E(i) for i in range(0, 4)], [E(i) for i in range(4, 8)], [E(i) for i in range(8, 12)], [E(i) for i in range(12, 16)], [C(i) for i in range(8)]]
    for g in range(5):
        out += mf[g]
        out += slots[g]
        out += groups[g]

def rdK(buf, off):
    return [f"ds_read_b128 {vr(KF[buf][0],4)}, v{VK1} offset:{off}", "s_mov_b32 exec_hi, 0",
            f"ds_read_b64 {vr(KF[buf][1],2)}, v{VK2} offset:{off}", "s_mov_b32 exec_hi, -1"]
def rdV(buf, off):
    return [f"ds_read_b128 {vr(VF[buf][0],4)}, v{VV} offset:{off}", f"ds_read_b128 {vr(VF[buf][1],4)}, v{VV} offset:{off+2*VSB}"]
def toffK(i):
    i %= 8
    return (i // 4) * SLOT + (i % 4) * 1024
def toffV(i):
    i %= 8
    return (i // 4) * SLOT + (i % 4) * 2 * VREC

def rowmax(A, s, acc, first):
    if first:
        A(f"v_max3_f32 v{acc}, v{s}, v{s+1}, v{s+2}")
        A(f"v_max_f32 v{acc}, v{acc}, v{s+3}")
        st = 4
    else:
        st = 0
    for i in range(st, 16, 2):
        A(f"v_max3_f32 v{acc}, v{acc}, v{s+i}, v{s+i+1}")

def set_nc(A, acc, q2, tmp):
    A(f"v_mov_b32 v{tmp}, v{acc}")
    A("s_nop 1")
    A(f"v_permlane32_swap_b32 v{acc}, v{tmp}")
    A("s_nop 1")
    A(f"v_max_f32 v{acc}, v{acc}, v{tmp}")
    A(f"v_cvt_pk_bf16_f32 v{tmp}, -v{acc}, -v{acc}")
    A(f"v_lshlrev_b32 v{tmp}, 16, v{tmp}")
    A(f"v_sub_f32 v{tmp}, -v{acc}, v{tmp}")
    A("s_mov_b32 exec_lo, 0")
    A(f"v_cvt_pk_bf16_f32 v{q2}, -v{acc}, v{tmp}")
    A("s_mov_b64 exec, -1")

def dma_ops(slot):
    L = [f"s_add_u32 m0, s46, {slot*SLOT}", "s_nop 0"]
    for j in range(3):
        L.append(f"buffer_load_dwordx4 v{VD[j]}, s[20:23], s47 offen offset:{j*1024} lds" + NTF("k"))
    L.append("s_add_u32 s47, s47, s45")
    return L

def mlp_loads(st):
    p = st % 4; b = MF + (st % 4) * 8
    L = [(f"buffer_load_dwordx4 {vr(b,4)}, v{VP+p}, s[24:27], s48 offen" + NTF("h"), f"h{st}"),
         (f"buffer_load_dwordx4 {vr(b+4,4)}, v{VP+p}, s[28:31], s49 offen", f"w{st}")]
    if p == 0:
        L.append((f"buffer_load_dwordx4 {vr(F5 + ((st//4) % 2) * 4, 4)}, v{VP}, s[28:31], s50 offen", f"f{st}"))
    if p == 3:
        L += ["s_add_u32 s48, s48, 4096", "s_add_u32 s49, s49, 4096", "s_add_u32 s50, s50, 4096"]
        if st == 11 and os.environ.get("MROT"):
            L += ["s_add_u32 s63, s63, 1", "s_cmp_eq_u32 s63, 4", "s_cselect_b32 s60, 49152, 0",
                  "s_sub_u32 s48, s48, s60", "s_sub_u32 s49, s49, s60", "s_sub_u32 s50, s50, s60"]
    return L

def resolve_waits(body):
    isv = lambda x: (x[0] if isinstance(x, tuple) else x).startswith("buffer_")
    n = len(body)
    out = []
    for i, x in enumerate(body):
        if isinstance(x, tuple) and x[0] == "WAIT":
            cnt = 0; j = i
            while True:
                j = (j - 1) % n
                y = body[j]
                if isinstance(y, tuple) and y[0] != "WAIT" and y[1] == x[1]:
                    break
                if not (isinstance(y, tuple) and y[0] == "WAIT") and isv(y):
                    cnt += 1
                assert j != i
            out.append(f"s_waitcnt vmcnt({cnt})")
        else:
            out.append(x[0] if isinstance(x, tuple) else x)
    return out


def build_body():
    mm = []
    for st in range(12):
        b = MF + (st % 4) * 8
        mm.append(([("WAIT", f"w{st}"), m16(MO, b + 4, b, vr(MO, 16))], st if st % 4 else None))
        if st % 4 == 0:
            mm.append(([("WAIT", f"f{st}"), m16(M5, F5 + ((st // 4) % 2) * 4, b, vr(M5, 16))], st))
    body = []
    ph = 0
    for i in range(8):
        b = i & 1; nb = b ^ 1
        k = rdK(nb, toffK(i + 1)); v = rdV(nb, toffV(i + 1))
        last = (i % 4 == 3)
        for half in range(2):
            if ph < 15:
                x5, fin = mm[ph]
                post = mlp_loads((fin + 3) % 12) if fin is not None else []
                if fin == 9:
                    post = ["s_add_u32 s60, s58, 4096", "s_cmp_lt_u32 s39, 3"] + [f"s_cselect_b32 s{d}, s{d}, s{o}" for d, o in
                            ((24, 72), (25, 73), (26, 74), (28, 72), (29, 73), (30, 74), (48, 60), (49, 58))] + ["s_cselect_b32 s50, s50, 0x40000000"] + post
            else:
                x5, post = [], []
            if half == 0:
                pre = [("WAIT", f"d{i//4}"), "s_waitcnt lgkmcnt(0)", "s_barrier"] if last else []
                dm = dma_ops(i // 4) if last else []
                if dm:
                    dm[4] = (dm[4], f"d{(i//4)^1}")
                    dm = ["s_cmp_lt_u32 s39, 3", "s_cselect_b32 s22, s22, 0", "s_cselect_b32 s46, s46, 0x30000"] + dm
                phase(body, SA, PA,
                      [[m16(SB, KF[b][0], QB1, "0")], [m8(SB, KF[b][1], QB2, vr(SB, 16))],
                       [m16(OB_, VF[nb][0], PB, vr(OB_, 16))], [m16(OB_, VF[nb][1], PB + 4, vr(OB_, 16))], x5],
                      [pre + k, [], dm, [], post + ["s_waitcnt lgkmcnt(0)"]])
            else:
                tail = ["s_add_u32 s39, s39, 1", "s_cmp_lt_u32 s39, 4"] if i == 7 else []
                wl = []
                if i in (0, 2, 4):
                    wl = ["s_mov_b32 m0, s71", "s_add_u32 s71, s71, 1024",
                          f"buffer_load_dwordx4 v{L16}, s[72:75], s58 offen lds", "s_add_u32 s58, s58, 1024"]
                phase(body, SB, PB,
                      [[m16(SA, KF[nb][0], QA1, "0")], [m8(SA, KF[nb][1], QA2, vr(SA, 16))],
                       [m16(OA, VF[b][0], PA, vr(OA, 16))], [m16(OA, VF[b][1], PA + 4, vr(OA, 16))], x5],
                      [v, [], wl, [], post + tail])
            ph += 1
    return body

def prologue_vmem(body):
    i0 = next(i for i, x in enumerate(body) if isinstance(x, tuple) and x[1] == "h0" and x[0] != "WAIT")
    out = []
    for x in body[i0:]:
        if isinstance(x, tuple) and x[0] == "WAIT": continue
        t = x[0] if isinstance(x, tuple) else x
        if t.startswith("buffer_") or t.startswith("s_add_u32 m0") or t == "s_nop 0" or t.startswith("s_add_u32 s47") \
           or t.startswith("s_add_u32 s48") or t.startswith("s_add_u32 s49") or t.startswith("s_add_u32 s50"):
            out.append(t)
    return out


QP = 1040
RES = FLAG + 4
OS = 68
RW5 = [48, 52, 56, 60, 64]
ROWN = {12: MF + 4, 13: MF + 12, 14: MF + 20, 15: 248, 16: MF, 17: MF + 8, 18: MF + 16, 19: 252}
WB = 100
XO, X5R, BO, B5R = 28, 32, 36, 40
TIMEOUT = int(os.environ.get("K2TIMEOUT", "400"))
pr = lambda r: f"v[{r}:{r+1}]"

def wof_loads():
    L = []
    for g in range(5):
        L.append(f"buffer_load_dwordx4 {vr(RW5[g], 4)}, v{VP}, s[72:75], s59 offen")
        if g < 4: L.append("s_add_u32 s59, s59, 4096")
    L.append(f"buffer_load_dwordx4 {vr(248, 4)}, v{VP+3}, s[72:75], s62 offen")
    L.append("s_add_u32 s62, s62, 4096")
    L.append(f"buffer_load_dwordx4 {vr(252, 4)}, v{VP+3}, s[72:75], s62 offen")
    L.append(f"buffer_load_dwordx4 {vr(XO,4)}, v13, s[8:11], 0 offen")
    L.append(f"buffer_load_dwordx2 {pr(X5R)}, v14, s[8:11], 0 offen")
    L.append(f"buffer_load_dwordx4 {vr(BO,4)}, v42, s[16:19], 0 offen")
    L.append(f"buffer_load_dwordx2 {pr(B5R)}, v43, s[16:19], 0 offen")
    return L

def gen_k2(A):
    name = "k2_kernel"
    kernel_begin(A, name)
    A("s_cmp_ge_u32 s2, 256")
    A("s_cbranch_scc1 k2_done")
    stamp(A, 0); tl_start(A, 1)
    A("s_load_dwordx2 s[6:7], s[0:1], 80")
    A("s_load_dwordx4 s[76:79], s[0:1], 56")
    A("s_load_dwordx2 s[4:5], s[0:1], 0")
    A("v_lshrrev_b32 v1, 6, v0")
    A("s_nop 0")
    A("v_readfirstlane_b32 s64, v1")
    A("s_and_b32 s32, s2, 7")
    A("s_lshr_b32 s33, s2, 3")
    A("s_lshl_b32 s34, s32, 2")
    A("s_lshr_b32 s53, s33, 3")
    A("s_add_u32 s34, s34, s53")
    A("s_and_b32 s35, s33, 7")
    A("s_lshl_b32 s52, s35, 3")
    A("s_add_u32 s52, s52, s32")
    A("s_and_b32 s65, s64, 3")
    A("s_lshr_b32 s66, s64, 2")
    A("k2_restart:")
    A("v_and_b32 v1, 63, v0")
    A(f"v_lshlrev_b32 v{L16}, 4, v1")
    A("s_mul_i32 s46, s64, 3072")
    A("s_mul_i32 s67, s34, 5")
    A("s_lshr_b32 s67, s67, 1")
    A("s_and_b32 s68, s34, 1")
    A(f"s_mul_i32 s45, s66, {8*VREC - 4096}")
    A("s_add_u32 s45, s45, 4096")
    A("s_mul_i32 s69, s65, 3")
    A(f"s_mul_i32 s70, s34, {64*VREC}")
    A(f"s_add_u32 s70, s70, {V_OFF - K_OFF}")
    for j in range(3):
        A(f"s_add_u32 s54, s69, {j}")
        A("s_lshr_b32 s55, s54, 2")
        A("s_add_u32 s55, s55, s67")
        A("s_lshl_b32 s55, s55, 15")
        A("s_and_b32 s56, s54, 3")
        A("s_lshl_b32 s56, s56, 10")
        A("s_add_u32 s55, s55, s56")
        A("s_lshl_b32 s56, s54, 10")
        A("s_add_u32 s56, s56, s70")
        if j == 2:
            A("s_cmp_eq_u32 s54, 11")
            A("s_cselect_b32 s56, 0x40000000, s56")
        A("s_cmp_eq_u32 s66, 0")
        A("s_cselect_b32 s55, s55, s56")
        if j: A(f"s_sub_u32 s55, s55, {j*1024}")
        A(f"v_add_u32 v{VD[j]}, s55, v{L16}")
    A(f"s_mov_b32 s51, {KVSZ}")
    A("s_mov_b32 s38, 0")
    A("s_lshl_b32 s36, s35, 3")
    A("s_lshl_b32 s37, s65, 1")
    A("s_add_u32 s36, s36, s37")
    A("s_add_u32 s36, s36, s66")
    A("s_lshl_b32 s37, s36, 9")
    A("s_lshl_b32 s54, s67, 15")
    A("s_add_u32 s37, s37, s54")
    A("s_xor_b32 s44, s37, 512")
    A("v_and_b32 v2, 31, v1")
    A("v_lshrrev_b32 v3, 5, v1")
    A("v_add_u32 v7, s68, v3")
    A("v_lshlrev_b32 v15, 4, v2")
    A(f"v_lshl_add_u32 v{VK1}, v7, 12, v15")
    A("v_lshl_add_u32 v40, v7, 15, v15")
    A("s_lshl_b32 s54, s68, 1")
    A("s_sub_u32 s54, 2, s54")
    A("s_lshl_b32 s55, s68, 3")
    A("s_lshl_b32 s56, s54, 12")
    A("s_add_u32 s56, s56, s55")
    A(f"v_add_u32 v{VK2}, s56, v15")
    A("s_lshl_b32 s56, s54, 15")
    A("s_add_u32 s56, s56, s55")
    A("v_add_u32 v41, s56, v15")
    for r in (QA2, QA2 + 1, QB2, QB2 + 1): A(f"v_mov_b32 v{r}, 0")
    for r in (KF[0][1], KF[0][1] + 1, KF[1][1], KF[1][1] + 1): A(f"v_mov_b32 v{r}, 0x3f803f80")
    for p in range(4):
        A(f"s_xor_b32 s54, s65, {p}")
        A("s_lshl_b32 s54, s54, 10")
        A(f"v_add_u32 v{VP+p}, s54, v{L16}")
    A("s_waitcnt lgkmcnt(0)")
    srd(A, 20, 6, KVSZ, K_OFF)
    srd(A, 8, 6, 80 * 32768, Q_OFF)
    A("s_mov_b32 s47, 0")
    for l in dma_ops(0): A(l)
    A(f"buffer_load_dwordx4 {vr(QA1,4)}, v40, s[8:11], s37 offen")
    A(f"buffer_load_dwordx4 {vr(QB1,4)}, v40, s[8:11], s44 offen")
    A("s_mov_b32 exec_hi, 0")
    A(f"buffer_load_dwordx2 {vr(QA2,2)}, v41, s[8:11], s37 offen")
    A(f"buffer_load_dwordx2 {vr(QB2,2)}, v41, s[8:11], s44 offen")
    A("s_mov_b64 exec, -1")
    srd(A, 12, 6, 64 * 32 * 2048, OB_OFF)
    A(f"s_load_dword s3, s[6:7], {hex(SYNC_OFF)}")
    A(f"v_mul_u32_u24 v15, {VSB}, v3")
    A(f"v_lshl_add_u32 v{VV}, v2, 4, v15")
    A(f"s_mul_i32 s57, s66, {VREC}")
    A("s_add_u32 s57, s57, 12288")
    A(f"v_add_u32 v{VV}, s57, v{VV}")
    A("v_cmp_lt_u32 vcc, 20, v2")
    A(f"v_mov_b32 v15, {OOB}")
    A("s_lshl_b32 s57, s66, 9")
    A(f"v_cndmask_b32 v{VV}, v{VV}, v15, vcc")
    A(f"v_mov_b32 v7, {FLAG}")
    A("v_mov_b32 v15, 0")
    A("ds_write_b32 v7, v15")
    A("s_branch k2_main2")
    A("k2_main:")
    A("s_mul_i32 s46, s64, 3072")
    A("s_mov_b32 s22, s51")
    A("s_mov_b32 s47, 0")
    for l in dma_ops(0): A(l)
    A("k2_main2:")
    srd(A, 24, 6, 64 * 96 * 1024, HB_OFF)
    srd(A, 28, 6, 20 * 96 * 1024, W2F_OFF)
    A("s_mul_i32 s54, s66, 48")
    A("s_mul_i32 s48, s52, 96")
    A("s_add_u32 s48, s48, s54")
    A("s_lshl_b32 s48, s48, 10")
    A("s_mul_i32 s49, s53, 5")
    A("s_add_u32 s50, s49, 4")
    A("s_add_u32 s49, s49, s65")
    for r in (49, 50):
        A(f"s_mul_i32 s{r}, s{r}, 96")
        A(f"s_add_u32 s{r}, s{r}, s54")
        A(f"s_lshl_b32 s{r}, s{r}, 10")
    if os.environ.get("MROT"):
        A("s_and_b32 s63, s2, 3")
        A("s_mul_i32 s54, s63, 12288")
        for r in (48, 49, 50): A(f"s_add_u32 s{r}, s{r}, s54")
    srd(A, 72, 6, 20 * 40 * 1024, WOF_OFF)
    A("s_mul_i32 s54, s66, 20")
    A("s_mul_i32 s58, s53, 5")
    A("s_add_u32 s59, s58, 4")
    A("s_add_u32 s58, s58, s65")
    for r in (58, 59):
        A(f"s_mul_i32 s{r}, s{r}, 40")
        A(f"s_add_u32 s{r}, s{r}, s54")
        A(f"s_lshl_b32 s{r}, s{r}, 10")
    A("s_mul_i32 s71, s64, 12288")
    A(f"s_add_u32 s71, s71, {WL}")
    A("v_lshrrev_b32 v2, 4, v0")
    A("v_and_b32 v3, 15, v0")
    A("s_lshl_b32 s54, s52, 5")
    A("s_mul_i32 s55, s53, 320")
    A("v_lshl_add_u32 v42, v3, 4, s55")
    A("v_add_u32 v13, s54, v2")
    A("v_mul_u32_u24 v13, 1280, v13")
    A("v_add_u32 v13, v13, v42")
    A("v_lshrrev_b32 v2, 3, v0")
    A("v_and_b32 v3, 7, v0")
    A("s_add_u32 s55, s55, 256")
    A("v_lshl_add_u32 v43, v3, 3, s55")
    A("v_add_u32 v14, s54, v2")
    A("v_mul_u32_u24 v14, 1280, v14")
    A("v_add_u32 v14, v14, v43")
    A("v_cmp_gt_u32 vcc, 256, v0")
    A("v_mov_b32 v2, 0x7fffffff")
    A("s_nop 0")
    A("v_cndmask_b32 v14, v2, v14, vcc")
    srd(A, 8, 4, XSZ)
    srd(A, 16, 76, 1280)
    body = build_body()
    pv = prologue_vmem(body)
    for r in list(range(OA, OA + 32)) + list(range(PB, PB + 8)) + list(range(VF[1][0], VF[1][0] + 8)) + list(range(MO, MO + 32)):
        A(f"v_mov_b32 v{r}, 0")
    A("s_waitcnt vmcnt(0) lgkmcnt(0)")
    stamp(A, 1)
    A("s_barrier")
    A("s_cmp_lg_u32 s38, 0")
    A("s_cbranch_scc1 k2_havemax")
    for l in rdK(1, 0): A(l)
    for r in (VK1, VK2): A(f"v_add_u32 v{r}, s57, v{r}")
    for l in rdK(0, 0) + rdV(0, 0): A(l)
    for l in pv[:2]: A(l)
    A("s_waitcnt lgkmcnt(4)")
    A(m16(SA, KF[1][0], QA1, "0")); A(m8(SA, KF[1][1], QA2, vr(SA, 16)))
    A(m16(SB, KF[1][0], QB1, "0")); A(m8(SB, KF[1][1], QB2, vr(SB, 16)))
    for l in pv[2:5]: A(l)
    A("s_nop 6")
    rowmax(A, SA, 2, True)
    set_nc(A, 2, QA2, 7)
    A("s_waitcnt lgkmcnt(0)")
    A(m16(SA, KF[0][0], QA1, "0")); A(m8(SA, KF[0][1], QA2, vr(SA, 16)))
    for l in pv[5:11]: A(l)
    rowmax(A, SB, 3, True)
    set_nc(A, 3, QB2, 7)
    for l in pv[11:]: A(l)
    A("s_branch k2_go")
    A("k2_havemax:")
    for l in rdK(0, 0) + rdV(0, 0): A(l)
    for l in pv: A(l)
    A("s_waitcnt lgkmcnt(0)")
    A(m16(SA, KF[0][0], QA1, "0")); A(m8(SA, KF[0][1], QA2, vr(SA, 16)))
    A("s_nop 10")
    A("k2_go:")
    A("s_add_u32 s62, s58, 12288")
    A("s_add_u32 s61, s66, 1")
    A("s_mov_b32 s39, 0")
    stamp(A, 2)
    A(".p2align 3")
    A("k2_loop:")
    A("s_cmp_eq_u32 s39, s61")
    A("s_cbranch_scc1 k2_early")
    A("k2_early_ret:")
    for l in resolve_waits(body): A(l)
    A("s_cbranch_scc1 k2_loop")
    A("s_nop 1")
    A(m16(OB_, VF[1][0], PB, vr(OB_, 16))); A(m16(OB_, VF[1][1], PB + 4, vr(OB_, 16)))
    stamp(A, 3)
    A("s_mul_i32 s40, s64, 3072")
    A(f"s_add_u32 s40, s40, {XCH}")
    A(f"v_add_u32 v7, s40, v{L16}")
    A("s_xor_b32 s40, s64, 4")
    A("s_mul_i32 s40, s40, 3072")
    A(f"s_add_u32 s40, s40, {XCH}")
    A(f"v_add_u32 v15, s40, v{L16}")
    A("s_lshl_b32 s41, s36, 5")
    A("s_add_u32 s41, s41, s34")
    A("s_lshl_b32 s41, s41, 11")
    A("s_nop 7")
    for q, r in enumerate([OB_, OB_ + 4, OB_ + 8]):
        A(f"ds_write_b128 v7, {vr(r,4)} offset:{q*1024}")
    A(f"s_mov_b32 s40, {f32hex(2.0**64)}")
    A("s_waitcnt lgkmcnt(0)")
    stamp(A, 4)
    A("s_barrier")
    for q in range(3):
        A(f"ds_read_b128 {vr(SA+4*q,4)}, v15 offset:{q*1024}")
    A("v_mov_b32 v44, 0"); A("v_mov_b32 v45, 0"); A("v_mov_b32 v2, 0"); A("v_mov_b32 v3, 0")
    A("s_waitcnt lgkmcnt(0)")
    for e in (8, 10, 0, 2, 4, 6):
        A(f"v_pk_add_f32 {pr(OA+e)}, {pr(OA+e)}, {pr(SA+e)}")
        if e == 10:
            A(f"v_mov_b32 v7, v{OA+8}")
            A(f"v_mov_b32 v46, v{OA+8}")
    A(f"v_permlane32_swap_b32 v7, v46")
    for e in range(0, 12, 2):
        A(f"v_pk_fma_f32 v[2:3], {pr(OA+e)}, v[44:45], v[2:3]")
    A("v_cmp_nlt_f32 s[60:61], v46, s40")
    A("v_cmp_u_f32 s[62:63], v2, v3")
    A("v_rcp_f32 v46, v46")
    A("s_nop 2")
    A("s_or_b64 s[60:61], s[60:61], s[62:63]")
    A("s_cbranch_scc0 k2_noflag")
    A(f"v_mov_b32 v7, {FLAG}")
    A("v_mov_b32 v15, 1")
    A("ds_write_b32 v7, v15")
    A("s_cmp_eq_u32 s38, 0")
    A("s_cbranch_scc1 k2_nopub")
    A("k2_noflag:")
    for e in range(0, 12, 2):
        A(f"v_pk_mul_f32 {pr(OA+e)}, {pr(OA+e)}, v[46:47] op_sel_hi:[1,0]")
    for i, d in enumerate((168, 169, 170, 174, 172, 173)):
        A(f"v_cvt_pk_bf16_f32 v{d}, v{OA+2*i}, v{OA+2*i+1}")
    A("v_mov_b32 v171, s3"); A("v_mov_b32 v175, s3")
    A(f"buffer_store_dwordx4 {vr(168,4)}, v{L16}, s[12:15], s41 offen sc1")
    A(f"buffer_store_dwordx4 {vr(172,4)}, v{L16}, s[12:15], s41 offen offset:1024 sc1")
    A("k2_nopub:")
    A(f"v_mov_b32 v7, {RES}")
    A("v_mov_b32 v15, 0")
    A("ds_write_b32 v7, v15")
    A("s_waitcnt lgkmcnt(0)")
    stamp(A, 5)
    A("s_barrier")
    A(f"v_mov_b32 v7, {FLAG}")
    A("ds_read_b32 v15, v7")
    A("s_lshl_b32 s40, s52, 5")
    A("s_lshl_b32 s41, s64, 2")
    A("s_add_u32 s40, s40, s41")
    A("s_lshl_b32 s40, s40, 11")
    A(f"v_add_u32 v3, 4096, v{L16}")
    A("v_and_b32 v2, 3, v1")
    A("v_lshlrev_b32 v2, 11, v2")
    A("v_add_u32 v2, 2044, v2")
    A("s_waitcnt lgkmcnt(0)")
    A("v_readfirstlane_b32 s41, v15")
    A("s_nop 3")
    A("s_cmp_eq_u32 s41, 0")
    A("s_cbranch_scc1 k2_pub")
    A("s_cmp_eq_u32 s38, 0")
    A("s_cbranch_scc1 k2_fallback")
    A("k2_pub:")
    A("s_mov_b32 s41, 0")
    A("k2_poll:")
    if not os.environ.get("PREPOLL"):
        A("s_add_u32 s41, s41, 1")
        A("s_branch k2_full")
    A("s_mov_b64 exec, 15")
    A("buffer_load_dword v15, v2, s[12:15], s40 offen sc1")
    A("s_waitcnt vmcnt(0)")
    A("v_cmp_ne_u32 vcc, s3, v15")
    A("s_mov_b64 exec, -1")
    A("s_add_u32 s41, s41, 1")
    A("s_nop 2")
    A("s_cmp_eq_u32 vcc_lo, 0")
    A("s_cbranch_scc1 k2_full")
    A(f"s_cmp_lt_u32 s41, {TIMEOUT}")
    A("s_cbranch_scc1 k2_poll")
    A("s_branch k2_miss")
    A("k2_full:")
    for i in range(8):
        va = L16 if i < 4 else 3
        A(f"buffer_load_dwordx4 {vr(OS+4*i,4)}, v{va}, s[12:15], s40 offen offset:{(i%4)*1024} sc1")
    A("s_waitcnt vmcnt(0)")
    A("s_mov_b32 s42, 0")
    for hh in range(4):
        A(f"v_xor_b32 v15, s3, v{OS+8*hh+3}")
        A(f"v_xor_b32 v7, s3, v{OS+8*hh+7}")
        A("v_or_b32 v15, v15, v7")
        A("v_cmp_ne_u32 vcc, 0, v15")
        A("s_nop 3")
        A("s_cmp_lg_u64 vcc, 0")
        A(f"s_cselect_b32 s43, {1 << hh}, 0")
        A("s_or_b32 s42, s42, s43")
    A("s_cmp_eq_u32 s42, 0")
    A("s_cbranch_scc1 k2_oproj")
    A("s_mov_b32 vcc_lo, s42")
    A(f"s_cmp_lt_u32 s41, {TIMEOUT}")
    A("s_cbranch_scc1 k2_poll")
    A("k2_miss:")
    A("s_ff1_i32_b32 s42, vcc_lo")
    A("s_lshl_b32 s43, s64, 2")
    A("s_add_u32 s42, s42, s43")
    A("s_add_u32 s42, s42, 1")
    A(f"v_mov_b32 v7, {RES}")
    A("v_mov_b32 v15, s42")
    A("ds_write_b32 v7, v15")
    A("k2_oproj:")
    stamp(A, 6)
    A("s_lshl_b32 s41, s64, 12")
    A(f"v_add_u32 v2, s41, v{L16}")
    A("s_lshl_b32 s41, s64, 10")
    A("s_add_u32 s41, s41, 32768")
    A(f"v_add_u32 v3, s41, v{L16}")
    for hh in range(4):
        A(f"v_mov_b32 v{OS+8*hh+3}, v{OS+8*hh+6}")
        A(f"ds_write_b128 v2, {vr(OS+8*hh,4)} offset:{hh*1024}")
    A("s_mov_b32 exec_hi, 0")
    for hh in range(4):
        A(f"ds_write_b64 v3, {pr(OS+8*hh+4)} offset:{(hh>>1)*512 + (hh&1)*8}")
    A("s_mov_b64 exec, -1")
    A("s_mul_i32 s41, s66, 20480")
    A("s_mul_i32 s42, s64, 12288")
    A(f"s_add_u32 s42, s42, {WL}")
    for p in range(4):
        A(f"v_add_u32 v{20+p}, s42, v{VP+p}")
        A(f"v_add_u32 v{24+p}, s41, v{VP+p}")
    def wrd(s): return f"ds_read_b128 {vr(WB + (s % 8) * 4, 4)}, v{20 + s % 4} offset:{(s // 4) * 4096}"
    for s_ in range(6): A(wrd(s_))
    A("s_waitcnt lgkmcnt(0)")
    A("s_barrier")
    A(f"v_mov_b32 v7, {RES}")
    A("ds_read_b32 v15, v7")
    def ord_(s): return f"ds_read_b128 {vr(OS + (s % 8) * 4, 4)}, v{24 + s % 4} offset:{(s // 4) * 4096}"
    ops = []
    def issue(l, tag): A(l); ops.append(tag)
    for s_ in range(6): issue(ord_(s_), f"o{s_}")
    A("s_waitcnt lgkmcnt(6)")
    A("v_readfirstlane_b32 s43, v15")
    A("s_nop 3")
    A("s_cmp_eq_u32 s43, 0")
    A("s_cbranch_scc1 k2_mm")
    A("s_sub_u32 s34, s43, 1")
    A("s_waitcnt vmcnt(0) lgkmcnt(0)")
    A("s_barrier")
    A("s_branch k2_restart")
    A("k2_mm:")
    for s_ in range(20):
        need = [f"o{s_}"] + ([f"w{s_}"] if 6 <= s_ < 12 else [])
        last = max(ops.index(t) for t in need)
        A(f"s_waitcnt lgkmcnt({len(ops) - 1 - last})")
        wreg = WB + (s_ % 8) * 4 if s_ < 12 else ROWN[s_]
        A(m16(MO, wreg, OS + (s_ % 8) * 4, vr(MO, 16)))
        if s_ % 4 == 0:
            A(m16(M5, RW5[s_ // 4], OS + (s_ % 8) * 4, vr(M5, 16)))
        if s_ + 6 < 20: issue(ord_(s_ + 6), f"o{s_+6}")
        if s_ + 6 < 12: issue(wrd(s_ + 6), f"w{s_+6}")
    A(f"v_add_u32 v2, s42, v{L16}")
    A("v_lshrrev_b32 v7, 4, v0")
    A("v_bfe_u32 v15, v0, 2, 2")
    A("v_mul_u32_u24 v15, 12288, v15")
    A("v_lshl_add_u32 v7, v7, 4, v15")
    A("v_and_b32 v15, 3, v0")
    A(f"v_mul_u32_u24 v15, {QP}, v15")
    A("v_add_u32 v7, v7, v15")
    A(f"v_add_u32 v7, {WL}, v7")
    for q in range(4):
        A(f"ds_write_b128 v2, {vr(M5+4*q,4)} offset:{(4+q)*QP}")
    A("v_lshrrev_b32 v15, 3, v0")
    A("v_and_b32 v44, 1, v0")
    A("v_lshl_add_u32 v15, v44, 5, v15")
    A("v_bfe_u32 v44, v0, 1, 2")
    A(f"v_mul_u32_u24 v44, {QP}, v44")
    A("v_lshl_add_u32 v15, v15, 4, v44")
    A(f"v_add_u32 v15, {WL + 4*QP}, v15")
    A(f"v_add_u32 v44, {4*12288}, v15")
    for q in range(4):
        A(f"ds_write_b128 v2, {vr(MO+4*q,4)} offset:{q*QP}")
    srd(A, 16, 78, XSZ)
    A("s_waitcnt lgkmcnt(0)")
    A("s_barrier")
    R = 68
    for k in range(2):
        for h in range(2):
            A(f"ds_read_b128 {vr(R + (k*2+h)*4, 4)}, v7 offset:{k*4*12288 + h*512}")
    A("s_cmp_ge_u32 s64, 4")
    A("s_cbranch_scc1 k2_no5")
    for w in range(8):
        A(f"ds_read_b128 {vr(R + 16 + 4*w, 4)}, v{15 if w < 4 else 44} offset:{(w%4)*12288}")
    A("k2_no5:")
    T = 120
    for e in range(4):
        A(f"v_lshlrev_b32 v{T+2*e}, 16, v{XO+e}")
        A(f"v_and_b32 v{T+2*e+1}, 0xffff0000, v{XO+e}")
        A(f"v_lshlrev_b32 v{T+8+2*e}, 16, v{BO+e}")
        A(f"v_and_b32 v{T+8+2*e+1}, 0xffff0000, v{BO+e}")
    for e in range(0, 8, 2):
        A(f"v_pk_add_f32 {pr(T+e)}, {pr(T+e)}, {pr(T+8+e)}")
    for e in range(2):
        A(f"v_lshlrev_b32 v{T+16+2*e}, 16, v{X5R+e}")
        A(f"v_and_b32 v{T+16+2*e+1}, 0xffff0000, v{X5R+e}")
        A(f"v_lshlrev_b32 v{T+20+2*e}, 16, v{B5R+e}")
        A(f"v_and_b32 v{T+20+2*e+1}, 0xffff0000, v{B5R+e}")
    for e in range(0, 4, 2):
        A(f"v_pk_add_f32 {pr(T+16+e)}, {pr(T+16+e)}, {pr(T+20+e)}")
    A("s_waitcnt lgkmcnt(0)")
    for e in range(0, 8, 2):
        A(f"v_pk_add_f32 {pr(R+e)}, {pr(R+e)}, {pr(R+8+e)}")
        A(f"v_pk_add_f32 {pr(R+e)}, {pr(R+e)}, {pr(T+e)}")
    for e in range(4):
        A(f"v_cvt_pk_bf16_f32 v{R+8+e}, v{R+2*e}, v{R+2*e+1}")
    A(f"buffer_store_dwordx4 {vr(R+8,4)}, v13, s[16:19], 0 offen" + NTF("o"))
    A("s_cmp_ge_u32 s64, 4")
    A("s_cbranch_scc1 k2_fin")
    for w in range(8):
        for e in range(0, 4, 2):
            A(f"v_pk_add_f32 {pr(T+16+e)}, {pr(T+16+e)}, {pr(R+16+4*w+e)}")
    for e in range(2):
        A(f"v_cvt_pk_bf16_f32 v{T+e}, v{T+16+2*e}, v{T+16+2*e+1}")
    A(f"buffer_store_dwordx2 {pr(T)}, v14, s[16:19], 0 offen" + NTF("o"))
    A("k2_fin:")
    stamp_flush(A, 7, 6, 1, 64); tl_end(A, 1)
    A("k2_done:")
    A("s_endpgm")
    A("k2_early:")
    for l in wof_loads(): A(l)
    A("s_branch k2_early_ret")
    A("k2_fallback:")
    A("s_mul_i32 s46, s64, 3072")
    A("s_mov_b32 s38, 1")
    A("s_waitcnt vmcnt(0)")
    for r in (KF[0][1], KF[0][1] + 1, KF[1][1], KF[1][1] + 1): A(f"v_mov_b32 v{r}, 0x3f803f80")
    A(f"v_mov_b32 v2, {f32hex(-3.0e38)}")
    A(f"v_mov_b32 v3, {f32hex(-3.0e38)}")
    A("s_mov_b32 exec_lo, 0")
    A(f"v_mov_b32 v{QA2}, 0")
    A(f"v_mov_b32 v{QB2}, 0")
    A("s_mov_b64 exec, -1")
    for r in (VK1, VK2): A(f"v_subrev_u32 v{r}, s57, v{r}")
    A("s_mov_b32 s22, s51")
    A("s_mov_b32 s47, 0")
    A("s_mov_b32 s39, 0")
    A("k2_maxloop:")
    for l in dma_ops(0): A(l)
    A("s_waitcnt vmcnt(0)")
    A("s_barrier")
    A("s_mov_b32 s40, 0")
    A("k2_maxin:")
    for l in rdK(0, 0): A(l)
    A("s_waitcnt lgkmcnt(0)")
    A(m16(SA, KF[0][0], QA1, "0")); A(m8(SA, KF[0][1], QA2, vr(SA, 16)))
    A(m16(SB, KF[0][0], QB1, "0")); A(m8(SB, KF[0][1], QB2, vr(SB, 16)))
    for r in (VK1, VK2): A(f"v_add_u32 v{r}, 512, v{r}")
    A("s_nop 15")
    rowmax(A, SA, 2, False); rowmax(A, SB, 3, False)
    A("s_add_u32 s40, s40, 1")
    A("s_cmp_lt_u32 s40, 8")
    A("s_cbranch_scc1 k2_maxin")
    for r in (VK1, VK2): A(f"v_subrev_u32 v{r}, 4096, v{r}")
    A("s_barrier")
    A("s_add_u32 s39, s39, 1")
    A("s_cmp_lt_u32 s39, 8")
    A("s_cbranch_scc1 k2_maxloop")
    for r in (VK1, VK2): A(f"v_add_u32 v{r}, s57, v{r}")
    set_nc(A, 2, QA2, 7); set_nc(A, 3, QB2, 7)
    A("s_branch k2_main")
    return kernel_desc(name, 256), f"; @launch kernel=k2_kernel grid=(256,1,1) block=(512,1,1) lds={LDS_BYTES}"
```

```python
from asmlib import *
from layout import *
import math, os

NST = 10
ACC = 128
XF = 48
WF = 80
DV = 16
XAB, WAB, XAC, WAC = 28, 32, 36, 40
PX, PWQ, PW1, PB1, PWO, PW2, PDBG, PWS = 4, 6, 48, 50, 52, 54, 56, 58
EP = 147456
CSL = EP + 4096
BIASL = CSL + 768
LDS_BYTES = EP + 6144
ST_OFF = XN_OFF
CS_OFF = XN_OFF + 0x10000
PRIV_OFF = 0x8000000
NONL = EP + 6136
TIMEOUT = int(os.environ.get("K1TIMEOUT", "400"))
SLOW = os.environ.get("K1SLOW", "")
NT = os.environ.get("NT", "rsp")
def NTF(c): return " nt" if c in NT else ""
STF = os.environ.get("STF", "")
STH = os.environ.get("STH", "")
STP = os.environ.get("STP", "")
KROT = os.environ.get("KROT", "1")
HD = int(os.environ.get("HD", "0"))
BARM = int(os.environ.get("BARM", "0"))
RPER = int(os.environ.get("RPER", "2"))
pr = lambda r: f"v[{r}:{r+1}]"

def bf16r(A, v):
    A(f"v_cvt_pk_bf16_f32 v{v}, v{v}, v{v}")
    A(f"v_and_b32 v{v}, 0xffff0000, v{v}")

RX, UX, RW = 16, 56, 136
def h_rows_issue(A):
    A("v_lshrrev_b32 v2, 3, v1")
    A("s_lshl_b32 s32, s70, 3")
    A("v_add_u32 v2, s32, v2")
    A("v_mul_u32_u24 v3, 1280, v2")
    A("v_and_b32 v4, 7, v1")
    A("v_lshl_add_u32 v3, v4, 4, v3")
    for j in range(10):
        A(f"buffer_load_dwordx4 {vr(RX+4*j,4)}, v3, s[8:11], 0 offen offset:{128*j}" + NTF("r"))
def red8(A, v):
    for mod in ("quad_perm:[1,0,3,2]", "quad_perm:[2,3,0,1]", "row_half_mirror"):
        A("s_nop 1")
        A(f"v_add_f32_dpp v{v}, v{v}, v{v} {mod} row_mask:0xf bank_mask:0xf")
def h_rows_p1a(A):
    for i in range(20):
        A(f"v_lshlrev_b32 v{UX+2*i}, 16, v{RX+i}")
        A(f"v_and_b32 v{UX+2*i+1}, 0xffff0000, v{RX+i}")
    A(f"v_add_f32 v5, v{UX}, v{UX+1}")
    A(f"v_add_f32 v6, v{UX+2}, v{UX+3}")
    for i in range(4, 40, 2):
        A(f"v_add_f32 v5, v5, v{UX+i}")
        A(f"v_add_f32 v6, v6, v{UX+i+1}")
def h_rows_p1b(A):
    for i in range(20, 40):
        A(f"v_lshlrev_b32 v{UX+2*i}, 16, v{RX+i}")
        A(f"v_and_b32 v{UX+2*i+1}, 0xffff0000, v{RX+i}")
    for i in range(40, 80, 2):
        A(f"v_add_f32 v5, v5, v{UX+i}")
        A(f"v_add_f32 v6, v6, v{UX+i+1}")
    A("v_add_f32 v5, v5, v6")
    red8(A, 5)
    A(f"v_mul_f32 v7, {f32hex(1.0/640)}, v5")
def h_rows_p1(A):
    h_rows_p1a(A); h_rows_p1b(A)
def h_rows_p2a(A):
    A("v_mov_b32 v5, 0"); A("v_mov_b32 v6, 0")
    for i in range(0, 52, 2):
        A(f"v_sub_f32 v13, v{UX+i}, v7")
        A(f"v_sub_f32 v14, v{UX+i+1}, v7")
        A("v_fmac_f32 v5, v13, v13")
        A("v_fmac_f32 v6, v14, v14")
def h_rows_p2(A):
    h_rows_p2a(A); h_rows_p2b(A)
def h_rows_p2b(A):
    s, mean, var, m, r, t2, r2 = 5, 7, 8, 9, 10, 11, 12
    for i in range(52, 80, 2):
        A(f"v_sub_f32 v13, v{UX+i}, v7")
        A(f"v_sub_f32 v14, v{UX+i+1}, v7")
        A("v_fmac_f32 v5, v13, v13")
        A("v_fmac_f32 v6, v14, v14")
    A("v_add_f32 v5, v5, v6")
    red8(A, 5)
    A(f"v_mul_f32 v{var}, {f32hex(1.0/640)}, v{s}")
    A(f"v_mov_b32 v{m}, v{mean}"); bf16r(A, m)
    A(f"v_mov_b32 v{s}, v{var}"); bf16r(A, s)
    A(f"v_add_f32 v{s}, {f32hex(1e-5)}, v{s}"); bf16r(A, s)
    A(f"v_sqrt_f32 v{s}, v{s}"); A("s_nop 0"); bf16r(A, s)
    A(f"v_rcp_f32 v{r}, v{s}")
    A(f"v_sub_f32 v{t2}, v{mean}, v{m}")
    A(f"v_mul_f32 v{t2}, v{t2}, v{r}"); bf16r(A, t2)
    A(f"v_mul_f32 v{s}, v{var}, v{r}")
    A(f"v_mul_f32 v{s}, v{s}, v{r}"); bf16r(A, s)
    A(f"v_add_f32 v{s}, {f32hex(1e-5)}, v{s}"); bf16r(A, s)
    A(f"v_sqrt_f32 v{s}, v{s}"); A("s_nop 0"); bf16r(A, s)
    A(f"v_rcp_f32 v{r2}, v{s}")
    O = RX
    A(f"v_mov_b32 v{O}, v{r}")
    A(f"v_mul_f32 v{O+1}, v{m}, v{r}")
    A(f"v_mul_f32 v{O+4}, v{r}, v{r2}")
    A(f"v_add_f32 v{O+5}, v{O+1}, v{t2}")
    A(f"v_mul_f32 v{O+5}, v{O+5}, v{r2}")
def h_rows_store(A):
    O = RX
    for i in (2, 3, 6, 7): A(f"v_mov_b32 v{O+i}, s76")
    A("v_lshlrev_b32 v3, 4, v2")
    A("v_add_u32 v4, 0x8000, v3")
    A("s_mov_b32 exec_lo, 0x01010101"); A("s_mov_b32 exec_hi, 0x01010101")
    A(f"buffer_store_dwordx4 {vr(O,4)}, v3, s[60:63], 0 offen sc1")
    A(f"buffer_store_dwordx4 {vr(O+4,4)}, v4, s[60:63], 0 offen sc1")
    A("s_mov_b64 exec, -1")
def h_strip_issue(A):
    A("s_lshr_b32 s35, s71, 2")
    A("s_cmp_lt_u32 s35, 30")
    A(f"s_cselect_b32 s12, s{PWQ}, s{PW1}")
    A(f"s_cselect_b32 s13, s{PWQ+1}, s{PW1+1}")
    A("s_cselect_b32 s33, 768, 0")
    A("s_cselect_b32 s34, 0, 30")
    A("s_add_u32 s33, s33, 3072")
    A("s_mul_i32 s14, s33, 640")
    A("s_mov_b32 s15, 0x00020000")
    A("s_cmp_lt_u32 s71, 216")
    A("s_cselect_b32 s14, s14, 0")
    A("s_sub_u32 s34, s35, s34")
    A("s_lshl_b32 s34, s34, 7")
    A("v_lshrrev_b32 v13, 3, v1")
    A("v_mul_lo_u32 v13, v13, s33")
    A("v_and_b32 v14, 7, v1")
    A("v_lshl_add_u32 v13, v14, 4, v13")
    A("v_add_u32 v13, s34, v13")
    A("s_and_b32 s34, s71, 3")
    A("s_mul_i32 s34, s34, 160")
    A("s_mul_i32 s34, s34, s33")
    A("s_lshl_b32 s33, s33, 3")
    for i in range(20):
        A(f"buffer_load_dwordx4 {vr(RW+4*i,4)}, v13, s[12:15], s34 offen" + NTF("s"))
        if i < 19: A("s_add_u32 s34, s34, s33")
def h_strip_p(A, lo, hi):
    C = 216
    for i in range(lo, hi):
        for e in range(4):
            w = RW + 4 * i + e
            if i == 0:
                A(f"v_lshlrev_b32 v{C+2*e}, 16, v{w}")
                A(f"v_and_b32 v{C+2*e+1}, 0xffff0000, v{w}")
            else:
                A(f"v_lshlrev_b32 v13, 16, v{w}")
                A(f"v_and_b32 v14, 0xffff0000, v{w}")
                A(f"v_add_f32 v{C+2*e}, v{C+2*e}, v13")
                A(f"v_add_f32 v{C+2*e+1}, v{C+2*e+1}, v14")
def h_strip_fin(A):
    C = 216; T = 224
    for mod in ("row_ror:8",):
        A("s_nop 1")
        for e in range(8):
            A(f"v_add_f32_dpp v{C+e}, v{C+e}, v{C+e} {mod} row_mask:0xf bank_mask:0xf")
    for op in ("v_permlane16_swap_b32", "v_permlane32_swap_b32"):
        for e in range(8): A(f"v_mov_b32 v{T+e}, v{C+e}")
        A("s_nop 1")
        for e in range(8): A(f"{op} v{C+e}, v{T+e}")
        A("s_nop 1")
        for e in range(8): A(f"v_add_f32 v{C+e}, v{C+e}, v{T+e}")
def h_strip_store(A):
    C = 216; T = 224
    A("v_lshrrev_b32 v13, 3, v1")
    A(f"v_mov_b32 v{T}, v{C}")
    for e in range(1, 8):
        A(f"v_cmp_eq_u32 vcc, {e}, v13")
        A("s_nop 1")
        A(f"v_cndmask_b32 v{T}, v{T}, v{C+e}, vcc")
    A(f"v_mov_b32 v{T+1}, s76")
    A("v_and_b32 v14, 7, v1")
    A("v_lshl_add_u32 v13, v14, 3, v13")
    A("s_lshr_b32 s33, s71, 2")
    A("s_lshl_b32 s33, s33, 9")
    A("s_and_b32 s34, s71, 3")
    A("s_lshl_b32 s34, s34, 15")
    A("s_add_u32 s33, s33, s34")
    A(f"s_add_u32 s33, s33, {CS_OFF - ST_OFF}")
    A("v_lshl_add_u32 v13, v13, 3, s33")
    A("s_cmp_lt_u32 s71, 216")
    A("s_cselect_b32 s33, 0, 0x40000000")
    A(f"buffer_store_dwordx2 {pr(T)}, v13, s[60:63], s33 offen sc1")

def h_pack_setup(A):
    A("s_cmp_ge_u32 s2, 96")
    A("s_cbranch_scc1 pk_n1")
    A("s_lshl_b32 s34, s2, 4"); A("s_mov_b32 s35, 4"); A("s_mov_b32 s36, 8"); A("s_movk_i32 s37, 1280")
    A(f"s_mov_b32 s16, s{PW2}"); A(f"s_mov_b32 s17, s{PW2+1}"); A(f"s_mov_b32 s18, {1536*1280}")
    A("s_lshl_b32 s84, s2, 10"); A(f"s_mov_b32 s85, {96*1024}"); A("s_mov_b32 s86, 10"); A("s_mov_b32 s32, 0")
    A("s_branch pk_go")
    A("pk_n1:")
    A("s_cmp_ge_u32 s2, 136")
    A("s_cbranch_scc1 pk_n2")
    A("s_sub_u32 s33, s2, 96")
    A("s_mul_i32 s34, s33, 20"); A("s_mov_b32 s35, 4"); A("s_mov_b32 s36, 8"); A("s_movk_i32 s37, 1280")
    A(f"s_mov_b32 s16, s{PWO}"); A(f"s_mov_b32 s17, s{PWO+1}"); A(f"s_mov_b32 s18, {640*1280}")
    A("s_lshl_b32 s84, s33, 10"); A(f"s_add_u32 s84, s84, {WOF_OFF - W2F_OFF}")
    A(f"s_mov_b32 s85, {40*1024}"); A("s_mov_b32 s86, 10"); A("s_mov_b32 s32, 0")
    A("s_cmp_lt_u32 s33, 32")
    A("s_cbranch_scc1 pk_go")
    A("s_sub_u32 s33, s33, 32")
    A("s_mul_i32 s34, s33, 80"); A("s_add_u32 s34, s34, 16"); A("s_mov_b32 s35, 40"); A("s_mov_b32 s36, 20")
    A("s_branch pk_go")
    A("pk_n2:")
    A("s_mov_b32 s34, 0"); A("s_mov_b32 s35, 0"); A("s_mov_b32 s36, 0"); A("s_mov_b32 s37, 0"); A("s_mov_b32 s32, 0")
    A(f"s_mov_b32 s16, s{PW1}"); A(f"s_mov_b32 s17, s{PW1+1}"); A("s_mov_b32 s18, 0")
    A("s_mov_b32 s84, 0x40000000"); A("s_mov_b32 s85, 0"); A("s_mov_b32 s86, 10")
    A("pk_go:")
    A("s_mov_b32 s19, 0x00020000")
    A("s_mul_i32 s38, s86, s78")
    A("s_add_u32 s32, s32, s38")
    A("s_mul_i32 s38, s32, s85")
    A("s_add_u32 s84, s84, s38")
    A("v_mul_u32_u24 v12, s35, v246")
    A("v_add_u32 v12, s34, v12")
    A("v_add_u32 v12, v12, v245")
    A("v_mul_u32_u24 v248, s36, v249")
    A("v_add_u32 v12, v12, v248")
    A("v_mul_lo_u32 v12, v12, s37")
    A("s_lshl_b32 s32, s32, 6")
    A("v_add_u32 v12, s32, v12")
    A("v_add_u32 v253, v12, v250")
    A("s_mov_b32 s88, s16"); A("s_mov_b32 s89, s17"); A("s_mov_b32 s90, s18"); A("s_mov_b32 s91, s19")
def h_pack_issue(A):
    A("s_mov_b32 m0, s77")
    A("s_mov_b32 s32, 0")
    for j in range(10):
        if j == 8:
            A("s_cmp_eq_u32 s86, 8")
            A("s_cselect_b32 s90, 0, s90")
        A("buffer_load_dwordx4 v253, s[88:91], s32 offen lds" + NTF("p"))
        A("s_add_u32 m0, m0, 1024")
        A("s_add_u32 s32, s32, 64")
def h_pack_finish(A):
    lab = A.label("pf")
    for j in range(10):
        A(f"ds_read_b64_tr_b16 {pr(64+4*j)}, v251 offset:{j*1024}")
        A(f"ds_read_b64_tr_b16 {pr(66+4*j)}, v251 offset:{j*1024+256}")
    A("s_waitcnt lgkmcnt(0)")
    for j in range(10):
        if j == 8:
            A("s_cmp_eq_u32 s86, 8")
            A(f"s_cbranch_scc1 {lab}")
        A(f"buffer_store_dwordx4 {vr(64+4*j,4)}, v247, s[64:67], s84 offen {STP}")
        A("s_add_u32 s84, s84, s85")
    A(f"{lab}:")

def h_pack_lanes(A):
    A("v_bfe_u32 v245, v1, 2, 2")
    A("v_lshrrev_b32 v246, 5, v1")
    A("v_lshlrev_b32 v247, 4, v1")
    A("v_bfe_u32 v249, v1, 4, 1")
    A("v_and_b32 v250, 3, v1")
    A("v_lshlrev_b32 v250, 4, v250")
    A("s_mov_b32 s78, s25")
    A("s_mul_i32 s77, s78, 10240")
    A("s_add_u32 s77, s77, 49152")
    A("v_lshl_add_u32 v251, v246, 3, v245")
    A("v_lshlrev_b32 v251, 6, v251")
    A("v_lshl_add_u32 v251, v249, 5, v251")
    A("v_and_b32 v252, 3, v1")
    A("v_lshl_add_u32 v251, v252, 3, v251")
    A("v_add_u32 v251, s77, v251")

def helper(A):
    A("k1_helper:")
    A("s_waitcnt lgkmcnt(0)")
    srd(A, 8, PX, XSZ)
    srd(A, 60, PWS, 0x30000, ST_OFF)
    srd(A, 20, PDBG, 256)
    srd(A, 64, PWS, 0x500000, W2F_OFF)
    if not os.environ.get("NOXLOC"):
        A("s_and_b32 s32, s2, 7")
        A("s_lshr_b32 s33, s2, 3")
        A("s_lshl_b32 s70, s32, 5")
        A("s_add_u32 s70, s70, s33")
        A("s_and_b32 s34, s32, 3")
        A("s_lshr_b32 s35, s32, 2")
        A("s_mul_i32 s35, s35, 27")
        A("s_add_u32 s35, s35, s33")
        A("s_mul_i32 s36, s34, 30")
        A("s_add_u32 s36, s36, s35")
        A("s_mul_i32 s37, s34, 24")
        A("s_add_u32 s37, s37, s35")
        A("s_add_u32 s37, s37, 90")
        A("s_cmp_lt_u32 s35, 30")
        A("s_cselect_b32 s71, s36, s37")
        A("s_cmp_lt_u32 s33, 27")
        A("s_cselect_b32 s71, s71, 255")
    else:
        A("s_mov_b32 s70, s2")
        A("s_mov_b32 s71, s2")
    A("v_mov_b32 v240, 0")
    A(f"v_mov_b32 v241, {NONL}")
    A("s_cmp_eq_u32 s25, 5")
    A("s_cbranch_scc1 k1_hB")
    if not HD: h_rows_issue(A)
    A("s_cmp_lg_u32 s2, 0")
    A("s_cbranch_scc1 k1_hA1")
    A("s_memrealtime s[32:33]")
    A("s_waitcnt lgkmcnt(0)")
    A("s_or_b32 s32, s32, 1")
    A("v_mov_b32 v13, s32")
    A("s_mov_b64 exec, 1")
    A("buffer_store_dword v13, v240, s[20:23], 0 offen sc1")
    srd(A, 16, PWS, 64, SYNC_OFF)
    A("buffer_store_dword v13, v240, s[16:19], 0 offen")
    A("s_mov_b64 exec, -1")
    A("k1_hA1:")
    srd(A, 16, PB1, 1536 * 2)
    A("s_cmp_eq_u32 s28, 2")
    A("s_cselect_b32 s18, s18, 0")
    A("v_add_u32 v15, s31, v1")
    A("v_lshlrev_b32 v15, 1, v15")
    for i in range(3):
        A(f"buffer_load_ushort v{232+i}, v15, s[16:19], 0 offen offset:{128*i}")
    if HD:
        for _ in range(HD): A("s_barrier")
        h_rows_issue(A)
        A("s_barrier")
        A("s_waitcnt vmcnt(0)")
    else:
        A("s_barrier")
        A("s_waitcnt vmcnt(3)")
    h_rows_p1a(A)
    A("s_barrier")
    A("buffer_load_dword v242, v240, s[20:23], 0 offen")
    h_rows_p1b(A)
    A("s_barrier")
    h_rows_p2a(A)
    A("s_barrier")
    h_rows_p2b(A)
    A("s_mov_b32 s34, 0")
    A("k1_hn:")
    A("s_waitcnt vmcnt(0)")
    A("v_readfirstlane_b32 s76, v242")
    A("s_nop 3")
    A("s_cmp_lg_u32 s76, 0")
    A("s_cbranch_scc1 k1_hn_ok")
    A("buffer_load_dword v242, v240, s[20:23], 0 offen sc1")
    A("s_add_u32 s34, s34, 1")
    A("s_sleep 1")
    A("s_cmp_lt_u32 s34, 400")
    A("s_cbranch_scc1 k1_hn")
    A("k1_hn_ok:")
    A("v_mov_b32 v242, s76")
    A("ds_write_b32 v241, v242")
    h_rows_store(A)
    A("s_waitcnt lgkmcnt(0)")
    A("s_barrier")
    A("s_cmp_eq_u32 s28, 3")
    A("s_cbranch_scc1 k1_done")
    for _ in range(3 - HD): A("s_barrier")
    A("v_add_u32 v243, s30, v1")
    A("v_lshlrev_b32 v243, 4, v243")
    A("s_cmp_eq_u32 s28, 2")
    A("s_cselect_b32 s32, 0x8000, 0")
    A("v_add_u32 v243, s32, v243")
    A("v_add_u32 v244, s29, v1")
    A("v_lshlrev_b32 v244, 3, v244")
    A(f"v_add_u32 v244, {CS_OFF - ST_OFF}, v244")
    A("s_mov_b32 s68, 0"); A("s_mov_b32 s69, 0x8000"); A("s_mov_b32 s74, 0x10000"); A("s_mov_b32 s75, 0x18000")
    def gl():
        for i in range(4):
            A(f"buffer_load_dwordx4 {vr(16+4*i,4)}, v243, s[60:63], 0 offen offset:{1024*i} sc1")
        for q in range(4):
            for i in range(3):
                A(f"buffer_load_dwordx2 {pr(32+6*q+2*i)}, v244, s[60:63], s{68+q if q < 2 else 72+q} offen offset:{512*i} sc1")
    gl()
    A("s_barrier")
    A("s_barrier")
    A("s_mov_b32 s34, 0")
    A("s_mov_b32 s38, 1")
    A("k1_hpoll:")
    A("s_waitcnt vmcnt(0)")
    A("v_xor_b32 v60, s76, v18")
    A("v_xor_b32 v61, s76, v22")
    A("v_or_b32 v60, v60, v61")
    for q in range(4):
        for i in range(2):
            A(f"v_xor_b32 v61, s76, v{33+6*q+2*i}")
            A("v_or_b32 v60, v60, v61")
    A("v_xor_b32 v62, s76, v26")
    A("v_xor_b32 v61, s76, v30")
    A("v_or_b32 v62, v62, v61")
    A("v_xor_b32 v63, s76, v37")
    for q in range(1, 4):
        A(f"v_xor_b32 v61, s76, v{37+6*q}")
        A("v_or_b32 v63, v63, v61")
    A("v_cmp_ne_u32 s[40:41], 0, v60")
    A("v_cmp_ne_u32 s[42:43], 0, v62")
    A("v_cmp_ne_u32 s[46:47], 0, v63")
    A("s_nop 3")
    A("s_cmp_eq_u32 s28, 2")
    A("s_cselect_b64 s[42:43], s[46:47], s[42:43]")
    A("s_or_b64 s[40:41], s[40:41], s[42:43]")
    A("s_cselect_b32 s32, 1, 0")
    A("s_cmp_eq_u32 s76, 0")
    A("s_cselect_b32 s32, 1, s32")
    A(f"s_cmp_eq_u32 s32, {0 if SLOW != '2' else 5}")
    A("s_cbranch_scc1 k1_hok")
    A("s_cmp_eq_u32 s38, 0")
    A("s_cbranch_scc0 k1_hp2")
    A("s_mov_b32 s38, 1")
    A("s_barrier")
    A("k1_hp2:")
    A("s_sleep 2")
    gl()
    A("s_add_u32 s34, s34, 1")
    A("s_cmp_eq_u32 s76, 0")
    A("s_cbranch_scc1 k1_hself")
    A(f"s_cmp_lt_u32 s34, {TIMEOUT}")
    A("s_cbranch_scc1 k1_hpoll")
    A("k1_hself:")
    A("s_lshl_b32 s32, s2, 18")
    A(f"s_add_u32 s32, s32, {PRIV_OFF}")
    A(f"s_add_u32 s60, s{PWS}, s32")
    A(f"s_addc_u32 s61, s{PWS+1}, 0")
    A("s_lshr_b32 s70, s30, 3")
    A("s_lshr_b32 s39, s27, 3")
    A("s_add_u32 s39, s39, s70")
    A("k1_hs1:")
    h_rows_issue(A)
    A("s_waitcnt vmcnt(0)")
    h_rows_p1(A); h_rows_p2(A); h_rows_store(A)
    A("s_add_u32 s70, s70, 1")
    A("s_cmp_lt_u32 s70, s39")
    A("s_cbranch_scc1 k1_hs1")
    A("s_lshr_b32 s71, s29, 4")
    A("s_lshr_b32 s39, s26, 4")
    A("s_add_u32 s39, s39, s71")
    A("k1_hs2:")
    h_strip_issue(A)
    A("s_waitcnt vmcnt(0)")
    h_strip_p(A, 0, 20); h_strip_fin(A); h_strip_store(A)
    A("s_add_u32 s71, s71, 1")
    A("s_cmp_lt_u32 s71, s39")
    A("s_cbranch_scc1 k1_hs2")
    A("s_waitcnt vmcnt(0)")
    gl()
    A("s_waitcnt vmcnt(0)")
    A("k1_hok:")
    A("v_lshlrev_b32 v12, 3, v1")
    A(f"v_add_u32 v12, {EP}, v12")
    A("v_lshlrev_b32 v13, 2, v1")
    A(f"v_add_u32 v13, {EP}, v13")
    for i in range(4):
        A(f"v_mul_f32 v{16+4*i}, s45, v{16+4*i}")
        A(f"v_mul_f32 v{17+4*i}, s45, v{17+4*i}")
        A(f"ds_write_b64 v12, {pr(16+4*i)} offset:{512*i}")
        A(f"ds_write_b32 v13, v{16+4*i} offset:{2048+256*i}")
        A(f"ds_write_b32 v13, v{17+4*i} offset:{3072+256*i}")
    for i in range(3):
        A(f"v_lshlrev_b32 v{232+i}, 16, v{232+i}")
        for q in range(1, 4):
            A(f"v_add_f32 v{32+2*i}, v{32+2*i}, v{32+6*q+2*i}")
        A(f"ds_write_b32 v13, v{32+2*i} offset:{CSL-EP+256*i}")
        A(f"ds_write_b32 v13, v{232+i} offset:{BIASL-EP+256*i}")
    A("s_waitcnt lgkmcnt(0)")
    A("s_cmp_eq_u32 s38, 0")
    A("s_cbranch_scc0 k1_hw")
    A("s_barrier")
    A("k1_hw:")
    A("s_barrier")
    A("s_endpgm")
    A("k1_hB:")
    PB = lambda i: 16 + 8 * i
    if os.environ.get("LATEB"):
        A("s_barrier")
        h_strip_issue(A)
        A("s_barrier")
        A("s_barrier")
        A("s_waitcnt vmcnt(5)")
        h_strip_p(A, 0, 10)
    else:
        for _ in range(HD): A("s_barrier")
        h_strip_issue(A)
        A("s_barrier")
        A("s_waitcnt vmcnt(15)")
        h_strip_p(A, 0, 5)
        A("s_barrier")
        A("s_waitcnt vmcnt(10)")
        h_strip_p(A, 5, 10)
        A("s_barrier")
    A("s_waitcnt vmcnt(0)")
    h_strip_p(A, 10, 15)
    A("s_barrier")
    h_strip_p(A, 15, 20)
    h_strip_fin(A)
    A("s_barrier")
    A("ds_read_b32 v242, v241")
    A("s_waitcnt lgkmcnt(0)")
    A("v_readfirstlane_b32 s76, v242")
    A("s_nop 1")
    h_strip_store(A)
    srd(A, 16, PWS, 32 * 64 * VREC, V_OFF)
    A("s_cmp_lt_u32 s2, 128")
    A("s_cselect_b32 s18, s18, 0")
    A("s_lshl_b32 s32, s2, 6")
    A("v_add_u32 v12, s32, v1")
    A("v_lshrrev_b32 v13, 2, v12")
    A("v_and_b32 v12, 3, v12")
    A(f"v_mul_u32_u24 v13, {VREC}, v13")
    A(f"v_mul_u32_u24 v12, {VSB}, v12")
    A("v_add_u32 v12, v12, v13")
    for i in range(4): A(f"v_mov_b32 v{124+i}, 0x3f803f80")
    A("buffer_store_dwordx4 v[124:127], v12, s[16:19], 0 offen offset:320")
    A("s_cmp_eq_u32 s28, 3")
    A("s_cbranch_scc1 k1_done")
    A("s_barrier")
    A("s_barrier")
    A("s_endpgm")

def loader(A, tag, TM, TN, ldw, isH):
    BM, BN = 2 * TM * 32, 2 * TN * 32
    AB = BM * 128; pitch = BN * 2; BB = 64 * pitch; SS = AB + BB
    nA = BM // 16; nB = BB // 2048; ND = nA + nB
    CPR = BN // 8
    A(f"{tag}:")
    for q in range(8, nA):
        A(f"v_add_u32 v{DV+q}, {q*8*1280 - (q&3)*1024}, v{5 + (q&1)}")
    A(f"s_mul_i32 s27, s25, {nB*1024}")
    A(f"s_add_u32 s27, s27, {AB}")
    def dmaA(q0=0):
        for q in range(q0, nA):
            if q % 4 == 0:
                A("s_add_u32 m0, s23, s26" if q == 0 else "s_add_u32 m0, m0, 4096")
                A("s_nop 0")
            A(f"buffer_load_dwordx4 v{DV+q}, s[8:11], s21 offen offset:{(q&3)*1024} lds" + NTF("a"))
    def dmaB():
        for q in range(nB):
            if q % 4 == 0:
                A("s_add_u32 m0, s23, s27" if q == 0 else "s_add_u32 m0, m0, 4096")
                A("s_nop 0")
            A(f"buffer_load_dwordx4 v{DV+nA+q}, s[12:15], s22 offen offset:{(q&3)*1024} lds" + NTF("b"))
    def adv():
        A("s_add_u32 s21, s21, 128")
        A(f"s_add_u32 s22, s22, {64*ldw}")
        if KROT:
            A("s_cmp_eq_u32 s21, 1280")
            A("s_cselect_b32 s21, 0, s21")
            A("s_cselect_b32 s22, 0, s22")
        A(f"s_add_u32 s23, s23, {SS}")
        A(f"s_cmp_eq_u32 s23, {3*SS}")
        A("s_cselect_b32 s23, 0, s23")
    dmaA(8)
    A(f"s_mul_i32 s41, s25, {nB*64}")
    A(f"s_lshl_b32 s42, s31, 1")
    for q in range(nB):
        A(f"v_add_u32 v7, s41, v1")
        if q: A(f"v_add_u32 v7, {q*64}, v7")
        if CPR == 16:
            A("v_lshrrev_b32 v8, 4, v7")
            A("v_and_b32 v9, 15, v7")
            A("v_and_b32 v10, 3, v8")
        else:
            A("v_mul_u32_u24 v8, 2731, v7")
            A("v_lshrrev_b32 v8, 16, v8")
            A("v_mul_u32_u24 v9, 24, v8")
            A("v_sub_u32 v9, v7, v9")
            A("v_bfe_u32 v10, v8, 1, 1")
        A("v_lshlrev_b32 v10, 2, v10")
        A("v_xor_b32 v9, v9, v10")
        A(f"v_mul_u32_u24 v8, {ldw}, v8")
        A("v_lshl_add_u32 v8, v9, 4, v8")
        A(f"v_add_u32 v8, s42, v8")
        if q & 3:
            A(f"v_subrev_u32 v{DV+nA+q}, {(q&3)*1024}, v8")
        else:
            A(f"v_mov_b32 v{DV+nA+q}, v8")
    srd(A, 12, PW1 if isH else PWQ, 640 * ldw)
    if KROT:
        A(f"s_mul_i32 s22, s21, {64*ldw//128}")
    dmaB(); adv()
    if not os.environ.get("LDOLD"):
        dmaB()
        A(f"s_waitcnt vmcnt({nB})")
        A("s_barrier")
        dmaA(); adv()
        A("s_mov_b32 s20, 1")
    A(f"{tag}_loop:")
    dmaA(); dmaB(); adv()
    A(f"s_waitcnt vmcnt({ND})")
    A("s_barrier")
    A("s_add_u32 s20, s20, 1")
    A(f"s_cmp_lt_u32 s20, {NST-1}")
    A(f"s_cbranch_scc1 {tag}_loop")
    A("s_branch k1_ld_pack")

def loader_tail(A):
    A("k1_ld_pack:")
    h_pack_lanes(A)
    h_pack_setup(A)
    srd(A, 64, PWS, 0x800000, W2F_OFF)
    h_pack_issue(A)
    A("s_cmp_eq_u32 s28, 3")
    A("s_cbranch_scc1 k1_ld_fin")
    A("s_waitcnt vmcnt(10)")
    A("s_barrier")
    A("s_barrier")
    A("k1_ld_fin:")
    A("s_waitcnt vmcnt(0)")
    h_pack_finish(A)
    A("s_endpgm")

def gemm_core(A, tag, TM, TN, transposed, ldw, isH):
    BM, BN = 2 * TM * 32, 2 * TN * 32
    AB = BM * 128; pitch = BN * 2; BB = 64 * pitch; SS = AB + BB
    CPR = BN // 8
    A("s_and_b32 s43, s25, 1")
    A("s_lshr_b32 s44, s25, 1")
    A("v_and_b32 v2, 31, v1")
    A("v_lshrrev_b32 v3, 5, v1")
    A("v_bfe_u32 v4, v2, 1, 3")
    A(f"s_mul_i32 s45, s43, {TM*32*128}")
    A("v_lshlrev_b32 v5, 7, v2")
    A("v_add_u32 v5, s45, v5")
    for kk in range(4):
        A(f"v_add_u32 v6, {2*kk}, v3")
        A("v_xor_b32 v6, v6, v4")
        A(f"v_lshl_add_u32 v{XAB+kk}, v6, 4, v5")
    A("v_bfe_u32 v6, v1, 2, 2")
    A("v_lshl_add_u32 v7, v3, 3, v6")
    A(f"v_mul_u32_u24 v7, {pitch}, v7")
    A("v_bfe_u32 v8, v1, 4, 1")
    A("v_lshl_add_u32 v7, v8, 5, v7")
    A("v_and_b32 v8, 3, v1")
    A("v_lshl_add_u32 v7, v8, 3, v7")
    A(f"v_add_u32 v7, {AB}, v7")
    if CPR != 16:
        A("v_lshrrev_b32 v6, 1, v6")
    A(f"s_mul_i32 s46, s44, {TN}")
    for u in range(TN):
        A(f"s_add_u32 s47, s46, {u}")
        A("v_xor_b32 v8, s47, v6")
        A(f"v_lshl_add_u32 v{WAB+u}, v8, 6, v7")
    for i in range(TM * TN * 16):
        A(f"v_mov_b32 v{ACC+i}, 0")
    def reads(kk, buf):
        L = []
        for t in range(TM):
            L.append(f"ds_read_b128 {vr(XF + (buf*4+t)*4, 4)}, v{XAC+kk} offset:{t*4096}")
        for u in range(TN):
            for i in range(2):
                L.append(f"ds_read_b64_tr_b16 {vr(WF + (buf*3+u)*4 + 2*i, 2)}, v{WAC+u} offset:{(16*kk+4*i)*pitch}")
        return L
    def mfmas(buf):
        L = []
        for t in range(TM):
            for u in range(TN):
                a = ACC + (t * TN + u) * 16
                x = vr(XF + (buf*4+t)*4, 4); w = vr(WF + (buf*3+u)*4, 4)
                o = (w, x) if transposed else (x, w)
                L.append(f"v_mfma_f32_32x32x16_bf16 {vr(a,16)}, {o[0]}, {o[1]}, {vr(a,16)}")
        return L
    def setcur():
        L = []
        for kk in range(4): L.append(f"v_add_u32 v{XAC+kk}, s24, v{XAB+kk}")
        for u in range(TN): L.append(f"v_add_u32 v{WAC+u}, s24, v{WAB+u}")
        return L
    A("s_mov_b32 s24, 0"); A("s_mov_b32 s20, 0")
    for l in setcur(): A(l)
    A("s_setprio 2")
    stamp(A, 1)
    A("s_waitcnt lgkmcnt(0)")
    A("s_barrier")
    stamp(A, 2)
    for l in reads(0, 0): A(l)
    A(f"{tag}_loop:")
    NM = TM * TN
    for kk in range(4):
        buf = kk & 1
        ms = mfmas(buf)
        slots = [[] for _ in ms]
        if kk < 3:
            A("s_waitcnt lgkmcnt(0)")
            rd = reads(kk + 1, buf ^ 1)
        else:
            if os.environ.get("ITST"):
                A("s_memtime s[90:91]")
            A("s_waitcnt lgkmcnt(0)")
            if os.environ.get("ITST"):
                A("s_memtime s[92:93]")
            if not BARM: A("s_barrier")
            if os.environ.get("ITST"):
                A("s_memtime s[94:95]")
                A("s_waitcnt lgkmcnt(0)")
                A("s_mul_i32 m0, s20, 3")
                A("s_nop 1")
                A("v_writelane_b32 v47, s90, m0")
                A("s_add_u32 m0, m0, 1")
                A("s_nop 1")
                A("v_writelane_b32 v47, s92, m0")
                A("s_add_u32 m0, m0, 1")
                A("s_nop 1")
                A("v_writelane_b32 v47, s94, m0")
            rd = reads(0, buf ^ 1)
        if kk == 3 and BARM:
            slots[0].append("s_barrier")
            for i, l in enumerate(rd):
                slots[i // 3].append(l)
        else:
            for i, l in enumerate(rd):
                slots[i // RPER].append(l)
        if kk == 1:
            slots[NM - 1] += [f"s_add_u32 s24, s24, {SS}", f"s_cmp_eq_u32 s24, {3*SS}", "s_cselect_b32 s24, 0, s24"]
        if kk == 2:
            sc = setcur()
            slots[NM - 2] += sc[:4]; slots[NM - 1] += sc[4:]
        if kk == 3:
            slots[NM - 1] += ["s_add_u32 s20, s20, 1", f"s_cmp_lt_u32 s20, {NST}"]
        for m, sl in zip(ms, slots):
            A(m)
            for l in sl: A(l)
    A(f"s_cbranch_scc1 {tag}_loop")
    A("s_waitcnt lgkmcnt(0)")
    stamp(A, 3)
    return SS

def fin(A):
    if os.environ.get("ITST"):
        srd(A, 72, PWS, 1 << 20, 0x4800000)
        A("s_lshl_b32 s76, s2, 2")
        A("s_add_u32 s76, s76, s25")
        A("s_lshl_b32 s76, s76, 8")
        A("v_and_b32 v1, 63, v0")
        A("v_lshlrev_b32 v1, 2, v1")
        A("v_mov_b32 v2, s80")
        A("v_sub_u32 v47, v47, v2")
        A("buffer_store_dword v47, v1, s[72:75], s76 offen")
    stamp(A, 4); stamp_flush(A, 5, PWS, 0, 25); tl_end(A, 0)
    A("s_endpgm")

def gen_k1(A):
    name = "k1_kernel"
    kernel_begin(A, name)
    A("s_cmp_ge_u32 s2, 256")
    A("s_cbranch_scc1 k1_done")
    stamp(A, 0); tl_start(A, 0)
    A("s_load_dwordx4 s[4:7], s[0:1], 0")
    A("s_load_dwordx4 s[48:51], s[0:1], 32")
    A("s_load_dwordx2 s[52:53], s[0:1], 16")
    A("s_load_dwordx2 s[54:55], s[0:1], 48")
    A("s_load_dwordx4 s[56:59], s[0:1], 72")
    A("v_lshrrev_b32 v1, 6, v0")
    A("s_and_b32 s32, s2, 7")
    A("v_readfirstlane_b32 s25, v1")
    A("v_and_b32 v1, 63, v0")
    A("s_lshr_b32 s33, s2, 3")
    A("s_lshr_b32 s34, s32, 2")
    A("s_and_b32 s35, s32, 3")
    A("s_mov_b32 s45, 1.0")
    A("s_cmp_ge_u32 s33, 15")
    A("s_cbranch_scc1 k1_dh")
    A("s_mul_i32 s36, s35, 15")
    A("s_add_u32 s36, s36, s33")
    A("s_lshr_b32 s75, s36, 2")
    A("s_and_b32 s38, s36, 3")
    A("s_lshl_b32 s39, s34, 2")
    A("s_add_u32 s38, s38, s39")
    A("s_lshl_b32 s30, s38, 8")
    A("s_lshl_b32 s31, s75, 7")
    A("s_mov_b32 s29, s31")
    A("s_movk_i32 s27, 256"); A("s_movk_i32 s26, 128")
    A("s_cmp_lt_u32 s75, 5")
    A(f"s_cselect_b32 s45, {f32hex(DH**-0.5 * math.log2(math.e))}, s45")
    A("s_cmp_ge_u32 s75, 10")
    A("s_cselect_b32 s28, 1, 0")
    A("s_branch k1_dd")
    A("k1_dh:")
    A("s_sub_u32 s36, s33, 15")
    A("s_lshr_b32 s37, s36, 3")
    A("s_lshl_b32 s38, s35, 1")
    A("s_add_u32 s37, s37, s38")
    A("s_and_b32 s38, s36, 7")
    A("s_lshl_b32 s39, s34, 3")
    A("s_add_u32 s38, s38, s39")
    A("s_lshl_b32 s30, s38, 7")
    A("s_mul_i32 s31, s37, 192")
    A("s_add_u32 s29, s31, 1920")
    A("s_movk_i32 s27, 128"); A("s_movk_i32 s26, 192")
    A("s_cmp_ge_u32 s33, 31")
    A("s_cselect_b32 s28, 3, 2")
    A("k1_dd:")
    A("s_cmp_lt_u32 s25, 6")
    A("s_cbranch_scc1 k1_other")
    A("s_sub_u32 s25, s25, 6")
    A("s_cmp_eq_u32 s28, 3")
    A("s_cbranch_scc0 k1_ld0")
    A("s_waitcnt lgkmcnt(0)")
    A("s_branch k1_ld_pack")
    A("k1_ld0:")
    A("v_lshrrev_b32 v2, 3, v1")
    A("v_and_b32 v3, 7, v1")
    A("v_lshrrev_b32 v4, 4, v1")
    A("s_lshr_b32 s40, s27, 1")
    A("s_mul_i32 s40, s40, s25")
    A("s_lshl_b32 s26, s40, 7")
    A("s_add_u32 s40, s40, s30")
    A("v_add_u32 v2, s40, v2")
    A("v_mul_u32_u24 v2, 1280, v2")
    A("v_xor_b32 v5, v3, v4")
    A("v_xor_b32 v6, 4, v5")
    A("v_lshl_add_u32 v5, v5, 4, v2")
    A("v_lshl_add_u32 v6, v6, 4, v2")
    for q in range(8):
        A(f"v_add_u32 v{DV+q}, {q*8*1280 - (q&3)*1024}, v{5 + (q&1)}")
    A("s_mov_b32 s21, 0"); A("s_mov_b32 s22, 0"); A("s_mov_b32 s23, 0")
    if KROT:
        A("s_and_b32 s21, s2, 7")
        if KROT == "2":
            A("s_and_b32 s21, s21, 3"); A("s_mul_i32 s21, s21, 5"); A("s_lshr_b32 s21, s21, 1")
        A("s_lshl_b32 s21, s21, 7")
    A("s_mov_b32 s20, 0")
    A("s_mov_b32 m0, s26")
    A("s_waitcnt lgkmcnt(0)")
    srd(A, 8, PX, XSZ)
    for q in range(8):
        if q == 4:
            A("s_add_u32 m0, m0, 4096"); A("s_nop 0")
        A(f"buffer_load_dwordx4 v{DV+q}, s[8:11], s21 offen offset:{(q&3)*1024} lds" + NTF("a"))
    A("s_cmp_eq_u32 s28, 2")
    A("s_cbranch_scc1 k1_ldh")
    loader(A, "k1_ldq", 4, 2, 3840, False)
    loader(A, "k1_ldh", 2, 3, 3072, True)
    loader_tail(A)
    A("k1_other:")
    A("s_cmp_ge_u32 s25, 4")
    A("s_cbranch_scc1 k1_helper")
    A("s_cmp_eq_u32 s28, 1")
    A("s_cbranch_scc1 k1_v")
    A("s_cmp_eq_u32 s28, 2")
    A("s_cbranch_scc1 k1_h")
    A("s_cmp_eq_u32 s28, 3")
    A("s_cbranch_scc1 k1_done")
    SS1 = gemm_core(A, "k1qk", 4, 2, True, 3840, False)
    A("v_and_b32 v2, 31, v1")
    A("v_lshrrev_b32 v3, 5, v1")
    A("s_lshl_b32 s32, s43, 10")
    A(f"s_add_u32 s32, s32, {EP}")
    A("v_lshl_add_u32 v12, v2, 3, s32")
    for t in range(4):
        A(f"ds_read_b64 {pr(4+2*t)}, v12 offset:{t*256}")
    A("s_lshl_b32 s32, s44, 8")
    A(f"s_add_u32 s32, s32, {CSL}")
    A("v_lshl_add_u32 v12, v3, 4, s32")
    for u in range(2):
        for j in range(4):
            A(f"ds_read_b128 {vr(48+16*u+4*j,4)}, v12 offset:{128*u+32*j}")
    A("s_cmp_ge_u32 s75, 5")
    A(f"s_cselect_b32 s36, {K_OFF - Q_OFF - 80*32768}, 0")
    srd(A, 16, PWS, K_OFF - Q_OFF + 80 * 32768, Q_OFF)
    A("s_lshl_b32 s38, s75, 4")
    A("s_lshl_b32 s32, s44, 3")
    A("s_add_u32 s38, s38, s32")
    A("s_lshl_b32 s38, s38, 15")
    A("s_add_u32 s38, s38, s36")
    A("s_lshl_b32 s32, s43, 7")
    A("s_add_u32 s32, s32, s30")
    A("s_lshl_b32 s32, s32, 4")
    A("s_add_u32 s38, s38, s32")
    for i in range(1, 4):
        A(f"s_add_u32 s{38+i}, s{37+i}, 65536")
    A("v_lshlrev_b32 v3, 15, v3")
    A("v_lshl_add_u32 v16, v2, 4, v3")
    A("s_waitcnt lgkmcnt(0)")
    for t in range(4):
        for u in range(2):
            a = ACC + (t * 2 + u) * 16
            T = 80
            for i in range(0, 16, 2):
                A(f"v_pk_mul_f32 {pr(T+i)}, {pr(48+16*u+i)}, {pr(4+2*t)} op_sel:[0,1] op_sel_hi:[1,1]")
            for i in range(0, 16, 2):
                A(f"v_pk_fma_f32 {pr(a+i)}, {pr(a+i)}, {pr(4+2*t)}, {pr(T+i)} op_sel_hi:[1,0,1] neg_lo:[0,0,1] neg_hi:[0,0,1]")
            p = 18 + ((t * 2 + u) % 3) * 8
            for i in range(8):
                A(f"v_cvt_pk_bf16_f32 v{p+i}, v{a+2*i}, v{a+2*i+1}")
            A("s_nop 0")
            for j in range(2):
                A(f"v_permlane32_swap_b32 v{p+4*j}, v{p+4*j+2}")
                A(f"v_permlane32_swap_b32 v{p+4*j+1}, v{p+4*j+3}")
            for j in range(2):
                A(f"buffer_store_dwordx4 v[{p+4*j}:{p+4*j+3}], v16, s[16:19], s{38+u*2+j} offen offset:{t*512} {STF}")
    fin(A)
    A("k1_v:")
    gemm_core(A, "k1v", 4, 2, False, 3840, False)
    A("v_and_b32 v2, 31, v1")
    A("v_lshrrev_b32 v3, 5, v1")
    A("s_lshl_b32 s32, s43, 9")
    A(f"s_add_u32 s32, s32, {EP+2048}")
    A("v_lshl_add_u32 v12, v3, 4, s32")
    A("s_lshl_b32 s32, s44, 8")
    A(f"s_add_u32 s32, s32, {CSL}")
    A("v_lshl_add_u32 v13, v2, 2, s32")
    for u in range(2):
        A(f"ds_read_b32 v{4+2*u}, v13 offset:{128*u}")
    def vrd(t):
        b = 48 + (t & 1) * 32
        for j in range(4):
            A(f"ds_read_b128 {vr(b+4*j,4)}, v12 offset:{t*128+32*j}")
            A(f"ds_read_b128 {vr(b+16+4*j,4)}, v12 offset:{1024+t*128+32*j}")
    vrd(0)
    srd(A, 16, PWS, 32 * 64 * VREC, V_OFF)
    A("s_lshr_b32 s38, s30, 5")
    A("s_lshl_b32 s32, s43, 2")
    A("s_add_u32 s38, s38, s32")
    A(f"s_mul_i32 s38, s38, {VREC}")
    for t in range(1, 4):
        A(f"s_add_u32 s{38+t}, s{37+t}, {VREC}")
    A("s_sub_u32 s33, s31, 1280")
    A("s_lshl_b32 s32, s44, 6")
    A("s_add_u32 s33, s33, s32")
    A(f"v_mul_u32_u24 v3, {VSB}, v3")
    A(f"s_mov_b32 s34, {64*VREC}")
    for u in range(2):
        A("v_add_u32 v8, s33, v2")
        if u: A("v_add_u32 v8, 32, v8")
        A("v_mul_u32_u24 v9, 3277, v8")
        A("v_lshrrev_b32 v9, 16, v9")
        A("v_mul_u32_u24 v10, 20, v9")
        A("v_sub_u32 v10, v8, v10")
        A("v_lshl_add_u32 v10, v10, 4, v3")
        A("v_mul_lo_u32 v9, v9, s34")
        A(f"v_add_u32 v{16+u}, v9, v10")
    for t in range(4):
        A("s_waitcnt lgkmcnt(0)")
        if t < 3: vrd(t + 1)
        b = 48 + (t & 1) * 32
        for u in range(2):
            a = ACC + (t * 2 + u) * 16
            T = 112
            for i in range(0, 16, 2):
                A(f"v_pk_mul_f32 {pr(T+i)}, {pr(b+16+i)}, {pr(4+2*u)} op_sel_hi:[1,0]")
            for i in range(0, 16, 2):
                A(f"v_pk_fma_f32 {pr(a+i)}, {pr(a+i)}, {pr(b+i)}, {pr(T+i)} neg_lo:[0,0,1] neg_hi:[0,0,1]")
            p = 18 + ((t * 2 + u) % 3) * 8
            for i in range(8):
                A(f"v_cvt_pk_bf16_f32 v{p+i}, v{a+2*i}, v{a+2*i+1}")
            A(f"buffer_store_dwordx4 v[{p}:{p+3}], v{16+u}, s[16:19], s{38+t} offen {STF}")
            A(f"buffer_store_dwordx4 v[{p+4}:{p+7}], v{16+u}, s[16:19], s{38+t} offen offset:{2*VSB} {STF}")
    fin(A)
    A("k1_h:")
    SS2 = gemm_core(A, "k1h", 2, 3, True, 3072, True)
    A("v_and_b32 v2, 31, v1")
    A("v_lshrrev_b32 v3, 5, v1")
    A("s_lshl_b32 s32, s43, 9")
    A(f"s_add_u32 s32, s32, {EP}")
    A("v_lshl_add_u32 v12, v2, 3, s32")
    for t in range(2):
        A(f"ds_read_b64 {pr(8+2*t)}, v12 offset:{t*256}")
    A("s_mul_i32 s32, s44, 384")
    A(f"s_add_u32 s32, s32, {CSL}")
    A("v_lshl_add_u32 v12, v3, 4, s32")
    def hrd(u):
        b = 48 + (u & 1) * 32
        for j in range(4):
            A(f"ds_read_b128 {vr(b+4*j,4)}, v12 offset:{128*u+32*j}")
            A(f"ds_read_b128 {vr(b+16+4*j,4)}, v12 offset:{768+128*u+32*j}")
    hrd(0)
    srd(A, 16, PWS, 64 * 96 * 1024, HB_OFF)
    A("s_lshr_b32 s33, s30, 5")
    A("s_lshl_b32 s32, s43, 1")
    A("s_add_u32 s33, s33, s32")
    A("s_mul_i32 s33, s33, 96")
    A("s_lshr_b32 s32, s31, 4")
    A("s_add_u32 s33, s33, s32")
    A("s_mul_i32 s32, s44, 6")
    A("s_add_u32 s33, s33, s32")
    A("s_lshl_b32 s36, s33, 10")
    A(f"s_add_u32 s37, s36, {96*1024}")
    A("v_lshlrev_b32 v16, 4, v1")
    A("v_add_u32 v17, 4096, v16")
    c0 = -2.0 * math.sqrt(2.0 / math.pi) * math.log2(math.e)
    c1 = c0 * 0.044715
    A(f"v_mov_b32 v4, {f32hex(c0)}"); A(f"v_mov_b32 v5, {f32hex(c1)}")
    A("v_mov_b32 v6, 1.0")
    T = 112
    for u in range(3):
        A("s_waitcnt lgkmcnt(0)")
        if u < 2: hrd(u + 1)
        b = 48 + (u & 1) * 32
        for t in range(2):
            a = ACC + (t * 3 + u) * 16
            p = 18 + ((u * 2 + t) % 3) * 8
            ab = pr(8 + 2 * t)
            for i in range(0, 16, 2): A(f"v_pk_fma_f32 {pr(T+i)}, {pr(b+i)}, {ab}, {pr(b+16+i)} op_sel:[0,1,0] op_sel_hi:[1,1,1] neg_lo:[1,0,0] neg_hi:[1,0,0]")
            for i in range(0, 16, 2): A(f"v_pk_fma_f32 {pr(a+i)}, {pr(a+i)}, {ab}, {pr(T+i)} op_sel_hi:[1,0,1]")
            for i in range(0, 16, 2): A(f"v_pk_mul_f32 {pr(T+i)}, {pr(a+i)}, {pr(a+i)}")
            for i in range(0, 16, 2): A(f"v_pk_fma_f32 {pr(T+i)}, {pr(T+i)}, v[4:5], v[4:5] op_sel:[0,1,0] op_sel_hi:[1,1,0]")
            for i in range(0, 16, 2): A(f"v_pk_mul_f32 {pr(T+i)}, {pr(T+i)}, {pr(a+i)}")
            for i in range(16): A(f"v_exp_f32 v{T+i}, v{T+i}")
            for i in range(0, 16, 2): A(f"v_pk_add_f32 {pr(T+i)}, {pr(T+i)}, v[6:7] op_sel_hi:[1,0]")
            for i in range(16): A(f"v_rcp_f32 v{T+i}, v{T+i}")
            for i in range(0, 16, 2): A(f"v_pk_mul_f32 {pr(T+i)}, {pr(T+i)}, {pr(a+i)}")
            for i in range(8): A(f"v_cvt_pk_bf16_f32 v{p+i}, v{T+2*i}, v{T+2*i+1}")
            va = 16 if u < 2 else 17
            off = (2 * u * 1024) % 4096
            A(f"buffer_store_dwordx4 v[{p}:{p+3}], v{va}, s[16:19], s{36+t} offen offset:{off} {STH}")
            A(f"buffer_store_dwordx4 v[{p+4}:{p+7}], v{va}, s[16:19], s{36+t} offen offset:{off+1024} {STH}")
    fin(A)
    helper(A)
    A("k1_done:")
    A("s_endpgm")
    assert 3 * max(SS1, SS2) <= EP
    return kernel_desc(name, 256), f"; @launch kernel=k1_kernel grid=(256,1,1) block=(512,1,1) lds={LDS_BYTES}"
```

```python
from asmlib import *
from layout import *
import math, os

NST = 10
ACC = 128
XF = 48
WF = 80
DV = 16
XAB, WAB, XAC, WAC = 28, 32, 36, 40
PX, PWQ, PW1, PB1, PWO, PW2, PDBG, PWS = 4, 6, 48, 50, 52, 54, 56, 58
SS = 45056
EP = 3 * SS
CSL = EP + 4096
BIASL = CSL + 1024
LDS_BYTES = EP + 6144
ST_OFF = XN_OFF
CS_OFF = XN_OFF + 0x10000
PRIV_OFF = 0x8000000
NONL = EP + 6136
TIMEOUT = int(os.environ.get("K1TIMEOUT", "400"))
SLOW = os.environ.get("K1SLOW", "")
NT = os.environ.get("NT", "rsp")
def NTF(c): return " nt" if c in NT else ""
STF = os.environ.get("STF", "")
STH = os.environ.get("STH", "")
STP = os.environ.get("STP", "")
KROT = os.environ.get("KROT", "1")
HD = int(os.environ.get("HD", "0"))
BARM = int(os.environ.get("BARM", "0"))
RPER = int(os.environ.get("RPER", "2"))
pr = lambda r: f"v[{r}:{r+1}]"

def bf16r(A, v):
    A(f"v_cvt_pk_bf16_f32 v{v}, v{v}, v{v}")
    A(f"v_and_b32 v{v}, 0xffff0000, v{v}")

RX, UX, RW = 16, 56, 136
def h_rows_issue(A):
    A("v_lshrrev_b32 v2, 3, v1")
    A("s_lshl_b32 s32, s70, 3")
    A("v_add_u32 v2, s32, v2")
    A("v_mul_u32_u24 v3, 1280, v2")
    A("v_and_b32 v4, 7, v1")
    A("v_lshl_add_u32 v3, v4, 4, v3")
    for j in range(10):
        A(f"buffer_load_dwordx4 {vr(RX+4*j,4)}, v3, s[8:11], 0 offen offset:{128*j}" + NTF("r"))
def red8(A, v):
    for mod in ("quad_perm:[1,0,3,2]", "quad_perm:[2,3,0,1]", "row_half_mirror"):
        A("s_nop 1")
        A(f"v_add_f32_dpp v{v}, v{v}, v{v} {mod} row_mask:0xf bank_mask:0xf")
def h_rows_p1a(A):
    for i in range(20):
        A(f"v_lshlrev_b32 v{UX+2*i}, 16, v{RX+i}")
        A(f"v_and_b32 v{UX+2*i+1}, 0xffff0000, v{RX+i}")
    A(f"v_add_f32 v5, v{UX}, v{UX+1}")
    A(f"v_add_f32 v6, v{UX+2}, v{UX+3}")
    for i in range(4, 40, 2):
        A(f"v_add_f32 v5, v5, v{UX+i}")
        A(f"v_add_f32 v6, v6, v{UX+i+1}")
def h_rows_p1b(A):
    for i in range(20, 40):
        A(f"v_lshlrev_b32 v{UX+2*i}, 16, v{RX+i}")
        A(f"v_and_b32 v{UX+2*i+1}, 0xffff0000, v{RX+i}")
    for i in range(40, 80, 2):
        A(f"v_add_f32 v5, v5, v{UX+i}")
        A(f"v_add_f32 v6, v6, v{UX+i+1}")
    A("v_add_f32 v5, v5, v6")
    red8(A, 5)
    A(f"v_mul_f32 v7, {f32hex(1.0/640)}, v5")
def h_rows_p1(A):
    h_rows_p1a(A); h_rows_p1b(A)
def h_rows_p2a(A):
    A("v_mov_b32 v5, 0"); A("v_mov_b32 v6, 0")
    for i in range(0, 52, 2):
        A(f"v_sub_f32 v13, v{UX+i}, v7")
        A(f"v_sub_f32 v14, v{UX+i+1}, v7")
        A("v_fmac_f32 v5, v13, v13")
        A("v_fmac_f32 v6, v14, v14")
def h_rows_p2(A):
    h_rows_p2a(A); h_rows_p2b(A)
def h_rows_p2b(A):
    s, mean, var, m, r, t2, r2 = 5, 7, 8, 9, 10, 11, 12
    for i in range(52, 80, 2):
        A(f"v_sub_f32 v13, v{UX+i}, v7")
        A(f"v_sub_f32 v14, v{UX+i+1}, v7")
        A("v_fmac_f32 v5, v13, v13")
        A("v_fmac_f32 v6, v14, v14")
    A("v_add_f32 v5, v5, v6")
    red8(A, 5)
    A(f"v_mul_f32 v{var}, {f32hex(1.0/640)}, v{s}")
    A(f"v_mov_b32 v{m}, v{mean}"); bf16r(A, m)
    A(f"v_mov_b32 v{s}, v{var}"); bf16r(A, s)
    A(f"v_add_f32 v{s}, {f32hex(1e-5)}, v{s}"); bf16r(A, s)
    A(f"v_sqrt_f32 v{s}, v{s}"); A("s_nop 0"); bf16r(A, s)
    A(f"v_rcp_f32 v{r}, v{s}")
    A(f"v_sub_f32 v{t2}, v{mean}, v{m}")
    A(f"v_mul_f32 v{t2}, v{t2}, v{r}"); bf16r(A, t2)
    A(f"v_mul_f32 v{s}, v{var}, v{r}")
    A(f"v_mul_f32 v{s}, v{s}, v{r}"); bf16r(A, s)
    A(f"v_add_f32 v{s}, {f32hex(1e-5)}, v{s}"); bf16r(A, s)
    A(f"v_sqrt_f32 v{s}, v{s}"); A("s_nop 0"); bf16r(A, s)
    A(f"v_rcp_f32 v{r2}, v{s}")
    O = RX
    A(f"v_mov_b32 v{O}, v{r}")
    A(f"v_mul_f32 v{O+1}, v{m}, v{r}")
    A(f"v_mul_f32 v{O+4}, v{r}, v{r2}")
    A(f"v_add_f32 v{O+5}, v{O+1}, v{t2}")
    A(f"v_mul_f32 v{O+5}, v{O+5}, v{r2}")
def h_rows_store(A):
    O = RX
    for i in (2, 3, 6, 7): A(f"v_mov_b32 v{O+i}, s76")
    A("v_lshlrev_b32 v3, 4, v2")
    A("v_add_u32 v4, 0x8000, v3")
    A("s_mov_b32 exec_lo, 0x01010101"); A("s_mov_b32 exec_hi, 0x01010101")
    A(f"buffer_store_dwordx4 {vr(O,4)}, v3, s[60:63], 0 offen sc1")
    A(f"buffer_store_dwordx4 {vr(O+4,4)}, v4, s[60:63], 0 offen sc1")
    A("s_mov_b64 exec, -1")
def h_strip_issue(A):
    A("s_lshr_b32 s35, s71, 2")
    A("s_cmp_lt_u32 s35, 30")
    A(f"s_cselect_b32 s12, s{PWQ}, s{PW1}")
    A(f"s_cselect_b32 s13, s{PWQ+1}, s{PW1+1}")
    A("s_cselect_b32 s33, 768, 0")
    A("s_cselect_b32 s34, 0, 30")
    A("s_add_u32 s33, s33, 3072")
    A("s_mul_i32 s14, s33, 640")
    A("s_mov_b32 s15, 0x00020000")
    A("s_cmp_lt_u32 s71, 216")
    A("s_cselect_b32 s14, s14, 0")
    A("s_sub_u32 s34, s35, s34")
    A("s_lshl_b32 s34, s34, 7")
    A("v_lshrrev_b32 v13, 3, v1")
    A("v_mul_lo_u32 v13, v13, s33")
    A("v_and_b32 v14, 7, v1")
    A("v_lshl_add_u32 v13, v14, 4, v13")
    A("v_add_u32 v13, s34, v13")
    A("s_and_b32 s34, s71, 3")
    A("s_mul_i32 s34, s34, 160")
    A("s_mul_i32 s34, s34, s33")
    A("s_lshl_b32 s33, s33, 3")
    for i in range(20):
        A(f"buffer_load_dwordx4 {vr(RW+4*i,4)}, v13, s[12:15], s34 offen" + NTF("s"))
        if i < 19: A("s_add_u32 s34, s34, s33")
def h_strip_p(A, lo, hi):
    C = 216
    for i in range(lo, hi):
        for e in range(4):
            w = RW + 4 * i + e
            if i == 0:
                A(f"v_lshlrev_b32 v{C+2*e}, 16, v{w}")
                A(f"v_and_b32 v{C+2*e+1}, 0xffff0000, v{w}")
            else:
                A(f"v_lshlrev_b32 v13, 16, v{w}")
                A(f"v_and_b32 v14, 0xffff0000, v{w}")
                A(f"v_add_f32 v{C+2*e}, v{C+2*e}, v13")
                A(f"v_add_f32 v{C+2*e+1}, v{C+2*e+1}, v14")
def h_strip_fin(A):
    C = 216; T = 224
    for mod in ("row_ror:8",):
        A("s_nop 1")
        for e in range(8):
            A(f"v_add_f32_dpp v{C+e}, v{C+e}, v{C+e} {mod} row_mask:0xf bank_mask:0xf")
    for op in ("v_permlane16_swap_b32", "v_permlane32_swap_b32"):
        for e in range(8): A(f"v_mov_b32 v{T+e}, v{C+e}")
        A("s_nop 1")
        for e in range(8): A(f"{op} v{C+e}, v{T+e}")
        A("s_nop 1")
        for e in range(8): A(f"v_add_f32 v{C+e}, v{C+e}, v{T+e}")
def h_strip_store(A):
    C = 216; T = 224
    A("v_lshrrev_b32 v13, 3, v1")
    A(f"v_mov_b32 v{T}, v{C}")
    for e in range(1, 8):
        A(f"v_cmp_eq_u32 vcc, {e}, v13")
        A("s_nop 1")
        A(f"v_cndmask_b32 v{T}, v{T}, v{C+e}, vcc")
    A(f"v_mov_b32 v{T+1}, s76")
    A("v_and_b32 v14, 7, v1")
    A("v_lshl_add_u32 v13, v14, 3, v13")
    A("s_lshr_b32 s33, s71, 2")
    A("s_lshl_b32 s33, s33, 9")
    A("s_and_b32 s34, s71, 3")
    A("s_lshl_b32 s34, s34, 15")
    A("s_add_u32 s33, s33, s34")
    A(f"s_add_u32 s33, s33, {CS_OFF - ST_OFF}")
    A("v_lshl_add_u32 v13, v13, 3, s33")
    A("s_cmp_lt_u32 s71, 216")
    A("s_cselect_b32 s33, 0, 0x40000000")
    A(f"buffer_store_dwordx2 {pr(T)}, v13, s[60:63], s33 offen sc1")

def h_pack_setup(A):
    A("s_cmp_ge_u32 s2, 96")
    A("s_cbranch_scc1 pk_n1")
    A("s_lshl_b32 s34, s2, 4"); A("s_mov_b32 s35, 4"); A("s_mov_b32 s36, 8"); A("s_movk_i32 s37, 1280")
    A(f"s_mov_b32 s16, s{PW2}"); A(f"s_mov_b32 s17, s{PW2+1}"); A(f"s_mov_b32 s18, {1536*1280}")
    A("s_lshl_b32 s84, s2, 10"); A(f"s_mov_b32 s85, {96*1024}"); A("s_mov_b32 s86, 10"); A("s_mov_b32 s32, 0")
    A("s_branch pk_go")
    A("pk_n1:")
    A("s_cmp_ge_u32 s2, 136")
    A("s_cbranch_scc1 pk_n2")
    A("s_sub_u32 s33, s2, 96")
    A("s_mul_i32 s34, s33, 20"); A("s_mov_b32 s35, 4"); A("s_mov_b32 s36, 8"); A("s_movk_i32 s37, 1280")
    A(f"s_mov_b32 s16, s{PWO}"); A(f"s_mov_b32 s17, s{PWO+1}"); A(f"s_mov_b32 s18, {640*1280}")
    A("s_lshl_b32 s84, s33, 10"); A(f"s_add_u32 s84, s84, {WOF_OFF - W2F_OFF}")
    A(f"s_mov_b32 s85, {40*1024}"); A("s_mov_b32 s86, 10"); A("s_mov_b32 s32, 0")
    A("s_cmp_lt_u32 s33, 32")
    A("s_cbranch_scc1 pk_go")
    A("s_sub_u32 s33, s33, 32")
    A("s_mul_i32 s34, s33, 80"); A("s_add_u32 s34, s34, 16"); A("s_mov_b32 s35, 40"); A("s_mov_b32 s36, 20")
    A("s_branch pk_go")
    A("pk_n2:")
    A("s_mov_b32 s34, 0"); A("s_mov_b32 s35, 0"); A("s_mov_b32 s36, 0"); A("s_mov_b32 s37, 0"); A("s_mov_b32 s32, 0")
    A(f"s_mov_b32 s16, s{PW1}"); A(f"s_mov_b32 s17, s{PW1+1}"); A("s_mov_b32 s18, 0")
    A("s_mov_b32 s84, 0x40000000"); A("s_mov_b32 s85, 0"); A("s_mov_b32 s86, 10")
    A("pk_go:")
    A("s_mov_b32 s19, 0x00020000")
    A("s_mul_i32 s38, s86, s78")
    A("s_add_u32 s32, s32, s38")
    A("s_mul_i32 s38, s32, s85")
    A("s_add_u32 s84, s84, s38")
    A("v_mul_u32_u24 v12, s35, v246")
    A("v_add_u32 v12, s34, v12")
    A("v_add_u32 v12, v12, v245")
    A("v_mul_u32_u24 v248, s36, v249")
    A("v_add_u32 v12, v12, v248")
    A("v_mul_lo_u32 v12, v12, s37")
    A("s_lshl_b32 s32, s32, 6")
    A("v_add_u32 v12, s32, v12")
    A("v_add_u32 v253, v12, v250")
    A("s_mov_b32 s88, s16"); A("s_mov_b32 s89, s17"); A("s_mov_b32 s90, s18"); A("s_mov_b32 s91, s19")
def h_pack_issue(A):
    A("s_mov_b32 s32, 0")
    A("s_mov_b32 m0, s77")
    for j in range(10):
        if j == 8:
            A("s_cmp_eq_u32 s86, 8")
            A("s_cselect_b32 s90, 0, s90")
        A("buffer_load_dwordx4 v253, s[88:91], s32 offen lds" + NTF("p"))
        A("s_add_u32 m0, m0, 1024")
        A("s_add_u32 s32, s32, 64")
def h_pack_finish(A):
    lab = A.label("pf")
    for j in range(10):
        A(f"ds_read_b64_tr_b16 {pr(64+4*j)}, v251 offset:{j*1024}")
        A(f"ds_read_b64_tr_b16 {pr(66+4*j)}, v251 offset:{j*1024+256}")
    A("s_waitcnt lgkmcnt(0)")
    for j in range(10):
        if j == 8:
            A("s_cmp_eq_u32 s86, 8")
            A(f"s_cbranch_scc1 {lab}")
        A(f"buffer_store_dwordx4 {vr(64+4*j,4)}, v247, s[64:67], s84 offen {STP}")
        A("s_add_u32 s84, s84, s85")
    A(f"{lab}:")

def h_pack_lanes(A):
    A("v_bfe_u32 v245, v1, 2, 2")
    A("v_lshrrev_b32 v246, 5, v1")
    A("v_lshlrev_b32 v247, 4, v1")
    A("v_bfe_u32 v249, v1, 4, 1")
    A("v_and_b32 v250, 3, v1")
    A("v_lshlrev_b32 v250, 4, v250")
    A("s_mov_b32 s78, s25")
    A("s_mul_i32 s77, s78, 10240")
    A(f"s_add_u32 s77, s77, {SS}")
    A("v_lshl_add_u32 v251, v246, 3, v245")
    A("v_lshlrev_b32 v251, 6, v251")
    A("v_lshl_add_u32 v251, v249, 5, v251")
    A("v_and_b32 v252, 3, v1")
    A("v_lshl_add_u32 v251, v252, 3, v251")
    A("v_add_u32 v251, s77, v251")

def helper(A):
    A("k1_helper:")
    A("s_waitcnt lgkmcnt(0)")
    srd(A, 8, PX, XSZ)
    srd(A, 60, PWS, 0x30000, ST_OFF)
    srd(A, 20, PDBG, 256)
    A("s_and_b32 s32, s2, 7")
    A("s_lshr_b32 s33, s2, 3")
    A("s_lshl_b32 s70, s32, 5")
    A("s_add_u32 s70, s70, s33")
    A("s_and_b32 s34, s32, 3")
    A("s_lshr_b32 s35, s32, 2")
    A("s_mul_i32 s35, s35, 28")
    A("s_add_u32 s35, s35, s33")
    A("s_lshl_b32 s36, s34, 5")
    A("s_add_u32 s36, s36, s35")
    A("s_cmp_lt_u32 s36, 120")
    A("s_cselect_b32 s36, s36, 255")
    A("s_mul_i32 s37, s34, 24")
    A("s_add_u32 s37, s37, s35")
    A("s_add_u32 s37, s37, 88")
    A("s_cmp_lt_u32 s35, 32")
    A("s_cselect_b32 s71, s36, s37")
    A("s_cmp_lt_u32 s33, 28")
    A("s_cselect_b32 s71, s71, 255")
    A("v_mov_b32 v240, 0")
    A(f"v_mov_b32 v241, {NONL}")
    A("s_cmp_eq_u32 s25, 5")
    A("s_cbranch_scc1 k1_hB")
    h_rows_issue(A)
    A("s_cmp_lg_u32 s2, 0")
    A("s_cbranch_scc1 k1_hA1")
    A("s_memrealtime s[32:33]")
    A("s_waitcnt lgkmcnt(0)")
    A("s_or_b32 s32, s32, 1")
    A("v_mov_b32 v13, s32")
    A("s_mov_b64 exec, 1")
    A("buffer_store_dword v13, v240, s[20:23], 0 offen sc1")
    srd(A, 16, PWS, 64, SYNC_OFF)
    A("buffer_store_dword v13, v240, s[16:19], 0 offen")
    A("s_mov_b64 exec, -1")
    A("k1_hA1:")
    srd(A, 16, PB1, 1536 * 2)
    A("v_add_u32 v15, s29, v1")
    A("v_lshlrev_b32 v15, 1, v15")
    for i in range(2):
        A(f"buffer_load_ushort v{232+i}, v15, s[16:19], 0 offen offset:{128*i}")
    A("s_barrier")
    A("s_waitcnt vmcnt(2)")
    h_rows_p1a(A)
    A("s_barrier")
    A("buffer_load_dword v242, v240, s[20:23], 0 offen")
    h_rows_p1b(A)
    A("s_barrier")
    h_rows_p2a(A)
    A("s_barrier")
    h_rows_p2b(A)
    A("s_mov_b32 s34, 0")
    A("k1_hn:")
    A("s_waitcnt vmcnt(0)")
    A("v_readfirstlane_b32 s76, v242")
    A("s_nop 3")
    A("s_cmp_lg_u32 s76, 0")
    A("s_cbranch_scc1 k1_hn_ok")
    A("buffer_load_dword v242, v240, s[20:23], 0 offen sc1")
    A("s_add_u32 s34, s34, 1")
    A("s_sleep 1")
    A("s_cmp_lt_u32 s34, 400")
    A("s_cbranch_scc1 k1_hn")
    A("k1_hn_ok:")
    A("v_mov_b32 v242, s76")
    A("ds_write_b32 v241, v242")
    h_rows_store(A)
    A("s_waitcnt lgkmcnt(0)")
    A("s_barrier")
    A("v_add_u32 v243, s30, v1")
    A("v_lshlrev_b32 v243, 4, v243")
    A("v_add_u32 v245, 0x8000, v243")
    A("s_add_u32 s32, s29, 1920")
    A("s_cmp_eq_u32 s28, 2")
    A("s_cselect_b32 s33, 1792, s31")
    A("v_add_u32 v244, s33, v1")
    A("v_lshlrev_b32 v244, 3, v244")
    A(f"v_add_u32 v244, {CS_OFF - ST_OFF}, v244")
    A("v_add_u32 v246, s32, v1")
    A("v_lshlrev_b32 v246, 3, v246")
    A(f"v_add_u32 v246, {CS_OFF - ST_OFF}, v246")
    A("v_and_b32 v247, 31, v1")
    A("v_add_u32 v247, s32, v247")
    A("v_lshlrev_b32 v247, 3, v247")
    A(f"v_add_u32 v247, {CS_OFF - ST_OFF + 512}, v247")
    A("s_mov_b32 s68, 0"); A("s_mov_b32 s69, 0x8000"); A("s_mov_b32 s74, 0x10000"); A("s_mov_b32 s75, 0x18000")
    def gl():
        for i in range(2):
            A(f"buffer_load_dwordx4 {vr(16+4*i,4)}, v243, s[60:63], 0 offen offset:{1024*i} sc1")
            A(f"buffer_load_dwordx4 {vr(24+4*i,4)}, v245, s[60:63], 0 offen offset:{1024*i} sc1")
        for q in range(4):
            so = 68 + q if q < 2 else 72 + q
            A(f"buffer_load_dwordx2 {pr(32+8*q)}, v244, s[60:63], s{so} offen sc1")
            A(f"buffer_load_dwordx2 {pr(34+8*q)}, v244, s[60:63], s{so} offen offset:512 sc1")
            A(f"buffer_load_dwordx2 {pr(36+8*q)}, v246, s[60:63], s{so} offen sc1")
            A(f"buffer_load_dwordx2 {pr(38+8*q)}, v247, s[60:63], s{so} offen sc1")
    A("s_barrier")
    A("s_barrier")
    A("s_barrier")
    gl()
    A("s_barrier")
    A("s_barrier")
    A("s_mov_b32 s34, 0")
    A("k1_hpoll:")
    A("s_waitcnt vmcnt(0)")
    A("v_xor_b32 v64, s76, v18")
    for r in (22, 26, 30) + tuple(33 + 2 * q for q in range(16)):
        A(f"v_xor_b32 v65, s76, v{r}")
        A("v_or_b32 v64, v64, v65")
    A("v_cmp_ne_u32 s[40:41], 0, v64")
    A("s_nop 3")
    A("s_or_b64 s[40:41], s[40:41], s[40:41]")
    A("s_cselect_b32 s32, 1, 0")
    A("s_cmp_eq_u32 s76, 0")
    A("s_cselect_b32 s32, 1, s32")
    A(f"s_cmp_eq_u32 s32, {0 if SLOW != '2' else 5}")
    A("s_cbranch_scc1 k1_hok")
    gl()
    A("s_add_u32 s34, s34, 1")
    A("s_cmp_eq_u32 s76, 0")
    A("s_cbranch_scc1 k1_hself")
    A(f"s_cmp_lt_u32 s34, {TIMEOUT}")
    A("s_cbranch_scc1 k1_hpoll")
    A("k1_hself:")
    A("s_lshl_b32 s32, s2, 18")
    A(f"s_add_u32 s32, s32, {PRIV_OFF}")
    A(f"s_add_u32 s60, s{PWS}, s32")
    A(f"s_addc_u32 s61, s{PWS+1}, 0")
    A("s_lshr_b32 s70, s30, 3")
    A("s_add_u32 s39, s70, 16")
    A("k1_hs1:")
    h_rows_issue(A)
    A("s_waitcnt vmcnt(0)")
    h_rows_p1(A); h_rows_p2(A); h_rows_store(A)
    A("s_add_u32 s70, s70, 1")
    A("s_cmp_lt_u32 s70, s39")
    A("s_cbranch_scc1 k1_hs1")
    A("s_cmp_eq_u32 s28, 2")
    A("s_cselect_b32 s71, 1792, s31")
    A("s_lshr_b32 s71, s71, 4")
    A("s_add_u32 s39, s71, 8")
    A("s_mov_b32 s38, 0")
    A("k1_hs2:")
    h_strip_issue(A)
    A("s_waitcnt vmcnt(0)")
    h_strip_p(A, 0, 20); h_strip_fin(A); h_strip_store(A)
    A("s_add_u32 s71, s71, 1")
    A("s_cmp_lt_u32 s71, s39")
    A("s_cbranch_scc1 k1_hs2")
    A("s_cmp_lg_u32 s38, 0")
    A("s_cbranch_scc1 k1_hs3")
    A("s_mov_b32 s38, 1")
    A("s_add_u32 s71, s29, 1920")
    A("s_lshr_b32 s71, s71, 6")
    A("s_lshl_b32 s71, s71, 2")
    A("s_add_u32 s39, s71, 8")
    A("s_branch k1_hs2")
    A("k1_hs3:")
    A("s_waitcnt vmcnt(0)")
    gl()
    A("s_waitcnt vmcnt(0)")
    A("k1_hok:")
    A("v_lshlrev_b32 v12, 3, v1")
    A(f"v_add_u32 v12, {EP}, v12")
    A("v_lshlrev_b32 v13, 2, v1")
    A(f"v_add_u32 v13, {EP}, v13")
    for i in range(2):
        A(f"v_mul_f32 v{16+4*i}, s45, v{16+4*i}")
        A(f"v_mul_f32 v{17+4*i}, s45, v{17+4*i}")
        A(f"ds_write_b64 v12, {pr(16+4*i)} offset:{512*i}")
        A(f"ds_write_b64 v12, {pr(24+4*i)} offset:{1024+512*i}")
        A(f"ds_write_b32 v13, v{16+4*i} offset:{2048+256*i}")
        A(f"ds_write_b32 v13, v{17+4*i} offset:{3072+256*i}")
    for i in range(4):
        for q in range(1, 4):
            A(f"v_add_f32 v{32+2*i}, v{32+2*i}, v{32+8*q+2*i}")
        A(f"ds_write_b32 v13, v{32+2*i} offset:{CSL-EP+256*i}")
    for i in range(2):
        A(f"v_lshlrev_b32 v{232+i}, 16, v{232+i}")
        A(f"ds_write_b32 v13, v{232+i} offset:{BIASL-EP+256*i}")
    A("s_waitcnt lgkmcnt(0)")
    A("s_barrier")
    A("s_endpgm")
    A("k1_hB:")
    h_strip_issue(A)
    A("s_barrier")
    A("s_waitcnt vmcnt(15)")
    h_strip_p(A, 0, 5)
    A("s_barrier")
    A("s_waitcnt vmcnt(10)")
    h_strip_p(A, 5, 10)
    A("s_barrier")
    A("s_waitcnt vmcnt(0)")
    h_strip_p(A, 10, 15)
    A("s_barrier")
    h_strip_p(A, 15, 20)
    h_strip_fin(A)
    A("s_barrier")
    A("ds_read_b32 v242, v241")
    A("s_waitcnt lgkmcnt(0)")
    A("v_readfirstlane_b32 s76, v242")
    A("s_nop 1")
    h_strip_store(A)
    srd(A, 16, PWS, 32 * 64 * VREC, V_OFF)
    A("s_cmp_lt_u32 s2, 128")
    A("s_cselect_b32 s18, s18, 0")
    A("s_lshl_b32 s32, s2, 6")
    A("v_add_u32 v12, s32, v1")
    A("v_lshrrev_b32 v13, 2, v12")
    A("v_and_b32 v12, 3, v12")
    A(f"v_mul_u32_u24 v13, {VREC}, v13")
    A(f"v_mul_u32_u24 v12, {VSB}, v12")
    A("v_add_u32 v12, v12, v13")
    for i in range(4): A(f"v_mov_b32 v{124+i}, 0x3f803f80")
    A("buffer_store_dwordx4 v[124:127], v12, s[16:19], 0 offen offset:320")
    A("s_barrier")
    A("s_barrier")
    A("s_endpgm")

AB = 16384; BQ0 = 16384; BH0 = 32768
def loader(A):
    A("v_lshrrev_b32 v2, 3, v1")
    A("v_and_b32 v3, 7, v1")
    A("v_lshrrev_b32 v4, 4, v1")
    A("s_lshl_b32 s40, s25, 6")
    A("s_lshl_b32 s26, s25, 13")
    A(f"s_add_u32 s27, s26, {BQ0}")
    A("s_mul_i32 s44, s25, 6144")
    A(f"s_add_u32 s44, s44, {BH0}")
    A("s_add_u32 s40, s40, s30")
    A("v_add_u32 v2, s40, v2")
    A("v_mul_u32_u24 v2, 1280, v2")
    A("v_xor_b32 v5, v3, v4")
    A("v_xor_b32 v6, 4, v5")
    A("v_lshl_add_u32 v5, v5, 4, v2")
    A("v_lshl_add_u32 v6, v6, 4, v2")
    for q in range(8):
        A(f"v_add_u32 v{DV+q}, {q*8*1280 - (q&3)*1024}, v{5 + (q&1)}")
    A("v_and_b32 v9, 15, v1")
    A("v_lshlrev_b32 v10, 2, v4")
    A("v_xor_b32 v9, v9, v10")
    A("s_lshl_b32 s41, s25, 5")
    A("v_add_u32 v8, s41, v4")
    A("v_mul_u32_u24 v8, 3840, v8")
    A("v_lshl_add_u32 v8, v9, 4, v8")
    A("s_lshl_b32 s42, s31, 1")
    A("v_add_u32 v8, s42, v8")
    for q in range(8):
        A(f"v_add_u32 v{DV+8+q}, {q*4*3840 - (q&3)*1024}, v8")
    A("s_and_b32 s21, s2, 7")
    A("s_mul_i32 s22, s21, 245760")
    A("s_mul_i32 s43, s21, 196608")
    A("s_lshl_b32 s21, s21, 7")
    A("s_mov_b32 s23, 0")
    def part(n, base, r0, srdr, so, c):
        for q in range(n):
            if q % 4 == 0:
                A(f"s_add_u32 m0, s23, {base}" if q == 0 else "s_add_u32 m0, m0, 4096")
                A("s_nop 0")
            A(f"buffer_load_dwordx4 v{r0+q}, {srdr}, {so} offen offset:{(q&3)*1024} lds" + NTF(c))
    pA = lambda: part(8, "s26", DV, "s[8:11]", "s21", "a")
    pQ = lambda: part(8, "s27", DV + 8, "s[12:15]", "s22", "b")
    pH = lambda: part(6, "s44", DV + 16, "s[68:71]", "s43", "b")
    def adv():
        A("s_add_u32 s21, s21, 128")
        A("s_add_u32 s22, s22, 245760")
        A("s_add_u32 s43, s43, 196608")
        A("s_cmp_eq_u32 s21, 1280")
        A("s_cselect_b32 s21, 0, s21")
        A("s_cselect_b32 s22, 0, s22")
        A("s_cselect_b32 s43, 0, s43")
        A(f"s_add_u32 s23, s23, {SS}")
        A(f"s_cmp_eq_u32 s23, {3*SS}")
        A("s_cselect_b32 s23, 0, s23")
    A("s_waitcnt lgkmcnt(0)")
    srd(A, 8, PX, XSZ)
    srd(A, 12, PWQ, 640 * 3840)
    A("s_cmp_eq_u32 s28, 2")
    A("s_cselect_b32 s14, 0, s14")
    pA(); pQ()
    A("s_mul_i32 s41, s25, 384")
    A("s_lshl_b32 s42, s29, 1")
    for q in range(6):
        A("v_add_u32 v7, s41, v1")
        if q: A(f"v_add_u32 v7, {q*64}, v7")
        A("v_mul_u32_u24 v8, 5462, v7")
        A("v_lshrrev_b32 v8, 16, v8")
        A("v_mul_u32_u24 v9, 12, v8")
        A("v_sub_u32 v9, v7, v9")
        A("v_mul_u32_u24 v8, 3072, v8")
        A("v_lshl_add_u32 v8, v9, 4, v8")
        A("v_add_u32 v8, s42, v8")
        if q & 3: A(f"v_subrev_u32 v{DV+16+q}, {(q&3)*1024}, v8")
        else: A(f"v_mov_b32 v{DV+16+q}, v8")
    srd(A, 68, PW1, 640 * 3072)
    pH(); adv()
    pA()
    A("s_waitcnt vmcnt(8)")
    A("s_barrier")
    pQ(); pH(); adv()
    A("s_mov_b32 s20, 1")
    A("k1_ld_loop:")
    pA(); pQ(); pH(); adv()
    A("s_waitcnt vmcnt(22)")
    A("s_barrier")
    A("s_add_u32 s20, s20, 1")
    A(f"s_cmp_lt_u32 s20, {NST-1}")
    A("s_cbranch_scc1 k1_ld_loop")
    h_pack_lanes(A)
    h_pack_setup(A)
    srd(A, 64, PWS, 0x800000, W2F_OFF)
    h_pack_issue(A)
    A("s_waitcnt vmcnt(10)")
    A("s_barrier")
    A("s_barrier")
    A("s_waitcnt vmcnt(0)")
    h_pack_finish(A)
    A("s_endpgm")

XFj = 48
WFj = 56
ACCj = 128
XA, WA, HA = 28, 32, 36
XC, WC, HC = 37, 41, 45
def gemm_core(A, tag, transposed):
    A("v_and_b32 v2, 31, v1")
    A("v_lshrrev_b32 v3, 5, v1")
    A("v_bfe_u32 v4, v2, 1, 3")
    A("s_lshl_b32 s46, s25, 12")
    A("v_lshlrev_b32 v5, 7, v2")
    A("v_add_u32 v5, s46, v5")
    for kk in range(4):
        A(f"v_add_u32 v6, {2*kk}, v3")
        A("v_xor_b32 v6, v6, v4")
        A(f"v_lshl_add_u32 v{XA+kk}, v6, 4, v5")
    A("v_bfe_u32 v6, v1, 2, 2")
    A("v_lshl_add_u32 v7, v3, 3, v6")
    A("v_bfe_u32 v8, v1, 4, 1")
    A("v_lshlrev_b32 v8, 5, v8")
    A("v_and_b32 v9, 3, v1")
    A("v_lshl_add_u32 v8, v9, 3, v8")
    A("v_lshl_add_u32 v9, v7, 8, v8")
    A(f"v_add_u32 v9, {BQ0}, v9")
    for u in range(4):
        A(f"v_xor_b32 v10, {u}, v6")
        A(f"v_lshl_add_u32 v{WA+u}, v10, 6, v9")
    A("v_mul_u32_u24 v9, 192, v7")
    A("v_add_u32 v9, v9, v8")
    A(f"v_add_u32 v{HA}, {BH0}, v9")
    for i in range(7 * 16):
        A(f"v_mov_b32 v{ACCj+i}, 0")
    def reads(kk, buf):
        L = [f"ds_read_b128 {vr(XFj + buf*4, 4)}, v{XC+kk}"]
        for u in range(7):
            for i in range(2):
                d = vr(WFj + (buf*7+u)*4 + 2*i, 2)
                if u < 4: L.append(f"ds_read_b64_tr_b16 {d}, v{WC+u} offset:{(16*kk+4*i)*256}")
                else: L.append(f"ds_read_b64_tr_b16 {d}, v{HC} offset:{(16*kk+4*i)*192 + (u-4)*64}")
        return L
    def mf(buf, u):
        a = ACCj + u * 16
        x = vr(XFj + buf*4, 4); w = vr(WFj + (buf*7+u)*4, 4)
        o = (w, x) if (transposed or u >= 4) else (x, w)
        return f"v_mfma_f32_32x32x16_bf16 {vr(a,16)}, {o[0]}, {o[1]}, {vr(a,16)}"
    def setcur():
        return [f"v_add_u32 v{XC+i}, s24, v{XA+i}" for i in range(9)]
    A("s_mov_b32 s24, 0"); A("s_mov_b32 s20, 0")
    for l in setcur(): A(l)
    A("s_setprio 2")
    stamp(A, 1)
    A("s_waitcnt lgkmcnt(0)")
    A("s_barrier")
    stamp(A, 2)
    for l in reads(0, 0): A(l)
    A(f"{tag}_loop:")
    for kk in range(4):
        buf = kk & 1
        slots = [[] for _ in range(7)]
        A("s_waitcnt lgkmcnt(0)")
        if kk == 3: A("s_barrier")
        rd = reads((kk + 1) % 4, buf ^ 1)
        for i, l in enumerate(rd):
            slots[i // 3].append(l)
        if kk == 1:
            slots[6] += [f"s_add_u32 s24, s24, {SS}", f"s_cmp_eq_u32 s24, {3*SS}", "s_cselect_b32 s24, 0, s24"]
        if kk == 2:
            sc = setcur()
            slots[5] += sc[:5]; slots[6] += sc[5:]
        if kk == 3:
            slots[6] += ["s_add_u32 s20, s20, 1", f"s_cmp_lt_u32 s20, {NST}"]
        for u in range(7):
            A(mf(buf, u))
            for l in slots[u]: A(l)
    A(f"s_cbranch_scc1 {tag}_loop")
    A("s_waitcnt lgkmcnt(0)")
    stamp(A, 3)

def h_epilogue(A):
    A("s_lshl_b32 s32, s25, 8")
    A(f"s_add_u32 s32, s32, {EP+1024}")
    A("v_and_b32 v2, 31, v1")
    A("v_lshrrev_b32 v3, 5, v1")
    A("v_lshl_add_u32 v12, v2, 3, s32")
    A("ds_read_b64 v[8:9], v12")
    A(f"v_lshlrev_b32 v12, 4, v3")
    A(f"v_add_u32 v12, {CSL+512}, v12")
    def hrd(u):
        b = 48 + (u & 1) * 32
        for j in range(4):
            A(f"ds_read_b128 {vr(b+4*j,4)}, v12 offset:{128*u+32*j}")
            A(f"ds_read_b128 {vr(b+16+4*j,4)}, v12 offset:{512+128*u+32*j}")
    hrd(0)
    srd(A, 16, PWS, 64 * 96 * 1024, HB_OFF)
    A("s_lshr_b32 s33, s30, 5")
    A("s_add_u32 s33, s33, s25")
    A("s_mul_i32 s33, s33, 96")
    A("s_lshr_b32 s32, s29, 4")
    A("s_add_u32 s33, s33, s32")
    A("s_lshl_b32 s36, s33, 10")
    A("v_lshlrev_b32 v16, 4, v1")
    A("v_add_u32 v17, 4096, v16")
    c0 = -2.0 * math.sqrt(2.0 / math.pi) * math.log2(math.e)
    A(f"v_mov_b32 v4, {f32hex(c0)}"); A(f"v_mov_b32 v5, {f32hex(c0*0.044715)}")
    A("v_mov_b32 v6, 1.0")
    T = 112
    for u in range(3):
        A("s_waitcnt lgkmcnt(0)")
        if u < 2: hrd(u + 1)
        b = 48 + (u & 1) * 32
        a = ACCj + (4 + u) * 16
        p = 18 + ((u + 1) % 3) * 8
        ab = "v[8:9]"
        for i in range(0, 16, 2): A(f"v_pk_fma_f32 {pr(T+i)}, {pr(b+i)}, {ab}, {pr(b+16+i)} op_sel:[0,1,0] op_sel_hi:[1,1,1] neg_lo:[1,0,0] neg_hi:[1,0,0]")
        for i in range(0, 16, 2): A(f"v_pk_fma_f32 {pr(a+i)}, {pr(a+i)}, {ab}, {pr(T+i)} op_sel_hi:[1,0,1]")
        for i in range(0, 16, 2): A(f"v_pk_mul_f32 {pr(T+i)}, {pr(a+i)}, {pr(a+i)}")
        for i in range(0, 16, 2): A(f"v_pk_fma_f32 {pr(T+i)}, {pr(T+i)}, v[4:5], v[4:5] op_sel:[0,1,0] op_sel_hi:[1,1,0]")
        for i in range(0, 16, 2): A(f"v_pk_mul_f32 {pr(T+i)}, {pr(T+i)}, {pr(a+i)}")
        for i in range(16): A(f"v_exp_f32 v{T+i}, v{T+i}")
        for i in range(0, 16, 2): A(f"v_pk_add_f32 {pr(T+i)}, {pr(T+i)}, v[6:7] op_sel_hi:[1,0]")
        for i in range(16): A(f"v_rcp_f32 v{T+i}, v{T+i}")
        for i in range(0, 16, 2): A(f"v_pk_mul_f32 {pr(T+i)}, {pr(T+i)}, {pr(a+i)}")
        for i in range(8): A(f"v_cvt_pk_bf16_f32 v{p+i}, v{T+2*i}, v{T+2*i+1}")
        va = 16 if u < 2 else 17
        off = (2 * u * 1024) % 4096
        A(f"buffer_store_dwordx4 v[{p}:{p+3}], v{va}, s[16:19], s36 offen offset:{off}")
        A(f"buffer_store_dwordx4 v[{p+4}:{p+7}], v{va}, s[16:19], s36 offen offset:{off+1024}")
    stamp(A, 4); stamp_flush(A, 5, PWS, 0, 25); tl_end(A, 0)
    A("s_endpgm")

def gen_k1(A):
    name = "k1_kernel"
    kernel_begin(A, name)
    A("s_cmp_ge_u32 s2, 256")
    A("s_cbranch_scc1 k1_done")
    stamp(A, 0); tl_start(A, 0)
    A("s_load_dwordx4 s[4:7], s[0:1], 0")
    A("s_load_dwordx4 s[48:51], s[0:1], 32")
    A("s_load_dwordx2 s[52:53], s[0:1], 16")
    A("s_load_dwordx2 s[54:55], s[0:1], 48")
    A("s_load_dwordx4 s[56:59], s[0:1], 72")
    A("v_lshrrev_b32 v1, 6, v0")
    A("s_and_b32 s32, s2, 7")
    A("v_readfirstlane_b32 s25, v1")
    A("v_and_b32 v1, 63, v0")
    A("s_lshr_b32 s33, s2, 3")
    A("s_lshr_b32 s34, s32, 2")
    A("s_and_b32 s35, s32, 3")
    A("s_lshl_b32 s75, s35, 2")
    A("s_lshr_b32 s36, s33, 3")
    A("s_add_u32 s75, s75, s36")
    A("s_and_b32 s38, s33, 7")
    A("s_lshl_b32 s39, s34, 3")
    A("s_add_u32 s38, s38, s39")
    A("s_lshl_b32 s30, s38, 7")
    A("s_lshl_b32 s31, s75, 7")
    A("s_mul_i32 s29, s75, 96")
    A("s_mov_b32 s45, 1.0")
    A("s_cmp_lt_u32 s75, 5")
    A(f"s_cselect_b32 s45, {f32hex(DH**-0.5 * math.log2(math.e))}, s45")
    A("s_cmp_ge_u32 s75, 10")
    A("s_cselect_b32 s28, 1, 0")
    A("s_cmp_eq_u32 s75, 15")
    A("s_cselect_b32 s28, 2, s28")
    A("s_cmp_lt_u32 s25, 6")
    A("s_cbranch_scc1 k1_other")
    A("s_sub_u32 s25, s25, 6")
    loader(A)
    A("k1_other:")
    A("s_cmp_ge_u32 s25, 4")
    A("s_cbranch_scc1 k1_helper")
    A("s_cmp_eq_u32 s28, 1")
    A("s_cbranch_scc1 k1_v")
    gemm_core(A, "k1qk", True)
    A("s_cmp_eq_u32 s28, 2")
    A("s_cbranch_scc1 k1_hep")
    A("s_lshl_b32 s32, s25, 8")
    A(f"s_add_u32 s32, s32, {EP}")
    A("v_lshl_add_u32 v12, v2, 3, s32")
    A("ds_read_b64 v[4:5], v12")
    A("v_lshlrev_b32 v12, 4, v3")
    A(f"v_add_u32 v12, {CSL}, v12")
    for u in range(4):
        for j in range(4):
            A(f"ds_read_b128 {vr(48+16*u+4*j,4)}, v12 offset:{128*u+32*j}")
    A("s_cmp_ge_u32 s75, 5")
    A(f"s_cselect_b32 s36, {K_OFF - Q_OFF - 80*32768}, 0")
    srd(A, 16, PWS, K_OFF - Q_OFF + 80 * 32768, Q_OFF)
    A("s_lshl_b32 s38, s75, 19")
    A("s_add_u32 s38, s38, s36")
    A("s_lshl_b32 s32, s25, 5")
    A("s_add_u32 s32, s32, s30")
    A("s_lshl_b32 s32, s32, 4")
    A("s_add_u32 s38, s38, s32")
    A("v_lshlrev_b32 v3, 15, v3")
    A("v_lshl_add_u32 v16, v2, 4, v3")
    for u in range(4):
        A(f"s_waitcnt lgkmcnt({12-4*u})")
        a = ACCj + u * 16
        T = 112
        for i in range(0, 16, 2):
            A(f"v_pk_mul_f32 {pr(T+i)}, {pr(48+16*u+i)}, v[4:5] op_sel:[0,1] op_sel_hi:[1,1]")
        for i in range(0, 16, 2):
            A(f"v_pk_fma_f32 {pr(a+i)}, {pr(a+i)}, v[4:5], {pr(T+i)} op_sel_hi:[1,0,1] neg_lo:[0,0,1] neg_hi:[0,0,1]")
        p = 18 + (u % 3) * 8
        for i in range(8):
            A(f"v_cvt_pk_bf16_f32 v{p+i}, v{a+2*i}, v{a+2*i+1}")
        A("s_nop 0")
        for j in range(2):
            A(f"v_permlane32_swap_b32 v{p+4*j}, v{p+4*j+2}")
            A(f"v_permlane32_swap_b32 v{p+4*j+1}, v{p+4*j+3}")
        for j in range(2):
            A(f"buffer_store_dwordx4 v[{p+4*j}:{p+4*j+3}], v16, s[16:19], s38 offen")
            A("s_add_u32 s38, s38, 65536")
    A("k1_hep:")
    h_epilogue(A)
    A("k1_v:")
    gemm_core(A, "k1v", False)
    A("s_lshl_b32 s32, s25, 7")
    A(f"s_add_u32 s32, s32, {EP+2048}")
    A("v_lshl_add_u32 v12, v3, 4, s32")
    A("v_lshlrev_b32 v13, 2, v2")
    A(f"v_add_u32 v13, {CSL}, v13")
    for u in range(4):
        A(f"ds_read_b32 v{4+2*u}, v13 offset:{128*u}")
    for j in range(4):
        A(f"ds_read_b128 {vr(48+4*j,4)}, v12 offset:{32*j}")
        A(f"ds_read_b128 {vr(64+4*j,4)}, v12 offset:{1024+32*j}")
    srd(A, 16, PWS, 32 * 64 * VREC, V_OFF)
    A("s_lshr_b32 s38, s30, 5")
    A("s_add_u32 s38, s38, s25")
    A(f"s_mul_i32 s38, s38, {VREC}")
    A("s_sub_u32 s33, s31, 1280")
    A(f"v_mul_u32_u24 v3, {VSB}, v3")
    A(f"s_mov_b32 s34, {64*VREC}")
    for u in range(4):
        A("v_add_u32 v12, s33, v2")
        if u: A(f"v_add_u32 v12, {32*u}, v12")
        A("v_mul_u32_u24 v13, 3277, v12")
        A("v_lshrrev_b32 v13, 16, v13")
        A("v_mul_u32_u24 v14, 20, v13")
        A("v_sub_u32 v14, v12, v14")
        A("v_lshl_add_u32 v14, v14, 4, v3")
        A("v_mul_lo_u32 v13, v13, s34")
        A(f"v_add_u32 v{80+u}, v13, v14")
    A("s_waitcnt lgkmcnt(0)")
    for u in range(4):
        a = ACCj + u * 16
        T = 112
        for i in range(0, 16, 2):
            A(f"v_pk_mul_f32 {pr(T+i)}, {pr(64+i)}, {pr(4+2*u)} op_sel_hi:[1,0]")
        for i in range(0, 16, 2):
            A(f"v_pk_fma_f32 {pr(a+i)}, {pr(a+i)}, {pr(48+i)}, {pr(T+i)} neg_lo:[0,0,1] neg_hi:[0,0,1]")
        p = 18 + (u % 3) * 8
        for i in range(8):
            A(f"v_cvt_pk_bf16_f32 v{p+i}, v{a+2*i}, v{a+2*i+1}")
        A(f"buffer_store_dwordx4 v[{p}:{p+3}], v{80+u}, s[16:19], s38 offen")
        A(f"buffer_store_dwordx4 v[{p+4}:{p+7}], v{80+u}, s[16:19], s38 offen offset:{2*VSB}")
    A("s_branch k1_hep")
    helper(A)
    A("k1_done:")
    A("s_endpgm")
    return kernel_desc(name, 256), f"; @launch kernel=k1_kernel grid=(256,1,1) block=(512,1,1) lds={LDS_BYTES}"
```

```python
from asmlib import *
from layout import *
import math, os

QA1, QA2, QB1, QB2 = 16, 20, 22, 26
B2R = 28
VW = 36
SA, SB = 68, 84
PA, PB = 100, 108
OA, OB_ = 116, 132
KF = [(148, 152), (154, 158)]
VF = [(160, 164), (168, 172)]
MO, M5 = 176, 192
MF = 208
F5 = 240
VK1, VK2, VV = 4, 5, 6
VP = 8
VD = [12, 34, 35]
L16 = 47
KVSZ = (V_OFF - K_OFF) + 32 * 64 * VREC
SLOT = 24576
XCH = 0
WL = 2 * SLOT
FLAG = WL + 8 * 12288
LDS_BYTES = FLAG + 64
OOB = 0x40000

NT = os.environ.get("NT", "")
def NTF(c): return " nt" if c in NT else ""
def m16(d, a, b, c):
    return f"v_mfma_f32_32x32x16_bf16 {vr(d,16)}, {vr(a,4)}, {vr(b,4)}, {c}"
def m8(d, a, b, c):
    return f"v_mfma_f32_32x32x8_bf16 {vr(d,16)}, {vr(a,2)}, {vr(b,2)}, {c}"

def phase(out, s, p, mf, slots):
    E = lambda i: f"v_exp_f32 v{s+i}, v{s+i}"
    C = lambda i: f"v_cvt_pk_bf16_f32 v{p+i}, v{s+2*i}, v{s+2*i+1}"
    groups = [[E(0), E(1), E(2), E(3), C(0)],
              [E(4), E(5), C(1), E(6), E(7)],
              [C(2), E(8), E(9), C(3), E(10)],
              [E(11), C(4), E(12), E(13), C(5)],
              [E(14), E(15), C(6), C(7)]]
    X = os.environ.get("K2X", "")
    if "ord2" in X:
        groups = [[E(0), E(1), E(2), E(3), E(4)],
                  [E(5), C(0), E(6), E(7), C(1)],
                  [E(8), E(9), C(2), E(10), E(11)],
                  [C(3), E(12), E(13), C(4), E(14)],
                  [E(15), C(5), C(6), C(7)]]
    if "ord3" in X:
        groups = [[E(i) for i in range(0, 4)], [E(i) for i in range(4, 8)], [E(i) for i in range(8, 12)], [E(i) for i in range(12, 16)], [C(i) for i in range(8)]]
    for g in range(5):
        out += mf[g]
        out += slots[g]
        out += groups[g]

def rdK(buf, off):
    return [f"ds_read_b128 {vr(KF[buf][0],4)}, v{VK1} offset:{off}", "s_mov_b32 exec_hi, 0",
            f"ds_read_b64 {vr(KF[buf][1],2)}, v{VK2} offset:{off}", "s_mov_b32 exec_hi, -1"]
def rdV(buf, off):
    return [f"ds_read_b128 {vr(VF[buf][0],4)}, v{VV} offset:{off}", f"ds_read_b128 {vr(VF[buf][1],4)}, v{VV} offset:{off+2*VSB}"]
def toffK(i):
    i %= 8
    return (i // 4) * SLOT + (i % 4) * 1024
def toffV(i):
    i %= 8
    return (i // 4) * SLOT + (i % 4) * 2 * VREC

def rowmax(A, s, acc, first):
    if first:
        A(f"v_max3_f32 v{acc}, v{s}, v{s+1}, v{s+2}")
        A(f"v_max_f32 v{acc}, v{acc}, v{s+3}")
        st = 4
    else:
        st = 0
    for i in range(st, 16, 2):
        A(f"v_max3_f32 v{acc}, v{acc}, v{s+i}, v{s+i+1}")

def set_nc(A, acc, q2, tmp):
    A(f"v_mov_b32 v{tmp}, v{acc}")
    A("s_nop 1")
    A(f"v_permlane32_swap_b32 v{acc}, v{tmp}")
    A("s_nop 1")
    A(f"v_max_f32 v{acc}, v{acc}, v{tmp}")
    A(f"v_cvt_pk_bf16_f32 v{tmp}, -v{acc}, -v{acc}")
    A(f"v_lshlrev_b32 v{tmp}, 16, v{tmp}")
    A(f"v_sub_f32 v{tmp}, -v{acc}, v{tmp}")
    A("s_mov_b32 exec_lo, 0")
    A(f"v_cvt_pk_bf16_f32 v{q2}, -v{acc}, v{tmp}")
    A("s_mov_b64 exec, -1")

def dma_ops(slot):
    L = [f"s_add_u32 m0, s46, {slot*SLOT}", "s_nop 0"]
    for j in range(3):
        L.append(f"buffer_load_dwordx4 v{VD[j]}, s[20:23], s47 offen offset:{j*1024} lds" + NTF("k"))
    L.append("s_add_u32 s47, s47, s45")
    return L

def mlp_loads(st):
    p = st % 4; b = MF + (st % 4) * 8
    L = [(f"buffer_load_dwordx4 {vr(b,4)}, v{VP+p}, s[24:27], s48 offen" + NTF("h"), f"h{st}"),
         (f"buffer_load_dwordx4 {vr(b+4,4)}, v{VP+p}, s[28:31], s49 offen", f"w{st}")]
    if p == 0:
        L.append((f"buffer_load_dwordx4 {vr(F5 + ((st//4) % 2) * 4, 4)}, v{VP}, s[28:31], s50 offen", f"f{st}"))
    if p == 3:
        L += ["s_add_u32 s48, s48, 4096", "s_add_u32 s49, s49, 4096", "s_add_u32 s50, s50, 4096"]
        if st == 11 and os.environ.get("MROT"):
            L += ["s_add_u32 s63, s63, 1", "s_cmp_eq_u32 s63, 4", "s_cselect_b32 s60, 49152, 0",
                  "s_sub_u32 s48, s48, s60", "s_sub_u32 s49, s49, s60", "s_sub_u32 s50, s50, s60"]
    return L

def resolve_waits(body):
    isv = lambda x: (x[0] if isinstance(x, tuple) else x).startswith("buffer_")
    n = len(body)
    out = []
    for i, x in enumerate(body):
        if isinstance(x, tuple) and x[0] == "WAIT":
            cnt = 0; j = i
            while True:
                j = (j - 1) % n
                y = body[j]
                if isinstance(y, tuple) and y[0] != "WAIT" and y[1] == x[1]:
                    break
                if not (isinstance(y, tuple) and y[0] == "WAIT") and isv(y):
                    cnt += 1
                assert j != i
            out.append(f"s_waitcnt vmcnt({cnt})")
        else:
            out.append(x[0] if isinstance(x, tuple) else x)
    return out


def build_body():
    mm = []
    for st in range(12):
        b = MF + (st % 4) * 8
        mm.append(([("WAIT", f"w{st}"), m16(MO, b + 4, b, vr(MO, 16))], st if st % 4 else None))
        if st % 4 == 0:
            mm.append(([("WAIT", f"f{st}"), m16(M5, F5 + ((st // 4) % 2) * 4, b, vr(M5, 16))], st))
    body = []
    ph = 0
    for i in range(8):
        b = i & 1; nb = b ^ 1
        k = rdK(nb, toffK(i + 1)); v = rdV(nb, toffV(i + 1))
        last = (i % 4 == 3)
        for half in range(2):
            if ph < 15:
                x5, fin = mm[ph]
                post = mlp_loads((fin + 3) % 12) if fin is not None else []
                if fin == 9:
                    post = ["s_add_u32 s60, s58, 4096", "s_cmp_lt_u32 s39, 3"] + [f"s_cselect_b32 s{d}, s{d}, s{o}" for d, o in
                            ((24, 72), (25, 73), (26, 74), (28, 72), (29, 73), (30, 74), (48, 60), (49, 58))] + ["s_cselect_b32 s50, s50, 0x40000000"] + post
            else:
                x5, post = [], []
            if half == 0:
                pre = [("WAIT", f"d{i//4}"), "s_waitcnt lgkmcnt(0)", "s_barrier"] if last else []
                dm = dma_ops(i // 4) if last else []
                if dm:
                    dm[4] = (dm[4], f"d{(i//4)^1}")
                    dm = ["s_cmp_lt_u32 s39, 3", "s_cselect_b32 s22, s22, 0", "s_cselect_b32 s46, s46, 0x30000"] + dm
                phase(body, SA, PA,
                      [[m16(SB, KF[b][0], QB1, "0")], [m8(SB, KF[b][1], QB2, vr(SB, 16))],
                       [m16(OB_, VF[nb][0], PB, vr(OB_, 16))], [m16(OB_, VF[nb][1], PB + 4, vr(OB_, 16))], x5],
                      [pre + k, [], dm, [], post + ["s_waitcnt lgkmcnt(0)"]])
            else:
                tail = ["s_add_u32 s39, s39, 1", "s_cmp_lt_u32 s39, 4"] if i == 7 else []
                wl = []
                if i in (0, 2, 4):
                    wl = ["s_mov_b32 m0, s71", "s_add_u32 s71, s71, 1024",
                          f"buffer_load_dwordx4 v{L16}, s[72:75], s58 offen lds", "s_add_u32 s58, s58, 1024"]
                phase(body, SB, PB,
                      [[m16(SA, KF[nb][0], QA1, "0")], [m8(SA, KF[nb][1], QA2, vr(SA, 16))],
                       [m16(OA, VF[b][0], PA, vr(OA, 16))], [m16(OA, VF[b][1], PA + 4, vr(OA, 16))], x5],
                      [v, [], wl, [], post + tail])
            ph += 1
    return body

def prologue_vmem(body):
    i0 = next(i for i, x in enumerate(body) if isinstance(x, tuple) and x[1] == "h0" and x[0] != "WAIT")
    out = []
    for x in body[i0:]:
        if isinstance(x, tuple) and x[0] == "WAIT": continue
        t = x[0] if isinstance(x, tuple) else x
        if t.startswith("buffer_") or t.startswith("s_add_u32 m0") or t == "s_nop 0" or t.startswith("s_add_u32 s47") \
           or t.startswith("s_add_u32 s48") or t.startswith("s_add_u32 s49") or t.startswith("s_add_u32 s50"):
            out.append(t)
    return out


QP = 1040
RES = FLAG + 4
OS = 68
RW5 = [48, 52, 56, 60, 64]
ROWN = {12: MF + 4, 13: MF + 12, 14: MF + 20, 15: 248, 16: MF, 17: MF + 8, 18: MF + 16, 19: 252}
WB = 100
XO, X5R, BO, B5R = 28, 32, 36, 40
TIMEOUT = int(os.environ.get("K2TIMEOUT", "400"))
pr = lambda r: f"v[{r}:{r+1}]"

def wof_loads():
    L = []
    for g in range(5):
        L.append(f"buffer_load_dwordx4 {vr(RW5[g], 4)}, v{VP}, s[72:75], s59 offen")
        if g < 4: L.append("s_add_u32 s59, s59, 4096")
    L.append(f"buffer_load_dwordx4 {vr(248, 4)}, v{VP+3}, s[72:75], s62 offen")
    L.append("s_add_u32 s62, s62, 4096")
    L.append(f"buffer_load_dwordx4 {vr(252, 4)}, v{VP+3}, s[72:75], s62 offen")
    L.append(f"buffer_load_dwordx4 {vr(XO,4)}, v13, s[8:11], 0 offen")
    L.append(f"buffer_load_dwordx2 {pr(X5R)}, v14, s[8:11], 0 offen")
    L.append(f"buffer_load_dwordx4 {vr(BO,4)}, v42, s[16:19], 0 offen")
    L.append(f"buffer_load_dwordx2 {pr(B5R)}, v43, s[16:19], 0 offen")
    return L

def gen_k2(A):
    name = "k2_kernel"
    kernel_begin(A, name)
    A("s_cmp_ge_u32 s2, 256")
    A("s_cbranch_scc1 k2_done")
    stamp(A, 0); tl_start(A, 1)
    A("s_load_dwordx2 s[6:7], s[0:1], 80")
    A("s_load_dwordx4 s[76:79], s[0:1], 56")
    A("s_load_dwordx2 s[4:5], s[0:1], 0")
    A("v_lshrrev_b32 v1, 6, v0")
    A("s_nop 0")
    A("v_readfirstlane_b32 s64, v1")
    A("s_and_b32 s32, s2, 7")
    A("s_lshr_b32 s33, s2, 3")
    A("s_lshl_b32 s34, s32, 2")
    A("s_lshr_b32 s53, s33, 3")
    A("s_add_u32 s34, s34, s53")
    A("s_and_b32 s35, s33, 7")
    A("s_lshl_b32 s52, s35, 3")
    A("s_add_u32 s52, s52, s32")
    A("s_and_b32 s65, s64, 3")
    A("s_lshr_b32 s66, s64, 2")
    A("k2_restart:")
    A("v_and_b32 v1, 63, v0")
    A(f"v_lshlrev_b32 v{L16}, 4, v1")
    A("s_mul_i32 s46, s64, 3072")
    A("s_mul_i32 s67, s34, 5")
    A("s_lshr_b32 s67, s67, 1")
    A("s_and_b32 s68, s34, 1")
    A(f"s_mul_i32 s45, s66, {8*VREC - 4096}")
    A("s_add_u32 s45, s45, 4096")
    A("s_mul_i32 s69, s65, 3")
    A(f"s_mul_i32 s70, s34, {64*VREC}")
    A(f"s_add_u32 s70, s70, {V_OFF - K_OFF}")
    for j in range(3):
        A(f"s_add_u32 s54, s69, {j}")
        A("s_lshr_b32 s55, s54, 2")
        A("s_add_u32 s55, s55, s67")
        A("s_lshl_b32 s55, s55, 15")
        A("s_and_b32 s56, s54, 3")
        A("s_lshl_b32 s56, s56, 10")
        A("s_add_u32 s55, s55, s56")
        A("s_lshl_b32 s56, s54, 10")
        A("s_add_u32 s56, s56, s70")
        if j == 2:
            A("s_cmp_eq_u32 s54, 11")
            A("s_cselect_b32 s56, 0x40000000, s56")
        A("s_cmp_eq_u32 s66, 0")
        A("s_cselect_b32 s55, s55, s56")
        if j: A(f"s_sub_u32 s55, s55, {j*1024}")
        A(f"v_add_u32 v{VD[j]}, s55, v{L16}")
    A(f"s_mov_b32 s51, {KVSZ}")
    A("s_mov_b32 s38, 0")
    A("s_lshl_b32 s36, s35, 3")
    A("s_lshl_b32 s37, s65, 1")
    A("s_add_u32 s36, s36, s37")
    A("s_add_u32 s36, s36, s66")
    A("s_lshl_b32 s37, s36, 9")
    A("s_lshl_b32 s54, s67, 15")
    A("s_add_u32 s37, s37, s54")
    A("s_xor_b32 s44, s37, 512")
    A("v_and_b32 v2, 31, v1")
    A("v_lshrrev_b32 v3, 5, v1")
    A("v_add_u32 v7, s68, v3")
    A("v_lshlrev_b32 v15, 4, v2")
    A(f"v_lshl_add_u32 v{VK1}, v7, 12, v15")
    A("v_lshl_add_u32 v40, v7, 15, v15")
    A("s_lshl_b32 s54, s68, 1")
    A("s_sub_u32 s54, 2, s54")
    A("s_lshl_b32 s55, s68, 3")
    A("s_lshl_b32 s56, s54, 12")
    A("s_add_u32 s56, s56, s55")
    A(f"v_add_u32 v{VK2}, s56, v15")
    A("s_lshl_b32 s56, s54, 15")
    A("s_add_u32 s56, s56, s55")
    A("v_add_u32 v41, s56, v15")
    for r in (QA2, QA2 + 1, QB2, QB2 + 1): A(f"v_mov_b32 v{r}, 0")
    for r in (KF[0][1], KF[0][1] + 1, KF[1][1], KF[1][1] + 1): A(f"v_mov_b32 v{r}, 0x3f803f80")
    for p in range(4):
        A(f"s_xor_b32 s54, s65, {p}")
        A("s_lshl_b32 s54, s54, 10")
        A(f"v_add_u32 v{VP+p}, s54, v{L16}")
    A("s_waitcnt lgkmcnt(0)")
    srd(A, 20, 6, KVSZ, K_OFF)
    srd(A, 8, 6, 80 * 32768, Q_OFF)
    A("s_mov_b32 s47, 0")
    for l in dma_ops(0): A(l)
    A(f"buffer_load_dwordx4 {vr(QA1,4)}, v40, s[8:11], s37 offen")
    A(f"buffer_load_dwordx4 {vr(QB1,4)}, v40, s[8:11], s44 offen")
    A("s_mov_b32 exec_hi, 0")
    A(f"buffer_load_dwordx2 {vr(QA2,2)}, v41, s[8:11], s37 offen")
    A(f"buffer_load_dwordx2 {vr(QB2,2)}, v41, s[8:11], s44 offen")
    A("s_mov_b64 exec, -1")
    srd(A, 12, 6, 64 * 32 * 2048, OB_OFF)
    A(f"s_load_dword s3, s[6:7], {hex(SYNC_OFF)}")
    A(f"v_mul_u32_u24 v15, {VSB}, v3")
    A(f"v_lshl_add_u32 v{VV}, v2, 4, v15")
    A(f"s_mul_i32 s57, s66, {VREC}")
    A("s_add_u32 s57, s57, 12288")
    A(f"v_add_u32 v{VV}, s57, v{VV}")
    A("v_cmp_lt_u32 vcc, 20, v2")
    A(f"v_mov_b32 v15, {OOB}")
    A("s_lshl_b32 s57, s66, 9")
    A(f"v_cndmask_b32 v{VV}, v{VV}, v15, vcc")
    A(f"v_mov_b32 v7, {FLAG}")
    A("v_mov_b32 v15, 0")
    A("ds_write_b32 v7, v15")
    A("s_branch k2_main2")
    A("k2_main:")
    A("s_mul_i32 s46, s64, 3072")
    A("s_mov_b32 s22, s51")
    A("s_mov_b32 s47, 0")
    for l in dma_ops(0): A(l)
    A("k2_main2:")
    srd(A, 24, 6, 64 * 96 * 1024, HB_OFF)
    srd(A, 28, 6, 20 * 96 * 1024, W2F_OFF)
    A("s_mul_i32 s54, s66, 48")
    A("s_mul_i32 s48, s52, 96")
    A("s_add_u32 s48, s48, s54")
    A("s_lshl_b32 s48, s48, 10")
    A("s_mul_i32 s49, s53, 5")
    A("s_add_u32 s50, s49, 4")
    A("s_add_u32 s49, s49, s65")
    for r in (49, 50):
        A(f"s_mul_i32 s{r}, s{r}, 96")
        A(f"s_add_u32 s{r}, s{r}, s54")
        A(f"s_lshl_b32 s{r}, s{r}, 10")
    if os.environ.get("MROT"):
        A("s_and_b32 s63, s2, 3")
        A("s_mul_i32 s54, s63, 12288")
        for r in (48, 49, 50): A(f"s_add_u32 s{r}, s{r}, s54")
    srd(A, 72, 6, 20 * 40 * 1024, WOF_OFF)
    A("s_mul_i32 s54, s66, 20")
    A("s_mul_i32 s58, s53, 5")
    A("s_add_u32 s59, s58, 4")
    A("s_add_u32 s58, s58, s65")
    for r in (58, 59):
        A(f"s_mul_i32 s{r}, s{r}, 40")
        A(f"s_add_u32 s{r}, s{r}, s54")
        A(f"s_lshl_b32 s{r}, s{r}, 10")
    A("s_mul_i32 s71, s64, 12288")
    A(f"s_add_u32 s71, s71, {WL}")
    A("v_lshrrev_b32 v2, 4, v0")
    A("v_and_b32 v3, 15, v0")
    A("s_lshl_b32 s54, s52, 5")
    A("s_mul_i32 s55, s53, 320")
    A("v_lshl_add_u32 v42, v3, 4, s55")
    A("v_add_u32 v13, s54, v2")
    A("v_mul_u32_u24 v13, 1280, v13")
    A("v_add_u32 v13, v13, v42")
    A("v_lshrrev_b32 v2, 3, v0")
    A("v_and_b32 v3, 7, v0")
    A("s_add_u32 s55, s55, 256")
    A("v_lshl_add_u32 v43, v3, 3, s55")
    A("v_add_u32 v14, s54, v2")
    A("v_mul_u32_u24 v14, 1280, v14")
    A("v_add_u32 v14, v14, v43")
    A("v_cmp_gt_u32 vcc, 256, v0")
    A("v_mov_b32 v2, 0x7fffffff")
    A("s_nop 0")
    A("v_cndmask_b32 v14, v2, v14, vcc")
    srd(A, 8, 4, XSZ)
    srd(A, 16, 76, 1280)
    body = build_body()
    pv = prologue_vmem(body)
    for r in list(range(OA, OA + 32)) + list(range(PB, PB + 8)) + list(range(VF[1][0], VF[1][0] + 8)) + list(range(MO, MO + 32)):
        A(f"v_mov_b32 v{r}, 0")
    A("s_waitcnt vmcnt(0) lgkmcnt(0)")
    stamp(A, 1)
    A("s_barrier")
    A("s_cmp_lg_u32 s38, 0")
    A("s_cbranch_scc1 k2_havemax")
    for l in rdK(1, 0): A(l)
    for r in (VK1, VK2): A(f"v_add_u32 v{r}, s57, v{r}")
    for l in rdK(0, 0) + rdV(0, 0): A(l)
    for l in pv[:2]: A(l)
    A("s_waitcnt lgkmcnt(4)")
    A(m16(SA, KF[1][0], QA1, "0")); A(m8(SA, KF[1][1], QA2, vr(SA, 16)))
    A(m16(SB, KF[1][0], QB1, "0")); A(m8(SB, KF[1][1], QB2, vr(SB, 16)))
    for l in pv[2:5]: A(l)
    A("s_nop 6")
    rowmax(A, SA, 2, True)
    set_nc(A, 2, QA2, 7)
    A("s_waitcnt lgkmcnt(0)")
    A(m16(SA, KF[0][0], QA1, "0")); A(m8(SA, KF[0][1], QA2, vr(SA, 16)))
    for l in pv[5:11]: A(l)
    rowmax(A, SB, 3, True)
    set_nc(A, 3, QB2, 7)
    for l in pv[11:]: A(l)
    A("s_branch k2_go")
    A("k2_havemax:")
    for l in rdK(0, 0) + rdV(0, 0): A(l)
    for l in pv: A(l)
    A("s_waitcnt lgkmcnt(0)")
    A(m16(SA, KF[0][0], QA1, "0")); A(m8(SA, KF[0][1], QA2, vr(SA, 16)))
    A("s_nop 10")
    A("k2_go:")
    A("s_add_u32 s62, s58, 12288")
    A("s_add_u32 s61, s66, 1")
    if os.environ.get("PRIO"):
        A(f"s_cmp_eq_u32 s66, {os.environ['PRIO']}")
        A("s_cbranch_scc0 k2_npr")
        A("s_setprio 1")
        A("k2_npr:")
    A("s_mov_b32 s39, 0")
    stamp(A, 2)
    A(".p2align 3")
    A("k2_loop:")
    A("s_cmp_eq_u32 s39, s61")
    A("s_cbranch_scc1 k2_early")
    A("k2_early_ret:")
    for l in resolve_waits(body): A(l)
    A("s_cbranch_scc1 k2_loop")
    A("s_nop 1")
    A(m16(OB_, VF[1][0], PB, vr(OB_, 16))); A(m16(OB_, VF[1][1], PB + 4, vr(OB_, 16)))
    stamp(A, 3)
    A("s_mul_i32 s40, s64, 3072")
    A(f"s_add_u32 s40, s40, {XCH}")
    A(f"v_add_u32 v7, s40, v{L16}")
    A("s_xor_b32 s40, s64, 4")
    A("s_mul_i32 s40, s40, 3072")
    A(f"s_add_u32 s40, s40, {XCH}")
    A(f"v_add_u32 v15, s40, v{L16}")
    A("s_lshl_b32 s41, s36, 5")
    A("s_add_u32 s41, s41, s34")
    A("s_lshl_b32 s41, s41, 11")
    A("s_nop 7")
    for q, r in enumerate([OB_, OB_ + 4, OB_ + 8]):
        A(f"ds_write_b128 v7, {vr(r,4)} offset:{q*1024}")
    A(f"s_mov_b32 s40, {f32hex(2.0**64)}")
    A("s_waitcnt lgkmcnt(0)")
    stamp(A, 4)
    A("s_barrier")
    for q in range(3):
        A(f"ds_read_b128 {vr(SA+4*q,4)}, v15 offset:{q*1024}")
    A("v_mov_b32 v44, 0"); A("v_mov_b32 v45, 0"); A("v_mov_b32 v2, 0"); A("v_mov_b32 v3, 0")
    A("s_waitcnt lgkmcnt(0)")
    for e in (8, 10, 0, 2, 4, 6):
        A(f"v_pk_add_f32 {pr(OA+e)}, {pr(OA+e)}, {pr(SA+e)}")
        if e == 10:
            A(f"v_mov_b32 v7, v{OA+8}")
            A(f"v_mov_b32 v46, v{OA+8}")
    A(f"v_permlane32_swap_b32 v7, v46")
    for e in range(0, 12, 2):
        A(f"v_pk_fma_f32 v[2:3], {pr(OA+e)}, v[44:45], v[2:3]")
    A("v_cmp_nlt_f32 s[60:61], v46, s40")
    A("v_cmp_u_f32 s[62:63], v2, v3")
    A("v_rcp_f32 v46, v46")
    A("s_nop 2")
    A("s_or_b64 s[60:61], s[60:61], s[62:63]")
    A("s_cbranch_scc0 k2_noflag")
    A(f"v_mov_b32 v7, {FLAG}")
    A("v_mov_b32 v15, 1")
    A("ds_write_b32 v7, v15")
    A("s_cmp_eq_u32 s38, 0")
    A("s_cbranch_scc1 k2_nopub")
    A("k2_noflag:")
    for e in range(0, 12, 2):
        A(f"v_pk_mul_f32 {pr(OA+e)}, {pr(OA+e)}, v[46:47] op_sel_hi:[1,0]")
    for i, d in enumerate((168, 169, 170, 174, 172, 173)):
        A(f"v_cvt_pk_bf16_f32 v{d}, v{OA+2*i}, v{OA+2*i+1}")
    A("v_mov_b32 v171, s3"); A("v_mov_b32 v175, s3")
    A(f"buffer_store_dwordx4 {vr(168,4)}, v{L16}, s[12:15], s41 offen sc1")
    A(f"buffer_store_dwordx4 {vr(172,4)}, v{L16}, s[12:15], s41 offen offset:1024 sc1")
    A("k2_nopub:")
    A(f"v_mov_b32 v7, {RES}")
    A("v_mov_b32 v15, 0")
    A("ds_write_b32 v7, v15")
    A("s_waitcnt lgkmcnt(0)")
    stamp(A, 5)
    A("s_barrier")
    A(f"v_mov_b32 v7, {FLAG}")
    A("ds_read_b32 v15, v7")
    A("s_lshl_b32 s40, s52, 5")
    A("s_lshl_b32 s41, s64, 2")
    A("s_add_u32 s40, s40, s41")
    A("s_lshl_b32 s40, s40, 11")
    A(f"v_add_u32 v3, 4096, v{L16}")
    A("v_and_b32 v2, 3, v1")
    A("v_lshlrev_b32 v2, 11, v2")
    A("v_add_u32 v2, 2044, v2")
    A("s_waitcnt lgkmcnt(0)")
    A("v_readfirstlane_b32 s41, v15")
    A("s_nop 3")
    A("s_cmp_eq_u32 s41, 0")
    A("s_cbranch_scc1 k2_pub")
    A("s_cmp_eq_u32 s38, 0")
    A("s_cbranch_scc1 k2_fallback")
    A("k2_pub:")
    A("s_mov_b32 s41, 0")
    A("k2_poll:")
    if not os.environ.get("PREPOLL"):
        A("s_add_u32 s41, s41, 1")
        A("s_branch k2_full")
    A("s_mov_b64 exec, 15")
    A("buffer_load_dword v15, v2, s[12:15], s40 offen sc1")
    A("s_waitcnt vmcnt(0)")
    A("v_cmp_ne_u32 vcc, s3, v15")
    A("s_mov_b64 exec, -1")
    A("s_add_u32 s41, s41, 1")
    A("s_nop 2")
    A("s_cmp_eq_u32 vcc_lo, 0")
    A("s_cbranch_scc1 k2_full")
    A(f"s_cmp_lt_u32 s41, {TIMEOUT}")
    A("s_cbranch_scc1 k2_poll")
    A("s_branch k2_miss")
    A("k2_full:")
    for i in range(8):
        va = L16 if i < 4 else 3
        A(f"buffer_load_dwordx4 {vr(OS+4*i,4)}, v{va}, s[12:15], s40 offen offset:{(i%4)*1024} sc1")
    A("s_waitcnt vmcnt(0)")
    A("s_mov_b32 s42, 0")
    for hh in range(4):
        A(f"v_xor_b32 v15, s3, v{OS+8*hh+3}")
        A(f"v_xor_b32 v7, s3, v{OS+8*hh+7}")
        A("v_or_b32 v15, v15, v7")
        A("v_cmp_ne_u32 vcc, 0, v15")
        A("s_nop 3")
        A("s_cmp_lg_u64 vcc, 0")
        A(f"s_cselect_b32 s43, {1 << hh}, 0")
        A("s_or_b32 s42, s42, s43")
    A("s_cmp_eq_u32 s42, 0")
    A("s_cbranch_scc1 k2_oproj")
    A("s_mov_b32 vcc_lo, s42")
    A(f"s_cmp_lt_u32 s41, {TIMEOUT}")
    A("s_cbranch_scc1 k2_poll")
    A("k2_miss:")
    A("s_ff1_i32_b32 s42, vcc_lo")
    A("s_lshl_b32 s43, s64, 2")
    A("s_add_u32 s42, s42, s43")
    A("s_add_u32 s42, s42, 1")
    A(f"v_mov_b32 v7, {RES}")
    A("v_mov_b32 v15, s42")
    A("ds_write_b32 v7, v15")
    A("k2_oproj:")
    stamp(A, 6)
    A("s_lshl_b32 s41, s64, 12")
    A(f"v_add_u32 v2, s41, v{L16}")
    A("s_lshl_b32 s41, s64, 10")
    A("s_add_u32 s41, s41, 32768")
    A(f"v_add_u32 v3, s41, v{L16}")
    for hh in range(4):
        A(f"v_mov_b32 v{OS+8*hh+3}, v{OS+8*hh+6}")
        A(f"ds_write_b128 v2, {vr(OS+8*hh,4)} offset:{hh*1024}")
    A("s_mov_b32 exec_hi, 0")
    for hh in range(4):
        A(f"ds_write_b64 v3, {pr(OS+8*hh+4)} offset:{(hh>>1)*512 + (hh&1)*8}")
    A("s_mov_b64 exec, -1")
    A("s_mul_i32 s41, s66, 20480")
    A("s_mul_i32 s42, s64, 12288")
    A(f"s_add_u32 s42, s42, {WL}")
    for p in range(4):
        A(f"v_add_u32 v{20+p}, s42, v{VP+p}")
        A(f"v_add_u32 v{24+p}, s41, v{VP+p}")
    def wrd(s): return f"ds_read_b128 {vr(WB + (s % 8) * 4, 4)}, v{20 + s % 4} offset:{(s // 4) * 4096}"
    for s_ in range(6): A(wrd(s_))
    A("s_waitcnt lgkmcnt(0)")
    A("s_barrier")
    A(f"v_mov_b32 v7, {RES}")
    A("ds_read_b32 v15, v7")
    def ord_(s): return f"ds_read_b128 {vr(OS + (s % 8) * 4, 4)}, v{24 + s % 4} offset:{(s // 4) * 4096}"
    ops = []
    def issue(l, tag): A(l); ops.append(tag)
    for s_ in range(6): issue(ord_(s_), f"o{s_}")
    A("s_waitcnt lgkmcnt(6)")
    A("v_readfirstlane_b32 s43, v15")
    A("s_nop 3")
    A("s_cmp_eq_u32 s43, 0")
    A("s_cbranch_scc1 k2_mm")
    A("s_sub_u32 s34, s43, 1")
    A("s_waitcnt vmcnt(0) lgkmcnt(0)")
    A("s_barrier")
    A("s_branch k2_restart")
    A("k2_mm:")
    for s_ in range(20):
        need = [f"o{s_}"] + ([f"w{s_}"] if 6 <= s_ < 12 else [])
        last = max(ops.index(t) for t in need)
        A(f"s_waitcnt lgkmcnt({len(ops) - 1 - last})")
        wreg = WB + (s_ % 8) * 4 if s_ < 12 else ROWN[s_]
        A(m16(MO, wreg, OS + (s_ % 8) * 4, vr(MO, 16)))
        if s_ % 4 == 0:
            A(m16(M5, RW5[s_ // 4], OS + (s_ % 8) * 4, vr(M5, 16)))
        if s_ + 6 < 20: issue(ord_(s_ + 6), f"o{s_+6}")
        if s_ + 6 < 12: issue(wrd(s_ + 6), f"w{s_+6}")
    A(f"v_add_u32 v2, s42, v{L16}")
    A("v_lshrrev_b32 v7, 4, v0")
    A("v_bfe_u32 v15, v0, 2, 2")
    A("v_mul_u32_u24 v15, 12288, v15")
    A("v_lshl_add_u32 v7, v7, 4, v15")
    A("v_and_b32 v15, 3, v0")
    A(f"v_mul_u32_u24 v15, {QP}, v15")
    A("v_add_u32 v7, v7, v15")
    A(f"v_add_u32 v7, {WL}, v7")
    for q in range(4):
        A(f"ds_write_b128 v2, {vr(M5+4*q,4)} offset:{(4+q)*QP}")
    A("v_lshrrev_b32 v15, 3, v0")
    A("v_and_b32 v44, 1, v0")
    A("v_lshl_add_u32 v15, v44, 5, v15")
    A("v_bfe_u32 v44, v0, 1, 2")
    A(f"v_mul_u32_u24 v44, {QP}, v44")
    A("v_lshl_add_u32 v15, v15, 4, v44")
    A(f"v_add_u32 v15, {WL + 4*QP}, v15")
    A(f"v_add_u32 v44, {4*12288}, v15")
    for q in range(4):
        A(f"ds_write_b128 v2, {vr(MO+4*q,4)} offset:{q*QP}")
    srd(A, 16, 78, XSZ)
    A("s_waitcnt lgkmcnt(0)")
    A("s_barrier")
    R = 68
    for k in range(2):
        for h in range(2):
            A(f"ds_read_b128 {vr(R + (k*2+h)*4, 4)}, v7 offset:{k*4*12288 + h*512}")
    A("s_cmp_ge_u32 s64, 4")
    A("s_cbranch_scc1 k2_no5")
    for w in range(8):
        A(f"ds_read_b128 {vr(R + 16 + 4*w, 4)}, v{15 if w < 4 else 44} offset:{(w%4)*12288}")
    A("k2_no5:")
    T = 120
    for e in range(4):
        A(f"v_lshlrev_b32 v{T+2*e}, 16, v{XO+e}")
        A(f"v_and_b32 v{T+2*e+1}, 0xffff0000, v{XO+e}")
        A(f"v_lshlrev_b32 v{T+8+2*e}, 16, v{BO+e}")
        A(f"v_and_b32 v{T+8+2*e+1}, 0xffff0000, v{BO+e}")
    for e in range(0, 8, 2):
        A(f"v_pk_add_f32 {pr(T+e)}, {pr(T+e)}, {pr(T+8+e)}")
    for e in range(2):
        A(f"v_lshlrev_b32 v{T+16+2*e}, 16, v{X5R+e}")
        A(f"v_and_b32 v{T+16+2*e+1}, 0xffff0000, v{X5R+e}")
        A(f"v_lshlrev_b32 v{T+20+2*e}, 16, v{B5R+e}")
        A(f"v_and_b32 v{T+20+2*e+1}, 0xffff0000, v{B5R+e}")
    for e in range(0, 4, 2):
        A(f"v_pk_add_f32 {pr(T+16+e)}, {pr(T+16+e)}, {pr(T+20+e)}")
    A("s_waitcnt lgkmcnt(0)")
    for e in range(0, 8, 2):
        A(f"v_pk_add_f32 {pr(R+e)}, {pr(R+e)}, {pr(R+8+e)}")
        A(f"v_pk_add_f32 {pr(R+e)}, {pr(R+e)}, {pr(T+e)}")
    for e in range(4):
        A(f"v_cvt_pk_bf16_f32 v{R+8+e}, v{R+2*e}, v{R+2*e+1}")
    A(f"buffer_store_dwordx4 {vr(R+8,4)}, v13, s[16:19], 0 offen" + NTF("o"))
    A("s_cmp_ge_u32 s64, 4")
    A("s_cbranch_scc1 k2_fin")
    for w in range(8):
        for e in range(0, 4, 2):
            A(f"v_pk_add_f32 {pr(T+16+e)}, {pr(T+16+e)}, {pr(R+16+4*w+e)}")
    for e in range(2):
        A(f"v_cvt_pk_bf16_f32 v{T+e}, v{T+16+2*e}, v{T+16+2*e+1}")
    A(f"buffer_store_dwordx2 {pr(T)}, v14, s[16:19], 0 offen" + NTF("o"))
    A("k2_fin:")
    stamp_flush(A, 7, 6, 1, 64); tl_end(A, 1)
    A("k2_done:")
    A("s_endpgm")
    A("k2_early:")
    for l in wof_loads(): A(l)
    A("s_branch k2_early_ret")
    A("k2_fallback:")
    A("s_mul_i32 s46, s64, 3072")
    A("s_mov_b32 s38, 1")
    A("s_waitcnt vmcnt(0)")
    for r in (KF[0][1], KF[0][1] + 1, KF[1][1], KF[1][1] + 1): A(f"v_mov_b32 v{r}, 0x3f803f80")
    A(f"v_mov_b32 v2, {f32hex(-3.0e38)}")
    A(f"v_mov_b32 v3, {f32hex(-3.0e38)}")
    A("s_mov_b32 exec_lo, 0")
    A(f"v_mov_b32 v{QA2}, 0")
    A(f"v_mov_b32 v{QB2}, 0")
    A("s_mov_b64 exec, -1")
    for r in (VK1, VK2): A(f"v_subrev_u32 v{r}, s57, v{r}")
    A("s_mov_b32 s22, s51")
    A("s_mov_b32 s47, 0")
    A("s_mov_b32 s39, 0")
    A("k2_maxloop:")
    for l in dma_ops(0): A(l)
    A("s_waitcnt vmcnt(0)")
    A("s_barrier")
    A("s_mov_b32 s40, 0")
    A("k2_maxin:")
    for l in rdK(0, 0): A(l)
    A("s_waitcnt lgkmcnt(0)")
    A(m16(SA, KF[0][0], QA1, "0")); A(m8(SA, KF[0][1], QA2, vr(SA, 16)))
    A(m16(SB, KF[0][0], QB1, "0")); A(m8(SB, KF[0][1], QB2, vr(SB, 16)))
    for r in (VK1, VK2): A(f"v_add_u32 v{r}, 512, v{r}")
    A("s_nop 15")
    rowmax(A, SA, 2, False); rowmax(A, SB, 3, False)
    A("s_add_u32 s40, s40, 1")
    A("s_cmp_lt_u32 s40, 8")
    A("s_cbranch_scc1 k2_maxin")
    for r in (VK1, VK2): A(f"v_subrev_u32 v{r}, 4096, v{r}")
    A("s_barrier")
    A("s_add_u32 s39, s39, 1")
    A("s_cmp_lt_u32 s39, 8")
    A("s_cbranch_scc1 k2_maxloop")
    for r in (VK1, VK2): A(f"v_add_u32 v{r}, s57, v{r}")
    set_nc(A, 2, QA2, 7); set_nc(A, 3, QB2, 7)
    A("s_branch k2_main")
    return kernel_desc(name, 256), f"; @launch kernel=k2_kernel grid=(256,1,1) block=(512,1,1) lds={LDS_BYTES}"
```
